```python
import torch

def _softmax(x, axis=-1):
    return torch.softmax(x, dim=axis)
def _gelu(x):
    return torch.nn.functional.gelu(x, approximate="tanh")
def _silu(x):
    return torch.nn.functional.silu(x)
def _sigmoid(x):
    return torch.sigmoid(x)
def _layernorm(x, axis=-1, eps=1e-5):
    m = x.mean(dim=axis, keepdim=True)
    v = x.var(dim=axis, keepdim=True, unbiased=False)
    return (x - m) / torch.sqrt(v + eps)
def _scatter_add(tgt, idx, src, axis=0):
    return tgt.clone().index_add_(axis, idx, src)
def _segment_sum(src, seg, n):
    out = torch.zeros((n,) + src.shape[1:], dtype=src.dtype)
    return out.index_add_(0, seg, src)
def _pad(x, pw):
    flat = tuple(v for pair in reversed(pw) for v in pair)
    return torch.nn.functional.pad(x, flat)

kernel_name = 'concat_heads__mha_block__ssm_conv_h3__prompt'

def setup_inputs():

    _w = (lambda a: (lambda t: t.to(torch.bfloat16) if t.is_floating_point() else t)(torch.as_tensor(a)))
    def _A_setup():
        B, S, D, H = 1, 2048, 512, 32
        return {
            "x": _w((lambda *s: torch.randn(*s, dtype=torch.bfloat16) * 0.2)(B, S, D)),
            "wqkv": _w((lambda *s: torch.randn(*s, dtype=torch.bfloat16) * 0.2)(D, 3 * D)),
            "wo": _w((lambda *s: torch.randn(*s, dtype=torch.bfloat16) * 0.05)(D, D)),
        }
    _A_in = _A_setup()

    def _B_setup():
        B, S, D = 1, 2048, 512
        ks = 4
        return {
            "q": _w((lambda *s: torch.randn(*s, dtype=torch.bfloat16) * 0.05)(B, S, D)),
            "k": _w((lambda *s: torch.randn(*s, dtype=torch.bfloat16) * 0.4)(B, S, D)),
            "v": _w((lambda *s: torch.randn(*s, dtype=torch.bfloat16) * 0.4)(B, S, D)),
            "shift_k": _w((lambda *s: torch.randn(*s, dtype=torch.bfloat16) * 0.4)(D, ks) * 0.5),
            "ssm_k": _w((lambda *s: torch.randn(*s, dtype=torch.bfloat16) * 0.8)(D, S) * (1.0 / S ** 0.5)),
            "ssm_D": _w((lambda *s: torch.randn(*s, dtype=torch.bfloat16) * 0.4)(D)),
        }
    _B_in = _B_setup()

    return {
        "A_x": _A_in["x"],
        "A_wqkv": _A_in["wqkv"],
        "A_wo": _A_in["wo"],
        "B_q": _B_in["q"],
        "B_k": _B_in["k"],
        "B_v": _B_in["v"],
        "B_shift_k": _B_in["shift_k"],
        "B_ssm_k": _B_in["ssm_k"],
        "B_ssm_D": _B_in["ssm_D"],
    }

def reference(A_x, A_wqkv, A_wo, B_q, B_k, B_v, B_shift_k, B_ssm_k, B_ssm_D):
    def _A_ref(x, wqkv, wo):
        B, S, D = x.shape
        H = 32
        Dh = D // H
        qkv = (lambda x, *d: x.permute(*d))((x @ wqkv).reshape(B, S, 3, H, Dh), 2, 0, 3, 1, 4)
        q, k, v = qkv[0], qkv[1], qkv[2]
        scores = torch.einsum("bhqd,bhkd->bhqk", q, k) * (Dh ** -0.5)
        p = _softmax(scores, axis=-1)
        o = torch.einsum("bhqk,bhkd->bhqd", p, v)
        return (lambda x, *d: x.permute(*d))(o, 0, 2, 1, 3).reshape(B, S, D) @ wo

    def _B_ref(q, k, v, shift_k, ssm_k, ssm_D):
        B, S, D = q.shape
        ks = shift_k.shape[-1]
        k_pad = _pad(k, ((0, 0), (ks - 1, 0), (0, 0)))
        k_shift = torch.zeros_like(k)
        for t in range(ks):
            k_shift = k_shift + k_pad[:, t:t + S, :] * shift_k[:, ks - 1 - t][None, None, :]
        kv = k_shift * v
        L = 2 * S
        kv_pad = _pad(kv, ((0, 0), (0, S), (0, 0)))
        kf_pad = _pad(ssm_k, ((0, 0), (0, S)))
        kv_f = (lambda x, axes=(-2,-1): torch.fft.rfft2(x.float(), dim=axes))(kv_pad[:, None, :, :], axes=(1, 2))
        kf_f = (lambda x, axes=(-2,-1): torch.fft.rfft2(x.float(), dim=axes))(kf_pad[:, None, :], axes=(1, 2))
        kf_f = (lambda x, *d: x.permute(*d))(kf_f, 1, 2, 0)
        y_f = kv_f * kf_f[None, :, :, :]
        y = (lambda x, s, axes=(-2,-1): torch.fft.irfft2(x, s=s, dim=axes).to(torch.bfloat16))(y_f, (1, L), axes=(1, 2))[:, 0, :S, :]
        y = y + kv * ssm_D[None, None, :]
        return q * y

    a = _A_ref(A_x, A_wqkv, A_wo)
    b = _B_ref(B_q, B_k, B_v, B_shift_k, B_ssm_k, B_ssm_D)
    return torch.concatenate([a, b], axis=-1)
```

```python
import re
class Asm:
    def __init__(self):
        self.lines = []
    def __call__(self, s):
        for l in s.split("\n"):
            l = l.strip()
            if l: self.lines.append(l)
    def label(self, n): self.lines.append(n + ":")
    def text(self):
        out = []
        for l in self.lines:
            out.append(l if (l.endswith(":") or l.startswith(".")) else "    " + l)
        return "\n".join(out) + "\n"

def vr(a, n=1): return f"v{a}" if n == 1 else f"v[{a}:{a+n-1}]"
def sr(a, n=1): return f"s{a}" if n == 1 else f"s[{a}:{a+n-1}]"

_reg = re.compile(r"^-?\|?([vsa])(\d+)\|?$|^-?([vsa])\[(\d+):(\d+)\]$")
def regs(tok):
    tok = tok.strip()
    m = _reg.match(tok)
    if not m:
        if tok in ("vcc", "exec", "m0"): return {tok}
        return set()
    if m.group(1): return {(m.group(1), int(m.group(2)))}
    return {(m.group(3), i) for i in range(int(m.group(4)), int(m.group(5)) + 1)}
TRANS = ("v_exp_f32", "v_log_f32", "v_rcp_f32", "v_rsq_f32", "v_sqrt_f32")
def parse(l):
    l = l.split(";")[0].strip()
    if not l or l.endswith(":") or l.startswith("."): return None
    p = l.split(None, 1)
    op = p[0]
    ops = []
    if len(p) > 1:
        ops = [t.strip() for t in p[1].split(",")]
        last = ops[-1].split()
        ops[-1] = last[0] if last else ""
        mods = last[1:]
    else: mods = []
    d = dict(op=op, ops=ops, mods=mods, w=set(), r=set(), kind="other", text=l)
    R = [regs(o) for o in ops]
    if op.startswith("v_mfma") or op.startswith("v_smfmac"):
        d["kind"] = "mfma"; d["passes"] = 8 if "32x32" in op else 4
        d["w"] = R[0]; d["ab"] = R[1] | R[2]
        if op.startswith("v_smfmac"): d["c"] = R[0]; d["ab"] |= R[3]
        else: d["c"] = R[3]
        d["r"] = d["ab"] | d["c"]
    elif op.startswith("v_"):
        d["kind"] = "valu"
        if op.startswith("v_cmp"):
            d["w"] = R[0]; d["r"] = set().union(*R[1:])
        elif op.startswith("v_permlane"):
            d["w"] = R[0] | R[1]; d["r"] = R[0] | R[1]
        else:
            d["w"] = R[0]; d["r"] = set().union(*R[1:]) if len(R) > 1 else set()
            if op.startswith("v_fmac") or op.startswith("v_pk_fmac"): d["r"] |= R[0]
    elif op.startswith("buffer_") or op.startswith("global_"):
        d["kind"] = "vmem"
        if "store" in op:
            d["r"] = set().union(*R); d["data"] = R[0] if op.startswith("buffer_") else R[1]
        elif "lds" in mods: d["r"] = set().union(*R) | {"m0"}
        else: d["w"] = R[0]; d["r"] = set().union(*R[1:])
    elif op.startswith("ds_"):
        d["kind"] = "ds"
        if "read" in op or "rtn" in op: d["w"] = R[0]; d["r"] = set().union(*R[1:])
        else: d["r"] = set().union(*R)
    elif op.startswith("s_"):
        d["kind"] = "salu"
        if op.startswith("s_cmp") or op.startswith("s_cbranch") or op in ("s_waitcnt", "s_nop", "s_barrier", "s_branch", "s_setprio", "s_sleep", "s_endpgm"):
            d["r"] = set().union(*R) if R else set()
        else:
            d["w"] = R[0] if R else set(); d["r"] = set().union(*R[1:]) if len(R) > 1 else set()
    return d
def need(p, c):
    n = 0
    if p["kind"] == "mfma":
        P = p["passes"]
        if c["kind"] == "mfma":
            if p["w"] & c["ab"]: n = max(n, 8 if P == 4 else 12)
            if p["w"] & c["c"] and not (p["w"] == c["c"] and P == c["passes"]): n = max(n, 6 if P == 4 else 10)
        else:
            if p["w"] & (c["r"] | c["w"]): n = max(n, 8 if P == 4 else 12)
            if c["kind"] == "valu" and p["c"] & c["w"]: n = max(n, 3 if P == 4 else 7)
    if p["kind"] == "valu":
        vw = {x for x in p["w"] if x[0] in "va" and x != "vcc"}
        sw = p["w"] - vw
        if c["kind"] == "mfma" and vw & c["r"]: n = max(n, 2)
        if c["op"].startswith("v_permlane") and vw & c["r"]: n = max(n, 2)
        if c["op"].startswith("v_read") and vw & c["r"]: n = max(n, 1)
        if "dpp" in c["op"] and vw & c["r"]: n = max(n, 2)
        if p["op"] in TRANS and c["kind"] == "valu" and c["op"] not in TRANS and vw & c["r"]: n = max(n, 1)
        if c["kind"] == "vmem" and sw & c["r"]: n = max(n, 5)
        if c["kind"] == "valu" and sw & c["r"]: n = max(n, 2)
    if p["kind"] == "vmem" and "data" in p and len(p["data"]) >= 3 and p["data"] & c["w"]: n = max(n, 2)
    if p["kind"] == "salu" and "m0" in p["w"] and "m0" in c["r"] and c["kind"] == "vmem": n = max(n, 1)
    return n
def check(lines):
    ins = [x for x in map(parse, lines) if x]
    bad = 0
    for i, c in enumerate(ins):
        dist = 0
        for j in range(i - 1, max(-1, i - 24), -1):
            p = ins[j]
            if p["op"] in ("s_branch", "s_endpgm"): break
            n = need(p, c)
            if n > dist:
                print(f"HAZARD need {n} have {dist}: [{p['text']}] -> [{c['text']}]"); bad += 1
            dist += (int(p["ops"][0], 0) + 1) if p["op"] == "s_nop" else 1
            if dist >= 20: break
    return bad
```

```python
import sys, math, struct
from asmlib import Asm, vr, sr, check

NAME = "concat_heads__mha_block__ssm_conv_h3__prompt"
OPT = dict(diag=0)
for arg in sys.argv[2:]:
    k, v = arg.split("="); OPT[k] = int(v, 0)
DIAG = OPT["diag"]

KV, UT, YT, OF, MB = 0, 0x400000, 0x600000, 0x800000, 0xA00000
MB_U, MB_KV, MB_Y, MB_O = MB, MB + 0x8000, MB + 0x10000, MB + 0x18000
EP = MB + 0x20000
STAMP = 0xA30000
WS_SIZE = 0xA50000
K1 = 1024
SLOT = [0, 48 * K1, 96 * K1]
EX = 144 * K1
P0S = SLOT[2]
HB = SLOT[2]; HSTR = 4512
UB = HB + 8 * HSTR; USTR = 4224
CNT = UB + 2 * USTR
QF = 0; RED = 8 * K1
YB = 128 * K1; MG = 140 * K1
LDS_BYTES = 160 * K1
assert CNT + 16 <= MG
X, W, WO, BQ, BK, BV, SH, HK, DD, OUT, WS = 4, 8, 12, 16, 20, 24, 28, 32, 36, 40, 44
sW, sHQ, sTB, sDB, sTBB, sROT, sTAG, sMASK = 48, 49, 50, 51, 52, 53, 54, 55
sA, sT0, sT1, sT2, sT3, sSX, sSW, sM0 = 56, 57, 58, 59, 60, 61, 62, 63
sOFF, sPASS, sREDO, sSPIN, sAND = 64, 65, 66, 67, 68
sHALF = 70
sCT, sTT, sHH, sKH = 3, 69, 72, 73
sST = 74
SPINMAX = 0x20000
f2h = lambda x: hex(struct.unpack("<I", struct.pack("<f", x))[0])

a = Asm()
nstamp = [0]
def stamp(name):
    if DIAG:
        i = nstamp[0]; nstamp[0] += 1
        assert sST + 2 * i + 1 <= 101, "too many stamps"
        a(f"s_memrealtime {sr(sST + 2 * i, 2)}")
def set_stamp(i): nstamp[0] = i
lab = [0]
def newlab(p):
    lab[0] += 1; return f"L_{p}{lab[0]}"

def bload(dst, n, vaddr, srd, soff, off=0, flags=""):
    op = {1: "dword", 2: "dwordx2", 4: "dwordx4"}[n]
    a(f"buffer_load_{op} {vr(dst, n)}, {vr(vaddr)}, {sr(srd, 4)}, {soff} offen" + (f" offset:{off}" if off else "") + (" " + flags if flags else ""))
def bstore(src, n, vaddr, srd, soff, off=0, flags=""):
    op = {1: "dword", 2: "dwordx2", 4: "dwordx4"}[n]
    a(f"buffer_store_{op} {vr(src, n)}, {vr(vaddr)}, {sr(srd, 4)}, {soff} offen" + (f" offset:{off}" if off else "") + (" " + flags if flags else ""))
def dma(vaddr, srd, soff, flags=""):
    a(f"buffer_load_dwordx4 {vr(vaddr)}, {sr(srd, 4)}, {soff} offen" + (" " + flags if flags else "") + " lds")
def dsr(op, dst, n, vaddr, off=0):
    assert 0 <= off < 65536
    a(f"{op} {vr(dst, n)}, {vr(vaddr)}" + (f" offset:{off}" if off else ""))
def dsw(op, vaddr, src, n, off=0):
    assert 0 <= off < 65536
    a(f"{op} {vr(vaddr)}, {vr(src, n)}" + (f" offset:{off}" if off else ""))
def mfma32(d, A, B, c): a(f"v_mfma_f32_32x32x16_bf16 {vr(d,16)}, {vr(A,4)}, {vr(B,4)}, " + ("0" if c is None else vr(c, 16)))
def mfma16(d, A, B, c): a(f"v_mfma_f32_16x16x32_bf16 {vr(d,4)}, {vr(A,4)}, {vr(B,4)}, " + ("0" if c is None else vr(c, 4)))
def cvt(d, x, y): a(f"v_cvt_pk_bf16_f32 {vr(d)}, {vr(x)}, {vr(y)}")
def lo(d, s): a(f"v_lshlrev_b32 {vr(d)}, 16, {vr(s)}")
def hi(d, s): a(f"v_and_b32 {vr(d)}, {sr(sMASK)}, {vr(s)}")

def poll(vaddr, vtmp, soff, first_issued=False):
    L, Lo = newlab("poll"), newlab("pollok")
    a(f"s_mov_b32 {sr(sSPIN)}, 0")
    if first_issued:
        a(f"v_cmp_ne_u32 vcc, {sr(sTAG)}, {vr(vtmp)}")
        a(f"s_cbranch_vccz {Lo}")
    a.label(L)
    bload(vtmp, 1, vaddr, WS, soff, flags="sc1")
    a(f"s_add_u32 {sr(sSPIN)}, {sr(sSPIN)}, 1")
    a(f"s_cmp_ge_u32 {sr(sSPIN)}, {SPINMAX}")
    a("s_waitcnt vmcnt(0)")
    a(f"s_cbranch_scc1 {Lo}")
    a(f"v_cmp_ne_u32 vcc, {sr(sTAG)}, {vr(vtmp)}")
    a(f"s_cbranch_vccz {Lo}")
    a("s_sleep 2")
    a(f"s_branch {L}")
    a.label(Lo)

def push(nl, vt0, vt1, soff):
    a(f"v_lshlrev_b32 {vr(vt0)}, 7, v1")
    a(f"v_mov_b32 {vr(vt1)}, {sr(sTAG)}")
    a(f"s_mov_b64 exec, {hex((1 << nl) - 1)}")
    bstore(vt1, 1, vt0, WS, soff, flags="sc1")
    a("s_mov_b64 exec, -1")

def arrive(cntoff, last, vt0, vt1, pushfn):
    L = newlab("arr")
    a(f"v_mov_b32 {vr(vt0)}, {CNT + cntoff}")
    a(f"v_mov_b32 {vr(vt1)}, 1")
    a("s_mov_b64 exec, 1")
    a(f"ds_add_rtn_u32 {vr(vt1)}, {vr(vt0)}, {vr(vt1)}")
    a("s_waitcnt lgkmcnt(0)")
    a(f"v_cmp_ne_u32 vcc, {last}, {vr(vt1)}")
    a("s_mov_b64 exec, -1")
    a(f"s_cbranch_vccnz {L}")
    pushfn()
    a.label(L)

a.label(f"{NAME}_kernel")
a("s_cmp_ge_u32 s2, 0x100")
a("s_cbranch_scc1 L_end")
a("s_load_dwordx16 s[64:79], s[0:1], 0")
a("s_load_dwordx8 s[80:87], s[0:1], 64")
if DIAG: a("s_memrealtime s[100:101]")
a("s_getpc_b64 s[88:89]")
a.label("L_pc")
a(f"s_lshr_b32 {sr(sTBB)}, s2, 3")
a(f"s_and_b32 {sr(sDB)}, s2, 7")
a("v_lshrrev_b32 v6, 6, v0")
a(f"v_lshl_add_u32 v7, {sr(sTBB)}, 3, v6")
a("v_lshlrev_b32 v7, 7, v7")
a("v_min_u32 v7, L_end-L_pc, v7")
a("global_load_dword v7, v7, s[88:89]")
a(f"v_readfirstlane_b32 {sr(sW)}, v6")
a("v_and_b32 v1, 63, v0")
a("v_and_b32 v5, 31, v0")
a("v_lshrrev_b32 v2, 5, v0")
a("v_lshlrev_b32 v4, 4, v5")
a("v_lshlrev_b32 v5, 2, v5")
a("v_lshl_add_u32 v2, v2, 12, v5")
a(f"s_lshl_b32 {sr(sA)}, {sr(sTBB)}, 16")
a(f"s_lshl_b32 {sr(sT0)}, {sr(sDB)}, 7")
a(f"s_lshl_b32 {sr(sT1)}, {sr(sDB)}, 9")
a(f"s_add_u32 {sr(sA)}, {sr(sA)}, {sr(sT0)}")
a(f"s_sub_u32 {sr(sT2)}, {sr(sA)}, 0xc00")
a(f"v_add_u32 v3, {sr(sT2)}, v2")
a(f"s_mov_b32 {sr(BK+2)}, 0x200000")
a(f"s_mov_b32 {sr(BK+3)}, 0x20000")
for r in (BV, X, HK, BQ): a(f"s_mov_b64 {sr(r+2,2)}, {sr(BK+2,2)}")
for r, n in ((SH, 4096), (DD, 1024)):
    a(f"s_movk_i32 {sr(r+2)}, {n}"); a(f"s_mov_b32 {sr(r+3)}, {sr(BK+3)}")
a("s_waitcnt lgkmcnt(0)")
a(f"s_mov_b64 {sr(BK,2)}, s[72:73]")
a(f"s_mov_b64 {sr(BV,2)}, s[74:75]")
a(f"s_mov_b64 {sr(SH,2)}, s[76:77]")
a(f"s_mov_b64 {sr(DD,2)}, s[80:81]")
for i in range(3): bload(16 + i, 1, 3, BK, 0, 1024 * i)
for i in range(4): bload(19 + i, 1, 2, BK, sr(sA), 1024 * i)
bload(28, 4, 4, SH, sr(sT1))
for i in range(4): bload(23 + i, 1, 2, BV, sr(sA), 1024 * i)
bload(27, 1, 5, DD, sr(sT0))
a(f"s_mov_b64 {sr(X,2)}, s[64:65]")
a(f"s_mov_b64 {sr(W,2)}, s[66:67]")
a(f"s_mov_b64 {sr(WS,2)}, s[86:87]")
a(f"s_mov_b32 {sr(W+2)}, 0x180000"); a(f"s_mov_b32 {sr(W+3)}, {sr(BK+3)}")
a(f"s_and_b32 {sr(sT0)}, {sr(sTBB)}, 3")
a(f"s_lshr_b32 {sr(sT1)}, {sr(sTBB)}, 2")
a(f"s_add_u32 {sr(sROT)}, {sr(sT0)}, {sr(sT1)}")
a(f"s_and_b32 {sr(sHQ)}, {sr(sDB)}, 1")
a(f"s_lshl2_add_u32 {sr(sHQ)}, {sr(sHQ)}, {sr(sT0)}")
a(f"s_lshr_b32 {sr(sTB)}, {sr(sDB)}, 1")
a(f"s_lshl3_add_u32 {sr(sTB)}, {sr(sTB)}, {sr(sT1)}")
vXS, vWS = 48, 49
a("v_lshrrev_b32 v6, 4, v0")
a("v_xor_b32 v32, v6, v0")
a("v_and_b32 v32, 15, v32")
a("v_lshlrev_b32 v32, 4, v32")
a(f"v_lshl_add_u32 {vr(vXS)}, v6, 10, v32")
a("v_lshrrev_b32 v6, 2, v0")
a("v_and_b32 v6, 4, v6")
a("v_xor_b32 v6, v6, v0")
a("v_and_b32 v6, 7, v6")
a("v_lshrrev_b32 v32, 3, v0")
a("v_mul_u32_u24 v32, 0xc00, v32")
a(f"v_lshl_add_u32 {vr(vWS)}, v6, 4, v32")
a(f"s_lshl_b32 {sr(sM0)}, {sr(sW)}, 10")

def chunk_offsets(c):
    a(f"s_add_u32 {sr(sT0)}, {sr(sROT)}, {c}")
    a(f"s_and_b32 {sr(sT0)}, {sr(sT0)}, 3")
    a(f"s_lshl_b32 {sr(sT1)}, {sr(sHQ)}, 7")
    a(f"s_mul_i32 {sr(sSW)}, {sr(sT0)}, {128*3072}")
    a(f"s_add_u32 {sr(sSW)}, {sr(sSW)}, {sr(sT1)}")
def dma_w(part, ldsbase):
    for i in range(2):
        a(f"s_add_u32 m0, {sr(sM0)}, {ldsbase + 8192 * i}")
        a(f"s_add_u32 {sr(sT2)}, {sr(sSW)}, {part * 1024 + i * 64 * 3072}")
        dma(vWS, W, sr(sT2))
def dma_chunk(c):
    s = SLOT[c % 3]
    chunk_offsets(c)
    a(f"s_lshl_b32 {sr(sT1)}, {sr(sTB)}, 8")
    a(f"s_add_u32 {sr(sT0)}, {sr(sT0)}, {sr(sT1)}")
    a(f"s_lshl_b32 {sr(sSX)}, {sr(sT0)}, 8")
    for i in range(2):
        a(f"s_add_u32 m0, {sr(sM0)}, {s + 8192 * i}")
        a(f"s_add_u32 {sr(sT2)}, {sr(sSX)}, {32768 * i}")
        dma(vXS, X, sr(sT2))
    dma_w(1, s + 16 * K1)
    dma_w(2, s + 32 * K1)

dma_chunk(0)
dma_w(0, EX)
a(f"s_add_u32 s88, s86, {EP}")
a("s_addc_u32 s89, s87, 0")
a(f"s_load_dword {sr(sTAG)}, s[88:89], 0")
a(f"s_mov_b64 {sr(HK,2)}, s[78:79]")
a(f"s_mov_b64 {sr(WO,2)}, s[68:69]")
a(f"s_mov_b64 {sr(BQ,2)}, s[70:71]")
a(f"s_mov_b64 {sr(OUT,2)}, s[82:83]")
for r, n in ((WO, 0x80000), (OUT, 0x400000), (WS, WS_SIZE)):
    a(f"s_mov_b32 {sr(r+2)}, {hex(n)}"); a(f"s_mov_b32 {sr(r+3)}, {sr(BK+3)}")
a(f"s_mov_b32 {sr(sMASK)}, 0xffff0000")
HP, HL = 56, 58
a("v_lshlrev_b32 v6, 4, v0")
a("v_and_b32 v32, 0xff, v0")
a("v_cmp_eq_u32 vcc, 0, v32")
a("v_subrev_u32 v32, 8, v6")
a(f"s_lshl_b32 {sr(sT0)}, {sr(sDB)}, 5")
a(f"s_add_u32 {sr(sT0)}, {sr(sT0)}, {sr(sTBB)}")
a(f"s_lshl_b32 {sr(sT0)}, {sr(sT0)}, 13")
a("v_bfrev_b32 v33, 2")
a("v_cndmask_b32 v32, v32, v33, vcc")
bload(HL, 4, 6, HK, sr(sT0))
bload(HP, 2, 32, HK, sr(sT0))
if DIAG: a(f"s_mov_b64 {sr(sST,2)}, s[100:101]"); nstamp[0] = 1
stamp("issued")
UD = 8
KP, WJ, VP, DP, UU = 64, 80, 88, 96, 98
a("v_lshrrev_b32 v6, 5, v0")
a("v_xor_b32 v6, 15, v6")
a("v_lshrrev_b32 v32, 1, v6")
a("v_xor_b32 v32, v32, v0")
a("v_and_b32 v32, 7, v32")
a("v_and_b32 v6, 1, v6")
a("v_lshlrev_b32 v6, 3, v6")
a("v_lshl_add_u32 v6, v32, 4, v6")
a("v_lshl_add_u32 v6, v5, 5, v6")
a(f"v_add_u32 v34, {P0S}, v6")
a("v_lshrrev_b32 v6, 3, v0")
a("v_xor_b32 v32, v6, v0")
a("v_and_b32 v32, 7, v32")
a("v_lshlrev_b32 v32, 4, v32")
a("v_lshl_add_u32 v32, v6, 7, v32")
a(f"v_add_u32 v35, {P0S}, v32")
a("v_and_b32 v32, 31, v6")
a("v_lshrrev_b32 v6, 5, v6")
a("v_lshl_add_u32 v6, v32, 1, v6")
a("v_and_b32 v32, 7, v0")
a("v_lshlrev_b32 v32, 4, v32")
a("v_lshl_add_u32 v36, v6, 12, v32")
a(f"s_lshl_b32 {sr(sT0)}, {sr(sDB)}, 18")
a(f"s_sub_u32 {sr(sT1)}, 31, {sr(sTBB)}")
a(f"s_lshl_b32 {sr(sT1)}, {sr(sT1)}, 7")
a(f"s_add_u32 {sr(sT3)}, {sr(sT0)}, {sr(sT1)}")
a(f"s_add_u32 {sr(sT3)}, {sr(sT3)}, {UT}")
a("s_waitcnt vmcnt(15)")
for i in range(7): lo(KP + 2*i, 16 + i); hi(KP + 2*i + 1, 16 + i)
lo(WJ+0, 28); lo(WJ+1, 30); hi(WJ+2, 28); hi(WJ+3, 30)
lo(WJ+4, 29); lo(WJ+5, 31); hi(WJ+6, 29); hi(WJ+7, 31)
for j in range(4):
    a(f"v_pk_mul_f32 {vr(UU+2*j,2)}, {vr(KP+2*j,2)}, {vr(WJ+6,2)}")
for t in (2, 1, 0):
    for j in range(4):
        a(f"v_pk_fma_f32 {vr(UU+2*j,2)}, {vr(KP+2*(j+3-t),2)}, {vr(WJ+2*t,2)}, {vr(UU+2*j,2)}")
a("s_waitcnt vmcnt(10)")
stamp("p0 loads")
for i in range(4): lo(VP + 2*i, 23 + i); hi(VP + 2*i + 1, 23 + i)
lo(DP, 27); hi(DP + 1, 27)
for j in range(4): a(f"v_pk_mul_f32 {vr(UU+2*j,2)}, {vr(UU+2*j,2)}, {vr(VP+2*j,2)}")
for c in range(2):
    cvt(16 + 2*c, UU + 6 + c, UU + 4 + c); cvt(17 + 2*c, UU + 2 + c, UU + c)
dsw("ds_write_b64", 34, 16, 2); dsw("ds_write_b64", 34, 18, 2, 4096)
for j in range(4): a(f"v_pk_mul_f32 {vr(UD+2*j,2)}, {vr(UU+2*j,2)}, {vr(DP,2)}")
a("s_waitcnt lgkmcnt(0)")
a("s_barrier")
dsr("ds_read_b128", 20, 4, 35)
a(f"s_mul_i32 {sr(sTAG)}, {sr(sTAG)}, 0x2c9277b5")
a(f"s_add_u32 {sr(sTAG)}, {sr(sTAG)}, 0xac564b05")
a("s_waitcnt lgkmcnt(0)")
bstore(20, 4, 36, WS, sr(sT3), flags="sc1")
dma_chunk(1)
XF, WF, ACC, ACQ = 128, 96, 64, 80
vXR, vWR, vXB, vWB, vXT = 50, 51, 52, 53, 54
a(f"s_and_b32 {sr(sCT)}, {sr(sW)}, 1")
a(f"s_bfe_u32 {sr(sTT)}, {sr(sW)}, 0x10001")
a(f"s_and_b32 {sr(sHH)}, {sr(sW)}, 3")
a(f"s_lshr_b32 {sr(sKH)}, {sr(sW)}, 2")
a("v_bfe_u32 v6, v1, 2, 2")
a("v_lshrrev_b32 v32, 5, v1")
a("v_lshl_add_u32 v33, v32, 3, v6")
a("v_lshrrev_b32 v6, 1, v6")
a(f"v_xor_b32 v6, {sr(sCT)}, v6")
a("v_lshlrev_b32 v6, 6, v6")
a("v_lshl_add_u32 v33, v33, 7, v6")
a("v_and_b32 v6, 16, v1")
a("v_lshl_add_u32 v33, v6, 1, v33")
a("v_and_b32 v6, 3, v1")
a(f"v_lshl_add_u32 {vr(vWR)}, v6, 3, v33")
a("v_and_b32 v6, 31, v1")
a(f"s_cmp_ge_u32 {sr(sW)}, 4")
a("s_cbranch_scc1 L_vwave")

def x_addr():
    a("v_xor_b32 v33, v32, v6")
    a("v_and_b32 v33, 15, v33")
    a("v_lshlrev_b32 v33, 4, v33")
    a(f"v_lshl_add_u32 v6, {sr(sTT)}, 5, v6")
    a(f"v_lshl_add_u32 {vr(vXR)}, v6, 8, v33")
def gemm_chunk(c, xbase, wbase, acc, first, swap):
    if xbase is not None: a(f"v_add_u32 {vr(vXB)}, {xbase}, {vr(vXR)}")
    a(f"v_add_u32 {vr(vWB)}, {wbase}, {vr(vWR)}")
    n = 3 if xbase is not None else 2
    def rd(s):
        if xbase is not None:
            t = vXT + (s & 1)
            if s: a(f"v_xor_b32 {vr(t)}, {32*s}, {vr(vXB)}")
            dsr("ds_read_b128", XF + 4*(8*c + s), 4, t if s else vXB)
        dsr("ds_read_b64_tr_b16", WF + 4*s, 2, vWB, 2048*s)
        dsr("ds_read_b64_tr_b16", WF + 4*s + 2, 2, vWB, 2048*s + 512)
    D = 4
    for s in range(D): rd(s)
    for s in range(8):
        a(f"s_waitcnt lgkmcnt({n * (min(8, s + D) - s - 1)})")
        x, w = XF + 4*(8*c + s), WF + 4*s
        mfma32(acc, x if swap else w, w if swap else x, None if (first and s == 0) else acc)
        if s + D < 8: rd(s + D)
def h_copies():
    T = 16
    a("v_lshrrev_b32 v6, 8, v0")
    a(f"v_mul_u32_u24 v6, {4*HSTR}, v6")
    a("v_and_b32 v32, 0xff, v0")
    a("v_lshl_add_u32 v6, v32, 4, v6")
    a(f"v_add_u32 v6, {HB + 384}, v6")
    D = [HP, HP+1, HL, HL+1, HL+2, HL+3]
    dsw("ds_write_b128", 6, HL, 4, 3*HSTR)
    for j in range(4): a(f"v_alignbit_b32 {vr(T+j)}, {vr(D[2+j])}, {vr(D[1+j])}, 16")
    for j in range(4): a(f"v_mov_b32 {vr(T+4+j)}, {vr(D[1+j])}")
    for j in range(4): a(f"v_alignbit_b32 {vr(T+8+j)}, {vr(D[1+j])}, {vr(D[j])}, 16")
    dsw("ds_write_b128", 6, T, 4, 2*HSTR)
    dsw("ds_write_b128", 6, T+4, 4, HSTR)
    dsw("ds_write_b128", 6, T+8, 4, 0)
    a(f"s_mul_i32 {sr(sT0)}, {sr(sW)}, {HSTR}")
    a(f"s_add_u32 {sr(sT0)}, {sr(sT0)}, {HB}")
    a(f"s_mul_i32 {sr(sT1)}, {sr(sCT)}, {USTR}")
    a(f"s_add_u32 {sr(sT1)}, {sr(sT1)}, {UB + 4096 - 384}")
    a(f"v_lshl_add_u32 v6, v1, 4, {sr(sT0)}")
    a(f"v_lshl_add_u32 v32, v1, 4, {sr(sT1)}")
    a("v_cmp_gt_u32 vcc, 24, v1")
    for j in range(4): a(f"v_mov_b32 {vr(T+12+j)}, 0")
    a("v_cndmask_b32 v6, v32, v6, vcc")
    a("v_cmp_gt_u32 vcc, 32, v1")
    a(f"v_mov_b32 v32, {CNT}")
    a("s_nop 0")
    a("v_cndmask_b32 v6, v32, v6, vcc")
    dsw("ds_write_b128", 6, T+12, 4)
def push_u():
    a(f"s_lshl_b32 {sr(sT0)}, {sr(sDB)}, 12")
    a(f"s_lshl2_add_u32 {sr(sT0)}, {sr(sTBB)}, {sr(sT0)}")
    a(f"s_add_u32 {sr(sT0)}, {sr(sT0)}, {MB_U}")
    push(32, 6, 32, sr(sT0))
def push_kv():
    a(f"s_lshl_b32 {sr(sT0)}, {sr(sHQ)}, 12")
    a(f"s_lshl2_add_u32 {sr(sT0)}, {sr(sTB)}, {sr(sT0)}")
    a(f"s_add_u32 {sr(sT0)}, {sr(sT0)}, {MB_KV}")
    push(32, 6, 7, sr(sT0))
def push_y():
    a(f"s_lshl_b32 {sr(sT0)}, {sr(sDB)}, 12")
    a(f"s_lshl2_add_u32 {sr(sT0)}, {sr(sTBB)}, {sr(sT0)}")
    a(f"s_add_u32 {sr(sT0)}, {sr(sT0)}, {MB_Y}")
    push(32, 6, 7, sr(sT0))
def kv_soff():
    a(f"s_lshl1_add_u32 {sr(sT0)}, {sr(sHQ)}, {sr(sCT)}")
    a(f"s_lshl_b32 {sr(sT0)}, {sr(sT0)}, 18")
    a(f"s_lshl1_add_u32 {sr(sT1)}, {sr(sTB)}, {sr(sTT)}")
    a(f"s_lshl_b32 {sr(sT1)}, {sr(sT1)}, 11")
    a(f"s_add_u32 {sr(sT3)}, {sr(sT0)}, {sr(sT1)}")

def gemm_main(isv):
    part = 32 * K1 if isv else 16 * K1
    a("s_waitcnt vmcnt(9)"); a("s_barrier")
    stamp("B1")
    dma_chunk(2)
    gemm_chunk(0, SLOT[0], SLOT[0] + part, ACC, True, isv)
    if not isv: gemm_chunk(0, None, EX, ACQ, True, False)
    a("s_waitcnt vmcnt(6)"); a("s_barrier")
    if isv:
        L = newlab("nu")
        a(f"s_cmp_lg_u32 {sr(sW)}, 4"); a(f"s_cbranch_scc1 {L}")
        push_u()
        a.label(L)
    dma_chunk(3)
    gemm_chunk(1, SLOT[1], SLOT[1] + part, ACC, False, isv)
    a("s_waitcnt vmcnt(6)"); a("s_barrier")
    for c in (1, 2, 3):
        chunk_offsets(c); dma_w(0, SLOT[1] + 16 * K1 * (c - 1))
    gemm_chunk(2, SLOT[2], SLOT[2] + part, ACC, False, isv)
    a("s_waitcnt vmcnt(6)"); a("s_barrier")
    stamp("B4")
    gemm_chunk(3, SLOT[0], SLOT[0] + part, ACC, False, isv)
    kv_soff()
    if isv:
        a("v_bfe_u32 v6, v1, 4, 1")
        a("v_lshlrev_b32 v6, 17, v6")
        a("v_lshrrev_b32 v32, 5, v1")
        a("v_lshl_add_u32 v6, v32, 8, v6")
        a("v_and_b32 v32, 15, v1")
        a("v_lshl_add_u32 v33, v32, 4, v6")
        a("s_nop 0")
    else:
        a("v_lshlrev_b32 v33, 4, v1")
        a(f"s_add_u32 {sr(sT2)}, {sr(sT3)}, 0x20000")
        a("s_nop 4")
    for j in range(8): cvt(40 + j, ACC + 2*j, ACC + 2*j + 1)
    if isv:
        bstore(40, 4, 33, WS, sr(sT3), 1024, "sc1"); bstore(44, 4, 33, WS, sr(sT3), 1536, "sc1")
    else:
        bstore(40, 4, 33, WS, sr(sT3), 0, "sc1"); bstore(44, 4, 33, WS, sr(sT2), 0, "sc1")
    h_copies()
    a("s_waitcnt vmcnt(2) lgkmcnt(0)"); a("s_barrier")
    stamp("B5")

O0, O1, S0, S1, C0, C1 = 16, 32, 48, 64, 80, 96
Q0, Q1 = 112, 116
QG = 120
vIDX, vKA, vVA = 124, 125, 126
RING = 128
def rK(i): return RING + 12 * (i & 7)
def rVa(i): return RING + 12 * (i & 7) + 4
def rVb(i): return RING + 12 * (i & 7) + 8
def attn_setup():
    a(f"s_lshl2_add_u32 {sr(sT0)}, {sr(sHQ)}, {sr(sHH)}")
    a(f"s_lshl_b32 {sr(sT0)}, {sr(sT0)}, 17")
    a(f"s_lshl_b32 {sr(sT1)}, {sr(sKH)}, 11")
    a(f"s_add_u32 {sr(sT0)}, {sr(sT0)}, {sr(sT1)}")
    a(f"v_lshl_add_u32 {vr(vKA)}, v1, 4, {sr(sT0)}")
    a("v_lshrrev_b32 v6, 5, v1")
    a(f"v_lshl_add_u32 v6, v6, 8, {sr(sT0)}")
    a("v_and_b32 v7, 15, v1")
    a(f"v_lshl_add_u32 {vr(vVA)}, v7, 4, v6")
    a(f"v_mov_b32 {vr(vIDX)}, 0xdddddddd")
    a(f"s_mov_b32 {sr(sHALF)}, 0xffff"); a(f"s_mov_b32 {sr(sHALF+1)}, {sr(sHALF)}")
    a(f"s_mov_b32 {sr(sAND)}, 0x4001ffff")
    a(f"s_mov_b32 {sr(sREDO)}, 0")
    a("v_mov_b32 v6, 0x3f803f80"); a("v_mov_b32 v7, v6")
    for i in range(8):
        for j in range(4): a(f"v_mov_b64 {vr(rVa(i) + 2*j, 2)}, v[6:7]")
def adv():
    a(f"s_add_u32 {sr(sOFF)}, {sr(sOFF)}, 0x1000")
    a(f"s_and_b32 {sr(sOFF)}, {sr(sOFF)}, {sr(sAND)}")
def ring_fill():
    a(f"s_lshl_b32 {sr(sOFF)}, {sr(sTB)}, 12")
    for i in range(7):
        bload(rK(i), 4, vKA, WS, sr(sOFF), 0, "sc1")
        a(f"s_mov_b64 exec, {sr(sHALF,2)}")
        bload(rVa(i), 4, vVA, WS, sr(sOFF), 1024, "sc1")
        bload(rVb(i), 4, vVA, WS, sr(sOFF), 1536, "sc1")
        a("s_mov_b64 exec, -1")
        adv()
def q_loads():
    for i in range(4): bload(QG + i, 1, 2, BQ, sr(sA), 1024 * i)
def read_qf():
    a(f"s_lshl1_add_u32 {sr(sT0)}, {sr(sHH)}, {sr(sKH)}")
    a(f"s_lshl_b32 {sr(sT0)}, {sr(sT0)}, 10")
    a(f"v_lshl_add_u32 v6, v1, 4, {sr(sT0)}")
    a("v_xor_b32 v7, 0x400, v6")
    dsr("ds_read_b128", Q0, 4, 6, QF); dsr("ds_read_b128", Q1, 4, 7, QF)

x_addr()
s0 = nstamp[0]
gemm_main(False)
for c in (1, 2, 3):
    gemm_chunk(c, None, SLOT[1] + 16 * K1 * (c - 1), ACQ, False, False)
a("s_waitcnt vmcnt(0)")
arrive(0, 7, 6, 7, push_kv)
a(f"s_mov_b32 {sr(sT2)}, {f2h(0.25 * math.log2(math.e))}")
a(f"s_lshl2_add_u32 {sr(sT0)}, {sr(sCT)}, {sr(sTT)}")
a(f"s_lshl_b32 {sr(sT0)}, {sr(sT0)}, 10")
a(f"v_lshl_add_u32 v33, v1, 4, {sr(sT0)}")
a("s_nop 3")
for j in range(16): a(f"v_mul_f32 {vr(ACQ+j)}, {sr(sT2)}, {vr(ACQ+j)}")
for j in range(8): cvt(40 + j, ACQ + 2*j, ACQ + 2*j + 1)
dsw("ds_write_b128", 33, 40, 4, QF); dsw("ds_write_b128", 33, 44, 4, QF + 2048)
stamp("q done")
attn_setup()
a(f"s_lshl_b32 {sr(sT0)}, {sr(sHQ)}, 5")
a(f"s_add_u32 {sr(sT0)}, {sr(sT0)}, {sr(sTB)}")
a(f"s_lshl_b32 {sr(sT0)}, {sr(sT0)}, 7")
a(f"s_add_u32 {sr(sT3)}, {sr(sT0)}, {MB_KV}")
poll(5, 6, sr(sT3))
stamp("kv flags")
ring_fill()
q_loads()
a("s_waitcnt lgkmcnt(0)"); a("s_barrier")
stamp("B6")
read_qf()
a("s_waitcnt lgkmcnt(0)")
arrive(4, 7, 6, 7, push_y)
a("s_setprio 1")
a("s_branch L_attn")

a.label("L_vwave")
a("v_and_b32 v33, 0x13, v6")
a("v_and_b32 v7, 4, v6")
a("v_lshl_or_b32 v33, v7, 1, v33")
a("v_and_b32 v7, 8, v6")
a("v_lshrrev_b32 v7, 1, v7")
a("v_or_b32 v6, v7, v33")
x_addr()
set_stamp(s0)
gemm_main(True)
a(f"s_lshl_b32 {sr(sT0)}, {sr(sDB)}, 5")
a(f"s_add_u32 {sr(sT0)}, {sr(sT0)}, {sr(sTBB)}")
a(f"s_lshl_b32 {sr(sSX)}, {sr(sT0)}, 13")
a(f"s_lshl_b32 {sr(sT0)}, {sr(sT0)}, 7")
a(f"s_add_u32 {sr(sT3)}, {sr(sT0)}, {MB_U}")
bload(33, 1, 5, WS, sr(sT3), flags="sc1")
CA, CB, CY = [128, 192], [160, 224], 16
vHA, vUA = 50, 51
a("v_and_b32 v6, 3, v1")
a(f"v_mul_u32_u24 v6, {HSTR}, v6")
a("v_bfe_u32 v7, v1, 2, 2")
a("v_lshl_add_u32 v6, v7, 7, v6")
a("v_and_b32 v7, 0x30, v1")
a("v_add_u32 v6, v6, v7")
a(f"s_mul_i32 {sr(sT0)}, {sr(sCT)}, {4*HSTR}")
a(f"s_lshl_b32 {sr(sT1)}, {sr(sTT)}, 8")
a(f"s_add_u32 {sr(sT0)}, {sr(sT0)}, {sr(sT1)}")
a(f"s_add_u32 {sr(sT0)}, {sr(sT0)}, {HB}")
a(f"v_add_u32 {vr(vHA)}, {sr(sT0)}, v6")
a("v_and_b32 v6, 15, v1")
a("v_lshlrev_b32 v6, 3, v6")
a("v_sub_u32 v6, v7, v6")
a(f"s_mul_i32 {sr(sSW)}, {sr(sCT)}, {USTR}")
a(f"s_add_u32 {sr(sSW)}, {sr(sSW)}, {UB}")
a(f"s_add_u32 {sr(sT0)}, {sr(sSW)}, {sr(sT1)}")
a(f"s_add_u32 {sr(sT0)}, {sr(sT0)}, 120")
a(f"v_add_u32 {vr(vUA)}, {sr(sT0)}, v6")
a("v_lshlrev_b32 v52, 4, v1")
a(f"s_lshl_b32 {sr(sT0)}, {sr(sCT)}, 12")
a(f"s_add_u32 {sr(sSX)}, {sr(sSX)}, {sr(sT0)}")
a("s_waitcnt vmcnt(0)")
arrive(0, 7, 6, 7, push_kv)
poll(5, 33, sr(sT3), True)
stamp("u flags")
a(f"s_add_u32 {sr(sT2)}, {sr(sSX)}, {UT}")
a(f"s_mov_b32 m0, {sr(sSW)}")
a("s_nop 0")
for i in range(4):
    a(f"buffer_load_dwordx4 v52, {sr(WS,4)}, {sr(sT2)} offen offset:{1024*i} sc1 lds")
def conv_reads(cls):
    b = cls & 1; out = []
    for i in range(8):
        out.append(("ds_read_b128", CA[b] + 4*i, 4, vHA, 64*cls + 512*i))
        out.append(("ds_read_b64", CB[b] + 4*i, 2, vUA, 3584 - 512*i + 64*cls))
        out.append(("ds_read_b64", CB[b] + 4*i + 2, 2, vUA, 3584 - 512*i + 64*cls + 8))
    return out
r0 = conv_reads(0)
for r in r0:
    if r[0] == "ds_read_b128": dsr(*r)
a("s_waitcnt vmcnt(0)")
stamp("u landed")
a("s_waitcnt lgkmcnt(0)")
rb = [r for r in r0 if r[0] != "ds_read_b128"]
for r in rb[:14]: dsr(*r)
a("s_waitcnt lgkmcnt(8)")
for r in rb[14:]: dsr(*r)
for cls in range(4):
    b = cls & 1
    a("s_waitcnt lgkmcnt(0)")
    nxt = conv_reads(cls + 1) if cls < 3 else []
    for ai in range(8):
        for bi in range(8 - ai):
            j = ai + bi
            mfma16(CY + 4*j, CA[b] + 4*ai, CB[b] + 4*bi, None if (cls == 0 and ai == 0) else CY + 4*j)
            if nxt: dsr(*nxt.pop(0))
a(f"s_lshl_b32 {sr(sT0)}, {sr(sHH)}, 12")
a(f"v_add_u32 v6, {sr(sT0)}, v52")
a("v_xor_b32 v7, 0x2000, v6")
a(f"s_cmp_lg_u32 {sr(sTT)}, 0")
a("s_nop 4")
a("s_cbranch_scc1 L_red1")
for j in range(4): dsw("ds_write_b128", 6, CY + 16 + 4*j, 4, RED + 1024*j)
a("s_branch L_red2")
a.label("L_red1")
for j in range(4): dsw("ds_write_b128", 6, CY + 4*j, 4, RED + 1024*j)
for j in range(8): a(f"v_mov_b64 {vr(CY + 2*j, 2)}, {vr(CY + 16 + 2*j, 2)}")
a.label("L_red2")
a("s_waitcnt lgkmcnt(0)"); a("s_barrier")
stamp("B6")
for j in range(4): dsr("ds_read_b128", CY + 16 + 4*j, 4, 7, RED + 1024*j)
read_qf()
a("v_lshlrev_b32 v52, 3, v1")
a(f"s_lshl_b32 {sr(sT0)}, {sr(sTT)}, 11")
a(f"s_add_u32 {sr(sSX)}, {sr(sSX)}, {sr(sT0)}")
a(f"s_add_u32 {sr(sSX)}, {sr(sSX)}, {YT}")
a("s_waitcnt lgkmcnt(0)")
for j in range(8): a(f"v_pk_add_f32 {vr(CY + 2*j, 2)}, {vr(CY + 2*j, 2)}, {vr(CY + 16 + 2*j, 2)}")
for j in range(8): cvt(CY + 16 + j, CY + 2*j, CY + 2*j + 1)
for j in range(4): bstore(CY + 16 + 2*j, 2, 52, WS, sr(sSX), 512*j, "sc1")
attn_setup()
ring_fill()
q_loads()
a("s_waitcnt vmcnt(25)")
arrive(4, 7, 6, 7, push_y)

def rowmax(S, m, acc):
    k = 0
    if not acc:
        a(f"v_max3_f32 {vr(m)}, {vr(S)}, {vr(S+1)}, {vr(S+2)}"); k = 3
    while k < 16:
        a(f"v_max3_f32 {vr(m)}, {vr(m)}, {vr(S+k)}, {vr(S+min(k+1,15))}"); k += 2
a.label("L_attn")
a("s_waitcnt vmcnt(22)")
mfma32(S0, rK(0), Q0, None); mfma32(S1, rK(0), Q1, None)
a("s_nop 10")
rowmax(S0, 6, False); rowmax(S1, 7, False)
a.label("L_havemax")
a("v_mov_b32 v4, v6"); a("v_mov_b32 v3, v7"); a("s_nop 1")
a("v_permlane32_swap_b32 v6, v4"); a("v_permlane32_swap_b32 v7, v3")
a(f"v_max_f32 v6, v6, v4"); a("v_max_f32 v7, v7, v3")
a(f"v_sub_f32 {vr(C0)}, 0, v6"); a(f"v_sub_f32 {vr(C0+1)}, 0, v6")
a(f"v_sub_f32 {vr(C1)}, 0, v7"); a(f"v_sub_f32 {vr(C1+1)}, 0, v7")
for j in range(1, 8): a(f"v_mov_b64 {vr(C0+2*j,2)}, {vr(C0,2)}")
for j in range(1, 8): a(f"v_mov_b64 {vr(C1+2*j,2)}, {vr(C1,2)}")
mfma32(S0, rK(0), Q0, C0)
for j in range(16): a(f"v_mov_b64 {vr(O0+2*j,2)}, 0")
for j in range(4): a(f"v_mov_b64 {vr(S1+8+2*j,2)}, 0")
a(f"s_mov_b32 {sr(sPASS)}, 0")
stamp("loop start")
def E(S, x, y):
    for k in range(x, y + 1): a(f"v_exp_f32 {vr(S+k)}, {vr(S+k)}")
def PV(O, V, S): a(f"v_smfmac_f32_32x32x32_bf16 {vr(O,16)}, {vr(V,4)}, {vr(S,8)}, {vr(vIDX)}")
a(".p2align 6")
a.label("L_loop")
for i in range(8):
    E(S0, 0, 1)
    PV(O1, rVb(i-1), S1 + 8)
    a(f"s_mov_b64 exec, {sr(sHALF,2)}")
    bload(rVa(i-1), 4, vVA, WS, sr(sOFF), 1024, "sc1")
    bload(rVb(i-1), 4, vVA, WS, sr(sOFF), 1536, "sc1")
    a("s_mov_b64 exec, -1")
    E(S0, 2, 5)
    mfma32(S1, rK(i), Q1, C1)
    bload(rK(i-1), 4, vKA, WS, sr(sOFF), 0, "sc1")
    E(S0, 6, 9)
    PV(O0, rVa(i), S0)
    adv()
    E(S0, 10, 15)
    E(S1, 0, 1)
    PV(O0, rVb(i), S0 + 8)
    a("s_waitcnt vmcnt(18)")
    if i == 0: a(f"s_cmp_eq_u32 {sr(sPASS)}, 3")
    if i == 7: a(f"s_add_u32 {sr(sPASS)}, {sr(sPASS)}, 1")
    E(S1, 2, 5)
    mfma32(S0, rK(i+1), Q0, C0)
    if i == 0: a(f"s_cselect_b32 {sr(sT0)}, 0x40000000, 0")
    elif i == 7: a(f"s_cmp_lg_u32 {sr(sPASS)}, 4")
    else: a("s_nop 0")
    E(S1, 6, 9)
    PV(O1, rVa(i), S1)
    if i == 0: a(f"s_or_b32 {sr(sOFF)}, {sr(sOFF)}, {sr(sT0)}")
    E(S1, 10, 15)
a("s_cbranch_scc1 L_loop")
a("s_nop 0")
PV(O1, rVb(7), S1 + 8)
a(f"s_mov_b32 {sr(sT0)}, {f2h(2.0**24)}")
a(f"s_cmp_lg_u32 {sr(sREDO)}, 0")
a("s_nop 9")
a("s_cbranch_scc1 L_attn_done")
a(f"v_cmp_nle_f32 vcc, {vr(O0+8)}, {sr(sT0)}")
a(f"v_cmp_nle_f32 {sr(sT1,2)}, {vr(O1+8)}, {sr(sT0)}")
a(f"s_or_b64 vcc, vcc, {sr(sT1,2)}")
a("s_cbranch_vccnz L_fallback")
a.label("L_attn_done")
stamp("loop end")
a(f"s_mul_i32 {sr(sT0)}, {sr(sW)}, 2560")
a(f"s_add_u32 {sr(sT0)}, {sr(sT0)}, {MG}")
a(f"v_lshl_add_u32 v6, v1, 4, {sr(sT0)}")
a(f"v_lshl_add_u32 v7, v1, 3, {sr(sT0)}")
a(f"v_mov_b32 {vr(O1+9)}, {vr(C1)}")
dsw("ds_write_b128", 6, O1, 4); dsw("ds_write_b128", 6, O1 + 4, 4, 1024); dsw("ds_write_b64", 7, O1 + 8, 2, 2048)
a(f"s_xor_b32 {sr(sT0)}, {sr(sW)}, 4")
a(f"s_mul_i32 {sr(sT0)}, {sr(sT0)}, 2560")
a(f"s_add_u32 {sr(sT0)}, {sr(sT0)}, {MG}")
a(f"v_lshl_add_u32 v3, v1, 4, {sr(sT0)}")
a(f"v_lshl_add_u32 v4, v1, 3, {sr(sT0)}")
a(f"s_cmp_lg_u32 {sr(sKH)}, 0")
a("s_cbranch_scc1 L_merge")
a("s_setprio 0")
a(f"s_lshl_b32 {sr(sT0)}, {sr(sDB)}, 5")
a(f"s_add_u32 {sr(sT0)}, {sr(sT0)}, {sr(sTBB)}")
a(f"s_lshl_b32 {sr(sT0)}, {sr(sT0)}, 7")
a(f"s_add_u32 {sr(sT3)}, {sr(sT0)}, {MB_Y}")
poll(5, 6, sr(sT3))
a("v_lshrrev_b32 v6, 3, v0")
a("v_lshrrev_b32 v7, 1, v6")
a("v_xor_b32 v7, v7, v0")
a("v_and_b32 v7, 7, v7")
a("v_lshlrev_b32 v7, 4, v7")
a("v_lshl_add_u32 v6, v6, 13, v7")
a(f"s_lshl_b32 {sr(sT0)}, {sr(sDB)}, 18")
a(f"s_lshl_b32 {sr(sT1)}, {sr(sTBB)}, 7")
a(f"s_add_u32 {sr(sT0)}, {sr(sT0)}, {sr(sT1)}")
a(f"s_add_u32 m0, {sr(sM0)}, {YB}")
a(f"s_add_u32 {sr(sT0)}, {sr(sT0)}, {YT}")
dma(6, WS, sr(sT0), "sc1")
a(f"s_add_u32 m0, {sr(sM0)}, {YB + 4096}")
a(f"s_add_u32 {sr(sT0)}, {sr(sT0)}, 0x1000")
dma(6, WS, sr(sT0), "sc1")
a("v_lshrrev_b32 v6, 4, v0")
a("v_lshlrev_b32 v7, 1, v6")
a("v_xor_b32 v7, v7, v0")
a("v_and_b32 v7, 15, v7")
a("v_lshlrev_b32 v7, 4, v7")
a("v_lshl_add_u32 v6, v6, 10, v7")
a(f"s_and_b32 {sr(sT0)}, {sr(sHQ)}, 3")
a(f"v_lshl_add_u32 v6, {sr(sT0)}, 8, v6")
a(f"s_lshl_b32 {sr(sT0)}, {sr(sTB)}, 14")
a(f"s_mov_b32 {sr(sT1)}, 0")
a.label("L_wo")
a(f"s_and_b32 {sr(sT0)}, {sr(sT0)}, 0x1ffff")
a(f"s_add_u32 m0, {sr(sM0)}, {sr(sT0)}")
a(f"s_lshl_b32 {sr(sT2)}, {sr(sT0)}, 2")
dma(6, WO, sr(sT2))
a(f"s_add_u32 {sr(sT0)}, {sr(sT0)}, 0x1000")
a(f"s_add_u32 {sr(sT1)}, {sr(sT1)}, 1")
a(f"s_cmp_lg_u32 {sr(sT1)}, 32")
a("s_waitcnt vmcnt(3)")
a("s_cbranch_scc1 L_wo")
a.label("L_merge")
a("s_waitcnt vmcnt(0) lgkmcnt(0)"); a("s_barrier")
stamp("B7")
PP = S0
dsr("ds_read_b64", PP + 8, 2, 4, 2048); dsr("ds_read_b128", PP, 4, 3); dsr("ds_read_b128", PP + 4, 4, 3, 1024)
a("v_lshrrev_b32 v6, 6, v0")
a("v_lshrrev_b32 v7, 1, v0")
a("v_xor_b32 v6, v6, v7")
a("v_and_b32 v6, 7, v6")
a("v_lshlrev_b32 v6, 4, v6")
a("v_lshl_add_u32 v6, v5, 5, v6")
a("v_lshrrev_b32 v7, 2, v0")
a("v_and_b32 v7, 8, v7")
a("v_add_u32 v6, v6, v7")
a(f"v_add_u32 v6, {YB}, v6")
YY = S1
dsr("ds_read_b64", YY, 2, 6); dsr("ds_read_b64", YY + 2, 2, 6, 4096)
a(f"s_lshl1_add_u32 {sr(sT0)}, {sr(sTB)}, {sr(sKH)}")
a(f"s_lshl_b32 {sr(sT0)}, {sr(sT0)}, 15")
a(f"s_lshl2_add_u32 {sr(sT1)}, {sr(sHQ)}, {sr(sHH)}")
a(f"s_lshl_b32 {sr(sT2)}, {sr(sT1)}, 10")
a(f"s_add_u32 {sr(sT0)}, {sr(sT0)}, {sr(sT2)}")
a(f"s_add_u32 {sr(sT0)}, {sr(sT0)}, {OF}")
a("s_waitcnt lgkmcnt(4)")
a(f"v_min_f32 v6, {vr(C0)}, {vr(PP+9)}")
a(f"v_sub_f32 v7, v6, {vr(C0)}")
a(f"v_sub_f32 v6, v6, {vr(PP+9)}")
a("v_exp_f32 v7, v7"); a("v_exp_f32 v6, v6")
a("v_lshlrev_b32 v3, 4, v1")
a(f"v_mul_f32 v4, v7, {vr(O0+8)}")
a(f"v_fmac_f32 v4, v6, {vr(PP+8)}")
a("v_rcp_f32 v4, v4")
a("s_waitcnt lgkmcnt(2)")
a("v_mul_f32 v7, v7, v4"); a("v_mul_f32 v6, v6, v4")
for j in range(8): a(f"v_mul_f32 {vr(O0+j)}, v7, {vr(O0+j)}")
for j in range(8): a(f"v_fmac_f32 {vr(O0+j)}, v6, {vr(PP+j)}")
for j in range(4): cvt(O1 + j, O0 + 2*j, O0 + 2*j + 1)
bstore(O1, 4, 3, WS, sr(sT0), 0, "sc1")
GY, GQ = S0, S0 + 8
a("s_waitcnt lgkmcnt(0)")
for c in range(2):
    lo(GY + c, YY + 2*c); hi(GY + 2 + c, YY + 2*c); lo(GY + 4 + c, YY + 2*c + 1); hi(GY + 6 + c, YY + 2*c + 1)
for j in range(4): lo(GQ + 2*j, QG + j); hi(GQ + 2*j + 1, QG + j)
for j in range(4): a(f"v_pk_add_f32 {vr(GY+2*j,2)}, {vr(GY+2*j,2)}, {vr(UD+2*j,2)}")
for j in range(4): a(f"v_pk_mul_f32 {vr(GY+2*j,2)}, {vr(GY+2*j,2)}, {vr(GQ+2*j,2)}")
for j in range(4): cvt(QG + j, GY + 2*j, GY + 2*j + 1)
a("v_lshrrev_b32 v6, 5, v0")
a("v_lshl_add_u32 v6, v6, 13, v5")
a(f"s_lshl_b32 {sr(sT0)}, {sr(sTBB)}, 17")
a(f"s_lshl_b32 {sr(sT2)}, {sr(sDB)}, 7")
a(f"s_add_u32 {sr(sT0)}, {sr(sT0)}, {sr(sT2)}")
a(f"s_add_u32 {sr(sT2)}, {sr(sT0)}, 0x1000")
bstore(QG, 1, 6, OUT, sr(sT0), 1024); bstore(QG + 1, 1, 6, OUT, sr(sT0), 3072)
bstore(QG + 2, 1, 6, OUT, sr(sT2), 1024); bstore(QG + 3, 1, 6, OUT, sr(sT2), 3072)
WOF = 128
a("v_bfe_u32 v6, v1, 2, 3")
a("v_lshrrev_b32 v7, 5, v1")
a("v_lshl_add_u32 v7, v7, 4, v6")
a(f"s_and_b32 {sr(sT0)}, {sr(sW)}, 6")
a(f"v_xor_b32 v6, {sr(sT0)}, v6")
a("v_lshlrev_b32 v6, 5, v6")
a("v_lshl_add_u32 v6, v7, 8, v6")
a("v_and_b32 v7, 3, v1")
a("v_lshl_add_u32 v16, v7, 3, v6")
a("v_xor_b32 v17, 32, v16")
a("v_add_u32 v18, 0x10000, v16")
a("v_add_u32 v19, 0x10000, v17")
def wo_reads(ps):
    for p in ps:
        for c in range(2):
            for part in range(2):
                dsr("ds_read_b64_tr_b16", WOF + 8*p + 4*c + 2*part, 2, 16 + c + 2*(p >> 3), ((p & 7) * 32 + 8*part) * 256)
wo_reads(range(0, 8))
a(f"s_lshl1_add_u32 {sr(sT0)}, {sr(sTB)}, {sr(sKH)}")
a(f"s_lshl_b32 {sr(sT0)}, {sr(sT0)}, 9")
a(f"s_lshl2_add_u32 {sr(sT0)}, {sr(sT1)}, {sr(sT0)}")
a(f"s_add_u32 {sr(sT0)}, {sr(sT0)}, {MB_O}")
a("s_waitcnt vmcnt(4)")
push(4, 6, 7, sr(sT0))
wo_reads(range(8, 16))
a(f"s_lshl3_add_u32 {sr(sT0)}, {sr(sTB)}, {sr(sHQ)}")
a(f"s_lshl_b32 {sr(sT0)}, {sr(sT0)}, 7")
a(f"s_lshl4_add_u32 {sr(sT0)}, {sr(sW)}, {sr(sT0)}")
a(f"s_add_u32 {sr(sT3)}, {sr(sT0)}, {MB_O}")
a("v_and_b32 v20, 12, v5")
a(f"s_lshr_b32 {sr(sT0)}, {sr(sHQ)}, 2")
a(f"s_lshl1_add_u32 {sr(sSX)}, {sr(sTB)}, {sr(sT0)}")
a(f"s_lshl_b32 {sr(sT0)}, {sr(sSX)}, 15")
a(f"s_lshl2_add_u32 {sr(sT0)}, {sr(sM0)}, {sr(sT0)}")
a(f"s_add_u32 {sr(sSW)}, {sr(sT0)}, {OF}")
a(f"s_lshl_b32 m0, {sr(sM0)}, 2")
a("s_waitcnt lgkmcnt(0)"); a("s_barrier")
poll(20, 6, sr(sT3))
stamp("o flags")
for i in range(4):
    a(f"buffer_load_dwordx4 v3, {sr(WS,4)}, {sr(sSW)} offen offset:{1024*i} sc1 lds")
a("v_lshrrev_b32 v6, 5, v1")
a("v_lshlrev_b32 v6, 10, v6")
a("v_and_b32 v7, 16, v1")
a("v_lshl_add_u32 v6, v7, 5, v6")
a("v_and_b32 v21, 15, v1")
a(f"v_lshl_add_u32 v21, {sr(sCT)}, 4, v21")
a("v_lshl_add_u32 v22, v21, 4, v6")
a("v_lshrrev_b32 v6, 5, v1")
a("v_lshlrev_b32 v6, 4, v6")
a("v_lshl_add_u32 v6, v7, 1, v6")
a("v_lshl_add_u32 v23, v21, 11, v6")
a(f"s_lshl_b32 {sr(sT0)}, {sr(sSX)}, 16")
a(f"s_and_b32 {sr(sT1)}, {sr(sHQ)}, 3")
a(f"s_lshl_b32 {sr(sT1)}, {sr(sT1)}, 8")
a(f"s_add_u32 {sr(sT0)}, {sr(sT0)}, {sr(sT1)}")
a(f"s_lshr_b32 {sr(sT1)}, {sr(sW)}, 1")
a(f"s_lshl_b32 {sr(sT1)}, {sr(sT1)}, 6")
a(f"s_add_u32 {sr(sT3)}, {sr(sT0)}, {sr(sT1)}")
a("s_waitcnt vmcnt(0)"); a("s_barrier")
OFR, PA = 32, 24
for p in range(12): dsr("ds_read_b128", OFR + 4*p, 4, 22, 2048*p)
for p in range(16):
    a(f"s_waitcnt lgkmcnt({min(16, p + 12) - p - 1})")
    mfma16(PA, WOF + 8*p, OFR + 4*p, None if p == 0 else PA)
    mfma16(PA + 4, WOF + 8*p + 4, OFR + 4*p, None if p == 0 else PA + 4)
    if p + 12 < 16: dsr("ds_read_b128", OFR + 4*(p + 12), 4, 22, 2048*(p + 12))
a("s_nop 7")
cvt(16, PA, PA + 1); cvt(17, PA + 2, PA + 3); cvt(18, PA + 4, PA + 5); cvt(19, PA + 6, PA + 7)
a("s_nop 1")
a("v_permlane16_swap_b32 v16, v18"); a("v_permlane16_swap_b32 v17, v19")
bstore(16, 4, 23, OUT, sr(sT3))
a(f"s_or_b32 {sr(sT0)}, s2, {sr(sW)}")
a("s_cbranch_scc1 L_noep")
a(f"v_mov_b32 v6, {EP}")
a(f"v_mov_b32 v7, {sr(sTAG)}")
a("s_mov_b64 exec, 1")
bstore(7, 1, 6, WS, 0, flags="sc1")
a("s_mov_b64 exec, -1")
a.label("L_noep")
if DIAG:
    stamp("end")
    a("s_waitcnt lgkmcnt(0)")
    for i in range(nstamp[0]): a(f"v_mov_b32 {vr(32+i)}, {sr(sST+2*i)}")
    a(f"s_lshl3_add_u32 {sr(sT0)}, s2, {sr(sW)}")
    a(f"s_lshl_b32 {sr(sT0)}, {sr(sT0)}, 6")
    a(f"s_add_u32 {sr(sT0)}, {sr(sT0)}, {STAMP}")
    a("v_mov_b32 v6, 0")
    a("s_mov_b64 exec, 1")
    for i in range(4): bstore(32 + 4*i, 4, 6, WS, sr(sT0), 16*i)
a("s_endpgm")
a.label("L_fallback")
a(f"s_mov_b32 {sr(sREDO)}, 1")
a(f"s_mov_b32 {sr(sOFF)}, 0")
a("v_mov_b32 v6, 0xff800000"); a("v_mov_b32 v7, v6")
a("s_waitcnt vmcnt(0)")
a.label("L_fb")
bload(rK(0), 4, vKA, WS, sr(sOFF), 0, "sc1")
a(f"s_add_u32 {sr(sOFF)}, {sr(sOFF)}, 0x1000")
a("s_waitcnt vmcnt(0)")
mfma32(S0, rK(0), Q0, None); mfma32(S1, rK(0), Q1, None)
a("s_nop 10")
rowmax(S0, 6, True); rowmax(S1, 7, True)
a(f"s_cmp_lg_u32 {sr(sOFF)}, 0x20000")
a("s_cbranch_scc1 L_fb")
ring_fill()
a("s_waitcnt vmcnt(18)")
a("s_branch L_havemax")
a.label("L_end")
a("s_endpgm")

nbad = check(a.lines)
ref = open(f"cdna_kernels/{NAME}.s.ref").read().split("\n")
head = [l for l in ref if l.startswith(";") and "@launch" not in l and "Override launch" not in l and "grid=ceil" not in l]
out = "\n".join(head) + f"""
; Fused single launch: 256 workgroups (one per CU) x 8 waves; generated by gen/gen.py.
; @launch grid=(256,1,1) block=(512,1,1) lds={LDS_BYTES}
.amdgcn_target "amdgcn-amd-amdhsa--gfx950"
.text
.globl {NAME}_kernel
.p2align 8
.type {NAME}_kernel,@function
""" + a.text() + f""".section .rodata,"a"
.p2align 6
.amdhsa_kernel {NAME}_kernel
  .amdhsa_next_free_vgpr 256
  .amdhsa_next_free_sgpr 102
  .amdhsa_accum_offset 256
  .amdhsa_group_segment_fixed_size 0
  .amdhsa_kernarg_size 96
  .amdhsa_user_sgpr_count 2
  .amdhsa_user_sgpr_kernarg_segment_ptr 1
  .amdhsa_system_sgpr_workgroup_id_x 1
.end_amdhsa_kernel
"""
open(sys.argv[1], "w").write(out)
print("hazards:", nbad, "lines:", len(a.lines), "stamps:", nstamp[0])
```

```python
import sys, math, struct
from asmlib import Asm, vr, sr, check

NAME = "concat_heads__mha_block__ssm_conv_h3__prompt"
OPT = dict(gfl="", pfl="", vz=1, noload=0, nopv=0, noqk=0, noexp=0, c0=0, prio=1, diag=0, spin=0, spinat="end", clk=0)
for arg in sys.argv[2:]:
    k, v = arg.split("=")
    try: OPT[k] = int(v, 0)
    except ValueError: OPT[k] = v
DIAG = OPT["diag"]

KV, UT, YT, OF, MB = 0, 0x400000, 0x600000, 0x800000, 0xA00000
MB_U, MB_KV, MB_Y, MB_O = MB, MB + 0x8000, MB + 0x10000, MB + 0x18000
EP = MB + 0x20000
STAMP = 0xA30000
WS_SIZE = 0xA50000
K1 = 1024
SLOT = [0, 48 * K1, 96 * K1]
EX = 144 * K1
P0S = SLOT[2]
HB = SLOT[2]; HSTR = 4512
UB = HB + 8 * HSTR; USTR = 4224
CNT = UB + 2 * USTR
QF = 0; RED = 8 * K1
YB = 128 * K1; MG = 140 * K1
LDS_BYTES = 160 * K1
assert CNT + 16 <= MG
X, W, WO, BQ, BK, BV, SH, HK, DD, OUT, WS = 4, 8, 12, 16, 20, 24, 28, 32, 36, 40, 44
sW, sHQ, sTB, sDB, sTBB, sROT, sTAG, sMASK = 48, 49, 50, 51, 52, 53, 54, 55
sA, sT0, sT1, sT2, sT3, sSX, sSW, sM0 = 56, 57, 58, 59, 60, 61, 62, 63
sOFF, sPASS, sREDO, sSPIN, sAND = 64, 65, 66, 67, 68
sHALF = 70
sCT, sTT, sHH, sKH = 3, 69, 72, 73
sST = 74
SPINMAX = 0x20000
f2h = lambda x: hex(struct.unpack("<I", struct.pack("<f", x))[0])

a = Asm()
nstamp = [0]
def stamp(name):
    if OPT["spin"] and name.replace(" ", "_") == OPT["spinat"]:
        L = newlab("spin")
        a.label(L)
        a("s_memrealtime s[98:99]"); a("s_waitcnt lgkmcnt(0)")
        a("s_sub_u32 s98, s98, s100"); a(f"s_cmp_lt_u32 s98, {OPT['spin'] * 100}"); a(f"s_cbranch_scc1 {L}")
    if DIAG == 2:
        if name in ("B1", "B5", "B6", "loop start", "loop end", "end"):
            i = nstamp[0]; nstamp[0] += 2
            a(f"s_memrealtime {sr(sST + 2 * i, 2)}")
            a(f"s_memtime {sr(sST + 2 * i + 2, 2)}")
    elif DIAG:
        i = nstamp[0]; nstamp[0] += 1
        assert sST + 2 * i + 1 <= 101, "too many stamps"
        a(f"{'s_memtime' if OPT['clk'] else 's_memrealtime'} {sr(sST + 2 * i, 2)} ; stamp {i} {name}")
def set_stamp(i): nstamp[0] = i
lab = [0]
def newlab(p):
    lab[0] += 1; return f"L_{p}{lab[0]}"

def bload(dst, n, vaddr, srd, soff, off=0, flags=""):
    op = {1: "dword", 2: "dwordx2", 4: "dwordx4"}[n]
    a(f"buffer_load_{op} {vr(dst, n)}, {vr(vaddr)}, {sr(srd, 4)}, {soff} offen" + (f" offset:{off}" if off else "") + (" " + flags if flags else ""))
def bstore(src, n, vaddr, srd, soff, off=0, flags=""):
    op = {1: "dword", 2: "dwordx2", 4: "dwordx4"}[n]
    a(f"buffer_store_{op} {vr(src, n)}, {vr(vaddr)}, {sr(srd, 4)}, {soff} offen" + (f" offset:{off}" if off else "") + (" " + flags if flags else ""))
def dma(vaddr, srd, soff, flags=""):
    a(f"buffer_load_dwordx4 {vr(vaddr)}, {sr(srd, 4)}, {soff} offen" + (" " + flags if flags else "") + " lds")
def dsr(op, dst, n, vaddr, off=0):
    assert 0 <= off < 65536
    a(f"{op} {vr(dst, n)}, {vr(vaddr)}" + (f" offset:{off}" if off else ""))
def dsw(op, vaddr, src, n, off=0):
    assert 0 <= off < 65536
    a(f"{op} {vr(vaddr)}, {vr(src, n)}" + (f" offset:{off}" if off else ""))
def mfma32(d, A, B, c): a(f"v_mfma_f32_32x32x16_bf16 {vr(d,16)}, {vr(A,4)}, {vr(B,4)}, " + ("0" if c is None else vr(c, 16)))
def mfma16(d, A, B, c): a(f"v_mfma_f32_16x16x32_bf16 {vr(d,4)}, {vr(A,4)}, {vr(B,4)}, " + ("0" if c is None else vr(c, 4)))
def cvt(d, x, y): a(f"v_cvt_pk_bf16_f32 {vr(d)}, {vr(x)}, {vr(y)}")
def lo(d, s): a(f"v_lshlrev_b32 {vr(d)}, 16, {vr(s)}")
def hi(d, s): a(f"v_and_b32 {vr(d)}, {sr(sMASK)}, {vr(s)}")

bload_, mfma32_ = bload, mfma32
def poll(vaddr, vtmp, soff, first_issued=False):
    L, Lo = newlab("poll"), newlab("pollok")
    a(f"s_mov_b32 {sr(sSPIN)}, 0")
    if first_issued:
        a(f"v_cmp_ne_u32 vcc, {sr(sTAG)}, {vr(vtmp)}")
        a(f"s_cbranch_vccz {Lo}")
    a.label(L)
    bload(vtmp, 1, vaddr, WS, soff, flags="sc1")
    a(f"s_add_u32 {sr(sSPIN)}, {sr(sSPIN)}, 1")
    a(f"s_cmp_ge_u32 {sr(sSPIN)}, {SPINMAX}")
    a("s_waitcnt vmcnt(0)")
    a(f"s_cbranch_scc1 {Lo}")
    a(f"v_cmp_ne_u32 vcc, {sr(sTAG)}, {vr(vtmp)}")
    a(f"s_cbranch_vccz {Lo}")
    a("s_sleep 2")
    a(f"s_branch {L}")
    a.label(Lo)

def push(nl, vt0, vt1, soff):
    a(f"v_lshlrev_b32 {vr(vt0)}, 7, v1")
    a(f"v_mov_b32 {vr(vt1)}, {sr(sTAG)}")
    a(f"s_mov_b64 exec, {hex((1 << nl) - 1)}")
    bstore(vt1, 1, vt0, WS, soff, flags="sc1")
    a("s_mov_b64 exec, -1")

def arrive(cntoff, last, vt0, vt1, pushfn):
    L = newlab("arr")
    a(f"v_mov_b32 {vr(vt0)}, {CNT + cntoff}")
    a(f"v_mov_b32 {vr(vt1)}, 1")
    a("s_mov_b64 exec, 1")
    a(f"ds_add_rtn_u32 {vr(vt1)}, {vr(vt0)}, {vr(vt1)}")
    a("s_waitcnt lgkmcnt(0)")
    a(f"v_cmp_ne_u32 vcc, {last}, {vr(vt1)}")
    a("s_mov_b64 exec, -1")
    a(f"s_cbranch_vccnz {L}")
    pushfn()
    a.label(L)

a.label(f"{NAME}_kernel")
a("s_cmp_ge_u32 s2, 0x100")
a("s_cbranch_scc1 L_end")
a("s_load_dwordx16 s[64:79], s[0:1], 0")
a("s_load_dwordx8 s[80:87], s[0:1], 64")
if DIAG or OPT["spin"]: a("s_memtime s[100:101]" if OPT["clk"] else "s_memrealtime s[100:101]")
a("s_getpc_b64 s[88:89]")
a.label("L_pc")
a(f"s_lshr_b32 {sr(sTBB)}, s2, 3")
a(f"s_and_b32 {sr(sDB)}, s2, 7")
a("v_lshrrev_b32 v6, 6, v0")
a(f"v_lshl_add_u32 v7, {sr(sTBB)}, 3, v6")
a("v_lshlrev_b32 v7, 7, v7")
a("v_min_u32 v7, L_end-L_pc, v7")
a("global_load_dword v7, v7, s[88:89]")
a(f"v_readfirstlane_b32 {sr(sW)}, v6")
a("v_and_b32 v1, 63, v0")
a("v_and_b32 v5, 31, v0")
a("v_lshrrev_b32 v2, 5, v0")
a("v_lshlrev_b32 v4, 4, v5")
a("v_lshlrev_b32 v5, 2, v5")
a("v_lshl_add_u32 v2, v2, 12, v5")
a(f"s_lshl_b32 {sr(sA)}, {sr(sTBB)}, 16")
a(f"s_lshl_b32 {sr(sT0)}, {sr(sDB)}, 7")
a(f"s_lshl_b32 {sr(sT1)}, {sr(sDB)}, 9")
a(f"s_add_u32 {sr(sA)}, {sr(sA)}, {sr(sT0)}")
a(f"s_sub_u32 {sr(sT2)}, {sr(sA)}, 0xc00")
a(f"v_add_u32 v3, {sr(sT2)}, v2")
a(f"s_mov_b32 {sr(BK+2)}, 0x200000")
a(f"s_mov_b32 {sr(BK+3)}, 0x20000")
for r in (BV, X, HK, BQ): a(f"s_mov_b64 {sr(r+2,2)}, {sr(BK+2,2)}")
for r, n in ((SH, 4096), (DD, 1024)):
    a(f"s_movk_i32 {sr(r+2)}, {n}"); a(f"s_mov_b32 {sr(r+3)}, {sr(BK+3)}")
a("s_waitcnt lgkmcnt(0)")
a(f"s_mov_b64 {sr(BK,2)}, s[72:73]")
a(f"s_mov_b64 {sr(BV,2)}, s[74:75]")
a(f"s_mov_b64 {sr(SH,2)}, s[76:77]")
a(f"s_mov_b64 {sr(DD,2)}, s[80:81]")
for i in range(3): bload(16 + i, 1, 3, BK, 0, 1024 * i)
for i in range(4): bload(19 + i, 1, 2, BK, sr(sA), 1024 * i)
bload(28, 4, 4, SH, sr(sT1))
for i in range(4): bload(23 + i, 1, 2, BV, sr(sA), 1024 * i)
bload(27, 1, 5, DD, sr(sT0))
a(f"s_mov_b64 {sr(X,2)}, s[64:65]")
a(f"s_mov_b64 {sr(W,2)}, s[66:67]")
a(f"s_mov_b64 {sr(WS,2)}, s[86:87]")
a(f"s_mov_b32 {sr(W+2)}, 0x180000"); a(f"s_mov_b32 {sr(W+3)}, {sr(BK+3)}")
a(f"s_and_b32 {sr(sT0)}, {sr(sTBB)}, 3")
a(f"s_lshr_b32 {sr(sT1)}, {sr(sTBB)}, 2")
a(f"s_add_u32 {sr(sROT)}, {sr(sT0)}, {sr(sT1)}")
a(f"s_and_b32 {sr(sHQ)}, {sr(sDB)}, 1")
a(f"s_lshl2_add_u32 {sr(sHQ)}, {sr(sHQ)}, {sr(sT0)}")
a(f"s_lshr_b32 {sr(sTB)}, {sr(sDB)}, 1")
a(f"s_lshl3_add_u32 {sr(sTB)}, {sr(sTB)}, {sr(sT1)}")
vXS, vWS = 48, 49
a("v_lshrrev_b32 v6, 4, v0")
a("v_xor_b32 v32, v6, v0")
a("v_and_b32 v32, 15, v32")
a("v_lshlrev_b32 v32, 4, v32")
a(f"v_lshl_add_u32 {vr(vXS)}, v6, 10, v32")
a("v_lshrrev_b32 v6, 2, v0")
a("v_and_b32 v6, 4, v6")
a("v_xor_b32 v6, v6, v0")
a("v_and_b32 v6, 7, v6")
a("v_lshrrev_b32 v32, 3, v0")
a("v_mul_u32_u24 v32, 0xc00, v32")
a(f"v_lshl_add_u32 {vr(vWS)}, v6, 4, v32")
a(f"s_lshl_b32 {sr(sM0)}, {sr(sW)}, 10")

def chunk_offsets(c):
    a(f"s_add_u32 {sr(sT0)}, {sr(sROT)}, {c}")
    a(f"s_and_b32 {sr(sT0)}, {sr(sT0)}, 3")
    a(f"s_lshl_b32 {sr(sT1)}, {sr(sHQ)}, 7")
    a(f"s_mul_i32 {sr(sSW)}, {sr(sT0)}, {128*3072}")
    a(f"s_add_u32 {sr(sSW)}, {sr(sSW)}, {sr(sT1)}")
def dma_w(part, ldsbase):
    for i in range(2):
        a(f"s_add_u32 m0, {sr(sM0)}, {ldsbase + 8192 * i}")
        a(f"s_add_u32 {sr(sT2)}, {sr(sSW)}, {part * 1024 + i * 64 * 3072}")
        dma(vWS, W, sr(sT2))
def dma_chunk(c):
    s = SLOT[c % 3]
    chunk_offsets(c)
    a(f"s_lshl_b32 {sr(sT1)}, {sr(sTB)}, 8")
    a(f"s_add_u32 {sr(sT0)}, {sr(sT0)}, {sr(sT1)}")
    a(f"s_lshl_b32 {sr(sSX)}, {sr(sT0)}, 8")
    for i in range(2):
        a(f"s_add_u32 m0, {sr(sM0)}, {s + 8192 * i}")
        a(f"s_add_u32 {sr(sT2)}, {sr(sSX)}, {32768 * i}")
        dma(vXS, X, sr(sT2))
    dma_w(1, s + 16 * K1)
    dma_w(2, s + 32 * K1)

dma_chunk(0)
dma_w(0, EX)
a(f"s_add_u32 s88, s86, {EP}")
a("s_addc_u32 s89, s87, 0")
a(f"s_load_dword {sr(sTAG)}, s[88:89], 0")
a(f"s_mov_b64 {sr(HK,2)}, s[78:79]")
a(f"s_mov_b64 {sr(WO,2)}, s[68:69]")
a(f"s_mov_b64 {sr(BQ,2)}, s[70:71]")
a(f"s_mov_b64 {sr(OUT,2)}, s[82:83]")
for r, n in ((WO, 0x80000), (OUT, 0x400000), (WS, WS_SIZE)):
    a(f"s_mov_b32 {sr(r+2)}, {hex(n)}"); a(f"s_mov_b32 {sr(r+3)}, {sr(BK+3)}")
a(f"s_mov_b32 {sr(sMASK)}, 0xffff0000")
HP, HL = 56, 58
a("v_lshlrev_b32 v6, 4, v0")
a("v_and_b32 v32, 0xff, v0")
a("v_cmp_eq_u32 vcc, 0, v32")
a("v_subrev_u32 v32, 8, v6")
a(f"s_lshl_b32 {sr(sT0)}, {sr(sDB)}, 5")
a(f"s_add_u32 {sr(sT0)}, {sr(sT0)}, {sr(sTBB)}")
a(f"s_lshl_b32 {sr(sT0)}, {sr(sT0)}, 13")
a("v_bfrev_b32 v33, 2")
a("v_cndmask_b32 v32, v32, v33, vcc")
bload(HL, 4, 6, HK, sr(sT0))
bload(HP, 2, 32, HK, sr(sT0))
if DIAG: a(f"s_mov_b64 {sr(sST,2)}, s[100:101]"); nstamp[0] = 1
stamp("issued")
UD = 8
KP, WJ, VP, DP, UU = 64, 80, 88, 96, 98
a("v_lshrrev_b32 v6, 5, v0")
a("v_xor_b32 v6, 15, v6")
a("v_lshrrev_b32 v32, 1, v6")
a("v_xor_b32 v32, v32, v0")
a("v_and_b32 v32, 7, v32")
a("v_and_b32 v6, 1, v6")
a("v_lshlrev_b32 v6, 3, v6")
a("v_lshl_add_u32 v6, v32, 4, v6")
a("v_lshl_add_u32 v6, v5, 5, v6")
a(f"v_add_u32 v34, {P0S}, v6")
a("v_lshrrev_b32 v6, 3, v0")
a("v_xor_b32 v32, v6, v0")
a("v_and_b32 v32, 7, v32")
a("v_lshlrev_b32 v32, 4, v32")
a("v_lshl_add_u32 v32, v6, 7, v32")
a(f"v_add_u32 v35, {P0S}, v32")
a("v_and_b32 v32, 31, v6")
a("v_lshrrev_b32 v6, 5, v6")
a("v_lshl_add_u32 v6, v32, 1, v6")
a("v_and_b32 v32, 7, v0")
a("v_lshlrev_b32 v32, 4, v32")
a("v_lshl_add_u32 v36, v6, 12, v32")
a(f"s_lshl_b32 {sr(sT0)}, {sr(sDB)}, 18")
a(f"s_sub_u32 {sr(sT1)}, 31, {sr(sTBB)}")
a(f"s_lshl_b32 {sr(sT1)}, {sr(sT1)}, 7")
a(f"s_add_u32 {sr(sT3)}, {sr(sT0)}, {sr(sT1)}")
a(f"s_add_u32 {sr(sT3)}, {sr(sT3)}, {UT}")
a("s_waitcnt vmcnt(15)")
for i in range(7): lo(KP + 2*i, 16 + i); hi(KP + 2*i + 1, 16 + i)
lo(WJ+0, 28); lo(WJ+1, 30); hi(WJ+2, 28); hi(WJ+3, 30)
lo(WJ+4, 29); lo(WJ+5, 31); hi(WJ+6, 29); hi(WJ+7, 31)
for j in range(4):
    a(f"v_pk_mul_f32 {vr(UU+2*j,2)}, {vr(KP+2*j,2)}, {vr(WJ+6,2)}")
for t in (2, 1, 0):
    for j in range(4):
        a(f"v_pk_fma_f32 {vr(UU+2*j,2)}, {vr(KP+2*(j+3-t),2)}, {vr(WJ+2*t,2)}, {vr(UU+2*j,2)}")
a("s_waitcnt vmcnt(10)")
stamp("p0 loads")
for i in range(4): lo(VP + 2*i, 23 + i); hi(VP + 2*i + 1, 23 + i)
lo(DP, 27); hi(DP + 1, 27)
for j in range(4): a(f"v_pk_mul_f32 {vr(UU+2*j,2)}, {vr(UU+2*j,2)}, {vr(VP+2*j,2)}")
for c in range(2):
    cvt(16 + 2*c, UU + 6 + c, UU + 4 + c); cvt(17 + 2*c, UU + 2 + c, UU + c)
dsw("ds_write_b64", 34, 16, 2); dsw("ds_write_b64", 34, 18, 2, 4096)
for j in range(4): a(f"v_pk_mul_f32 {vr(UD+2*j,2)}, {vr(UU+2*j,2)}, {vr(DP,2)}")
a("s_waitcnt lgkmcnt(0)")
a("s_barrier")
dsr("ds_read_b128", 20, 4, 35)
a(f"s_mul_i32 {sr(sTAG)}, {sr(sTAG)}, 0x2c9277b5")
a(f"s_add_u32 {sr(sTAG)}, {sr(sTAG)}, 0xac564b05")
a("s_waitcnt lgkmcnt(0)")
bstore(20, 4, 36, WS, sr(sT3), flags="sc1")
dma_chunk(1)
XF, WF, ACC, ACQ = 128, 96, 64, 80
vXR, vWR, vXB, vWB, vXT = 50, 51, 52, 53, 54
a(f"s_and_b32 {sr(sCT)}, {sr(sW)}, 1")
a(f"s_bfe_u32 {sr(sTT)}, {sr(sW)}, 0x10001")
a(f"s_and_b32 {sr(sHH)}, {sr(sW)}, 3")
a(f"s_lshr_b32 {sr(sKH)}, {sr(sW)}, 2")
a("v_bfe_u32 v6, v1, 2, 2")
a("v_lshrrev_b32 v32, 5, v1")
a("v_lshl_add_u32 v33, v32, 3, v6")
a("v_lshrrev_b32 v6, 1, v6")
a(f"v_xor_b32 v6, {sr(sCT)}, v6")
a("v_lshlrev_b32 v6, 6, v6")
a("v_lshl_add_u32 v33, v33, 7, v6")
a("v_and_b32 v6, 16, v1")
a("v_lshl_add_u32 v33, v6, 1, v33")
a("v_and_b32 v6, 3, v1")
a(f"v_lshl_add_u32 {vr(vWR)}, v6, 3, v33")
a("v_and_b32 v6, 31, v1")
a(f"s_cmp_ge_u32 {sr(sW)}, 4")
a("s_cbranch_scc1 L_vwave")

def x_addr():
    a("v_xor_b32 v33, v32, v6")
    a("v_and_b32 v33, 15, v33")
    a("v_lshlrev_b32 v33, 4, v33")
    a(f"v_lshl_add_u32 v6, {sr(sTT)}, 5, v6")
    a(f"v_lshl_add_u32 {vr(vXR)}, v6, 8, v33")
def gemm_chunk(c, xbase, wbase, acc, first, swap):
    if xbase is not None: a(f"v_add_u32 {vr(vXB)}, {xbase}, {vr(vXR)}")
    a(f"v_add_u32 {vr(vWB)}, {wbase}, {vr(vWR)}")
    n = 3 if xbase is not None else 2
    def rd(s):
        if xbase is not None:
            t = vXT + (s & 1)
            if s: a(f"v_xor_b32 {vr(t)}, {32*s}, {vr(vXB)}")
            dsr("ds_read_b128", XF + 4*(8*c + s), 4, t if s else vXB)
        dsr("ds_read_b64_tr_b16", WF + 4*s, 2, vWB, 2048*s)
        dsr("ds_read_b64_tr_b16", WF + 4*s + 2, 2, vWB, 2048*s + 512)
    D = 4
    for s in range(D): rd(s)
    for s in range(8):
        a(f"s_waitcnt lgkmcnt({n * (min(8, s + D) - s - 1)})")
        x, w = XF + 4*(8*c + s), WF + 4*s
        mfma32(acc, x if swap else w, w if swap else x, None if (first and s == 0) else acc)
        if s + D < 8: rd(s + D)
def h_copies():
    T = 16
    a("v_lshrrev_b32 v6, 8, v0")
    a(f"v_mul_u32_u24 v6, {4*HSTR}, v6")
    a("v_and_b32 v32, 0xff, v0")
    a("v_lshl_add_u32 v6, v32, 4, v6")
    a(f"v_add_u32 v6, {HB + 384}, v6")
    D = [HP, HP+1, HL, HL+1, HL+2, HL+3]
    dsw("ds_write_b128", 6, HL, 4, 3*HSTR)
    for j in range(4): a(f"v_alignbit_b32 {vr(T+j)}, {vr(D[2+j])}, {vr(D[1+j])}, 16")
    for j in range(4): a(f"v_mov_b32 {vr(T+4+j)}, {vr(D[1+j])}")
    for j in range(4): a(f"v_alignbit_b32 {vr(T+8+j)}, {vr(D[1+j])}, {vr(D[j])}, 16")
    dsw("ds_write_b128", 6, T, 4, 2*HSTR)
    dsw("ds_write_b128", 6, T+4, 4, HSTR)
    dsw("ds_write_b128", 6, T+8, 4, 0)
    a(f"s_mul_i32 {sr(sT0)}, {sr(sW)}, {HSTR}")
    a(f"s_add_u32 {sr(sT0)}, {sr(sT0)}, {HB}")
    a(f"s_mul_i32 {sr(sT1)}, {sr(sCT)}, {USTR}")
    a(f"s_add_u32 {sr(sT1)}, {sr(sT1)}, {UB + 4096 - 384}")
    a(f"v_lshl_add_u32 v6, v1, 4, {sr(sT0)}")
    a(f"v_lshl_add_u32 v32, v1, 4, {sr(sT1)}")
    a("v_cmp_gt_u32 vcc, 24, v1")
    for j in range(4): a(f"v_mov_b32 {vr(T+12+j)}, 0")
    a("v_cndmask_b32 v6, v32, v6, vcc")
    a("v_cmp_gt_u32 vcc, 32, v1")
    a(f"v_mov_b32 v32, {CNT}")
    a("s_nop 0")
    a("v_cndmask_b32 v6, v32, v6, vcc")
    dsw("ds_write_b128", 6, T+12, 4)
def push_u():
    a(f"s_lshl_b32 {sr(sT0)}, {sr(sDB)}, 12")
    a(f"s_lshl2_add_u32 {sr(sT0)}, {sr(sTBB)}, {sr(sT0)}")
    a(f"s_add_u32 {sr(sT0)}, {sr(sT0)}, {MB_U}")
    push(32, 6, 32, sr(sT0))
def push_kv():
    a(f"s_lshl_b32 {sr(sT0)}, {sr(sHQ)}, 12")
    a(f"s_lshl2_add_u32 {sr(sT0)}, {sr(sTB)}, {sr(sT0)}")
    a(f"s_add_u32 {sr(sT0)}, {sr(sT0)}, {MB_KV}")
    push(32, 6, 7, sr(sT0))
def push_y():
    a(f"s_lshl_b32 {sr(sT0)}, {sr(sDB)}, 12")
    a(f"s_lshl2_add_u32 {sr(sT0)}, {sr(sTBB)}, {sr(sT0)}")
    a(f"s_add_u32 {sr(sT0)}, {sr(sT0)}, {MB_Y}")
    push(32, 6, 7, sr(sT0))
def kv_soff():
    a(f"s_lshl1_add_u32 {sr(sT0)}, {sr(sHQ)}, {sr(sCT)}")
    a(f"s_lshl_b32 {sr(sT0)}, {sr(sT0)}, 18")
    a(f"s_lshl1_add_u32 {sr(sT1)}, {sr(sTB)}, {sr(sTT)}")
    a(f"s_lshl_b32 {sr(sT1)}, {sr(sT1)}, 11")
    a(f"s_add_u32 {sr(sT3)}, {sr(sT0)}, {sr(sT1)}")

def gemm_main(isv):
    part = 32 * K1 if isv else 16 * K1
    a("s_waitcnt vmcnt(9)"); a("s_barrier")
    stamp("B1")
    dma_chunk(2)
    gemm_chunk(0, SLOT[0], SLOT[0] + part, ACC, True, isv)
    if not isv: gemm_chunk(0, None, EX, ACQ, True, False)
    a("s_waitcnt vmcnt(6)"); a("s_barrier")
    if isv:
        L = newlab("nu")
        a(f"s_cmp_lg_u32 {sr(sW)}, 4"); a(f"s_cbranch_scc1 {L}")
        push_u()
        a.label(L)
    dma_chunk(3)
    gemm_chunk(1, SLOT[1], SLOT[1] + part, ACC, False, isv)
    a("s_waitcnt vmcnt(6)"); a("s_barrier")
    for c in (1, 2, 3):
        chunk_offsets(c); dma_w(0, SLOT[1] + 16 * K1 * (c - 1))
    gemm_chunk(2, SLOT[2], SLOT[2] + part, ACC, False, isv)
    a("s_waitcnt vmcnt(6)"); a("s_barrier")
    stamp("B4")
    gemm_chunk(3, SLOT[0], SLOT[0] + part, ACC, False, isv)
    kv_soff()
    if isv:
        a("v_bfe_u32 v6, v1, 4, 1")
        a("v_lshlrev_b32 v6, 17, v6")
        a("v_lshrrev_b32 v32, 5, v1")
        a("v_lshl_add_u32 v6, v32, 8, v6")
        a("v_and_b32 v32, 15, v1")
        a("v_lshl_add_u32 v33, v32, 4, v6")
        a("s_nop 0")
    else:
        a("v_lshlrev_b32 v33, 4, v1")
        a(f"s_add_u32 {sr(sT2)}, {sr(sT3)}, 0x20000")
        a("s_nop 4")
    for j in range(8): cvt(40 + j, ACC + 2*j, ACC + 2*j + 1)
    if isv:
        bstore(40, 4, 33, WS, sr(sT3), 1024, "sc1"); bstore(44, 4, 33, WS, sr(sT3), 1536, "sc1")
    else:
        bstore(40, 4, 33, WS, sr(sT3), 0, "sc1"); bstore(44, 4, 33, WS, sr(sT2), 0, "sc1")
    h_copies()
    a("s_waitcnt vmcnt(2) lgkmcnt(0)"); a("s_barrier")
    stamp("B5")

O0, O1, S0, S1, C0, C1 = 16, 32, 48, 64, 80, 96
Q0, Q1 = 112, 116
QG = 120
vIDX, vKA, vVA = 124, 125, 126
RING = 128
def rK(i): return RING + 12 * (i & 7)
def rVa(i): return RING + 12 * (i & 7) + 4
def rVb(i): return RING + 12 * (i & 7) + 8
def attn_setup():
    a(f"s_lshl2_add_u32 {sr(sT0)}, {sr(sHQ)}, {sr(sHH)}")
    a(f"s_lshl_b32 {sr(sT0)}, {sr(sT0)}, 17")
    a(f"s_lshl_b32 {sr(sT1)}, {sr(sKH)}, 11")
    a(f"s_add_u32 {sr(sT0)}, {sr(sT0)}, {sr(sT1)}")
    a(f"v_lshl_add_u32 {vr(vKA)}, v1, 4, {sr(sT0)}")
    a("v_lshrrev_b32 v6, 5, v1")
    a(f"v_lshl_add_u32 v6, v6, 8, {sr(sT0)}")
    a("v_and_b32 v7, 15, v1")
    a(f"v_lshl_add_u32 {vr(vVA)}, v7, 4, v6")
    a(f"v_mov_b32 {vr(vIDX)}, 0xdddddddd")
    a(f"s_mov_b32 {sr(sHALF)}, 0xffff"); a(f"s_mov_b32 {sr(sHALF+1)}, {sr(sHALF)}")
    a(f"s_mov_b32 {sr(sAND)}, 0x4001ffff")
    a(f"s_mov_b32 {sr(sREDO)}, 0")
    a("v_mov_b32 v6, 0x3f803f80")
    if OPT["vz"]:
        a("v_and_b32 v7, 0x1b, v1"); a("v_cmp_eq_u32 vcc, 16, v7"); a("s_nop 1"); a("v_cndmask_b32 v6, 0, v6, vcc")
    a("v_mov_b32 v7, v6")
    for i in range(8):
        for j in range(4): a(f"v_mov_b64 {vr(rVa(i) + 2*j, 2)}, v[6:7]")
def adv():
    a(f"s_add_u32 {sr(sOFF)}, {sr(sOFF)}, 0x1000")
    a(f"s_and_b32 {sr(sOFF)}, {sr(sOFF)}, {sr(sAND)}")
def ring_fill():
    a(f"s_lshl_b32 {sr(sOFF)}, {sr(sTB)}, 12")
    for i in range(7):
        bload(rK(i), 4, vKA, WS, sr(sOFF), 0, "sc1")
        a(f"s_mov_b64 exec, {sr(sHALF,2)}")
        bload(rVa(i), 4, vVA, WS, sr(sOFF), 1024, "sc1")
        bload(rVb(i), 4, vVA, WS, sr(sOFF), 1536, "sc1")
        a("s_mov_b64 exec, -1")
        adv()
def q_loads():
    for i in range(4): bload(QG + i, 1, 2, BQ, sr(sA), 1024 * i)
def read_qf():
    a(f"s_lshl1_add_u32 {sr(sT0)}, {sr(sHH)}, {sr(sKH)}")
    a(f"s_lshl_b32 {sr(sT0)}, {sr(sT0)}, 10")
    a(f"v_lshl_add_u32 v6, v1, 4, {sr(sT0)}")
    a("v_xor_b32 v7, 0x400, v6")
    dsr("ds_read_b128", Q0, 4, 6, QF); dsr("ds_read_b128", Q1, 4, 7, QF)

x_addr()
s0 = nstamp[0]
gemm_main(False)
for c in (1, 2, 3):
    gemm_chunk(c, None, SLOT[1] + 16 * K1 * (c - 1), ACQ, False, False)
a("s_waitcnt vmcnt(0)")
arrive(0, 7, 6, 7, push_kv)
a(f"s_mov_b32 {sr(sT2)}, {f2h(0.25 * math.log2(math.e))}")
a(f"s_lshl2_add_u32 {sr(sT0)}, {sr(sCT)}, {sr(sTT)}")
a(f"s_lshl_b32 {sr(sT0)}, {sr(sT0)}, 10")
a(f"v_lshl_add_u32 v33, v1, 4, {sr(sT0)}")
a("s_nop 3")
for j in range(16): a(f"v_mul_f32 {vr(ACQ+j)}, {sr(sT2)}, {vr(ACQ+j)}")
for j in range(8): cvt(40 + j, ACQ + 2*j, ACQ + 2*j + 1)
dsw("ds_write_b128", 33, 40, 4, QF); dsw("ds_write_b128", 33, 44, 4, QF + 2048)
stamp("q done")
attn_setup()
a(f"s_lshl_b32 {sr(sT0)}, {sr(sHQ)}, 5")
a(f"s_add_u32 {sr(sT0)}, {sr(sT0)}, {sr(sTB)}")
a(f"s_lshl_b32 {sr(sT0)}, {sr(sT0)}, 7")
a(f"s_add_u32 {sr(sT3)}, {sr(sT0)}, {MB_KV}")
poll(5, 6, sr(sT3))
stamp("kv flags")
ring_fill()
q_loads()
a("s_waitcnt lgkmcnt(0)"); a("s_barrier")
stamp("B6")
read_qf()
a("s_waitcnt lgkmcnt(0)")
arrive(4, 7, 6, 7, push_y)
if OPT["prio"]: a("s_setprio 1")
a("s_branch L_attn")

a.label("L_vwave")
a("v_and_b32 v33, 0x13, v6")
a("v_and_b32 v7, 4, v6")
a("v_lshl_or_b32 v33, v7, 1, v33")
a("v_and_b32 v7, 8, v6")
a("v_lshrrev_b32 v7, 1, v7")
a("v_or_b32 v6, v7, v33")
x_addr()
set_stamp(s0)
gemm_main(True)
a(f"s_lshl_b32 {sr(sT0)}, {sr(sDB)}, 5")
a(f"s_add_u32 {sr(sT0)}, {sr(sT0)}, {sr(sTBB)}")
a(f"s_lshl_b32 {sr(sSX)}, {sr(sT0)}, 13")
a(f"s_lshl_b32 {sr(sT0)}, {sr(sT0)}, 7")
a(f"s_add_u32 {sr(sT3)}, {sr(sT0)}, {MB_U}")
bload(33, 1, 5, WS, sr(sT3), flags="sc1")
CA, CB, CY = [128, 192], [160, 224], 16
vHA, vUA = 50, 51
a("v_and_b32 v6, 3, v1")
a(f"v_mul_u32_u24 v6, {HSTR}, v6")
a("v_bfe_u32 v7, v1, 2, 2")
a("v_lshl_add_u32 v6, v7, 7, v6")
a("v_and_b32 v7, 0x30, v1")
a("v_add_u32 v6, v6, v7")
a(f"s_mul_i32 {sr(sT0)}, {sr(sCT)}, {4*HSTR}")
a(f"s_lshl_b32 {sr(sT1)}, {sr(sTT)}, 8")
a(f"s_add_u32 {sr(sT0)}, {sr(sT0)}, {sr(sT1)}")
a(f"s_add_u32 {sr(sT0)}, {sr(sT0)}, {HB}")
a(f"v_add_u32 {vr(vHA)}, {sr(sT0)}, v6")
a("v_and_b32 v6, 15, v1")
a("v_lshlrev_b32 v6, 3, v6")
a("v_sub_u32 v6, v7, v6")
a(f"s_mul_i32 {sr(sSW)}, {sr(sCT)}, {USTR}")
a(f"s_add_u32 {sr(sSW)}, {sr(sSW)}, {UB}")
a(f"s_add_u32 {sr(sT0)}, {sr(sSW)}, {sr(sT1)}")
a(f"s_add_u32 {sr(sT0)}, {sr(sT0)}, 120")
a(f"v_add_u32 {vr(vUA)}, {sr(sT0)}, v6")
a("v_lshlrev_b32 v52, 4, v1")
a(f"s_lshl_b32 {sr(sT0)}, {sr(sCT)}, 12")
a(f"s_add_u32 {sr(sSX)}, {sr(sSX)}, {sr(sT0)}")
a("s_waitcnt vmcnt(0)")
arrive(0, 7, 6, 7, push_kv)
poll(5, 33, sr(sT3), True)
stamp("u flags")
a(f"s_add_u32 {sr(sT2)}, {sr(sSX)}, {UT}")
a(f"s_mov_b32 m0, {sr(sSW)}")
a("s_nop 0")
for i in range(4):
    a(f"buffer_load_dwordx4 v52, {sr(WS,4)}, {sr(sT2)} offen offset:{1024*i} sc1 lds")
def conv_reads(cls):
    b = cls & 1; out = []
    for i in range(8):
        out.append(("ds_read_b128", CA[b] + 4*i, 4, vHA, 64*cls + 512*i))
        out.append(("ds_read_b64", CB[b] + 4*i, 2, vUA, 3584 - 512*i + 64*cls))
        out.append(("ds_read_b64", CB[b] + 4*i + 2, 2, vUA, 3584 - 512*i + 64*cls + 8))
    return out
r0 = conv_reads(0)
for r in r0:
    if r[0] == "ds_read_b128": dsr(*r)
a("s_waitcnt vmcnt(0)")
stamp("u landed")
a("s_waitcnt lgkmcnt(0)")
rb = [r for r in r0 if r[0] != "ds_read_b128"]
for r in rb[:14]: dsr(*r)
a("s_waitcnt lgkmcnt(8)")
for r in rb[14:]: dsr(*r)
for cls in range(4):
    b = cls & 1
    a("s_waitcnt lgkmcnt(0)")
    nxt = conv_reads(cls + 1) if cls < 3 else []
    for ai in range(8):
        for bi in range(8 - ai):
            j = ai + bi
            mfma16(CY + 4*j, CA[b] + 4*ai, CB[b] + 4*bi, None if (cls == 0 and ai == 0) else CY + 4*j)
            if nxt: dsr(*nxt.pop(0))
a(f"s_lshl_b32 {sr(sT0)}, {sr(sHH)}, 12")
a(f"v_add_u32 v6, {sr(sT0)}, v52")
a("v_xor_b32 v7, 0x2000, v6")
a(f"s_cmp_lg_u32 {sr(sTT)}, 0")
a("s_nop 4")
a("s_cbranch_scc1 L_red1")
for j in range(4): dsw("ds_write_b128", 6, CY + 16 + 4*j, 4, RED + 1024*j)
a("s_branch L_red2")
a.label("L_red1")
for j in range(4): dsw("ds_write_b128", 6, CY + 4*j, 4, RED + 1024*j)
for j in range(8): a(f"v_mov_b64 {vr(CY + 2*j, 2)}, {vr(CY + 16 + 2*j, 2)}")
a.label("L_red2")
a("s_waitcnt lgkmcnt(0)"); a("s_barrier")
stamp("B6")
for j in range(4): dsr("ds_read_b128", CY + 16 + 4*j, 4, 7, RED + 1024*j)
read_qf()
a("v_lshlrev_b32 v52, 3, v1")
a(f"s_lshl_b32 {sr(sT0)}, {sr(sTT)}, 11")
a(f"s_add_u32 {sr(sSX)}, {sr(sSX)}, {sr(sT0)}")
a(f"s_add_u32 {sr(sSX)}, {sr(sSX)}, {YT}")
a("s_waitcnt lgkmcnt(0)")
for j in range(8): a(f"v_pk_add_f32 {vr(CY + 2*j, 2)}, {vr(CY + 2*j, 2)}, {vr(CY + 16 + 2*j, 2)}")
for j in range(8): cvt(CY + 16 + j, CY + 2*j, CY + 2*j + 1)
for j in range(4): bstore(CY + 16 + 2*j, 2, 52, WS, sr(sSX), 512*j, "sc1")
attn_setup()
ring_fill()
q_loads()
a("s_waitcnt vmcnt(25)")
arrive(4, 7, 6, 7, push_y)

def rowmax(S, m, acc):
    k = 0
    if not acc:
        a(f"v_max3_f32 {vr(m)}, {vr(S)}, {vr(S+1)}, {vr(S+2)}"); k = 3
    while k < 16:
        a(f"v_max3_f32 {vr(m)}, {vr(m)}, {vr(S+k)}, {vr(S+min(k+1,15))}"); k += 2
a.label("L_attn")
a("s_waitcnt vmcnt(22)")
mfma32(S0, rK(0), Q0, None); mfma32(S1, rK(0), Q1, None)
a("s_nop 10")
rowmax(S0, 6, False); rowmax(S1, 7, False)
a.label("L_havemax")
a("v_mov_b32 v4, v6"); a("v_mov_b32 v3, v7"); a("s_nop 1")
a("v_permlane32_swap_b32 v6, v4"); a("v_permlane32_swap_b32 v7, v3")
a(f"v_max_f32 v6, v6, v4"); a("v_max_f32 v7, v7, v3")
a(f"v_sub_f32 {vr(C0)}, 0, v6"); a(f"v_sub_f32 {vr(C0+1)}, 0, v6")
a(f"v_sub_f32 {vr(C1)}, 0, v7"); a(f"v_sub_f32 {vr(C1+1)}, 0, v7")
for j in range(1, 8): a(f"v_mov_b64 {vr(C0+2*j,2)}, {vr(C0,2)}")
for j in range(1, 8): a(f"v_mov_b64 {vr(C1+2*j,2)}, {vr(C1,2)}")
mfma32(S0, rK(0), Q0, C0)
for j in range(16): a(f"v_mov_b64 {vr(O0+2*j,2)}, 0")
for j in range(4): a(f"v_mov_b64 {vr(S1+8+2*j,2)}, 0")
a(f"s_mov_b32 {sr(sPASS)}, 0")
stamp("loop start")
def E(S, x, y):
    for k in range(x, y + 1): a(f"v_exp_f32 {vr(S+k)}, {vr(S+k)}" if not OPT["noexp"] else "s_nop 1")
if OPT["noload"]:
    def bload(*x, **y): a("s_nop 0")
if OPT["noqk"]:
    def mfma32(*x): a("s_nop 1")
if OPT["c0"]: C0x = C1x = None
else: C0x, C1x = C0, C1
def PV(O, V, S): a("s_nop 2" if OPT["nopv"] else f"v_smfmac_f32_32x32x32_bf16 {vr(O,16)}, {vr(V,4)}, {vr(S,8)}, {vr(vIDX)}")
a(".p2align 6")
a.label("L_loop")
for i in range(8):
    E(S0, 0, 1)
    PV(O1, rVb(i-1), S1 + 8)
    a(f"s_mov_b64 exec, {sr(sHALF,2)}")
    bload(rVa(i-1), 4, vVA, WS, sr(sOFF), 1024, "sc1")
    bload(rVb(i-1), 4, vVA, WS, sr(sOFF), 1536, "sc1")
    a("s_mov_b64 exec, -1")
    E(S0, 2, 5)
    mfma32(S1, rK(i), Q1, C1x)
    bload(rK(i-1), 4, vKA, WS, sr(sOFF), 0, "sc1")
    E(S0, 6, 9)
    PV(O0, rVa(i), S0)
    adv()
    E(S0, 10, 15)
    E(S1, 0, 1)
    PV(O0, rVb(i), S0 + 8)
    a("s_waitcnt vmcnt(18)")
    if i == 0: a(f"s_cmp_eq_u32 {sr(sPASS)}, 3")
    if i == 7: a(f"s_add_u32 {sr(sPASS)}, {sr(sPASS)}, 1")
    E(S1, 2, 5)
    mfma32(S0, rK(i+1), Q0, C0x)
    if i == 0: a(f"s_cselect_b32 {sr(sT0)}, 0x40000000, 0")
    elif i == 7: a(f"s_cmp_lg_u32 {sr(sPASS)}, 4")
    else: a("s_nop 0")
    E(S1, 6, 9)
    PV(O1, rVa(i), S1)
    if i == 0: a(f"s_or_b32 {sr(sOFF)}, {sr(sOFF)}, {sr(sT0)}")
    E(S1, 10, 15)
a("s_cbranch_scc1 L_loop")
bload, mfma32 = bload_, mfma32_
if OPT["noqk"] or OPT["noexp"]: a(f"s_mov_b32 {sr(sREDO)}, 1")
a("s_nop 0")
PV(O1, rVb(7), S1 + 8)
a(f"s_mov_b32 {sr(sT0)}, {f2h(2.0**24)}")
a(f"s_cmp_lg_u32 {sr(sREDO)}, 0")
a("s_nop 9")
a("s_cbranch_scc1 L_attn_done")
a(f"v_cmp_nle_f32 vcc, {vr(O0+8)}, {sr(sT0)}")
a(f"v_cmp_nle_f32 {sr(sT1,2)}, {vr(O1+8)}, {sr(sT0)}")
a(f"s_or_b64 vcc, vcc, {sr(sT1,2)}")
a("s_cbranch_vccnz L_fallback")
a.label("L_attn_done")
stamp("loop end")
a(f"s_mul_i32 {sr(sT0)}, {sr(sW)}, 2560")
a(f"s_add_u32 {sr(sT0)}, {sr(sT0)}, {MG}")
a(f"v_lshl_add_u32 v6, v1, 4, {sr(sT0)}")
a(f"v_lshl_add_u32 v7, v1, 3, {sr(sT0)}")
a(f"v_mov_b32 {vr(O1+9)}, {vr(C1)}")
dsw("ds_write_b128", 6, O1, 4); dsw("ds_write_b128", 6, O1 + 4, 4, 1024); dsw("ds_write_b64", 7, O1 + 8, 2, 2048)
a(f"s_xor_b32 {sr(sT0)}, {sr(sW)}, 4")
a(f"s_mul_i32 {sr(sT0)}, {sr(sT0)}, 2560")
a(f"s_add_u32 {sr(sT0)}, {sr(sT0)}, {MG}")
a(f"v_lshl_add_u32 v3, v1, 4, {sr(sT0)}")
a(f"v_lshl_add_u32 v4, v1, 3, {sr(sT0)}")
a(f"s_cmp_lg_u32 {sr(sKH)}, 0")
a("s_cbranch_scc1 L_merge")
a("s_setprio 0")
a(f"s_lshl_b32 {sr(sT0)}, {sr(sDB)}, 5")
a(f"s_add_u32 {sr(sT0)}, {sr(sT0)}, {sr(sTBB)}")
a(f"s_lshl_b32 {sr(sT0)}, {sr(sT0)}, 7")
a(f"s_add_u32 {sr(sT3)}, {sr(sT0)}, {MB_Y}")
poll(5, 6, sr(sT3))
a("v_lshrrev_b32 v6, 3, v0")
a("v_lshrrev_b32 v7, 1, v6")
a("v_xor_b32 v7, v7, v0")
a("v_and_b32 v7, 7, v7")
a("v_lshlrev_b32 v7, 4, v7")
a("v_lshl_add_u32 v6, v6, 13, v7")
a(f"s_lshl_b32 {sr(sT0)}, {sr(sDB)}, 18")
a(f"s_lshl_b32 {sr(sT1)}, {sr(sTBB)}, 7")
a(f"s_add_u32 {sr(sT0)}, {sr(sT0)}, {sr(sT1)}")
a(f"s_add_u32 m0, {sr(sM0)}, {YB}")
a(f"s_add_u32 {sr(sT0)}, {sr(sT0)}, {YT}")
dma(6, WS, sr(sT0), "sc1")
a(f"s_add_u32 m0, {sr(sM0)}, {YB + 4096}")
a(f"s_add_u32 {sr(sT0)}, {sr(sT0)}, 0x1000")
dma(6, WS, sr(sT0), "sc1")
a("v_lshrrev_b32 v6, 4, v0")
a("v_lshlrev_b32 v7, 1, v6")
a("v_xor_b32 v7, v7, v0")
a("v_and_b32 v7, 15, v7")
a("v_lshlrev_b32 v7, 4, v7")
a("v_lshl_add_u32 v6, v6, 10, v7")
a(f"s_and_b32 {sr(sT0)}, {sr(sHQ)}, 3")
a(f"v_lshl_add_u32 v6, {sr(sT0)}, 8, v6")
a(f"s_lshl_b32 {sr(sT0)}, {sr(sTB)}, 14")
a(f"s_mov_b32 {sr(sT1)}, 0")
a.label("L_wo")
a(f"s_and_b32 {sr(sT0)}, {sr(sT0)}, 0x1ffff")
a(f"s_add_u32 m0, {sr(sM0)}, {sr(sT0)}")
a(f"s_lshl_b32 {sr(sT2)}, {sr(sT0)}, 2")
dma(6, WO, sr(sT2))
a(f"s_add_u32 {sr(sT0)}, {sr(sT0)}, 0x1000")
a(f"s_add_u32 {sr(sT1)}, {sr(sT1)}, 1")
a(f"s_cmp_lg_u32 {sr(sT1)}, 32")
a("s_waitcnt vmcnt(3)")
a("s_cbranch_scc1 L_wo")
a.label("L_merge")
a("s_waitcnt vmcnt(0) lgkmcnt(0)"); a("s_barrier")
stamp("B7")
PP = S0
dsr("ds_read_b64", PP + 8, 2, 4, 2048); dsr("ds_read_b128", PP, 4, 3); dsr("ds_read_b128", PP + 4, 4, 3, 1024)
a("v_lshrrev_b32 v6, 6, v0")
a("v_lshrrev_b32 v7, 1, v0")
a("v_xor_b32 v6, v6, v7")
a("v_and_b32 v6, 7, v6")
a("v_lshlrev_b32 v6, 4, v6")
a("v_lshl_add_u32 v6, v5, 5, v6")
a("v_lshrrev_b32 v7, 2, v0")
a("v_and_b32 v7, 8, v7")
a("v_add_u32 v6, v6, v7")
a(f"v_add_u32 v6, {YB}, v6")
YY = S1
dsr("ds_read_b64", YY, 2, 6); dsr("ds_read_b64", YY + 2, 2, 6, 4096)
a(f"s_lshl1_add_u32 {sr(sT0)}, {sr(sTB)}, {sr(sKH)}")
a(f"s_lshl_b32 {sr(sT0)}, {sr(sT0)}, 15")
a(f"s_lshl2_add_u32 {sr(sT1)}, {sr(sHQ)}, {sr(sHH)}")
a(f"s_lshl_b32 {sr(sT2)}, {sr(sT1)}, 10")
a(f"s_add_u32 {sr(sT0)}, {sr(sT0)}, {sr(sT2)}")
a(f"s_add_u32 {sr(sT0)}, {sr(sT0)}, {OF}")
a("s_waitcnt lgkmcnt(4)")
a(f"v_min_f32 v6, {vr(C0)}, {vr(PP+9)}")
a(f"v_sub_f32 v7, v6, {vr(C0)}")
a(f"v_sub_f32 v6, v6, {vr(PP+9)}")
a("v_exp_f32 v7, v7"); a("v_exp_f32 v6, v6")
a("v_lshlrev_b32 v3, 4, v1")
a(f"v_mul_f32 v4, v7, {vr(O0+8)}")
a(f"v_fmac_f32 v4, v6, {vr(PP+8)}")
a("v_rcp_f32 v4, v4")
a("s_waitcnt lgkmcnt(2)")
a("v_mul_f32 v7, v7, v4"); a("v_mul_f32 v6, v6, v4")
for j in range(8): a(f"v_mul_f32 {vr(O0+j)}, v7, {vr(O0+j)}")
for j in range(8): a(f"v_fmac_f32 {vr(O0+j)}, v6, {vr(PP+j)}")
for j in range(4): cvt(O1 + j, O0 + 2*j, O0 + 2*j + 1)
bstore(O1, 4, 3, WS, sr(sT0), 0, "sc1")
GY, GQ = S0, S0 + 8
a("s_waitcnt lgkmcnt(0)")
for c in range(2):
    lo(GY + c, YY + 2*c); hi(GY + 2 + c, YY + 2*c); lo(GY + 4 + c, YY + 2*c + 1); hi(GY + 6 + c, YY + 2*c + 1)
for j in range(4): lo(GQ + 2*j, QG + j); hi(GQ + 2*j + 1, QG + j)
for j in range(4): a(f"v_pk_add_f32 {vr(GY+2*j,2)}, {vr(GY+2*j,2)}, {vr(UD+2*j,2)}")
for j in range(4): a(f"v_pk_mul_f32 {vr(GY+2*j,2)}, {vr(GY+2*j,2)}, {vr(GQ+2*j,2)}")
for j in range(4): cvt(QG + j, GY + 2*j, GY + 2*j + 1)
a("v_lshrrev_b32 v6, 5, v0")
a("v_lshl_add_u32 v6, v6, 13, v5")
a(f"s_lshl_b32 {sr(sT0)}, {sr(sTBB)}, 17")
a(f"s_lshl_b32 {sr(sT2)}, {sr(sDB)}, 7")
a(f"s_add_u32 {sr(sT0)}, {sr(sT0)}, {sr(sT2)}")
a(f"s_add_u32 {sr(sT2)}, {sr(sT0)}, 0x1000")
gfl = OPT["gfl"].replace("_", " ")
bstore(QG, 1, 6, OUT, sr(sT0), 1024, gfl); bstore(QG + 1, 1, 6, OUT, sr(sT0), 3072, gfl)
bstore(QG + 2, 1, 6, OUT, sr(sT2), 1024, gfl); bstore(QG + 3, 1, 6, OUT, sr(sT2), 3072, gfl)
WOF = 128
a("v_bfe_u32 v6, v1, 2, 3")
a("v_lshrrev_b32 v7, 5, v1")
a("v_lshl_add_u32 v7, v7, 4, v6")
a(f"s_and_b32 {sr(sT0)}, {sr(sW)}, 6")
a(f"v_xor_b32 v6, {sr(sT0)}, v6")
a("v_lshlrev_b32 v6, 5, v6")
a("v_lshl_add_u32 v6, v7, 8, v6")
a("v_and_b32 v7, 3, v1")
a("v_lshl_add_u32 v16, v7, 3, v6")
a("v_xor_b32 v17, 32, v16")
a("v_add_u32 v18, 0x10000, v16")
a("v_add_u32 v19, 0x10000, v17")
def wo_reads(ps):
    for p in ps:
        for c in range(2):
            for part in range(2):
                dsr("ds_read_b64_tr_b16", WOF + 8*p + 4*c + 2*part, 2, 16 + c + 2*(p >> 3), ((p & 7) * 32 + 8*part) * 256)
wo_reads(range(0, 8))
a(f"s_lshl1_add_u32 {sr(sT0)}, {sr(sTB)}, {sr(sKH)}")
a(f"s_lshl_b32 {sr(sT0)}, {sr(sT0)}, 9")
a(f"s_lshl2_add_u32 {sr(sT0)}, {sr(sT1)}, {sr(sT0)}")
a(f"s_add_u32 {sr(sT0)}, {sr(sT0)}, {MB_O}")
a("s_waitcnt vmcnt(4)")
push(4, 6, 7, sr(sT0))
wo_reads(range(8, 16))
a(f"s_lshl3_add_u32 {sr(sT0)}, {sr(sTB)}, {sr(sHQ)}")
a(f"s_lshl_b32 {sr(sT0)}, {sr(sT0)}, 7")
a(f"s_lshl4_add_u32 {sr(sT0)}, {sr(sW)}, {sr(sT0)}")
a(f"s_add_u32 {sr(sT3)}, {sr(sT0)}, {MB_O}")
a("v_and_b32 v20, 12, v5")
a(f"s_lshr_b32 {sr(sT0)}, {sr(sHQ)}, 2")
a(f"s_lshl1_add_u32 {sr(sSX)}, {sr(sTB)}, {sr(sT0)}")
a(f"s_lshl_b32 {sr(sT0)}, {sr(sSX)}, 15")
a(f"s_lshl2_add_u32 {sr(sT0)}, {sr(sM0)}, {sr(sT0)}")
a(f"s_add_u32 {sr(sSW)}, {sr(sT0)}, {OF}")
a(f"s_lshl_b32 m0, {sr(sM0)}, 2")
a("s_waitcnt lgkmcnt(0)"); a("s_barrier")
poll(20, 6, sr(sT3))
stamp("o flags")
for i in range(4):
    a(f"buffer_load_dwordx4 v3, {sr(WS,4)}, {sr(sSW)} offen offset:{1024*i} sc1 lds")
a("v_lshrrev_b32 v6, 5, v1")
a("v_lshlrev_b32 v6, 10, v6")
a("v_and_b32 v7, 16, v1")
a("v_lshl_add_u32 v6, v7, 5, v6")
a("v_and_b32 v21, 15, v1")
a(f"v_lshl_add_u32 v21, {sr(sCT)}, 4, v21")
a("v_lshl_add_u32 v22, v21, 4, v6")
a("v_lshrrev_b32 v6, 5, v1")
a("v_lshlrev_b32 v6, 4, v6")
a("v_lshl_add_u32 v6, v7, 1, v6")
a("v_lshl_add_u32 v23, v21, 11, v6")
a(f"s_lshl_b32 {sr(sT0)}, {sr(sSX)}, 16")
a(f"s_and_b32 {sr(sT1)}, {sr(sHQ)}, 3")
a(f"s_lshl_b32 {sr(sT1)}, {sr(sT1)}, 8")
a(f"s_add_u32 {sr(sT0)}, {sr(sT0)}, {sr(sT1)}")
a(f"s_lshr_b32 {sr(sT1)}, {sr(sW)}, 1")
a(f"s_lshl_b32 {sr(sT1)}, {sr(sT1)}, 6")
a(f"s_add_u32 {sr(sT3)}, {sr(sT0)}, {sr(sT1)}")
a("s_waitcnt vmcnt(0)"); a("s_barrier")
OFR, PA = 32, 24
for p in range(12): dsr("ds_read_b128", OFR + 4*p, 4, 22, 2048*p)
for p in range(16):
    a(f"s_waitcnt lgkmcnt({min(16, p + 12) - p - 1})")
    mfma16(PA, WOF + 8*p, OFR + 4*p, None if p == 0 else PA)
    mfma16(PA + 4, WOF + 8*p + 4, OFR + 4*p, None if p == 0 else PA + 4)
    if p + 12 < 16: dsr("ds_read_b128", OFR + 4*(p + 12), 4, 22, 2048*(p + 12))
a("s_nop 7")
cvt(16, PA, PA + 1); cvt(17, PA + 2, PA + 3); cvt(18, PA + 4, PA + 5); cvt(19, PA + 6, PA + 7)
a("s_nop 1")
a("v_permlane16_swap_b32 v16, v18"); a("v_permlane16_swap_b32 v17, v19")
bstore(16, 4, 23, OUT, sr(sT3), 0, OPT["pfl"].replace("_", " "))
a(f"s_or_b32 {sr(sT0)}, s2, {sr(sW)}")
a("s_cbranch_scc1 L_noep")
a(f"v_mov_b32 v6, {EP}")
a(f"v_mov_b32 v7, {sr(sTAG)}")
a("s_mov_b64 exec, 1")
bstore(7, 1, 6, WS, 0, flags="sc1")
a("s_mov_b64 exec, -1")
a.label("L_noep")
stamp("end")
if DIAG:
    a("s_waitcnt lgkmcnt(0)")
    for i in range(nstamp[0]): a(f"v_mov_b32 {vr(32+i)}, {sr(sST+2*i)}")
    a(f"s_lshl3_add_u32 {sr(sT0)}, s2, {sr(sW)}")
    a(f"s_lshl_b32 {sr(sT0)}, {sr(sT0)}, 6")
    a(f"s_add_u32 {sr(sT0)}, {sr(sT0)}, {STAMP}")
    a("v_mov_b32 v6, 0")
    a("s_mov_b64 exec, 1")
    for i in range(4): bstore(32 + 4*i, 4, 6, WS, sr(sT0), 16*i)
a("s_endpgm")
a.label("L_fallback")
a(f"s_mov_b32 {sr(sREDO)}, 1")
a(f"s_mov_b32 {sr(sOFF)}, 0")
a("v_mov_b32 v6, 0xff800000"); a("v_mov_b32 v7, v6")
a("s_waitcnt vmcnt(0)")
a.label("L_fb")
bload(rK(0), 4, vKA, WS, sr(sOFF), 0, "sc1")
a(f"s_add_u32 {sr(sOFF)}, {sr(sOFF)}, 0x1000")
a("s_waitcnt vmcnt(0)")
mfma32(S0, rK(0), Q0, None); mfma32(S1, rK(0), Q1, None)
a("s_nop 10")
rowmax(S0, 6, True); rowmax(S1, 7, True)
a(f"s_cmp_lg_u32 {sr(sOFF)}, 0x20000")
a("s_cbranch_scc1 L_fb")
ring_fill()
a("s_waitcnt vmcnt(18)")
a("s_branch L_havemax")
a.label("L_end")
a("s_endpgm")

nbad = check(a.lines)
ref = open(f"cdna_kernels/{NAME}.s.ref").read().split("\n")
head = [l for l in ref if l.startswith(";") and "@launch" not in l and "Override launch" not in l and "grid=ceil" not in l]
out = "\n".join(head) + f"""
; Fused single launch: 256 workgroups (one per CU) x 8 waves; generated by gen/gen.py.
; @launch grid=(256,1,1) block=(512,1,1) lds={LDS_BYTES}
.amdgcn_target "amdgcn-amd-amdhsa--gfx950"
.text
.globl {NAME}_kernel
.p2align 8
.type {NAME}_kernel,@function
""" + a.text() + f""".section .rodata,"a"
.p2align 6
.amdhsa_kernel {NAME}_kernel
  .amdhsa_next_free_vgpr 256
  .amdhsa_next_free_sgpr 102
  .amdhsa_accum_offset 256
  .amdhsa_group_segment_fixed_size 0
  .amdhsa_kernarg_size 96
  .amdhsa_user_sgpr_count 2
  .amdhsa_user_sgpr_kernarg_segment_ptr 1
  .amdhsa_system_sgpr_workgroup_id_x 1
.end_amdhsa_kernel
"""
open(sys.argv[1], "w").write(out)
print("hazards:", nbad, "lines:", len(a.lines), "stamps:", nstamp[0])
```

```python
import sys, math, struct
from asmlib import Asm, vr, sr, check

NAME = "concat_heads__mha_block__ssm_conv_h3__prompt"
OPT = dict(first=0, gfl="sc1", pfl="sc1", vz=1, noload=0, nopv=0, noqk=0, noexp=0, c0=0, prio=1, diag=0, spin=0, spinat="end", clk=0)
for arg in sys.argv[2:]:
    k, v = arg.split("=")
    try: OPT[k] = int(v, 0)
    except ValueError: OPT[k] = v
DIAG = OPT["diag"]

KV, UT, YT, OF, MB = 0, 0x400000, 0x600000, 0x800000, 0xA00000
MB_U, MB_KV, MB_Y, MB_O = MB, MB + 0x8000, MB + 0x10000, MB + 0x18000
EP = MB + 0x20000
STAMP = 0xA30000
WS_SIZE = 0xA50000
K1 = 1024
SLOT = [0, 48 * K1, 96 * K1]
EX = 144 * K1
P0S = SLOT[2]
HB = SLOT[2]; HSTR = 4512
UB = HB + 8 * HSTR; USTR = 4224
CNT = UB + 2 * USTR
QF = 0; RED = 8 * K1
YB = 128 * K1; MG = 140 * K1
LDS_BYTES = 160 * K1
assert CNT + 16 <= MG
X, W, WO, BQ, BK, BV, SH, HK, DD, OUT, WS = 4, 8, 12, 16, 20, 24, 28, 32, 36, 40, 44
sW, sHQ, sTB, sDB, sTBB, sROT, sTAG, sMASK = 48, 49, 50, 51, 52, 53, 54, 55
sA, sT0, sT1, sT2, sT3, sSX, sSW, sM0 = 56, 57, 58, 59, 60, 61, 62, 63
sOFF, sPASS, sREDO, sSPIN, sAND = 64, 65, 66, 67, 68
sHALF = 70
sCT, sTT, sHH, sKH = 3, 69, 72, 73
sST = 74
SPINMAX = 0x20000
f2h = lambda x: hex(struct.unpack("<I", struct.pack("<f", x))[0])

a = Asm()
nstamp = [0]
def stamp(name):
    if OPT["spin"] and name.replace(" ", "_") == OPT["spinat"]:
        L = newlab("spin")
        if OPT["first"]:
            a("v_mov_b32 v6, 0"); a("global_load_dword v6, v6, s[96:97] sc1"); a("s_waitcnt vmcnt(0)")
            a("v_readfirstlane_b32 s100, v6"); a("s_nop 3"); a("s_not_b32 s100, s100")
        a.label(L)
        a("s_memrealtime s[98:99]"); a("s_waitcnt lgkmcnt(0)")
        a("s_sub_u32 s98, s98, s100"); a(f"s_cmp_lt_u32 s98, {OPT['spin'] * 100}"); a(f"s_cbranch_scc1 {L}")
    if DIAG == 2:
        if name in ("B1", "B5", "B6", "loop start", "loop end", "end"):
            i = nstamp[0]; nstamp[0] += 2
            a(f"s_memrealtime {sr(sST + 2 * i, 2)}")
            a(f"s_memtime {sr(sST + 2 * i + 2, 2)}")
    elif DIAG:
        i = nstamp[0]; nstamp[0] += 1
        assert sST + 2 * i + 1 <= 101, "too many stamps"
        a(f"{'s_memtime' if OPT['clk'] else 's_memrealtime'} {sr(sST + 2 * i, 2)} ; stamp {i} {name}")
def set_stamp(i): nstamp[0] = i
lab = [0]
def newlab(p):
    lab[0] += 1; return f"L_{p}{lab[0]}"

def bload(dst, n, vaddr, srd, soff, off=0, flags=""):
    op = {1: "dword", 2: "dwordx2", 4: "dwordx4"}[n]
    a(f"buffer_load_{op} {vr(dst, n)}, {vr(vaddr)}, {sr(srd, 4)}, {soff} offen" + (f" offset:{off}" if off else "") + (" " + flags if flags else ""))
def bstore(src, n, vaddr, srd, soff, off=0, flags=""):
    op = {1: "dword", 2: "dwordx2", 4: "dwordx4"}[n]
    a(f"buffer_store_{op} {vr(src, n)}, {vr(vaddr)}, {sr(srd, 4)}, {soff} offen" + (f" offset:{off}" if off else "") + (" " + flags if flags else ""))
def dma(vaddr, srd, soff, flags=""):
    a(f"buffer_load_dwordx4 {vr(vaddr)}, {sr(srd, 4)}, {soff} offen" + (" " + flags if flags else "") + " lds")
def dsr(op, dst, n, vaddr, off=0):
    assert 0 <= off < 65536
    a(f"{op} {vr(dst, n)}, {vr(vaddr)}" + (f" offset:{off}" if off else ""))
def dsw(op, vaddr, src, n, off=0):
    assert 0 <= off < 65536
    a(f"{op} {vr(vaddr)}, {vr(src, n)}" + (f" offset:{off}" if off else ""))
def mfma32(d, A, B, c): a(f"v_mfma_f32_32x32x16_bf16 {vr(d,16)}, {vr(A,4)}, {vr(B,4)}, " + ("0" if c is None else vr(c, 16)))
def mfma16(d, A, B, c): a(f"v_mfma_f32_16x16x32_bf16 {vr(d,4)}, {vr(A,4)}, {vr(B,4)}, " + ("0" if c is None else vr(c, 4)))
def cvt(d, x, y): a(f"v_cvt_pk_bf16_f32 {vr(d)}, {vr(x)}, {vr(y)}")
def lo(d, s): a(f"v_lshlrev_b32 {vr(d)}, 16, {vr(s)}")
def hi(d, s): a(f"v_and_b32 {vr(d)}, {sr(sMASK)}, {vr(s)}")

bload_, mfma32_ = bload, mfma32
def poll(vaddr, vtmp, soff, first_issued=False):
    L, Lo = newlab("poll"), newlab("pollok")
    a(f"s_mov_b32 {sr(sSPIN)}, 0")
    if first_issued:
        a(f"v_cmp_ne_u32 vcc, {sr(sTAG)}, {vr(vtmp)}")
        a(f"s_cbranch_vccz {Lo}")
    a.label(L)
    bload(vtmp, 1, vaddr, WS, soff, flags="sc1")
    a(f"s_add_u32 {sr(sSPIN)}, {sr(sSPIN)}, 1")
    a(f"s_cmp_ge_u32 {sr(sSPIN)}, {SPINMAX}")
    a("s_waitcnt vmcnt(0)")
    a(f"s_cbranch_scc1 {Lo}")
    a(f"v_cmp_ne_u32 vcc, {sr(sTAG)}, {vr(vtmp)}")
    a(f"s_cbranch_vccz {Lo}")
    a("s_sleep 2")
    a(f"s_branch {L}")
    a.label(Lo)

def push(nl, vt0, vt1, soff):
    a(f"v_lshlrev_b32 {vr(vt0)}, 7, v1")
    a(f"v_mov_b32 {vr(vt1)}, {sr(sTAG)}")
    a(f"s_mov_b64 exec, {hex((1 << nl) - 1)}")
    bstore(vt1, 1, vt0, WS, soff, flags="sc1")
    a("s_mov_b64 exec, -1")

def arrive(cntoff, last, vt0, vt1, pushfn):
    L = newlab("arr")
    a(f"v_mov_b32 {vr(vt0)}, {CNT + cntoff}")
    a(f"v_mov_b32 {vr(vt1)}, 1")
    a("s_mov_b64 exec, 1")
    a(f"ds_add_rtn_u32 {vr(vt1)}, {vr(vt0)}, {vr(vt1)}")
    a("s_waitcnt lgkmcnt(0)")
    a(f"v_cmp_ne_u32 vcc, {last}, {vr(vt1)}")
    a("s_mov_b64 exec, -1")
    a(f"s_cbranch_vccnz {L}")
    pushfn()
    a.label(L)

a.label(f"{NAME}_kernel")
a("s_cmp_ge_u32 s2, 0x100")
a("s_cbranch_scc1 L_end")
a("s_load_dwordx16 s[64:79], s[0:1], 0")
a("s_load_dwordx8 s[80:87], s[0:1], 64")
if DIAG or OPT["spin"]: a("s_memtime s[100:101]" if OPT["clk"] else "s_memrealtime s[100:101]")
a("s_getpc_b64 s[88:89]")
a.label("L_pc")
a(f"s_lshr_b32 {sr(sTBB)}, s2, 3")
a(f"s_and_b32 {sr(sDB)}, s2, 7")
a("v_lshrrev_b32 v6, 6, v0")
a(f"v_lshl_add_u32 v7, {sr(sTBB)}, 3, v6")
a("v_lshlrev_b32 v7, 7, v7")
a("v_min_u32 v7, L_end-L_pc, v7")
a("global_load_dword v7, v7, s[88:89]")
a(f"v_readfirstlane_b32 {sr(sW)}, v6")
a("v_and_b32 v1, 63, v0")
a("v_and_b32 v5, 31, v0")
a("v_lshrrev_b32 v2, 5, v0")
a("v_lshlrev_b32 v4, 4, v5")
a("v_lshlrev_b32 v5, 2, v5")
a("v_lshl_add_u32 v2, v2, 12, v5")
a(f"s_lshl_b32 {sr(sA)}, {sr(sTBB)}, 16")
a(f"s_lshl_b32 {sr(sT0)}, {sr(sDB)}, 7")
a(f"s_lshl_b32 {sr(sT1)}, {sr(sDB)}, 9")
a(f"s_add_u32 {sr(sA)}, {sr(sA)}, {sr(sT0)}")
a(f"s_sub_u32 {sr(sT2)}, {sr(sA)}, 0xc00")
a(f"v_add_u32 v3, {sr(sT2)}, v2")
a(f"s_mov_b32 {sr(BK+2)}, 0x200000")
a(f"s_mov_b32 {sr(BK+3)}, 0x20000")
for r in (BV, X, HK, BQ): a(f"s_mov_b64 {sr(r+2,2)}, {sr(BK+2,2)}")
for r, n in ((SH, 4096), (DD, 1024)):
    a(f"s_movk_i32 {sr(r+2)}, {n}"); a(f"s_mov_b32 {sr(r+3)}, {sr(BK+3)}")
a("s_waitcnt lgkmcnt(0)")
a(f"s_mov_b64 {sr(BK,2)}, s[72:73]")
a(f"s_mov_b64 {sr(BV,2)}, s[74:75]")
a(f"s_mov_b64 {sr(SH,2)}, s[76:77]")
a(f"s_mov_b64 {sr(DD,2)}, s[80:81]")
if OPT["first"]:
    a("s_mov_b64 s[96:97], s[84:85]"); a("s_not_b32 s98, s100"); a("v_mov_b32 v32, 0"); a("v_mov_b32 v33, s98")
    a("s_mov_b64 exec, 1"); a("global_atomic_umax v32, v33, s[96:97] sc1"); a("s_mov_b64 exec, -1")
for i in range(3): bload(16 + i, 1, 3, BK, 0, 1024 * i)
for i in range(4): bload(19 + i, 1, 2, BK, sr(sA), 1024 * i)
bload(28, 4, 4, SH, sr(sT1))
for i in range(4): bload(23 + i, 1, 2, BV, sr(sA), 1024 * i)
bload(27, 1, 5, DD, sr(sT0))
a(f"s_mov_b64 {sr(X,2)}, s[64:65]")
a(f"s_mov_b64 {sr(W,2)}, s[66:67]")
a(f"s_mov_b64 {sr(WS,2)}, s[86:87]")
a(f"s_mov_b32 {sr(W+2)}, 0x180000"); a(f"s_mov_b32 {sr(W+3)}, {sr(BK+3)}")
a(f"s_and_b32 {sr(sT0)}, {sr(sTBB)}, 3")
a(f"s_lshr_b32 {sr(sT1)}, {sr(sTBB)}, 2")
a(f"s_add_u32 {sr(sROT)}, {sr(sT0)}, {sr(sT1)}")
a(f"s_and_b32 {sr(sHQ)}, {sr(sDB)}, 1")
a(f"s_lshl2_add_u32 {sr(sHQ)}, {sr(sHQ)}, {sr(sT0)}")
a(f"s_lshr_b32 {sr(sTB)}, {sr(sDB)}, 1")
a(f"s_lshl3_add_u32 {sr(sTB)}, {sr(sTB)}, {sr(sT1)}")
vXS, vWS = 48, 49
a("v_lshrrev_b32 v6, 4, v0")
a("v_xor_b32 v32, v6, v0")
a("v_and_b32 v32, 15, v32")
a("v_lshlrev_b32 v32, 4, v32")
a(f"v_lshl_add_u32 {vr(vXS)}, v6, 10, v32")
a("v_lshrrev_b32 v6, 2, v0")
a("v_and_b32 v6, 4, v6")
a("v_xor_b32 v6, v6, v0")
a("v_and_b32 v6, 7, v6")
a("v_lshrrev_b32 v32, 3, v0")
a("v_mul_u32_u24 v32, 0xc00, v32")
a(f"v_lshl_add_u32 {vr(vWS)}, v6, 4, v32")
a(f"s_lshl_b32 {sr(sM0)}, {sr(sW)}, 10")

def chunk_offsets(c):
    a(f"s_add_u32 {sr(sT0)}, {sr(sROT)}, {c}")
    a(f"s_and_b32 {sr(sT0)}, {sr(sT0)}, 3")
    a(f"s_lshl_b32 {sr(sT1)}, {sr(sHQ)}, 7")
    a(f"s_mul_i32 {sr(sSW)}, {sr(sT0)}, {128*3072}")
    a(f"s_add_u32 {sr(sSW)}, {sr(sSW)}, {sr(sT1)}")
def dma_w(part, ldsbase):
    for i in range(2):
        a(f"s_add_u32 m0, {sr(sM0)}, {ldsbase + 8192 * i}")
        a(f"s_add_u32 {sr(sT2)}, {sr(sSW)}, {part * 1024 + i * 64 * 3072}")
        dma(vWS, W, sr(sT2))
def dma_chunk(c):
    s = SLOT[c % 3]
    chunk_offsets(c)
    a(f"s_lshl_b32 {sr(sT1)}, {sr(sTB)}, 8")
    a(f"s_add_u32 {sr(sT0)}, {sr(sT0)}, {sr(sT1)}")
    a(f"s_lshl_b32 {sr(sSX)}, {sr(sT0)}, 8")
    for i in range(2):
        a(f"s_add_u32 m0, {sr(sM0)}, {s + 8192 * i}")
        a(f"s_add_u32 {sr(sT2)}, {sr(sSX)}, {32768 * i}")
        dma(vXS, X, sr(sT2))
    dma_w(1, s + 16 * K1)
    dma_w(2, s + 32 * K1)

dma_chunk(0)
dma_w(0, EX)
a(f"s_add_u32 s88, s86, {EP}")
a("s_addc_u32 s89, s87, 0")
a(f"s_load_dword {sr(sTAG)}, s[88:89], 0")
a(f"s_mov_b64 {sr(HK,2)}, s[78:79]")
a(f"s_mov_b64 {sr(WO,2)}, s[68:69]")
a(f"s_mov_b64 {sr(BQ,2)}, s[70:71]")
a(f"s_mov_b64 {sr(OUT,2)}, s[82:83]")
for r, n in ((WO, 0x80000), (OUT, 0x400000), (WS, WS_SIZE)):
    a(f"s_mov_b32 {sr(r+2)}, {hex(n)}"); a(f"s_mov_b32 {sr(r+3)}, {sr(BK+3)}")
a(f"s_mov_b32 {sr(sMASK)}, 0xffff0000")
HP, HL = 56, 58
a("v_lshlrev_b32 v6, 4, v0")
a("v_and_b32 v32, 0xff, v0")
a("v_cmp_eq_u32 vcc, 0, v32")
a("v_subrev_u32 v32, 8, v6")
a(f"s_lshl_b32 {sr(sT0)}, {sr(sDB)}, 5")
a(f"s_add_u32 {sr(sT0)}, {sr(sT0)}, {sr(sTBB)}")
a(f"s_lshl_b32 {sr(sT0)}, {sr(sT0)}, 13")
a("v_bfrev_b32 v33, 2")
a("v_cndmask_b32 v32, v32, v33, vcc")
bload(HL, 4, 6, HK, sr(sT0))
bload(HP, 2, 32, HK, sr(sT0))
if DIAG: a(f"s_mov_b64 {sr(sST,2)}, s[100:101]"); nstamp[0] = 1
stamp("issued")
UD = 8
KP, WJ, VP, DP, UU = 64, 80, 88, 96, 98
a("v_lshrrev_b32 v6, 5, v0")
a("v_xor_b32 v6, 15, v6")
a("v_lshrrev_b32 v32, 1, v6")
a("v_xor_b32 v32, v32, v0")
a("v_and_b32 v32, 7, v32")
a("v_and_b32 v6, 1, v6")
a("v_lshlrev_b32 v6, 3, v6")
a("v_lshl_add_u32 v6, v32, 4, v6")
a("v_lshl_add_u32 v6, v5, 5, v6")
a(f"v_add_u32 v34, {P0S}, v6")
a("v_lshrrev_b32 v6, 3, v0")
a("v_xor_b32 v32, v6, v0")
a("v_and_b32 v32, 7, v32")
a("v_lshlrev_b32 v32, 4, v32")
a("v_lshl_add_u32 v32, v6, 7, v32")
a(f"v_add_u32 v35, {P0S}, v32")
a("v_and_b32 v32, 31, v6")
a("v_lshrrev_b32 v6, 5, v6")
a("v_lshl_add_u32 v6, v32, 1, v6")
a("v_and_b32 v32, 7, v0")
a("v_lshlrev_b32 v32, 4, v32")
a("v_lshl_add_u32 v36, v6, 12, v32")
a(f"s_lshl_b32 {sr(sT0)}, {sr(sDB)}, 18")
a(f"s_sub_u32 {sr(sT1)}, 31, {sr(sTBB)}")
a(f"s_lshl_b32 {sr(sT1)}, {sr(sT1)}, 7")
a(f"s_add_u32 {sr(sT3)}, {sr(sT0)}, {sr(sT1)}")
a(f"s_add_u32 {sr(sT3)}, {sr(sT3)}, {UT}")
a("s_waitcnt vmcnt(15)")
for i in range(7): lo(KP + 2*i, 16 + i); hi(KP + 2*i + 1, 16 + i)
lo(WJ+0, 28); lo(WJ+1, 30); hi(WJ+2, 28); hi(WJ+3, 30)
lo(WJ+4, 29); lo(WJ+5, 31); hi(WJ+6, 29); hi(WJ+7, 31)
for j in range(4):
    a(f"v_pk_mul_f32 {vr(UU+2*j,2)}, {vr(KP+2*j,2)}, {vr(WJ+6,2)}")
for t in (2, 1, 0):
    for j in range(4):
        a(f"v_pk_fma_f32 {vr(UU+2*j,2)}, {vr(KP+2*(j+3-t),2)}, {vr(WJ+2*t,2)}, {vr(UU+2*j,2)}")
a("s_waitcnt vmcnt(10)")
stamp("p0 loads")
for i in range(4): lo(VP + 2*i, 23 + i); hi(VP + 2*i + 1, 23 + i)
lo(DP, 27); hi(DP + 1, 27)
for j in range(4): a(f"v_pk_mul_f32 {vr(UU+2*j,2)}, {vr(UU+2*j,2)}, {vr(VP+2*j,2)}")
for c in range(2):
    cvt(16 + 2*c, UU + 6 + c, UU + 4 + c); cvt(17 + 2*c, UU + 2 + c, UU + c)
dsw("ds_write_b64", 34, 16, 2); dsw("ds_write_b64", 34, 18, 2, 4096)
for j in range(4): a(f"v_pk_mul_f32 {vr(UD+2*j,2)}, {vr(UU+2*j,2)}, {vr(DP,2)}")
a("s_waitcnt lgkmcnt(0)")
a("s_barrier")
dsr("ds_read_b128", 20, 4, 35)
a(f"s_mul_i32 {sr(sTAG)}, {sr(sTAG)}, 0x2c9277b5")
a(f"s_add_u32 {sr(sTAG)}, {sr(sTAG)}, 0xac564b05")
a("s_waitcnt lgkmcnt(0)")
bstore(20, 4, 36, WS, sr(sT3), flags="sc1")
dma_chunk(1)
XF, WF, ACC, ACQ = 128, 96, 64, 80
vXR, vWR, vXB, vWB, vXT = 50, 51, 52, 53, 54
a(f"s_and_b32 {sr(sCT)}, {sr(sW)}, 1")
a(f"s_bfe_u32 {sr(sTT)}, {sr(sW)}, 0x10001")
a(f"s_and_b32 {sr(sHH)}, {sr(sW)}, 3")
a(f"s_lshr_b32 {sr(sKH)}, {sr(sW)}, 2")
a("v_bfe_u32 v6, v1, 2, 2")
a("v_lshrrev_b32 v32, 5, v1")
a("v_lshl_add_u32 v33, v32, 3, v6")
a("v_lshrrev_b32 v6, 1, v6")
a(f"v_xor_b32 v6, {sr(sCT)}, v6")
a("v_lshlrev_b32 v6, 6, v6")
a("v_lshl_add_u32 v33, v33, 7, v6")
a("v_and_b32 v6, 16, v1")
a("v_lshl_add_u32 v33, v6, 1, v33")
a("v_and_b32 v6, 3, v1")
a(f"v_lshl_add_u32 {vr(vWR)}, v6, 3, v33")
a("v_and_b32 v6, 31, v1")
a(f"s_cmp_ge_u32 {sr(sW)}, 4")
a("s_cbranch_scc1 L_vwave")

def x_addr():
    a("v_xor_b32 v33, v32, v6")
    a("v_and_b32 v33, 15, v33")
    a("v_lshlrev_b32 v33, 4, v33")
    a(f"v_lshl_add_u32 v6, {sr(sTT)}, 5, v6")
    a(f"v_lshl_add_u32 {vr(vXR)}, v6, 8, v33")
def gemm_chunk(c, xbase, wbase, acc, first, swap):
    if xbase is not None: a(f"v_add_u32 {vr(vXB)}, {xbase}, {vr(vXR)}")
    a(f"v_add_u32 {vr(vWB)}, {wbase}, {vr(vWR)}")
    n = 3 if xbase is not None else 2
    def rd(s):
        if xbase is not None:
            t = vXT + (s & 1)
            if s: a(f"v_xor_b32 {vr(t)}, {32*s}, {vr(vXB)}")
            dsr("ds_read_b128", XF + 4*(8*c + s), 4, t if s else vXB)
        dsr("ds_read_b64_tr_b16", WF + 4*s, 2, vWB, 2048*s)
        dsr("ds_read_b64_tr_b16", WF + 4*s + 2, 2, vWB, 2048*s + 512)
    D = 4
    for s in range(D): rd(s)
    for s in range(8):
        a(f"s_waitcnt lgkmcnt({n * (min(8, s + D) - s - 1)})")
        x, w = XF + 4*(8*c + s), WF + 4*s
        mfma32(acc, x if swap else w, w if swap else x, None if (first and s == 0) else acc)
        if s + D < 8: rd(s + D)
def h_copies():
    T = 16
    a("v_lshrrev_b32 v6, 8, v0")
    a(f"v_mul_u32_u24 v6, {4*HSTR}, v6")
    a("v_and_b32 v32, 0xff, v0")
    a("v_lshl_add_u32 v6, v32, 4, v6")
    a(f"v_add_u32 v6, {HB + 384}, v6")
    D = [HP, HP+1, HL, HL+1, HL+2, HL+3]
    dsw("ds_write_b128", 6, HL, 4, 3*HSTR)
    for j in range(4): a(f"v_alignbit_b32 {vr(T+j)}, {vr(D[2+j])}, {vr(D[1+j])}, 16")
    for j in range(4): a(f"v_mov_b32 {vr(T+4+j)}, {vr(D[1+j])}")
    for j in range(4): a(f"v_alignbit_b32 {vr(T+8+j)}, {vr(D[1+j])}, {vr(D[j])}, 16")
    dsw("ds_write_b128", 6, T, 4, 2*HSTR)
    dsw("ds_write_b128", 6, T+4, 4, HSTR)
    dsw("ds_write_b128", 6, T+8, 4, 0)
    a(f"s_mul_i32 {sr(sT0)}, {sr(sW)}, {HSTR}")
    a(f"s_add_u32 {sr(sT0)}, {sr(sT0)}, {HB}")
    a(f"s_mul_i32 {sr(sT1)}, {sr(sCT)}, {USTR}")
    a(f"s_add_u32 {sr(sT1)}, {sr(sT1)}, {UB + 4096 - 384}")
    a(f"v_lshl_add_u32 v6, v1, 4, {sr(sT0)}")
    a(f"v_lshl_add_u32 v32, v1, 4, {sr(sT1)}")
    a("v_cmp_gt_u32 vcc, 24, v1")
    for j in range(4): a(f"v_mov_b32 {vr(T+12+j)}, 0")
    a("v_cndmask_b32 v6, v32, v6, vcc")
    a("v_cmp_gt_u32 vcc, 32, v1")
    a(f"v_mov_b32 v32, {CNT}")
    a("s_nop 0")
    a("v_cndmask_b32 v6, v32, v6, vcc")
    dsw("ds_write_b128", 6, T+12, 4)
def push_u():
    a(f"s_lshl_b32 {sr(sT0)}, {sr(sDB)}, 12")
    a(f"s_lshl2_add_u32 {sr(sT0)}, {sr(sTBB)}, {sr(sT0)}")
    a(f"s_add_u32 {sr(sT0)}, {sr(sT0)}, {MB_U}")
    push(32, 6, 32, sr(sT0))
def push_kv():
    a(f"s_lshl_b32 {sr(sT0)}, {sr(sHQ)}, 12")
    a(f"s_lshl2_add_u32 {sr(sT0)}, {sr(sTB)}, {sr(sT0)}")
    a(f"s_add_u32 {sr(sT0)}, {sr(sT0)}, {MB_KV}")
    push(32, 6, 7, sr(sT0))
def push_y():
    a(f"s_lshl_b32 {sr(sT0)}, {sr(sDB)}, 12")
    a(f"s_lshl2_add_u32 {sr(sT0)}, {sr(sTBB)}, {sr(sT0)}")
    a(f"s_add_u32 {sr(sT0)}, {sr(sT0)}, {MB_Y}")
    push(32, 6, 7, sr(sT0))
def kv_soff():
    a(f"s_lshl1_add_u32 {sr(sT0)}, {sr(sHQ)}, {sr(sCT)}")
    a(f"s_lshl_b32 {sr(sT0)}, {sr(sT0)}, 18")
    a(f"s_lshl1_add_u32 {sr(sT1)}, {sr(sTB)}, {sr(sTT)}")
    a(f"s_lshl_b32 {sr(sT1)}, {sr(sT1)}, 11")
    a(f"s_add_u32 {sr(sT3)}, {sr(sT0)}, {sr(sT1)}")

def gemm_main(isv):
    part = 32 * K1 if isv else 16 * K1
    a("s_waitcnt vmcnt(9)"); a("s_barrier")
    stamp("B1")
    dma_chunk(2)
    gemm_chunk(0, SLOT[0], SLOT[0] + part, ACC, True, isv)
    if not isv: gemm_chunk(0, None, EX, ACQ, True, False)
    a("s_waitcnt vmcnt(6)"); a("s_barrier")
    if isv:
        L = newlab("nu")
        a(f"s_cmp_lg_u32 {sr(sW)}, 4"); a(f"s_cbranch_scc1 {L}")
        push_u()
        a.label(L)
    dma_chunk(3)
    gemm_chunk(1, SLOT[1], SLOT[1] + part, ACC, False, isv)
    a("s_waitcnt vmcnt(6)"); a("s_barrier")
    for c in (1, 2, 3):
        chunk_offsets(c); dma_w(0, SLOT[1] + 16 * K1 * (c - 1))
    gemm_chunk(2, SLOT[2], SLOT[2] + part, ACC, False, isv)
    a("s_waitcnt vmcnt(6)"); a("s_barrier")
    stamp("B4")
    gemm_chunk(3, SLOT[0], SLOT[0] + part, ACC, False, isv)
    kv_soff()
    if isv:
        a("v_bfe_u32 v6, v1, 4, 1")
        a("v_lshlrev_b32 v6, 17, v6")
        a("v_lshrrev_b32 v32, 5, v1")
        a("v_lshl_add_u32 v6, v32, 8, v6")
        a("v_and_b32 v32, 15, v1")
        a("v_lshl_add_u32 v33, v32, 4, v6")
        a("s_nop 0")
    else:
        a("v_lshlrev_b32 v33, 4, v1")
        a(f"s_add_u32 {sr(sT2)}, {sr(sT3)}, 0x20000")
        a("s_nop 4")
    for j in range(8): cvt(40 + j, ACC + 2*j, ACC + 2*j + 1)
    if isv:
        bstore(40, 4, 33, WS, sr(sT3), 1024, "sc1"); bstore(44, 4, 33, WS, sr(sT3), 1536, "sc1")
    else:
        bstore(40, 4, 33, WS, sr(sT3), 0, "sc1"); bstore(44, 4, 33, WS, sr(sT2), 0, "sc1")
    h_copies()
    a("s_waitcnt vmcnt(2) lgkmcnt(0)"); a("s_barrier")
    stamp("B5")

O0, O1, S0, S1, C0, C1 = 16, 32, 48, 64, 80, 96
Q0, Q1 = 112, 116
QG = 120
vIDX, vKA, vVA = 124, 125, 126
RING = 128
def rK(i): return RING + 12 * (i & 7)
def rVa(i): return RING + 12 * (i & 7) + 4
def rVb(i): return RING + 12 * (i & 7) + 8
def attn_setup():
    a(f"s_lshl2_add_u32 {sr(sT0)}, {sr(sHQ)}, {sr(sHH)}")
    a(f"s_lshl_b32 {sr(sT0)}, {sr(sT0)}, 17")
    a(f"s_lshl_b32 {sr(sT1)}, {sr(sKH)}, 11")
    a(f"s_add_u32 {sr(sT0)}, {sr(sT0)}, {sr(sT1)}")
    a(f"v_lshl_add_u32 {vr(vKA)}, v1, 4, {sr(sT0)}")
    a("v_lshrrev_b32 v6, 5, v1")
    a(f"v_lshl_add_u32 v6, v6, 8, {sr(sT0)}")
    a("v_and_b32 v7, 15, v1")
    a(f"v_lshl_add_u32 {vr(vVA)}, v7, 4, v6")
    a(f"v_mov_b32 {vr(vIDX)}, 0xdddddddd")
    a(f"s_mov_b32 {sr(sHALF)}, 0xffff"); a(f"s_mov_b32 {sr(sHALF+1)}, {sr(sHALF)}")
    a(f"s_mov_b32 {sr(sAND)}, 0x4001ffff")
    a(f"s_mov_b32 {sr(sREDO)}, 0")
    a("v_mov_b32 v6, 0x3f803f80")
    if OPT["vz"]:
        a("v_and_b32 v7, 0x1b, v1"); a("v_cmp_eq_u32 vcc, 16, v7"); a("s_nop 1"); a("v_cndmask_b32 v6, 0, v6, vcc")
    a("v_mov_b32 v7, v6")
    for i in range(8):
        for j in range(4): a(f"v_mov_b64 {vr(rVa(i) + 2*j, 2)}, v[6:7]")
def adv():
    a(f"s_add_u32 {sr(sOFF)}, {sr(sOFF)}, 0x1000")
    a(f"s_and_b32 {sr(sOFF)}, {sr(sOFF)}, {sr(sAND)}")
def ring_fill():
    a(f"s_lshl_b32 {sr(sOFF)}, {sr(sTB)}, 12")
    for i in range(7):
        bload(rK(i), 4, vKA, WS, sr(sOFF), 0, "sc1")
        a(f"s_mov_b64 exec, {sr(sHALF,2)}")
        bload(rVa(i), 4, vVA, WS, sr(sOFF), 1024, "sc1")
        bload(rVb(i), 4, vVA, WS, sr(sOFF), 1536, "sc1")
        a("s_mov_b64 exec, -1")
        adv()
def q_loads():
    for i in range(4): bload(QG + i, 1, 2, BQ, sr(sA), 1024 * i)
def read_qf():
    a(f"s_lshl1_add_u32 {sr(sT0)}, {sr(sHH)}, {sr(sKH)}")
    a(f"s_lshl_b32 {sr(sT0)}, {sr(sT0)}, 10")
    a(f"v_lshl_add_u32 v6, v1, 4, {sr(sT0)}")
    a("v_xor_b32 v7, 0x400, v6")
    dsr("ds_read_b128", Q0, 4, 6, QF); dsr("ds_read_b128", Q1, 4, 7, QF)

x_addr()
s0 = nstamp[0]
gemm_main(False)
for c in (1, 2, 3):
    gemm_chunk(c, None, SLOT[1] + 16 * K1 * (c - 1), ACQ, False, False)
a("s_waitcnt vmcnt(0)")
arrive(0, 7, 6, 7, push_kv)
a(f"s_mov_b32 {sr(sT2)}, {f2h(0.25 * math.log2(math.e))}")
a(f"s_lshl2_add_u32 {sr(sT0)}, {sr(sCT)}, {sr(sTT)}")
a(f"s_lshl_b32 {sr(sT0)}, {sr(sT0)}, 10")
a(f"v_lshl_add_u32 v33, v1, 4, {sr(sT0)}")
a("s_nop 3")
for j in range(16): a(f"v_mul_f32 {vr(ACQ+j)}, {sr(sT2)}, {vr(ACQ+j)}")
for j in range(8): cvt(40 + j, ACQ + 2*j, ACQ + 2*j + 1)
dsw("ds_write_b128", 33, 40, 4, QF); dsw("ds_write_b128", 33, 44, 4, QF + 2048)
stamp("q done")
attn_setup()
a(f"s_lshl_b32 {sr(sT0)}, {sr(sHQ)}, 5")
a(f"s_add_u32 {sr(sT0)}, {sr(sT0)}, {sr(sTB)}")
a(f"s_lshl_b32 {sr(sT0)}, {sr(sT0)}, 7")
a(f"s_add_u32 {sr(sT3)}, {sr(sT0)}, {MB_KV}")
poll(5, 6, sr(sT3))
stamp("kv flags")
ring_fill()
q_loads()
a("s_waitcnt lgkmcnt(0)"); a("s_barrier")
stamp("B6")
read_qf()
a("s_waitcnt lgkmcnt(0)")
arrive(4, 7, 6, 7, push_y)
if OPT["prio"]: a("s_setprio 1")
a("s_branch L_attn")

a.label("L_vwave")
a("v_and_b32 v33, 0x13, v6")
a("v_and_b32 v7, 4, v6")
a("v_lshl_or_b32 v33, v7, 1, v33")
a("v_and_b32 v7, 8, v6")
a("v_lshrrev_b32 v7, 1, v7")
a("v_or_b32 v6, v7, v33")
x_addr()
set_stamp(s0)
gemm_main(True)
a(f"s_lshl_b32 {sr(sT0)}, {sr(sDB)}, 5")
a(f"s_add_u32 {sr(sT0)}, {sr(sT0)}, {sr(sTBB)}")
a(f"s_lshl_b32 {sr(sSX)}, {sr(sT0)}, 13")
a(f"s_lshl_b32 {sr(sT0)}, {sr(sT0)}, 7")
a(f"s_add_u32 {sr(sT3)}, {sr(sT0)}, {MB_U}")
bload(33, 1, 5, WS, sr(sT3), flags="sc1")
CA, CB, CY = [128, 192], [160, 224], 16
vHA, vUA = 50, 51
a("v_and_b32 v6, 3, v1")
a(f"v_mul_u32_u24 v6, {HSTR}, v6")
a("v_bfe_u32 v7, v1, 2, 2")
a("v_lshl_add_u32 v6, v7, 7, v6")
a("v_and_b32 v7, 0x30, v1")
a("v_add_u32 v6, v6, v7")
a(f"s_mul_i32 {sr(sT0)}, {sr(sCT)}, {4*HSTR}")
a(f"s_lshl_b32 {sr(sT1)}, {sr(sTT)}, 8")
a(f"s_add_u32 {sr(sT0)}, {sr(sT0)}, {sr(sT1)}")
a(f"s_add_u32 {sr(sT0)}, {sr(sT0)}, {HB}")
a(f"v_add_u32 {vr(vHA)}, {sr(sT0)}, v6")
a("v_and_b32 v6, 15, v1")
a("v_lshlrev_b32 v6, 3, v6")
a("v_sub_u32 v6, v7, v6")
a(f"s_mul_i32 {sr(sSW)}, {sr(sCT)}, {USTR}")
a(f"s_add_u32 {sr(sSW)}, {sr(sSW)}, {UB}")
a(f"s_add_u32 {sr(sT0)}, {sr(sSW)}, {sr(sT1)}")
a(f"s_add_u32 {sr(sT0)}, {sr(sT0)}, 120")
a(f"v_add_u32 {vr(vUA)}, {sr(sT0)}, v6")
a("v_lshlrev_b32 v52, 4, v1")
a(f"s_lshl_b32 {sr(sT0)}, {sr(sCT)}, 12")
a(f"s_add_u32 {sr(sSX)}, {sr(sSX)}, {sr(sT0)}")
a("s_waitcnt vmcnt(0)")
arrive(0, 7, 6, 7, push_kv)
poll(5, 33, sr(sT3), True)
stamp("u flags")
a(f"s_add_u32 {sr(sT2)}, {sr(sSX)}, {UT}")
a(f"s_mov_b32 m0, {sr(sSW)}")
a("s_nop 0")
for i in range(4):
    a(f"buffer_load_dwordx4 v52, {sr(WS,4)}, {sr(sT2)} offen offset:{1024*i} sc1 lds")
def conv_reads(cls):
    b = cls & 1; out = []
    for i in range(8):
        out.append(("ds_read_b128", CA[b] + 4*i, 4, vHA, 64*cls + 512*i))
        out.append(("ds_read_b64", CB[b] + 4*i, 2, vUA, 3584 - 512*i + 64*cls))
        out.append(("ds_read_b64", CB[b] + 4*i + 2, 2, vUA, 3584 - 512*i + 64*cls + 8))
    return out
r0 = conv_reads(0)
for r in r0:
    if r[0] == "ds_read_b128": dsr(*r)
a("s_waitcnt vmcnt(0)")
stamp("u landed")
a("s_waitcnt lgkmcnt(0)")
rb = [r for r in r0 if r[0] != "ds_read_b128"]
for r in rb[:14]: dsr(*r)
a("s_waitcnt lgkmcnt(8)")
for r in rb[14:]: dsr(*r)
for cls in range(4):
    b = cls & 1
    a("s_waitcnt lgkmcnt(0)")
    nxt = conv_reads(cls + 1) if cls < 3 else []
    for ai in range(8):
        for bi in range(8 - ai):
            j = ai + bi
            mfma16(CY + 4*j, CA[b] + 4*ai, CB[b] + 4*bi, None if (cls == 0 and ai == 0) else CY + 4*j)
            if nxt: dsr(*nxt.pop(0))
a(f"s_lshl_b32 {sr(sT0)}, {sr(sHH)}, 12")
a(f"v_add_u32 v6, {sr(sT0)}, v52")
a("v_xor_b32 v7, 0x2000, v6")
a(f"s_cmp_lg_u32 {sr(sTT)}, 0")
a("s_nop 4")
a("s_cbranch_scc1 L_red1")
for j in range(4): dsw("ds_write_b128", 6, CY + 16 + 4*j, 4, RED + 1024*j)
a("s_branch L_red2")
a.label("L_red1")
for j in range(4): dsw("ds_write_b128", 6, CY + 4*j, 4, RED + 1024*j)
for j in range(8): a(f"v_mov_b64 {vr(CY + 2*j, 2)}, {vr(CY + 16 + 2*j, 2)}")
a.label("L_red2")
a("s_waitcnt lgkmcnt(0)"); a("s_barrier")
stamp("B6")
for j in range(4): dsr("ds_read_b128", CY + 16 + 4*j, 4, 7, RED + 1024*j)
read_qf()
a("v_lshlrev_b32 v52, 3, v1")
a(f"s_lshl_b32 {sr(sT0)}, {sr(sTT)}, 11")
a(f"s_add_u32 {sr(sSX)}, {sr(sSX)}, {sr(sT0)}")
a(f"s_add_u32 {sr(sSX)}, {sr(sSX)}, {YT}")
a("s_waitcnt lgkmcnt(0)")
for j in range(8): a(f"v_pk_add_f32 {vr(CY + 2*j, 2)}, {vr(CY + 2*j, 2)}, {vr(CY + 16 + 2*j, 2)}")
for j in range(8): cvt(CY + 16 + j, CY + 2*j, CY + 2*j + 1)
for j in range(4): bstore(CY + 16 + 2*j, 2, 52, WS, sr(sSX), 512*j, "sc1")
attn_setup()
ring_fill()
q_loads()
a("s_waitcnt vmcnt(25)")
arrive(4, 7, 6, 7, push_y)

def rowmax(S, m, acc):
    k = 0
    if not acc:
        a(f"v_max3_f32 {vr(m)}, {vr(S)}, {vr(S+1)}, {vr(S+2)}"); k = 3
    while k < 16:
        a(f"v_max3_f32 {vr(m)}, {vr(m)}, {vr(S+k)}, {vr(S+min(k+1,15))}"); k += 2
a.label("L_attn")
a("s_waitcnt vmcnt(22)")
mfma32(S0, rK(0), Q0, None); mfma32(S1, rK(0), Q1, None)
a("s_nop 10")
rowmax(S0, 6, False); rowmax(S1, 7, False)
a.label("L_havemax")
a("v_mov_b32 v4, v6"); a("v_mov_b32 v3, v7"); a("s_nop 1")
a("v_permlane32_swap_b32 v6, v4"); a("v_permlane32_swap_b32 v7, v3")
a(f"v_max_f32 v6, v6, v4"); a("v_max_f32 v7, v7, v3")
a(f"v_sub_f32 {vr(C0)}, 0, v6"); a(f"v_sub_f32 {vr(C0+1)}, 0, v6")
a(f"v_sub_f32 {vr(C1)}, 0, v7"); a(f"v_sub_f32 {vr(C1+1)}, 0, v7")
for j in range(1, 8): a(f"v_mov_b64 {vr(C0+2*j,2)}, {vr(C0,2)}")
for j in range(1, 8): a(f"v_mov_b64 {vr(C1+2*j,2)}, {vr(C1,2)}")
mfma32(S0, rK(0), Q0, C0)
for j in range(16): a(f"v_mov_b64 {vr(O0+2*j,2)}, 0")
for j in range(4): a(f"v_mov_b64 {vr(S1+8+2*j,2)}, 0")
a(f"s_mov_b32 {sr(sPASS)}, 0")
stamp("loop start")
def E(S, x, y):
    for k in range(x, y + 1): a(f"v_exp_f32 {vr(S+k)}, {vr(S+k)}" if not OPT["noexp"] else "s_nop 1")
if OPT["noload"]:
    def bload(*x, **y): a("s_nop 0")
if OPT["noqk"]:
    def mfma32(*x): a("s_nop 1")
if OPT["c0"]: C0x = C1x = None
else: C0x, C1x = C0, C1
def PV(O, V, S): a("s_nop 2" if OPT["nopv"] else f"v_smfmac_f32_32x32x32_bf16 {vr(O,16)}, {vr(V,4)}, {vr(S,8)}, {vr(vIDX)}")
a(".p2align 6")
a.label("L_loop")
for i in range(8):
    E(S0, 0, 1)
    PV(O1, rVb(i-1), S1 + 8)
    a(f"s_mov_b64 exec, {sr(sHALF,2)}")
    bload(rVa(i-1), 4, vVA, WS, sr(sOFF), 1024, "sc1")
    bload(rVb(i-1), 4, vVA, WS, sr(sOFF), 1536, "sc1")
    a("s_mov_b64 exec, -1")
    E(S0, 2, 5)
    mfma32(S1, rK(i), Q1, C1x)
    bload(rK(i-1), 4, vKA, WS, sr(sOFF), 0, "sc1")
    E(S0, 6, 9)
    PV(O0, rVa(i), S0)
    adv()
    E(S0, 10, 15)
    E(S1, 0, 1)
    PV(O0, rVb(i), S0 + 8)
    a("s_waitcnt vmcnt(18)")
    if i == 0: a(f"s_cmp_eq_u32 {sr(sPASS)}, 3")
    if i == 7: a(f"s_add_u32 {sr(sPASS)}, {sr(sPASS)}, 1")
    E(S1, 2, 5)
    mfma32(S0, rK(i+1), Q0, C0x)
    if i == 0: a(f"s_cselect_b32 {sr(sT0)}, 0x40000000, 0")
    elif i == 7: a(f"s_cmp_lg_u32 {sr(sPASS)}, 4")
    else: a("s_nop 0")
    E(S1, 6, 9)
    PV(O1, rVa(i), S1)
    if i == 0: a(f"s_or_b32 {sr(sOFF)}, {sr(sOFF)}, {sr(sT0)}")
    E(S1, 10, 15)
a("s_cbranch_scc1 L_loop")
bload, mfma32 = bload_, mfma32_
if OPT["noqk"] or OPT["noexp"]: a(f"s_mov_b32 {sr(sREDO)}, 1")
a("s_nop 0")
PV(O1, rVb(7), S1 + 8)
a(f"s_mov_b32 {sr(sT0)}, {f2h(2.0**24)}")
a(f"s_cmp_lg_u32 {sr(sREDO)}, 0")
a("s_nop 9")
a("s_cbranch_scc1 L_attn_done")
a(f"v_cmp_nle_f32 vcc, {vr(O0+8)}, {sr(sT0)}")
a(f"v_cmp_nle_f32 {sr(sT1,2)}, {vr(O1+8)}, {sr(sT0)}")
a(f"s_or_b64 vcc, vcc, {sr(sT1,2)}")
a("s_cbranch_vccnz L_fallback")
a.label("L_attn_done")
stamp("loop end")
a(f"s_mul_i32 {sr(sT0)}, {sr(sW)}, 2560")
a(f"s_add_u32 {sr(sT0)}, {sr(sT0)}, {MG}")
a(f"v_lshl_add_u32 v6, v1, 4, {sr(sT0)}")
a(f"v_lshl_add_u32 v7, v1, 3, {sr(sT0)}")
a(f"v_mov_b32 {vr(O1+9)}, {vr(C1)}")
dsw("ds_write_b128", 6, O1, 4); dsw("ds_write_b128", 6, O1 + 4, 4, 1024); dsw("ds_write_b64", 7, O1 + 8, 2, 2048)
a(f"s_xor_b32 {sr(sT0)}, {sr(sW)}, 4")
a(f"s_mul_i32 {sr(sT0)}, {sr(sT0)}, 2560")
a(f"s_add_u32 {sr(sT0)}, {sr(sT0)}, {MG}")
a(f"v_lshl_add_u32 v3, v1, 4, {sr(sT0)}")
a(f"v_lshl_add_u32 v4, v1, 3, {sr(sT0)}")
a(f"s_cmp_lg_u32 {sr(sKH)}, 0")
a("s_cbranch_scc1 L_merge")
a("s_setprio 0")
a(f"s_lshl_b32 {sr(sT0)}, {sr(sDB)}, 5")
a(f"s_add_u32 {sr(sT0)}, {sr(sT0)}, {sr(sTBB)}")
a(f"s_lshl_b32 {sr(sT0)}, {sr(sT0)}, 7")
a(f"s_add_u32 {sr(sT3)}, {sr(sT0)}, {MB_Y}")
poll(5, 6, sr(sT3))
a("v_lshrrev_b32 v6, 3, v0")
a("v_lshrrev_b32 v7, 1, v6")
a("v_xor_b32 v7, v7, v0")
a("v_and_b32 v7, 7, v7")
a("v_lshlrev_b32 v7, 4, v7")
a("v_lshl_add_u32 v6, v6, 13, v7")
a(f"s_lshl_b32 {sr(sT0)}, {sr(sDB)}, 18")
a(f"s_lshl_b32 {sr(sT1)}, {sr(sTBB)}, 7")
a(f"s_add_u32 {sr(sT0)}, {sr(sT0)}, {sr(sT1)}")
a(f"s_add_u32 m0, {sr(sM0)}, {YB}")
a(f"s_add_u32 {sr(sT0)}, {sr(sT0)}, {YT}")
dma(6, WS, sr(sT0), "sc1")
a(f"s_add_u32 m0, {sr(sM0)}, {YB + 4096}")
a(f"s_add_u32 {sr(sT0)}, {sr(sT0)}, 0x1000")
dma(6, WS, sr(sT0), "sc1")
a("v_lshrrev_b32 v6, 4, v0")
a("v_lshlrev_b32 v7, 1, v6")
a("v_xor_b32 v7, v7, v0")
a("v_and_b32 v7, 15, v7")
a("v_lshlrev_b32 v7, 4, v7")
a("v_lshl_add_u32 v6, v6, 10, v7")
a(f"s_and_b32 {sr(sT0)}, {sr(sHQ)}, 3")
a(f"v_lshl_add_u32 v6, {sr(sT0)}, 8, v6")
a(f"s_lshl_b32 {sr(sT0)}, {sr(sTB)}, 14")
a(f"s_mov_b32 {sr(sT1)}, 0")
a.label("L_wo")
a(f"s_and_b32 {sr(sT0)}, {sr(sT0)}, 0x1ffff")
a(f"s_add_u32 m0, {sr(sM0)}, {sr(sT0)}")
a(f"s_lshl_b32 {sr(sT2)}, {sr(sT0)}, 2")
dma(6, WO, sr(sT2))
a(f"s_add_u32 {sr(sT0)}, {sr(sT0)}, 0x1000")
a(f"s_add_u32 {sr(sT1)}, {sr(sT1)}, 1")
a(f"s_cmp_lg_u32 {sr(sT1)}, 32")
a("s_waitcnt vmcnt(3)")
a("s_cbranch_scc1 L_wo")
a.label("L_merge")
a("s_waitcnt vmcnt(0) lgkmcnt(0)"); a("s_barrier")
stamp("B7")
PP = S0
dsr("ds_read_b64", PP + 8, 2, 4, 2048); dsr("ds_read_b128", PP, 4, 3); dsr("ds_read_b128", PP + 4, 4, 3, 1024)
a("v_lshrrev_b32 v6, 6, v0")
a("v_lshrrev_b32 v7, 1, v0")
a("v_xor_b32 v6, v6, v7")
a("v_and_b32 v6, 7, v6")
a("v_lshlrev_b32 v6, 4, v6")
a("v_lshl_add_u32 v6, v5, 5, v6")
a("v_lshrrev_b32 v7, 2, v0")
a("v_and_b32 v7, 8, v7")
a("v_add_u32 v6, v6, v7")
a(f"v_add_u32 v6, {YB}, v6")
YY = S1
dsr("ds_read_b64", YY, 2, 6); dsr("ds_read_b64", YY + 2, 2, 6, 4096)
a(f"s_lshl1_add_u32 {sr(sT0)}, {sr(sTB)}, {sr(sKH)}")
a(f"s_lshl_b32 {sr(sT0)}, {sr(sT0)}, 15")
a(f"s_lshl2_add_u32 {sr(sT1)}, {sr(sHQ)}, {sr(sHH)}")
a(f"s_lshl_b32 {sr(sT2)}, {sr(sT1)}, 10")
a(f"s_add_u32 {sr(sT0)}, {sr(sT0)}, {sr(sT2)}")
a(f"s_add_u32 {sr(sT0)}, {sr(sT0)}, {OF}")
a("s_waitcnt lgkmcnt(4)")
a(f"v_min_f32 v6, {vr(C0)}, {vr(PP+9)}")
a(f"v_sub_f32 v7, v6, {vr(C0)}")
a(f"v_sub_f32 v6, v6, {vr(PP+9)}")
a("v_exp_f32 v7, v7"); a("v_exp_f32 v6, v6")
a("v_lshlrev_b32 v3, 4, v1")
a(f"v_mul_f32 v4, v7, {vr(O0+8)}")
a(f"v_fmac_f32 v4, v6, {vr(PP+8)}")
a("v_rcp_f32 v4, v4")
a("s_waitcnt lgkmcnt(2)")
a("v_mul_f32 v7, v7, v4"); a("v_mul_f32 v6, v6, v4")
for j in range(8): a(f"v_mul_f32 {vr(O0+j)}, v7, {vr(O0+j)}")
for j in range(8): a(f"v_fmac_f32 {vr(O0+j)}, v6, {vr(PP+j)}")
for j in range(4): cvt(O1 + j, O0 + 2*j, O0 + 2*j + 1)
bstore(O1, 4, 3, WS, sr(sT0), 0, "sc1")
GY, GQ = S0, S0 + 8
a("s_waitcnt lgkmcnt(0)")
for c in range(2):
    lo(GY + c, YY + 2*c); hi(GY + 2 + c, YY + 2*c); lo(GY + 4 + c, YY + 2*c + 1); hi(GY + 6 + c, YY + 2*c + 1)
for j in range(4): lo(GQ + 2*j, QG + j); hi(GQ + 2*j + 1, QG + j)
for j in range(4): a(f"v_pk_add_f32 {vr(GY+2*j,2)}, {vr(GY+2*j,2)}, {vr(UD+2*j,2)}")
for j in range(4): a(f"v_pk_mul_f32 {vr(GY+2*j,2)}, {vr(GY+2*j,2)}, {vr(GQ+2*j,2)}")
for j in range(4): cvt(QG + j, GY + 2*j, GY + 2*j + 1)
a("v_lshrrev_b32 v6, 5, v0")
a("v_lshl_add_u32 v6, v6, 13, v5")
a(f"s_lshl_b32 {sr(sT0)}, {sr(sTBB)}, 17")
a(f"s_lshl_b32 {sr(sT2)}, {sr(sDB)}, 7")
a(f"s_add_u32 {sr(sT0)}, {sr(sT0)}, {sr(sT2)}")
a(f"s_add_u32 {sr(sT2)}, {sr(sT0)}, 0x1000")
gfl = OPT["gfl"].replace("_", " ")
bstore(QG, 1, 6, OUT, sr(sT0), 1024, gfl); bstore(QG + 1, 1, 6, OUT, sr(sT0), 3072, gfl)
bstore(QG + 2, 1, 6, OUT, sr(sT2), 1024, gfl); bstore(QG + 3, 1, 6, OUT, sr(sT2), 3072, gfl)
WOF = 128
a("v_bfe_u32 v6, v1, 2, 3")
a("v_lshrrev_b32 v7, 5, v1")
a("v_lshl_add_u32 v7, v7, 4, v6")
a(f"s_and_b32 {sr(sT0)}, {sr(sW)}, 6")
a(f"v_xor_b32 v6, {sr(sT0)}, v6")
a("v_lshlrev_b32 v6, 5, v6")
a("v_lshl_add_u32 v6, v7, 8, v6")
a("v_and_b32 v7, 3, v1")
a("v_lshl_add_u32 v16, v7, 3, v6")
a("v_xor_b32 v17, 32, v16")
a("v_add_u32 v18, 0x10000, v16")
a("v_add_u32 v19, 0x10000, v17")
def wo_reads(ps):
    for p in ps:
        for c in range(2):
            for part in range(2):
                dsr("ds_read_b64_tr_b16", WOF + 8*p + 4*c + 2*part, 2, 16 + c + 2*(p >> 3), ((p & 7) * 32 + 8*part) * 256)
wo_reads(range(0, 8))
a(f"s_lshl1_add_u32 {sr(sT0)}, {sr(sTB)}, {sr(sKH)}")
a(f"s_lshl_b32 {sr(sT0)}, {sr(sT0)}, 9")
a(f"s_lshl2_add_u32 {sr(sT0)}, {sr(sT1)}, {sr(sT0)}")
a(f"s_add_u32 {sr(sT0)}, {sr(sT0)}, {MB_O}")
a("s_waitcnt vmcnt(4)")
push(4, 6, 7, sr(sT0))
wo_reads(range(8, 16))
a(f"s_lshl3_add_u32 {sr(sT0)}, {sr(sTB)}, {sr(sHQ)}")
a(f"s_lshl_b32 {sr(sT0)}, {sr(sT0)}, 7")
a(f"s_lshl4_add_u32 {sr(sT0)}, {sr(sW)}, {sr(sT0)}")
a(f"s_add_u32 {sr(sT3)}, {sr(sT0)}, {MB_O}")
a("v_and_b32 v20, 12, v5")
a(f"s_lshr_b32 {sr(sT0)}, {sr(sHQ)}, 2")
a(f"s_lshl1_add_u32 {sr(sSX)}, {sr(sTB)}, {sr(sT0)}")
a(f"s_lshl_b32 {sr(sT0)}, {sr(sSX)}, 15")
a(f"s_lshl2_add_u32 {sr(sT0)}, {sr(sM0)}, {sr(sT0)}")
a(f"s_add_u32 {sr(sSW)}, {sr(sT0)}, {OF}")
a(f"s_lshl_b32 m0, {sr(sM0)}, 2")
a("s_waitcnt lgkmcnt(0)"); a("s_barrier")
poll(20, 6, sr(sT3))
stamp("o flags")
for i in range(4):
    a(f"buffer_load_dwordx4 v3, {sr(WS,4)}, {sr(sSW)} offen offset:{1024*i} sc1 lds")
a("v_lshrrev_b32 v6, 5, v1")
a("v_lshlrev_b32 v6, 10, v6")
a("v_and_b32 v7, 16, v1")
a("v_lshl_add_u32 v6, v7, 5, v6")
a("v_and_b32 v21, 15, v1")
a(f"v_lshl_add_u32 v21, {sr(sCT)}, 4, v21")
a("v_lshl_add_u32 v22, v21, 4, v6")
a("v_lshrrev_b32 v6, 5, v1")
a("v_lshlrev_b32 v6, 4, v6")
a("v_lshl_add_u32 v6, v7, 1, v6")
a("v_lshl_add_u32 v23, v21, 11, v6")
a(f"s_lshl_b32 {sr(sT0)}, {sr(sSX)}, 16")
a(f"s_and_b32 {sr(sT1)}, {sr(sHQ)}, 3")
a(f"s_lshl_b32 {sr(sT1)}, {sr(sT1)}, 8")
a(f"s_add_u32 {sr(sT0)}, {sr(sT0)}, {sr(sT1)}")
a(f"s_lshr_b32 {sr(sT1)}, {sr(sW)}, 1")
a(f"s_lshl_b32 {sr(sT1)}, {sr(sT1)}, 6")
a(f"s_add_u32 {sr(sT3)}, {sr(sT0)}, {sr(sT1)}")
a("s_waitcnt vmcnt(0)"); a("s_barrier")
OFR, PA = 32, 24
for p in range(12): dsr("ds_read_b128", OFR + 4*p, 4, 22, 2048*p)
for p in range(16):
    a(f"s_waitcnt lgkmcnt({min(16, p + 12) - p - 1})")
    mfma16(PA, WOF + 8*p, OFR + 4*p, None if p == 0 else PA)
    mfma16(PA + 4, WOF + 8*p + 4, OFR + 4*p, None if p == 0 else PA + 4)
    if p + 12 < 16: dsr("ds_read_b128", OFR + 4*(p + 12), 4, 22, 2048*(p + 12))
a("s_nop 7")
cvt(16, PA, PA + 1); cvt(17, PA + 2, PA + 3); cvt(18, PA + 4, PA + 5); cvt(19, PA + 6, PA + 7)
a("s_nop 1")
a("v_permlane16_swap_b32 v16, v18"); a("v_permlane16_swap_b32 v17, v19")
bstore(16, 4, 23, OUT, sr(sT3), 0, OPT["pfl"].replace("_", " "))
a(f"s_or_b32 {sr(sT0)}, s2, {sr(sW)}")
a("s_cbranch_scc1 L_noep")
a(f"v_mov_b32 v6, {EP}")
a(f"v_mov_b32 v7, {sr(sTAG)}")
a("s_mov_b64 exec, 1")
bstore(7, 1, 6, WS, 0, flags="sc1")
a("s_mov_b64 exec, -1")
a.label("L_noep")
stamp("end")
if DIAG:
    a("s_waitcnt lgkmcnt(0)")
    for i in range(nstamp[0]): a(f"v_mov_b32 {vr(32+i)}, {sr(sST+2*i)}")
    a(f"s_lshl3_add_u32 {sr(sT0)}, s2, {sr(sW)}")
    a(f"s_lshl_b32 {sr(sT0)}, {sr(sT0)}, 6")
    a(f"s_add_u32 {sr(sT0)}, {sr(sT0)}, {STAMP}")
    a("v_mov_b32 v6, 0")
    a("s_mov_b64 exec, 1")
    for i in range(4): bstore(32 + 4*i, 4, 6, WS, sr(sT0), 16*i)
a("s_endpgm")
a.label("L_fallback")
a(f"s_mov_b32 {sr(sREDO)}, 1")
a(f"s_mov_b32 {sr(sOFF)}, 0")
a("v_mov_b32 v6, 0xff800000"); a("v_mov_b32 v7, v6")
a("s_waitcnt vmcnt(0)")
a.label("L_fb")
bload(rK(0), 4, vKA, WS, sr(sOFF), 0, "sc1")
a(f"s_add_u32 {sr(sOFF)}, {sr(sOFF)}, 0x1000")
a("s_waitcnt vmcnt(0)")
mfma32(S0, rK(0), Q0, None); mfma32(S1, rK(0), Q1, None)
a("s_nop 10")
rowmax(S0, 6, True); rowmax(S1, 7, True)
a(f"s_cmp_lg_u32 {sr(sOFF)}, 0x20000")
a("s_cbranch_scc1 L_fb")
ring_fill()
a("s_waitcnt vmcnt(18)")
a("s_branch L_havemax")
a.label("L_end")
a("s_endpgm")

nbad = check(a.lines)
ref = open(f"cdna_kernels/{NAME}.s.ref").read().split("\n")
head = [l for l in ref if l.startswith(";") and "@launch" not in l and "Override launch" not in l and "grid=ceil" not in l]
out = "\n".join(head) + f"""
; Fused single launch: 256 workgroups (one per CU) x 8 waves; generated by gen/gen.py.
; @launch grid=(256,1,1) block=(512,1,1) lds={LDS_BYTES}
.amdgcn_target "amdgcn-amd-amdhsa--gfx950"
.text
.globl {NAME}_kernel
.p2align 8
.type {NAME}_kernel,@function
""" + a.text() + f""".section .rodata,"a"
.p2align 6
.amdhsa_kernel {NAME}_kernel
  .amdhsa_next_free_vgpr 256
  .amdhsa_next_free_sgpr 102
  .amdhsa_accum_offset 256
  .amdhsa_group_segment_fixed_size 0
  .amdhsa_kernarg_size 96
  .amdhsa_user_sgpr_count 2
  .amdhsa_user_sgpr_kernarg_segment_ptr 1
  .amdhsa_system_sgpr_workgroup_id_x 1
.end_amdhsa_kernel
"""
open(sys.argv[1], "w").write(out)
print("hazards:", nbad, "lines:", len(a.lines), "stamps:", nstamp[0])
```

```python
import sys, math, struct
from asmlib import Asm, vr, sr, check

NAME = "concat_heads__mha_block__ssm_conv_h3__prompt"
OPT = dict(enc="", encw=0, first=0, gfl="sc1", pfl="sc1", vz=1, noload=0, nopv=0, noqk=0, noexp=0, c0=0, prio=1, diag=0, spin=0, spinat="end", clk=0)
for arg in sys.argv[2:]:
    k, v = arg.split("=")
    try: OPT[k] = int(v, 0)
    except ValueError: OPT[k] = v
DIAG = OPT["diag"]

KV, UT, YT, OF, MB = 0, 0x400000, 0x600000, 0x800000, 0xA00000
MB_U, MB_KV, MB_Y, MB_O = MB, MB + 0x8000, MB + 0x10000, MB + 0x18000
EP = MB + 0x20000
STAMP = 0xA30000
WS_SIZE = 0xA50000
K1 = 1024
SLOT = [0, 48 * K1, 96 * K1]
EX = 144 * K1
P0S = SLOT[2]
HB = SLOT[2]; HSTR = 4512
UB = HB + 8 * HSTR; USTR = 4224
CNT = UB + 2 * USTR
QF = 0; RED = 8 * K1
YB = 128 * K1; MG = 140 * K1
LDS_BYTES = 160 * K1
assert CNT + 16 <= MG
X, W, WO, BQ, BK, BV, SH, HK, DD, OUT, WS = 4, 8, 12, 16, 20, 24, 28, 32, 36, 40, 44
sW, sHQ, sTB, sDB, sTBB, sROT, sTAG, sMASK = 48, 49, 50, 51, 52, 53, 54, 55
sA, sT0, sT1, sT2, sT3, sSX, sSW, sM0 = 56, 57, 58, 59, 60, 61, 62, 63
sOFF, sPASS, sREDO, sSPIN, sAND = 64, 65, 66, 67, 68
sHALF = 70
sCT, sTT, sHH, sKH = 3, 69, 72, 73
sST = 74
SPINMAX = 0x20000
f2h = lambda x: hex(struct.unpack("<I", struct.pack("<f", x))[0])

a = Asm()
nstamp = [0]
def stamp(name):
    if OPT["enc"] and name.replace(" ", "_") == OPT["enc"]: a("s_memrealtime s[94:95]")
    if OPT["enc"] and name == "end":
        L, L2 = newlab("spin"), newlab("spin")
        a("s_waitcnt lgkmcnt(0)")
        a("s_sub_u32 s94, s94, s100"); a("s_lshl_b32 s94, s94, 2")
        a("s_lshr_b32 s95, s2, 3"); a(f"s_lshl3_add_u32 s95, s95, {sr(sW)}"); a(f"s_cmp_eq_u32 s95, {96 + OPT['encw']}")
        a("s_cselect_b32 s94, s94, 0"); a("s_add_u32 s94, s94, 4000")
        a.label(L)
        a("s_memrealtime s[98:99]"); a("s_waitcnt lgkmcnt(0)")
        a("s_sub_u32 s98, s98, s100"); a("s_cmp_lt_u32 s98, s94"); a(f"s_cbranch_scc1 {L}")
    if OPT["spin"] and name.replace(" ", "_") == OPT["spinat"]:
        L = newlab("spin")
        if OPT["first"]:
            a("v_mov_b32 v6, 0"); a("global_load_dword v6, v6, s[96:97] sc1"); a("s_waitcnt vmcnt(0)")
            a("v_readfirstlane_b32 s100, v6"); a("s_nop 3"); a("s_not_b32 s100, s100")
        a.label(L)
        a("s_memrealtime s[98:99]"); a("s_waitcnt lgkmcnt(0)")
        a("s_sub_u32 s98, s98, s100"); a(f"s_cmp_lt_u32 s98, {OPT['spin'] * 100}"); a(f"s_cbranch_scc1 {L}")
    if DIAG == 2:
        if name in ("B1", "B5", "B6", "loop start", "loop end", "end"):
            i = nstamp[0]; nstamp[0] += 2
            a(f"s_memrealtime {sr(sST + 2 * i, 2)}")
            a(f"s_memtime {sr(sST + 2 * i + 2, 2)}")
    elif DIAG:
        i = nstamp[0]; nstamp[0] += 1
        assert sST + 2 * i + 1 <= 101, "too many stamps"
        a(f"{'s_memtime' if OPT['clk'] else 's_memrealtime'} {sr(sST + 2 * i, 2)} ; stamp {i} {name}")
def set_stamp(i): nstamp[0] = i
lab = [0]
def newlab(p):
    lab[0] += 1; return f"L_{p}{lab[0]}"

def bload(dst, n, vaddr, srd, soff, off=0, flags=""):
    op = {1: "dword", 2: "dwordx2", 4: "dwordx4"}[n]
    a(f"buffer_load_{op} {vr(dst, n)}, {vr(vaddr)}, {sr(srd, 4)}, {soff} offen" + (f" offset:{off}" if off else "") + (" " + flags if flags else ""))
def bstore(src, n, vaddr, srd, soff, off=0, flags=""):
    op = {1: "dword", 2: "dwordx2", 4: "dwordx4"}[n]
    a(f"buffer_store_{op} {vr(src, n)}, {vr(vaddr)}, {sr(srd, 4)}, {soff} offen" + (f" offset:{off}" if off else "") + (" " + flags if flags else ""))
def dma(vaddr, srd, soff, flags=""):
    a(f"buffer_load_dwordx4 {vr(vaddr)}, {sr(srd, 4)}, {soff} offen" + (" " + flags if flags else "") + " lds")
def dsr(op, dst, n, vaddr, off=0):
    assert 0 <= off < 65536
    a(f"{op} {vr(dst, n)}, {vr(vaddr)}" + (f" offset:{off}" if off else ""))
def dsw(op, vaddr, src, n, off=0):
    assert 0 <= off < 65536
    a(f"{op} {vr(vaddr)}, {vr(src, n)}" + (f" offset:{off}" if off else ""))
def mfma32(d, A, B, c): a(f"v_mfma_f32_32x32x16_bf16 {vr(d,16)}, {vr(A,4)}, {vr(B,4)}, " + ("0" if c is None else vr(c, 16)))
def mfma16(d, A, B, c): a(f"v_mfma_f32_16x16x32_bf16 {vr(d,4)}, {vr(A,4)}, {vr(B,4)}, " + ("0" if c is None else vr(c, 4)))
def cvt(d, x, y): a(f"v_cvt_pk_bf16_f32 {vr(d)}, {vr(x)}, {vr(y)}")
def lo(d, s): a(f"v_lshlrev_b32 {vr(d)}, 16, {vr(s)}")
def hi(d, s): a(f"v_and_b32 {vr(d)}, {sr(sMASK)}, {vr(s)}")

bload_, mfma32_ = bload, mfma32
def poll(vaddr, vtmp, soff, first_issued=False):
    L, Lo = newlab("poll"), newlab("pollok")
    a(f"s_mov_b32 {sr(sSPIN)}, 0")
    if first_issued:
        a(f"v_cmp_ne_u32 vcc, {sr(sTAG)}, {vr(vtmp)}")
        a(f"s_cbranch_vccz {Lo}")
    a.label(L)
    bload(vtmp, 1, vaddr, WS, soff, flags="sc1")
    a(f"s_add_u32 {sr(sSPIN)}, {sr(sSPIN)}, 1")
    a(f"s_cmp_ge_u32 {sr(sSPIN)}, {SPINMAX}")
    a("s_waitcnt vmcnt(0)")
    a(f"s_cbranch_scc1 {Lo}")
    a(f"v_cmp_ne_u32 vcc, {sr(sTAG)}, {vr(vtmp)}")
    a(f"s_cbranch_vccz {Lo}")
    a("s_sleep 2")
    a(f"s_branch {L}")
    a.label(Lo)

def push(nl, vt0, vt1, soff):
    a(f"v_lshlrev_b32 {vr(vt0)}, 7, v1")
    a(f"v_mov_b32 {vr(vt1)}, {sr(sTAG)}")
    a(f"s_mov_b64 exec, {hex((1 << nl) - 1)}")
    bstore(vt1, 1, vt0, WS, soff, flags="sc1")
    a("s_mov_b64 exec, -1")

def arrive(cntoff, last, vt0, vt1, pushfn):
    L = newlab("arr")
    a(f"v_mov_b32 {vr(vt0)}, {CNT + cntoff}")
    a(f"v_mov_b32 {vr(vt1)}, 1")
    a("s_mov_b64 exec, 1")
    a(f"ds_add_rtn_u32 {vr(vt1)}, {vr(vt0)}, {vr(vt1)}")
    a("s_waitcnt lgkmcnt(0)")
    a(f"v_cmp_ne_u32 vcc, {last}, {vr(vt1)}")
    a("s_mov_b64 exec, -1")
    a(f"s_cbranch_vccnz {L}")
    pushfn()
    a.label(L)

a.label(f"{NAME}_kernel")
a("s_cmp_ge_u32 s2, 0x100")
a("s_cbranch_scc1 L_end")
a("s_load_dwordx16 s[64:79], s[0:1], 0")
a("s_load_dwordx8 s[80:87], s[0:1], 64")
if DIAG or OPT["spin"] or OPT["enc"]: a("s_memtime s[100:101]" if OPT["clk"] else "s_memrealtime s[100:101]")
a("s_getpc_b64 s[88:89]")
a.label("L_pc")
a(f"s_lshr_b32 {sr(sTBB)}, s2, 3")
a(f"s_and_b32 {sr(sDB)}, s2, 7")
a("v_lshrrev_b32 v6, 6, v0")
a(f"v_lshl_add_u32 v7, {sr(sTBB)}, 3, v6")
a("v_lshlrev_b32 v7, 7, v7")
a("v_min_u32 v7, L_end-L_pc, v7")
a("global_load_dword v7, v7, s[88:89]")
a(f"v_readfirstlane_b32 {sr(sW)}, v6")
a("v_and_b32 v1, 63, v0")
a("v_and_b32 v5, 31, v0")
a("v_lshrrev_b32 v2, 5, v0")
a("v_lshlrev_b32 v4, 4, v5")
a("v_lshlrev_b32 v5, 2, v5")
a("v_lshl_add_u32 v2, v2, 12, v5")
a(f"s_lshl_b32 {sr(sA)}, {sr(sTBB)}, 16")
a(f"s_lshl_b32 {sr(sT0)}, {sr(sDB)}, 7")
a(f"s_lshl_b32 {sr(sT1)}, {sr(sDB)}, 9")
a(f"s_add_u32 {sr(sA)}, {sr(sA)}, {sr(sT0)}")
a(f"s_sub_u32 {sr(sT2)}, {sr(sA)}, 0xc00")
a(f"v_add_u32 v3, {sr(sT2)}, v2")
a(f"s_mov_b32 {sr(BK+2)}, 0x200000")
a(f"s_mov_b32 {sr(BK+3)}, 0x20000")
for r in (BV, X, HK, BQ): a(f"s_mov_b64 {sr(r+2,2)}, {sr(BK+2,2)}")
for r, n in ((SH, 4096), (DD, 1024)):
    a(f"s_movk_i32 {sr(r+2)}, {n}"); a(f"s_mov_b32 {sr(r+3)}, {sr(BK+3)}")
a("s_waitcnt lgkmcnt(0)")
a(f"s_mov_b64 {sr(BK,2)}, s[72:73]")
a(f"s_mov_b64 {sr(BV,2)}, s[74:75]")
a(f"s_mov_b64 {sr(SH,2)}, s[76:77]")
a(f"s_mov_b64 {sr(DD,2)}, s[80:81]")
if OPT["first"]:
    a("s_mov_b64 s[96:97], s[84:85]"); a("s_not_b32 s98, s100"); a("v_mov_b32 v32, 0"); a("v_mov_b32 v33, s98")
    a("s_mov_b64 exec, 1"); a("global_atomic_umax v32, v33, s[96:97] sc1"); a("s_mov_b64 exec, -1")
for i in range(3): bload(16 + i, 1, 3, BK, 0, 1024 * i)
for i in range(4): bload(19 + i, 1, 2, BK, sr(sA), 1024 * i)
bload(28, 4, 4, SH, sr(sT1))
for i in range(4): bload(23 + i, 1, 2, BV, sr(sA), 1024 * i)
bload(27, 1, 5, DD, sr(sT0))
a(f"s_mov_b64 {sr(X,2)}, s[64:65]")
a(f"s_mov_b64 {sr(W,2)}, s[66:67]")
a(f"s_mov_b64 {sr(WS,2)}, s[86:87]")
a(f"s_mov_b32 {sr(W+2)}, 0x180000"); a(f"s_mov_b32 {sr(W+3)}, {sr(BK+3)}")
a(f"s_and_b32 {sr(sT0)}, {sr(sTBB)}, 3")
a(f"s_lshr_b32 {sr(sT1)}, {sr(sTBB)}, 2")
a(f"s_add_u32 {sr(sROT)}, {sr(sT0)}, {sr(sT1)}")
a(f"s_and_b32 {sr(sHQ)}, {sr(sDB)}, 1")
a(f"s_lshl2_add_u32 {sr(sHQ)}, {sr(sHQ)}, {sr(sT0)}")
a(f"s_lshr_b32 {sr(sTB)}, {sr(sDB)}, 1")
a(f"s_lshl3_add_u32 {sr(sTB)}, {sr(sTB)}, {sr(sT1)}")
vXS, vWS = 48, 49
a("v_lshrrev_b32 v6, 4, v0")
a("v_xor_b32 v32, v6, v0")
a("v_and_b32 v32, 15, v32")
a("v_lshlrev_b32 v32, 4, v32")
a(f"v_lshl_add_u32 {vr(vXS)}, v6, 10, v32")
a("v_lshrrev_b32 v6, 2, v0")
a("v_and_b32 v6, 4, v6")
a("v_xor_b32 v6, v6, v0")
a("v_and_b32 v6, 7, v6")
a("v_lshrrev_b32 v32, 3, v0")
a("v_mul_u32_u24 v32, 0xc00, v32")
a(f"v_lshl_add_u32 {vr(vWS)}, v6, 4, v32")
a(f"s_lshl_b32 {sr(sM0)}, {sr(sW)}, 10")

def chunk_offsets(c):
    a(f"s_add_u32 {sr(sT0)}, {sr(sROT)}, {c}")
    a(f"s_and_b32 {sr(sT0)}, {sr(sT0)}, 3")
    a(f"s_lshl_b32 {sr(sT1)}, {sr(sHQ)}, 7")
    a(f"s_mul_i32 {sr(sSW)}, {sr(sT0)}, {128*3072}")
    a(f"s_add_u32 {sr(sSW)}, {sr(sSW)}, {sr(sT1)}")
def dma_w(part, ldsbase):
    for i in range(2):
        a(f"s_add_u32 m0, {sr(sM0)}, {ldsbase + 8192 * i}")
        a(f"s_add_u32 {sr(sT2)}, {sr(sSW)}, {part * 1024 + i * 64 * 3072}")
        dma(vWS, W, sr(sT2))
def dma_chunk(c):
    s = SLOT[c % 3]
    chunk_offsets(c)
    a(f"s_lshl_b32 {sr(sT1)}, {sr(sTB)}, 8")
    a(f"s_add_u32 {sr(sT0)}, {sr(sT0)}, {sr(sT1)}")
    a(f"s_lshl_b32 {sr(sSX)}, {sr(sT0)}, 8")
    for i in range(2):
        a(f"s_add_u32 m0, {sr(sM0)}, {s + 8192 * i}")
        a(f"s_add_u32 {sr(sT2)}, {sr(sSX)}, {32768 * i}")
        dma(vXS, X, sr(sT2))
    dma_w(1, s + 16 * K1)
    dma_w(2, s + 32 * K1)

dma_chunk(0)
dma_w(0, EX)
a(f"s_add_u32 s88, s86, {EP}")
a("s_addc_u32 s89, s87, 0")
a(f"s_load_dword {sr(sTAG)}, s[88:89], 0")
a(f"s_mov_b64 {sr(HK,2)}, s[78:79]")
a(f"s_mov_b64 {sr(WO,2)}, s[68:69]")
a(f"s_mov_b64 {sr(BQ,2)}, s[70:71]")
a(f"s_mov_b64 {sr(OUT,2)}, s[82:83]")
for r, n in ((WO, 0x80000), (OUT, 0x400000), (WS, WS_SIZE)):
    a(f"s_mov_b32 {sr(r+2)}, {hex(n)}"); a(f"s_mov_b32 {sr(r+3)}, {sr(BK+3)}")
a(f"s_mov_b32 {sr(sMASK)}, 0xffff0000")
HP, HL = 56, 58
a("v_lshlrev_b32 v6, 4, v0")
a("v_and_b32 v32, 0xff, v0")
a("v_cmp_eq_u32 vcc, 0, v32")
a("v_subrev_u32 v32, 8, v6")
a(f"s_lshl_b32 {sr(sT0)}, {sr(sDB)}, 5")
a(f"s_add_u32 {sr(sT0)}, {sr(sT0)}, {sr(sTBB)}")
a(f"s_lshl_b32 {sr(sT0)}, {sr(sT0)}, 13")
a("v_bfrev_b32 v33, 2")
a("v_cndmask_b32 v32, v32, v33, vcc")
bload(HL, 4, 6, HK, sr(sT0))
bload(HP, 2, 32, HK, sr(sT0))
if DIAG: a(f"s_mov_b64 {sr(sST,2)}, s[100:101]"); nstamp[0] = 1
stamp("issued")
UD = 8
KP, WJ, VP, DP, UU = 64, 80, 88, 96, 98
a("v_lshrrev_b32 v6, 5, v0")
a("v_xor_b32 v6, 15, v6")
a("v_lshrrev_b32 v32, 1, v6")
a("v_xor_b32 v32, v32, v0")
a("v_and_b32 v32, 7, v32")
a("v_and_b32 v6, 1, v6")
a("v_lshlrev_b32 v6, 3, v6")
a("v_lshl_add_u32 v6, v32, 4, v6")
a("v_lshl_add_u32 v6, v5, 5, v6")
a(f"v_add_u32 v34, {P0S}, v6")
a("v_lshrrev_b32 v6, 3, v0")
a("v_xor_b32 v32, v6, v0")
a("v_and_b32 v32, 7, v32")
a("v_lshlrev_b32 v32, 4, v32")
a("v_lshl_add_u32 v32, v6, 7, v32")
a(f"v_add_u32 v35, {P0S}, v32")
a("v_and_b32 v32, 31, v6")
a("v_lshrrev_b32 v6, 5, v6")
a("v_lshl_add_u32 v6, v32, 1, v6")
a("v_and_b32 v32, 7, v0")
a("v_lshlrev_b32 v32, 4, v32")
a("v_lshl_add_u32 v36, v6, 12, v32")
a(f"s_lshl_b32 {sr(sT0)}, {sr(sDB)}, 18")
a(f"s_sub_u32 {sr(sT1)}, 31, {sr(sTBB)}")
a(f"s_lshl_b32 {sr(sT1)}, {sr(sT1)}, 7")
a(f"s_add_u32 {sr(sT3)}, {sr(sT0)}, {sr(sT1)}")
a(f"s_add_u32 {sr(sT3)}, {sr(sT3)}, {UT}")
a("s_waitcnt vmcnt(15)")
for i in range(7): lo(KP + 2*i, 16 + i); hi(KP + 2*i + 1, 16 + i)
lo(WJ+0, 28); lo(WJ+1, 30); hi(WJ+2, 28); hi(WJ+3, 30)
lo(WJ+4, 29); lo(WJ+5, 31); hi(WJ+6, 29); hi(WJ+7, 31)
for j in range(4):
    a(f"v_pk_mul_f32 {vr(UU+2*j,2)}, {vr(KP+2*j,2)}, {vr(WJ+6,2)}")
for t in (2, 1, 0):
    for j in range(4):
        a(f"v_pk_fma_f32 {vr(UU+2*j,2)}, {vr(KP+2*(j+3-t),2)}, {vr(WJ+2*t,2)}, {vr(UU+2*j,2)}")
a("s_waitcnt vmcnt(10)")
stamp("p0 loads")
for i in range(4): lo(VP + 2*i, 23 + i); hi(VP + 2*i + 1, 23 + i)
lo(DP, 27); hi(DP + 1, 27)
for j in range(4): a(f"v_pk_mul_f32 {vr(UU+2*j,2)}, {vr(UU+2*j,2)}, {vr(VP+2*j,2)}")
for c in range(2):
    cvt(16 + 2*c, UU + 6 + c, UU + 4 + c); cvt(17 + 2*c, UU + 2 + c, UU + c)
dsw("ds_write_b64", 34, 16, 2); dsw("ds_write_b64", 34, 18, 2, 4096)
for j in range(4): a(f"v_pk_mul_f32 {vr(UD+2*j,2)}, {vr(UU+2*j,2)}, {vr(DP,2)}")
a("s_waitcnt lgkmcnt(0)")
a("s_barrier")
dsr("ds_read_b128", 20, 4, 35)
a(f"s_mul_i32 {sr(sTAG)}, {sr(sTAG)}, 0x2c9277b5")
a(f"s_add_u32 {sr(sTAG)}, {sr(sTAG)}, 0xac564b05")
a("s_waitcnt lgkmcnt(0)")
bstore(20, 4, 36, WS, sr(sT3), flags="sc1")
dma_chunk(1)
XF, WF, ACC, ACQ = 128, 96, 64, 80
vXR, vWR, vXB, vWB, vXT = 50, 51, 52, 53, 54
a(f"s_and_b32 {sr(sCT)}, {sr(sW)}, 1")
a(f"s_bfe_u32 {sr(sTT)}, {sr(sW)}, 0x10001")
a(f"s_and_b32 {sr(sHH)}, {sr(sW)}, 3")
a(f"s_lshr_b32 {sr(sKH)}, {sr(sW)}, 2")
a("v_bfe_u32 v6, v1, 2, 2")
a("v_lshrrev_b32 v32, 5, v1")
a("v_lshl_add_u32 v33, v32, 3, v6")
a("v_lshrrev_b32 v6, 1, v6")
a(f"v_xor_b32 v6, {sr(sCT)}, v6")
a("v_lshlrev_b32 v6, 6, v6")
a("v_lshl_add_u32 v33, v33, 7, v6")
a("v_and_b32 v6, 16, v1")
a("v_lshl_add_u32 v33, v6, 1, v33")
a("v_and_b32 v6, 3, v1")
a(f"v_lshl_add_u32 {vr(vWR)}, v6, 3, v33")
a("v_and_b32 v6, 31, v1")
a(f"s_cmp_ge_u32 {sr(sW)}, 4")
a("s_cbranch_scc1 L_vwave")

def x_addr():
    a("v_xor_b32 v33, v32, v6")
    a("v_and_b32 v33, 15, v33")
    a("v_lshlrev_b32 v33, 4, v33")
    a(f"v_lshl_add_u32 v6, {sr(sTT)}, 5, v6")
    a(f"v_lshl_add_u32 {vr(vXR)}, v6, 8, v33")
def gemm_chunk(c, xbase, wbase, acc, first, swap):
    if xbase is not None: a(f"v_add_u32 {vr(vXB)}, {xbase}, {vr(vXR)}")
    a(f"v_add_u32 {vr(vWB)}, {wbase}, {vr(vWR)}")
    n = 3 if xbase is not None else 2
    def rd(s):
        if xbase is not None:
            t = vXT + (s & 1)
            if s: a(f"v_xor_b32 {vr(t)}, {32*s}, {vr(vXB)}")
            dsr("ds_read_b128", XF + 4*(8*c + s), 4, t if s else vXB)
        dsr("ds_read_b64_tr_b16", WF + 4*s, 2, vWB, 2048*s)
        dsr("ds_read_b64_tr_b16", WF + 4*s + 2, 2, vWB, 2048*s + 512)
    D = 4
    for s in range(D): rd(s)
    for s in range(8):
        a(f"s_waitcnt lgkmcnt({n * (min(8, s + D) - s - 1)})")
        x, w = XF + 4*(8*c + s), WF + 4*s
        mfma32(acc, x if swap else w, w if swap else x, None if (first and s == 0) else acc)
        if s + D < 8: rd(s + D)
def h_copies():
    T = 16
    a("v_lshrrev_b32 v6, 8, v0")
    a(f"v_mul_u32_u24 v6, {4*HSTR}, v6")
    a("v_and_b32 v32, 0xff, v0")
    a("v_lshl_add_u32 v6, v32, 4, v6")
    a(f"v_add_u32 v6, {HB + 384}, v6")
    D = [HP, HP+1, HL, HL+1, HL+2, HL+3]
    dsw("ds_write_b128", 6, HL, 4, 3*HSTR)
    for j in range(4): a(f"v_alignbit_b32 {vr(T+j)}, {vr(D[2+j])}, {vr(D[1+j])}, 16")
    for j in range(4): a(f"v_mov_b32 {vr(T+4+j)}, {vr(D[1+j])}")
    for j in range(4): a(f"v_alignbit_b32 {vr(T+8+j)}, {vr(D[1+j])}, {vr(D[j])}, 16")
    dsw("ds_write_b128", 6, T, 4, 2*HSTR)
    dsw("ds_write_b128", 6, T+4, 4, HSTR)
    dsw("ds_write_b128", 6, T+8, 4, 0)
    a(f"s_mul_i32 {sr(sT0)}, {sr(sW)}, {HSTR}")
    a(f"s_add_u32 {sr(sT0)}, {sr(sT0)}, {HB}")
    a(f"s_mul_i32 {sr(sT1)}, {sr(sCT)}, {USTR}")
    a(f"s_add_u32 {sr(sT1)}, {sr(sT1)}, {UB + 4096 - 384}")
    a(f"v_lshl_add_u32 v6, v1, 4, {sr(sT0)}")
    a(f"v_lshl_add_u32 v32, v1, 4, {sr(sT1)}")
    a("v_cmp_gt_u32 vcc, 24, v1")
    for j in range(4): a(f"v_mov_b32 {vr(T+12+j)}, 0")
    a("v_cndmask_b32 v6, v32, v6, vcc")
    a("v_cmp_gt_u32 vcc, 32, v1")
    a(f"v_mov_b32 v32, {CNT}")
    a("s_nop 0")
    a("v_cndmask_b32 v6, v32, v6, vcc")
    dsw("ds_write_b128", 6, T+12, 4)
def push_u():
    a(f"s_lshl_b32 {sr(sT0)}, {sr(sDB)}, 12")
    a(f"s_lshl2_add_u32 {sr(sT0)}, {sr(sTBB)}, {sr(sT0)}")
    a(f"s_add_u32 {sr(sT0)}, {sr(sT0)}, {MB_U}")
    push(32, 6, 32, sr(sT0))
def push_kv():
    a(f"s_lshl_b32 {sr(sT0)}, {sr(sHQ)}, 12")
    a(f"s_lshl2_add_u32 {sr(sT0)}, {sr(sTB)}, {sr(sT0)}")
    a(f"s_add_u32 {sr(sT0)}, {sr(sT0)}, {MB_KV}")
    push(32, 6, 7, sr(sT0))
def push_y():
    a(f"s_lshl_b32 {sr(sT0)}, {sr(sDB)}, 12")
    a(f"s_lshl2_add_u32 {sr(sT0)}, {sr(sTBB)}, {sr(sT0)}")
    a(f"s_add_u32 {sr(sT0)}, {sr(sT0)}, {MB_Y}")
    push(32, 6, 7, sr(sT0))
def kv_soff():
    a(f"s_lshl1_add_u32 {sr(sT0)}, {sr(sHQ)}, {sr(sCT)}")
    a(f"s_lshl_b32 {sr(sT0)}, {sr(sT0)}, 18")
    a(f"s_lshl1_add_u32 {sr(sT1)}, {sr(sTB)}, {sr(sTT)}")
    a(f"s_lshl_b32 {sr(sT1)}, {sr(sT1)}, 11")
    a(f"s_add_u32 {sr(sT3)}, {sr(sT0)}, {sr(sT1)}")

def gemm_main(isv):
    part = 32 * K1 if isv else 16 * K1
    a("s_waitcnt vmcnt(9)"); a("s_barrier")
    stamp("B1")
    dma_chunk(2)
    gemm_chunk(0, SLOT[0], SLOT[0] + part, ACC, True, isv)
    if not isv: gemm_chunk(0, None, EX, ACQ, True, False)
    a("s_waitcnt vmcnt(6)"); a("s_barrier")
    if isv:
        L = newlab("nu")
        a(f"s_cmp_lg_u32 {sr(sW)}, 4"); a(f"s_cbranch_scc1 {L}")
        push_u()
        a.label(L)
    dma_chunk(3)
    gemm_chunk(1, SLOT[1], SLOT[1] + part, ACC, False, isv)
    a("s_waitcnt vmcnt(6)"); a("s_barrier")
    for c in (1, 2, 3):
        chunk_offsets(c); dma_w(0, SLOT[1] + 16 * K1 * (c - 1))
    gemm_chunk(2, SLOT[2], SLOT[2] + part, ACC, False, isv)
    a("s_waitcnt vmcnt(6)"); a("s_barrier")
    stamp("B4")
    gemm_chunk(3, SLOT[0], SLOT[0] + part, ACC, False, isv)
    kv_soff()
    if isv:
        a("v_bfe_u32 v6, v1, 4, 1")
        a("v_lshlrev_b32 v6, 17, v6")
        a("v_lshrrev_b32 v32, 5, v1")
        a("v_lshl_add_u32 v6, v32, 8, v6")
        a("v_and_b32 v32, 15, v1")
        a("v_lshl_add_u32 v33, v32, 4, v6")
        a("s_nop 0")
    else:
        a("v_lshlrev_b32 v33, 4, v1")
        a(f"s_add_u32 {sr(sT2)}, {sr(sT3)}, 0x20000")
        a("s_nop 4")
    for j in range(8): cvt(40 + j, ACC + 2*j, ACC + 2*j + 1)
    if isv:
        bstore(40, 4, 33, WS, sr(sT3), 1024, "sc1"); bstore(44, 4, 33, WS, sr(sT3), 1536, "sc1")
    else:
        bstore(40, 4, 33, WS, sr(sT3), 0, "sc1"); bstore(44, 4, 33, WS, sr(sT2), 0, "sc1")
    h_copies()
    a("s_waitcnt vmcnt(2) lgkmcnt(0)"); a("s_barrier")
    stamp("B5")

O0, O1, S0, S1, C0, C1 = 16, 32, 48, 64, 80, 96
Q0, Q1 = 112, 116
QG = 120
vIDX, vKA, vVA = 124, 125, 126
RING = 128
def rK(i): return RING + 12 * (i & 7)
def rVa(i): return RING + 12 * (i & 7) + 4
def rVb(i): return RING + 12 * (i & 7) + 8
def attn_setup():
    a(f"s_lshl2_add_u32 {sr(sT0)}, {sr(sHQ)}, {sr(sHH)}")
    a(f"s_lshl_b32 {sr(sT0)}, {sr(sT0)}, 17")
    a(f"s_lshl_b32 {sr(sT1)}, {sr(sKH)}, 11")
    a(f"s_add_u32 {sr(sT0)}, {sr(sT0)}, {sr(sT1)}")
    a(f"v_lshl_add_u32 {vr(vKA)}, v1, 4, {sr(sT0)}")
    a("v_lshrrev_b32 v6, 5, v1")
    a(f"v_lshl_add_u32 v6, v6, 8, {sr(sT0)}")
    a("v_and_b32 v7, 15, v1")
    a(f"v_lshl_add_u32 {vr(vVA)}, v7, 4, v6")
    a(f"v_mov_b32 {vr(vIDX)}, 0xdddddddd")
    a(f"s_mov_b32 {sr(sHALF)}, 0xffff"); a(f"s_mov_b32 {sr(sHALF+1)}, {sr(sHALF)}")
    a(f"s_mov_b32 {sr(sAND)}, 0x4001ffff")
    a(f"s_mov_b32 {sr(sREDO)}, 0")
    a("v_mov_b32 v6, 0x3f803f80")
    if OPT["vz"]:
        a("v_and_b32 v7, 0x1b, v1"); a("v_cmp_eq_u32 vcc, 16, v7"); a("s_nop 1"); a("v_cndmask_b32 v6, 0, v6, vcc")
    a("v_mov_b32 v7, v6")
    for i in range(8):
        for j in range(4): a(f"v_mov_b64 {vr(rVa(i) + 2*j, 2)}, v[6:7]")
def adv():
    a(f"s_add_u32 {sr(sOFF)}, {sr(sOFF)}, 0x1000")
    a(f"s_and_b32 {sr(sOFF)}, {sr(sOFF)}, {sr(sAND)}")
def ring_fill():
    a(f"s_lshl_b32 {sr(sOFF)}, {sr(sTB)}, 12")
    for i in range(7):
        bload(rK(i), 4, vKA, WS, sr(sOFF), 0, "sc1")
        a(f"s_mov_b64 exec, {sr(sHALF,2)}")
        bload(rVa(i), 4, vVA, WS, sr(sOFF), 1024, "sc1")
        bload(rVb(i), 4, vVA, WS, sr(sOFF), 1536, "sc1")
        a("s_mov_b64 exec, -1")
        adv()
def q_loads():
    for i in range(4): bload(QG + i, 1, 2, BQ, sr(sA), 1024 * i)
def read_qf():
    a(f"s_lshl1_add_u32 {sr(sT0)}, {sr(sHH)}, {sr(sKH)}")
    a(f"s_lshl_b32 {sr(sT0)}, {sr(sT0)}, 10")
    a(f"v_lshl_add_u32 v6, v1, 4, {sr(sT0)}")
    a("v_xor_b32 v7, 0x400, v6")
    dsr("ds_read_b128", Q0, 4, 6, QF); dsr("ds_read_b128", Q1, 4, 7, QF)

x_addr()
s0 = nstamp[0]
gemm_main(False)
for c in (1, 2, 3):
    gemm_chunk(c, None, SLOT[1] + 16 * K1 * (c - 1), ACQ, False, False)
a("s_waitcnt vmcnt(0)")
arrive(0, 7, 6, 7, push_kv)
a(f"s_mov_b32 {sr(sT2)}, {f2h(0.25 * math.log2(math.e))}")
a(f"s_lshl2_add_u32 {sr(sT0)}, {sr(sCT)}, {sr(sTT)}")
a(f"s_lshl_b32 {sr(sT0)}, {sr(sT0)}, 10")
a(f"v_lshl_add_u32 v33, v1, 4, {sr(sT0)}")
a("s_nop 3")
for j in range(16): a(f"v_mul_f32 {vr(ACQ+j)}, {sr(sT2)}, {vr(ACQ+j)}")
for j in range(8): cvt(40 + j, ACQ + 2*j, ACQ + 2*j + 1)
dsw("ds_write_b128", 33, 40, 4, QF); dsw("ds_write_b128", 33, 44, 4, QF + 2048)
stamp("q done")
attn_setup()
a(f"s_lshl_b32 {sr(sT0)}, {sr(sHQ)}, 5")
a(f"s_add_u32 {sr(sT0)}, {sr(sT0)}, {sr(sTB)}")
a(f"s_lshl_b32 {sr(sT0)}, {sr(sT0)}, 7")
a(f"s_add_u32 {sr(sT3)}, {sr(sT0)}, {MB_KV}")
poll(5, 6, sr(sT3))
stamp("kv flags")
ring_fill()
q_loads()
a("s_waitcnt lgkmcnt(0)"); a("s_barrier")
stamp("B6")
read_qf()
a("s_waitcnt lgkmcnt(0)")
arrive(4, 7, 6, 7, push_y)
if OPT["prio"]: a("s_setprio 1")
a("s_branch L_attn")

a.label("L_vwave")
a("v_and_b32 v33, 0x13, v6")
a("v_and_b32 v7, 4, v6")
a("v_lshl_or_b32 v33, v7, 1, v33")
a("v_and_b32 v7, 8, v6")
a("v_lshrrev_b32 v7, 1, v7")
a("v_or_b32 v6, v7, v33")
x_addr()
set_stamp(s0)
gemm_main(True)
a(f"s_lshl_b32 {sr(sT0)}, {sr(sDB)}, 5")
a(f"s_add_u32 {sr(sT0)}, {sr(sT0)}, {sr(sTBB)}")
a(f"s_lshl_b32 {sr(sSX)}, {sr(sT0)}, 13")
a(f"s_lshl_b32 {sr(sT0)}, {sr(sT0)}, 7")
a(f"s_add_u32 {sr(sT3)}, {sr(sT0)}, {MB_U}")
bload(33, 1, 5, WS, sr(sT3), flags="sc1")
CA, CB, CY = [128, 192], [160, 224], 16
vHA, vUA = 50, 51
a("v_and_b32 v6, 3, v1")
a(f"v_mul_u32_u24 v6, {HSTR}, v6")
a("v_bfe_u32 v7, v1, 2, 2")
a("v_lshl_add_u32 v6, v7, 7, v6")
a("v_and_b32 v7, 0x30, v1")
a("v_add_u32 v6, v6, v7")
a(f"s_mul_i32 {sr(sT0)}, {sr(sCT)}, {4*HSTR}")
a(f"s_lshl_b32 {sr(sT1)}, {sr(sTT)}, 8")
a(f"s_add_u32 {sr(sT0)}, {sr(sT0)}, {sr(sT1)}")
a(f"s_add_u32 {sr(sT0)}, {sr(sT0)}, {HB}")
a(f"v_add_u32 {vr(vHA)}, {sr(sT0)}, v6")
a("v_and_b32 v6, 15, v1")
a("v_lshlrev_b32 v6, 3, v6")
a("v_sub_u32 v6, v7, v6")
a(f"s_mul_i32 {sr(sSW)}, {sr(sCT)}, {USTR}")
a(f"s_add_u32 {sr(sSW)}, {sr(sSW)}, {UB}")
a(f"s_add_u32 {sr(sT0)}, {sr(sSW)}, {sr(sT1)}")
a(f"s_add_u32 {sr(sT0)}, {sr(sT0)}, 120")
a(f"v_add_u32 {vr(vUA)}, {sr(sT0)}, v6")
a("v_lshlrev_b32 v52, 4, v1")
a(f"s_lshl_b32 {sr(sT0)}, {sr(sCT)}, 12")
a(f"s_add_u32 {sr(sSX)}, {sr(sSX)}, {sr(sT0)}")
a("s_waitcnt vmcnt(0)")
arrive(0, 7, 6, 7, push_kv)
poll(5, 33, sr(sT3), True)
stamp("u flags")
a(f"s_add_u32 {sr(sT2)}, {sr(sSX)}, {UT}")
a(f"s_mov_b32 m0, {sr(sSW)}")
a("s_nop 0")
for i in range(4):
    a(f"buffer_load_dwordx4 v52, {sr(WS,4)}, {sr(sT2)} offen offset:{1024*i} sc1 lds")
def conv_reads(cls):
    b = cls & 1; out = []
    for i in range(8):
        out.append(("ds_read_b128", CA[b] + 4*i, 4, vHA, 64*cls + 512*i))
        out.append(("ds_read_b64", CB[b] + 4*i, 2, vUA, 3584 - 512*i + 64*cls))
        out.append(("ds_read_b64", CB[b] + 4*i + 2, 2, vUA, 3584 - 512*i + 64*cls + 8))
    return out
r0 = conv_reads(0)
for r in r0:
    if r[0] == "ds_read_b128": dsr(*r)
a("s_waitcnt vmcnt(0)")
stamp("u landed")
a("s_waitcnt lgkmcnt(0)")
rb = [r for r in r0 if r[0] != "ds_read_b128"]
for r in rb[:14]: dsr(*r)
a("s_waitcnt lgkmcnt(8)")
for r in rb[14:]: dsr(*r)
for cls in range(4):
    b = cls & 1
    a("s_waitcnt lgkmcnt(0)")
    nxt = conv_reads(cls + 1) if cls < 3 else []
    for ai in range(8):
        for bi in range(8 - ai):
            j = ai + bi
            mfma16(CY + 4*j, CA[b] + 4*ai, CB[b] + 4*bi, None if (cls == 0 and ai == 0) else CY + 4*j)
            if nxt: dsr(*nxt.pop(0))
a(f"s_lshl_b32 {sr(sT0)}, {sr(sHH)}, 12")
a(f"v_add_u32 v6, {sr(sT0)}, v52")
a("v_xor_b32 v7, 0x2000, v6")
a(f"s_cmp_lg_u32 {sr(sTT)}, 0")
a("s_nop 4")
a("s_cbranch_scc1 L_red1")
for j in range(4): dsw("ds_write_b128", 6, CY + 16 + 4*j, 4, RED + 1024*j)
a("s_branch L_red2")
a.label("L_red1")
for j in range(4): dsw("ds_write_b128", 6, CY + 4*j, 4, RED + 1024*j)
for j in range(8): a(f"v_mov_b64 {vr(CY + 2*j, 2)}, {vr(CY + 16 + 2*j, 2)}")
a.label("L_red2")
a("s_waitcnt lgkmcnt(0)"); a("s_barrier")
stamp("B6")
for j in range(4): dsr("ds_read_b128", CY + 16 + 4*j, 4, 7, RED + 1024*j)
read_qf()
a("v_lshlrev_b32 v52, 3, v1")
a(f"s_lshl_b32 {sr(sT0)}, {sr(sTT)}, 11")
a(f"s_add_u32 {sr(sSX)}, {sr(sSX)}, {sr(sT0)}")
a(f"s_add_u32 {sr(sSX)}, {sr(sSX)}, {YT}")
a("s_waitcnt lgkmcnt(0)")
for j in range(8): a(f"v_pk_add_f32 {vr(CY + 2*j, 2)}, {vr(CY + 2*j, 2)}, {vr(CY + 16 + 2*j, 2)}")
for j in range(8): cvt(CY + 16 + j, CY + 2*j, CY + 2*j + 1)
for j in range(4): bstore(CY + 16 + 2*j, 2, 52, WS, sr(sSX), 512*j, "sc1")
attn_setup()
ring_fill()
q_loads()
a("s_waitcnt vmcnt(25)")
arrive(4, 7, 6, 7, push_y)

def rowmax(S, m, acc):
    k = 0
    if not acc:
        a(f"v_max3_f32 {vr(m)}, {vr(S)}, {vr(S+1)}, {vr(S+2)}"); k = 3
    while k < 16:
        a(f"v_max3_f32 {vr(m)}, {vr(m)}, {vr(S+k)}, {vr(S+min(k+1,15))}"); k += 2
a.label("L_attn")
a("s_waitcnt vmcnt(22)")
mfma32(S0, rK(0), Q0, None); mfma32(S1, rK(0), Q1, None)
a("s_nop 10")
rowmax(S0, 6, False); rowmax(S1, 7, False)
a.label("L_havemax")
a("v_mov_b32 v4, v6"); a("v_mov_b32 v3, v7"); a("s_nop 1")
a("v_permlane32_swap_b32 v6, v4"); a("v_permlane32_swap_b32 v7, v3")
a(f"v_max_f32 v6, v6, v4"); a("v_max_f32 v7, v7, v3")
a(f"v_sub_f32 {vr(C0)}, 0, v6"); a(f"v_sub_f32 {vr(C0+1)}, 0, v6")
a(f"v_sub_f32 {vr(C1)}, 0, v7"); a(f"v_sub_f32 {vr(C1+1)}, 0, v7")
for j in range(1, 8): a(f"v_mov_b64 {vr(C0+2*j,2)}, {vr(C0,2)}")
for j in range(1, 8): a(f"v_mov_b64 {vr(C1+2*j,2)}, {vr(C1,2)}")
mfma32(S0, rK(0), Q0, C0)
for j in range(16): a(f"v_mov_b64 {vr(O0+2*j,2)}, 0")
for j in range(4): a(f"v_mov_b64 {vr(S1+8+2*j,2)}, 0")
a(f"s_mov_b32 {sr(sPASS)}, 0")
stamp("loop start")
def E(S, x, y):
    for k in range(x, y + 1): a(f"v_exp_f32 {vr(S+k)}, {vr(S+k)}" if not OPT["noexp"] else "s_nop 1")
if OPT["noload"]:
    def bload(*x, **y): a("s_nop 0")
if OPT["noqk"]:
    def mfma32(*x): a("s_nop 1")
if OPT["c0"]: C0x = C1x = None
else: C0x, C1x = C0, C1
def PV(O, V, S): a("s_nop 2" if OPT["nopv"] else f"v_smfmac_f32_32x32x32_bf16 {vr(O,16)}, {vr(V,4)}, {vr(S,8)}, {vr(vIDX)}")
a(".p2align 6")
a.label("L_loop")
for i in range(8):
    E(S0, 0, 1)
    PV(O1, rVb(i-1), S1 + 8)
    a(f"s_mov_b64 exec, {sr(sHALF,2)}")
    bload(rVa(i-1), 4, vVA, WS, sr(sOFF), 1024, "sc1")
    bload(rVb(i-1), 4, vVA, WS, sr(sOFF), 1536, "sc1")
    a("s_mov_b64 exec, -1")
    E(S0, 2, 5)
    mfma32(S1, rK(i), Q1, C1x)
    bload(rK(i-1), 4, vKA, WS, sr(sOFF), 0, "sc1")
    E(S0, 6, 9)
    PV(O0, rVa(i), S0)
    adv()
    E(S0, 10, 15)
    E(S1, 0, 1)
    PV(O0, rVb(i), S0 + 8)
    a("s_waitcnt vmcnt(18)")
    if i == 0: a(f"s_cmp_eq_u32 {sr(sPASS)}, 3")
    if i == 7: a(f"s_add_u32 {sr(sPASS)}, {sr(sPASS)}, 1")
    E(S1, 2, 5)
    mfma32(S0, rK(i+1), Q0, C0x)
    if i == 0: a(f"s_cselect_b32 {sr(sT0)}, 0x40000000, 0")
    elif i == 7: a(f"s_cmp_lg_u32 {sr(sPASS)}, 4")
    else: a("s_nop 0")
    E(S1, 6, 9)
    PV(O1, rVa(i), S1)
    if i == 0: a(f"s_or_b32 {sr(sOFF)}, {sr(sOFF)}, {sr(sT0)}")
    E(S1, 10, 15)
a("s_cbranch_scc1 L_loop")
bload, mfma32 = bload_, mfma32_
if OPT["noqk"] or OPT["noexp"]: a(f"s_mov_b32 {sr(sREDO)}, 1")
a("s_nop 0")
PV(O1, rVb(7), S1 + 8)
a(f"s_mov_b32 {sr(sT0)}, {f2h(2.0**24)}")
a(f"s_cmp_lg_u32 {sr(sREDO)}, 0")
a("s_nop 9")
a("s_cbranch_scc1 L_attn_done")
a(f"v_cmp_nle_f32 vcc, {vr(O0+8)}, {sr(sT0)}")
a(f"v_cmp_nle_f32 {sr(sT1,2)}, {vr(O1+8)}, {sr(sT0)}")
a(f"s_or_b64 vcc, vcc, {sr(sT1,2)}")
a("s_cbranch_vccnz L_fallback")
a.label("L_attn_done")
stamp("loop end")
a(f"s_mul_i32 {sr(sT0)}, {sr(sW)}, 2560")
a(f"s_add_u32 {sr(sT0)}, {sr(sT0)}, {MG}")
a(f"v_lshl_add_u32 v6, v1, 4, {sr(sT0)}")
a(f"v_lshl_add_u32 v7, v1, 3, {sr(sT0)}")
a(f"v_mov_b32 {vr(O1+9)}, {vr(C1)}")
dsw("ds_write_b128", 6, O1, 4); dsw("ds_write_b128", 6, O1 + 4, 4, 1024); dsw("ds_write_b64", 7, O1 + 8, 2, 2048)
a(f"s_xor_b32 {sr(sT0)}, {sr(sW)}, 4")
a(f"s_mul_i32 {sr(sT0)}, {sr(sT0)}, 2560")
a(f"s_add_u32 {sr(sT0)}, {sr(sT0)}, {MG}")
a(f"v_lshl_add_u32 v3, v1, 4, {sr(sT0)}")
a(f"v_lshl_add_u32 v4, v1, 3, {sr(sT0)}")
a(f"s_cmp_lg_u32 {sr(sKH)}, 0")
a("s_cbranch_scc1 L_merge")
a("s_setprio 0")
a(f"s_lshl_b32 {sr(sT0)}, {sr(sDB)}, 5")
a(f"s_add_u32 {sr(sT0)}, {sr(sT0)}, {sr(sTBB)}")
a(f"s_lshl_b32 {sr(sT0)}, {sr(sT0)}, 7")
a(f"s_add_u32 {sr(sT3)}, {sr(sT0)}, {MB_Y}")
poll(5, 6, sr(sT3))
a("v_lshrrev_b32 v6, 3, v0")
a("v_lshrrev_b32 v7, 1, v6")
a("v_xor_b32 v7, v7, v0")
a("v_and_b32 v7, 7, v7")
a("v_lshlrev_b32 v7, 4, v7")
a("v_lshl_add_u32 v6, v6, 13, v7")
a(f"s_lshl_b32 {sr(sT0)}, {sr(sDB)}, 18")
a(f"s_lshl_b32 {sr(sT1)}, {sr(sTBB)}, 7")
a(f"s_add_u32 {sr(sT0)}, {sr(sT0)}, {sr(sT1)}")
a(f"s_add_u32 m0, {sr(sM0)}, {YB}")
a(f"s_add_u32 {sr(sT0)}, {sr(sT0)}, {YT}")
dma(6, WS, sr(sT0), "sc1")
a(f"s_add_u32 m0, {sr(sM0)}, {YB + 4096}")
a(f"s_add_u32 {sr(sT0)}, {sr(sT0)}, 0x1000")
dma(6, WS, sr(sT0), "sc1")
a("v_lshrrev_b32 v6, 4, v0")
a("v_lshlrev_b32 v7, 1, v6")
a("v_xor_b32 v7, v7, v0")
a("v_and_b32 v7, 15, v7")
a("v_lshlrev_b32 v7, 4, v7")
a("v_lshl_add_u32 v6, v6, 10, v7")
a(f"s_and_b32 {sr(sT0)}, {sr(sHQ)}, 3")
a(f"v_lshl_add_u32 v6, {sr(sT0)}, 8, v6")
a(f"s_lshl_b32 {sr(sT0)}, {sr(sTB)}, 14")
a(f"s_mov_b32 {sr(sT1)}, 0")
a.label("L_wo")
a(f"s_and_b32 {sr(sT0)}, {sr(sT0)}, 0x1ffff")
a(f"s_add_u32 m0, {sr(sM0)}, {sr(sT0)}")
a(f"s_lshl_b32 {sr(sT2)}, {sr(sT0)}, 2")
dma(6, WO, sr(sT2))
a(f"s_add_u32 {sr(sT0)}, {sr(sT0)}, 0x1000")
a(f"s_add_u32 {sr(sT1)}, {sr(sT1)}, 1")
a(f"s_cmp_lg_u32 {sr(sT1)}, 32")
a("s_waitcnt vmcnt(3)")
a("s_cbranch_scc1 L_wo")
a.label("L_merge")
a("s_waitcnt vmcnt(0) lgkmcnt(0)"); a("s_barrier")
stamp("B7")
PP = S0
dsr("ds_read_b64", PP + 8, 2, 4, 2048); dsr("ds_read_b128", PP, 4, 3); dsr("ds_read_b128", PP + 4, 4, 3, 1024)
a("v_lshrrev_b32 v6, 6, v0")
a("v_lshrrev_b32 v7, 1, v0")
a("v_xor_b32 v6, v6, v7")
a("v_and_b32 v6, 7, v6")
a("v_lshlrev_b32 v6, 4, v6")
a("v_lshl_add_u32 v6, v5, 5, v6")
a("v_lshrrev_b32 v7, 2, v0")
a("v_and_b32 v7, 8, v7")
a("v_add_u32 v6, v6, v7")
a(f"v_add_u32 v6, {YB}, v6")
YY = S1
dsr("ds_read_b64", YY, 2, 6); dsr("ds_read_b64", YY + 2, 2, 6, 4096)
a(f"s_lshl1_add_u32 {sr(sT0)}, {sr(sTB)}, {sr(sKH)}")
a(f"s_lshl_b32 {sr(sT0)}, {sr(sT0)}, 15")
a(f"s_lshl2_add_u32 {sr(sT1)}, {sr(sHQ)}, {sr(sHH)}")
a(f"s_lshl_b32 {sr(sT2)}, {sr(sT1)}, 10")
a(f"s_add_u32 {sr(sT0)}, {sr(sT0)}, {sr(sT2)}")
a(f"s_add_u32 {sr(sT0)}, {sr(sT0)}, {OF}")
a("s_waitcnt lgkmcnt(4)")
a(f"v_min_f32 v6, {vr(C0)}, {vr(PP+9)}")
a(f"v_sub_f32 v7, v6, {vr(C0)}")
a(f"v_sub_f32 v6, v6, {vr(PP+9)}")
a("v_exp_f32 v7, v7"); a("v_exp_f32 v6, v6")
a("v_lshlrev_b32 v3, 4, v1")
a(f"v_mul_f32 v4, v7, {vr(O0+8)}")
a(f"v_fmac_f32 v4, v6, {vr(PP+8)}")
a("v_rcp_f32 v4, v4")
a("s_waitcnt lgkmcnt(2)")
a("v_mul_f32 v7, v7, v4"); a("v_mul_f32 v6, v6, v4")
for j in range(8): a(f"v_mul_f32 {vr(O0+j)}, v7, {vr(O0+j)}")
for j in range(8): a(f"v_fmac_f32 {vr(O0+j)}, v6, {vr(PP+j)}")
for j in range(4): cvt(O1 + j, O0 + 2*j, O0 + 2*j + 1)
bstore(O1, 4, 3, WS, sr(sT0), 0, "sc1")
GY, GQ = S0, S0 + 8
a("s_waitcnt lgkmcnt(0)")
for c in range(2):
    lo(GY + c, YY + 2*c); hi(GY + 2 + c, YY + 2*c); lo(GY + 4 + c, YY + 2*c + 1); hi(GY + 6 + c, YY + 2*c + 1)
for j in range(4): lo(GQ + 2*j, QG + j); hi(GQ + 2*j + 1, QG + j)
for j in range(4): a(f"v_pk_add_f32 {vr(GY+2*j,2)}, {vr(GY+2*j,2)}, {vr(UD+2*j,2)}")
for j in range(4): a(f"v_pk_mul_f32 {vr(GY+2*j,2)}, {vr(GY+2*j,2)}, {vr(GQ+2*j,2)}")
for j in range(4): cvt(QG + j, GY + 2*j, GY + 2*j + 1)
a("v_lshrrev_b32 v6, 5, v0")
a("v_lshl_add_u32 v6, v6, 13, v5")
a(f"s_lshl_b32 {sr(sT0)}, {sr(sTBB)}, 17")
a(f"s_lshl_b32 {sr(sT2)}, {sr(sDB)}, 7")
a(f"s_add_u32 {sr(sT0)}, {sr(sT0)}, {sr(sT2)}")
a(f"s_add_u32 {sr(sT2)}, {sr(sT0)}, 0x1000")
gfl = OPT["gfl"].replace("_", " ")
bstore(QG, 1, 6, OUT, sr(sT0), 1024, gfl); bstore(QG + 1, 1, 6, OUT, sr(sT0), 3072, gfl)
bstore(QG + 2, 1, 6, OUT, sr(sT2), 1024, gfl); bstore(QG + 3, 1, 6, OUT, sr(sT2), 3072, gfl)
WOF = 128
a("v_bfe_u32 v6, v1, 2, 3")
a("v_lshrrev_b32 v7, 5, v1")
a("v_lshl_add_u32 v7, v7, 4, v6")
a(f"s_and_b32 {sr(sT0)}, {sr(sW)}, 6")
a(f"v_xor_b32 v6, {sr(sT0)}, v6")
a("v_lshlrev_b32 v6, 5, v6")
a("v_lshl_add_u32 v6, v7, 8, v6")
a("v_and_b32 v7, 3, v1")
a("v_lshl_add_u32 v16, v7, 3, v6")
a("v_xor_b32 v17, 32, v16")
a("v_add_u32 v18, 0x10000, v16")
a("v_add_u32 v19, 0x10000, v17")
def wo_reads(ps):
    for p in ps:
        for c in range(2):
            for part in range(2):
                dsr("ds_read_b64_tr_b16", WOF + 8*p + 4*c + 2*part, 2, 16 + c + 2*(p >> 3), ((p & 7) * 32 + 8*part) * 256)
wo_reads(range(0, 8))
a(f"s_lshl1_add_u32 {sr(sT0)}, {sr(sTB)}, {sr(sKH)}")
a(f"s_lshl_b32 {sr(sT0)}, {sr(sT0)}, 9")
a(f"s_lshl2_add_u32 {sr(sT0)}, {sr(sT1)}, {sr(sT0)}")
a(f"s_add_u32 {sr(sT0)}, {sr(sT0)}, {MB_O}")
a("s_waitcnt vmcnt(4)")
push(4, 6, 7, sr(sT0))
wo_reads(range(8, 16))
a(f"s_lshl3_add_u32 {sr(sT0)}, {sr(sTB)}, {sr(sHQ)}")
a(f"s_lshl_b32 {sr(sT0)}, {sr(sT0)}, 7")
a(f"s_lshl4_add_u32 {sr(sT0)}, {sr(sW)}, {sr(sT0)}")
a(f"s_add_u32 {sr(sT3)}, {sr(sT0)}, {MB_O}")
a("v_and_b32 v20, 12, v5")
a(f"s_lshr_b32 {sr(sT0)}, {sr(sHQ)}, 2")
a(f"s_lshl1_add_u32 {sr(sSX)}, {sr(sTB)}, {sr(sT0)}")
a(f"s_lshl_b32 {sr(sT0)}, {sr(sSX)}, 15")
a(f"s_lshl2_add_u32 {sr(sT0)}, {sr(sM0)}, {sr(sT0)}")
a(f"s_add_u32 {sr(sSW)}, {sr(sT0)}, {OF}")
a(f"s_lshl_b32 m0, {sr(sM0)}, 2")
a("s_waitcnt lgkmcnt(0)"); a("s_barrier")
poll(20, 6, sr(sT3))
stamp("o flags")
for i in range(4):
    a(f"buffer_load_dwordx4 v3, {sr(WS,4)}, {sr(sSW)} offen offset:{1024*i} sc1 lds")
a("v_lshrrev_b32 v6, 5, v1")
a("v_lshlrev_b32 v6, 10, v6")
a("v_and_b32 v7, 16, v1")
a("v_lshl_add_u32 v6, v7, 5, v6")
a("v_and_b32 v21, 15, v1")
a(f"v_lshl_add_u32 v21, {sr(sCT)}, 4, v21")
a("v_lshl_add_u32 v22, v21, 4, v6")
a("v_lshrrev_b32 v6, 5, v1")
a("v_lshlrev_b32 v6, 4, v6")
a("v_lshl_add_u32 v6, v7, 1, v6")
a("v_lshl_add_u32 v23, v21, 11, v6")
a(f"s_lshl_b32 {sr(sT0)}, {sr(sSX)}, 16")
a(f"s_and_b32 {sr(sT1)}, {sr(sHQ)}, 3")
a(f"s_lshl_b32 {sr(sT1)}, {sr(sT1)}, 8")
a(f"s_add_u32 {sr(sT0)}, {sr(sT0)}, {sr(sT1)}")
a(f"s_lshr_b32 {sr(sT1)}, {sr(sW)}, 1")
a(f"s_lshl_b32 {sr(sT1)}, {sr(sT1)}, 6")
a(f"s_add_u32 {sr(sT3)}, {sr(sT0)}, {sr(sT1)}")
a("s_waitcnt vmcnt(0)"); a("s_barrier")
OFR, PA = 32, 24
for p in range(12): dsr("ds_read_b128", OFR + 4*p, 4, 22, 2048*p)
for p in range(16):
    a(f"s_waitcnt lgkmcnt({min(16, p + 12) - p - 1})")
    mfma16(PA, WOF + 8*p, OFR + 4*p, None if p == 0 else PA)
    mfma16(PA + 4, WOF + 8*p + 4, OFR + 4*p, None if p == 0 else PA + 4)
    if p + 12 < 16: dsr("ds_read_b128", OFR + 4*(p + 12), 4, 22, 2048*(p + 12))
a("s_nop 7")
cvt(16, PA, PA + 1); cvt(17, PA + 2, PA + 3); cvt(18, PA + 4, PA + 5); cvt(19, PA + 6, PA + 7)
a("s_nop 1")
a("v_permlane16_swap_b32 v16, v18"); a("v_permlane16_swap_b32 v17, v19")
bstore(16, 4, 23, OUT, sr(sT3), 0, OPT["pfl"].replace("_", " "))
a(f"s_or_b32 {sr(sT0)}, s2, {sr(sW)}")
a("s_cbranch_scc1 L_noep")
a(f"v_mov_b32 v6, {EP}")
a(f"v_mov_b32 v7, {sr(sTAG)}")
a("s_mov_b64 exec, 1")
bstore(7, 1, 6, WS, 0, flags="sc1")
a("s_mov_b64 exec, -1")
a.label("L_noep")
stamp("end")
if DIAG:
    a("s_waitcnt lgkmcnt(0)")
    for i in range(nstamp[0]): a(f"v_mov_b32 {vr(32+i)}, {sr(sST+2*i)}")
    a(f"s_lshl3_add_u32 {sr(sT0)}, s2, {sr(sW)}")
    a(f"s_lshl_b32 {sr(sT0)}, {sr(sT0)}, 6")
    a(f"s_add_u32 {sr(sT0)}, {sr(sT0)}, {STAMP}")
    a("v_mov_b32 v6, 0")
    a("s_mov_b64 exec, 1")
    for i in range(4): bstore(32 + 4*i, 4, 6, WS, sr(sT0), 16*i)
a("s_endpgm")
a.label("L_fallback")
a(f"s_mov_b32 {sr(sREDO)}, 1")
a(f"s_mov_b32 {sr(sOFF)}, 0")
a("v_mov_b32 v6, 0xff800000"); a("v_mov_b32 v7, v6")
a("s_waitcnt vmcnt(0)")
a.label("L_fb")
bload(rK(0), 4, vKA, WS, sr(sOFF), 0, "sc1")
a(f"s_add_u32 {sr(sOFF)}, {sr(sOFF)}, 0x1000")
a("s_waitcnt vmcnt(0)")
mfma32(S0, rK(0), Q0, None); mfma32(S1, rK(0), Q1, None)
a("s_nop 10")
rowmax(S0, 6, True); rowmax(S1, 7, True)
a(f"s_cmp_lg_u32 {sr(sOFF)}, 0x20000")
a("s_cbranch_scc1 L_fb")
ring_fill()
a("s_waitcnt vmcnt(18)")
a("s_branch L_havemax")
a.label("L_end")
a("s_endpgm")

nbad = check(a.lines)
ref = open(f"cdna_kernels/{NAME}.s.ref").read().split("\n")
head = [l for l in ref if l.startswith(";") and "@launch" not in l and "Override launch" not in l and "grid=ceil" not in l]
out = "\n".join(head) + f"""
; Fused single launch: 256 workgroups (one per CU) x 8 waves; generated by gen/gen.py.
; @launch grid=(256,1,1) block=(512,1,1) lds={LDS_BYTES}
.amdgcn_target "amdgcn-amd-amdhsa--gfx950"
.text
.globl {NAME}_kernel
.p2align 8
.type {NAME}_kernel,@function
""" + a.text() + f""".section .rodata,"a"
.p2align 6
.amdhsa_kernel {NAME}_kernel
  .amdhsa_next_free_vgpr 256
  .amdhsa_next_free_sgpr 102
  .amdhsa_accum_offset 256
  .amdhsa_group_segment_fixed_size 0
  .amdhsa_kernarg_size 96
  .amdhsa_user_sgpr_count 2
  .amdhsa_user_sgpr_kernarg_segment_ptr 1
  .amdhsa_system_sgpr_workgroup_id_x 1
.end_amdhsa_kernel
"""
open(sys.argv[1], "w").write(out)
print("hazards:", nbad, "lines:", len(a.lines), "stamps:", nstamp[0])
```

```python
import sys, math, struct
from asmlib import Asm, vr, sr, check

NAME = "concat_heads__mha_block__ssm_conv_h3__prompt"
OPT = dict(wqe=1, ysl=24, usl=0, wpace=3, gd=2, p0late=1, hs=4, pt=0, slp=16, onepoll=1, skip="", cp=0, sp=0, ep=3, hp=0, enc="", encw=0, first=0, gfl="sc1", pfl="sc1", vz=1, noload=0, nopv=0, noqk=0, noexp=0, c0=0, prio=1, diag=0, spin=0, spinat="end", clk=0)
for arg in sys.argv[2:]:
    k, v = arg.split("=")
    try: OPT[k] = int(v, 0)
    except ValueError: OPT[k] = v
DIAG = OPT["diag"]

KV, UT, YT, OF, MB = 0, 0x400000, 0x600000, 0x800000, 0xA00000
MB_U, MB_KV, MB_Y, MB_O = MB, MB + 0x8000, MB + 0x10000, MB + 0x18000
EP = MB + 0x20000
STAMP = 0xA30000
WS_SIZE = 0xA50000
K1 = 1024
SLOT = [0, 48 * K1, 96 * K1]
EX = 144 * K1
P0S = 8 * K1
HB = SLOT[2]; HSTR = 4512
UB = HB + 8 * HSTR; USTR = 4224
CNT = UB + 2 * USTR
QF = 0; RED = 140 * K1; KVL = SLOT[2]
YB = 128 * K1; MG = 140 * K1
LDS_BYTES = 160 * K1
assert CNT + 16 <= MG
X, W, WO, BQ, BK, BV, SH, HK, DD, OUT, WS = 4, 8, 12, 16, 20, 24, 28, 32, 36, 40, 44
sW, sHQ, sTB, sDB, sTBB, sROT, sTAG, sMASK = 48, 49, 50, 51, 52, 53, 54, 55
sA, sT0, sT1, sT2, sT3, sSX, sSW, sM0 = 56, 57, 58, 59, 60, 61, 62, 63
sOFF, sPASS, sREDO, sSPIN, sAND = 64, 65, 66, 67, 68
sHALF = 70
sCT, sTT, sHH, sHB = 3, 69, 72, 73
sST = 74
SPINMAX = 0x20000
f2h = lambda x: hex(struct.unpack("<I", struct.pack("<f", x))[0])

a = Asm()
nstamp = [0]
def stamp(name):
    if OPT["enc"] and name.replace(" ", "_") == OPT["enc"]: a("s_memrealtime s[94:95]")
    if OPT["enc"] and name == "end":
        L, L2 = newlab("spin"), newlab("spin")
        a("s_waitcnt lgkmcnt(0)")
        a("s_sub_u32 s94, s94, s100"); a("s_lshl_b32 s94, s94, 2")
        a("s_lshr_b32 s95, s2, 3"); a(f"s_lshl3_add_u32 s95, s95, {sr(sW)}"); a(f"s_cmp_eq_u32 s95, {96 + OPT['encw']}")
        a("s_cselect_b32 s94, s94, 0"); a("s_add_u32 s94, s94, 4000")
        a.label(L)
        a("s_memrealtime s[98:99]"); a("s_waitcnt lgkmcnt(0)")
        a("s_sub_u32 s98, s98, s100"); a("s_cmp_lt_u32 s98, s94"); a(f"s_cbranch_scc1 {L}")
    if OPT["spin"] and name.replace(" ", "_") == OPT["spinat"]:
        L = newlab("spin")
        if OPT["first"]:
            a("v_mov_b32 v6, 0"); a("global_load_dword v6, v6, s[96:97] sc1"); a("s_waitcnt vmcnt(0)")
            a("v_readfirstlane_b32 s100, v6"); a("s_nop 3"); a("s_not_b32 s100, s100")
        a.label(L)
        a("s_memrealtime s[98:99]"); a("s_waitcnt lgkmcnt(0)")
        a("s_sub_u32 s98, s98, s100"); a(f"s_cmp_lt_u32 s98, {OPT['spin'] * 100}"); a(f"s_cbranch_scc1 {L}")
    if DIAG == 2:
        if name in ("B1", "B5", "B6", "loop start", "loop end", "end"):
            i = nstamp[0]; nstamp[0] += 2
            a(f"s_memrealtime {sr(sST + 2 * i, 2)}")
            a(f"s_memtime {sr(sST + 2 * i + 2, 2)}")
    elif DIAG:
        i = nstamp[0]; nstamp[0] += 1
        assert sST + 2 * i + 1 <= 101, "too many stamps"
        a(f"{'s_memtime' if OPT['clk'] else 's_memrealtime'} {sr(sST + 2 * i, 2)} ; stamp {i} {name}")
def set_stamp(i): nstamp[0] = i
def xstamp(i, name):
    if DIAG == 1 and not OPT["pt"]:
        k = nstamp[0]; nstamp[0] = i; stamp(name); nstamp[0] = k
    elif OPT["enc"]: stamp(name)
lab = [0]
def newlab(p):
    lab[0] += 1; return f"L_{p}{lab[0]}"

def bload(dst, n, vaddr, srd, soff, off=0, flags=""):
    op = {1: "dword", 2: "dwordx2", 4: "dwordx4"}[n]
    a(f"buffer_load_{op} {vr(dst, n)}, {vr(vaddr)}, {sr(srd, 4)}, {soff} offen" + (f" offset:{off}" if off else "") + (" " + flags if flags else ""))
def bstore(src, n, vaddr, srd, soff, off=0, flags=""):
    op = {1: "dword", 2: "dwordx2", 4: "dwordx4"}[n]
    a(f"buffer_store_{op} {vr(src, n)}, {vr(vaddr)}, {sr(srd, 4)}, {soff} offen" + (f" offset:{off}" if off else "") + (" " + flags if flags else ""))
def dma(vaddr, srd, soff, flags=""):
    a(f"buffer_load_dwordx4 {vr(vaddr)}, {sr(srd, 4)}, {soff} offen" + (" " + flags if flags else "") + " lds")
def dsr(op, dst, n, vaddr, off=0):
    assert 0 <= off < 65536
    a(f"{op} {vr(dst, n)}, {vr(vaddr)}" + (f" offset:{off}" if off else ""))
def dsw(op, vaddr, src, n, off=0):
    assert 0 <= off < 65536
    a(f"{op} {vr(vaddr)}, {vr(src, n)}" + (f" offset:{off}" if off else ""))
def mfma32(d, A, B, c): a(f"v_mfma_f32_32x32x16_bf16 {vr(d,16)}, {vr(A,4)}, {vr(B,4)}, " + ("0" if c is None else vr(c, 16)))
def mfma16(d, A, B, c): a(f"v_mfma_f32_16x16x32_bf16 {vr(d,4)}, {vr(A,4)}, {vr(B,4)}, " + ("0" if c is None else vr(c, 4)))
def cvt(d, x, y): a(f"v_cvt_pk_bf16_f32 {vr(d)}, {vr(x)}, {vr(y)}")
def lo(d, s): a(f"v_lshlrev_b32 {vr(d)}, 16, {vr(s)}")
def hi(d, s): a(f"v_and_b32 {vr(d)}, {sr(sMASK)}, {vr(s)}")

bload_, mfma32_ = bload, mfma32
def poll(vaddr, vtmp, soff, first_issued=False, slp=None):
    L, Lo = newlab("poll"), newlab("pollok")
    a(f"s_mov_b32 {sr(sSPIN)}, 0")
    if first_issued:
        a(f"v_cmp_ne_u32 vcc, {sr(sTAG)}, {vr(vtmp)}")
        a(f"s_cbranch_vccz {Lo}")
    a.label(L)
    bload(vtmp, 1, vaddr, WS, soff, flags="sc1")
    a(f"s_add_u32 {sr(sSPIN)}, {sr(sSPIN)}, 1")
    a(f"s_cmp_ge_u32 {sr(sSPIN)}, {SPINMAX}")
    a("s_waitcnt vmcnt(0)")
    a(f"s_cbranch_scc1 {Lo}")
    a(f"v_cmp_ne_u32 vcc, {sr(sTAG)}, {vr(vtmp)}")
    a(f"s_cbranch_vccz {Lo}")
    a(f"s_sleep {OPT['slp'] if slp is None else slp}")
    a(f"s_branch {L}")
    a.label(Lo)

def push(nl, vt0, vt1, soff):
    a(f"s_mov_b64 exec, {hex((1 << nl) - 1)}")
    bstore(vt1, 1, vt0, WS, soff, flags="sc1")
    a("s_mov_b64 exec, -1")

def arrive(cntoff, last, vt0, vt1, pushfn):
    L = newlab("arr")
    a(f"v_mov_b32 {vr(vt0)}, {CNT + cntoff}")
    a(f"v_mov_b32 {vr(vt1)}, 1")
    a("s_mov_b64 exec, 1")
    a(f"ds_add_rtn_u32 {vr(vt1)}, {vr(vt0)}, {vr(vt1)}")
    a("s_waitcnt lgkmcnt(0)")
    a(f"v_cmp_ne_u32 vcc, {last}, {vr(vt1)}")
    a("s_mov_b64 exec, -1")
    a(f"s_cbranch_vccnz {L}")
    pushfn()
    a.label(L)


def hbar(extra=0, slp=None):
    L = newlab("hb")
    a(f"s_add_u32 {sr(sHB)}, {sr(sHB)}, {4 + extra}")
    a("s_mov_b64 exec, 1")
    a(f"ds_add_u32 {vr(vCNT)}, {vr(vONE)}")
    a.label(L)
    dsr("ds_read_b32", 6, 1, vCNT)
    a("s_waitcnt lgkmcnt(0)")
    a(f"v_cmp_gt_u32 vcc, {sr(sHB)}, v6")
    a(f"s_cbranch_vccz {L}x")
    if slp != 0: a(f"s_sleep {OPT['hs']}")
    a(f"s_branch {L}")
    a.label(L + "x")
    a("s_mov_b64 exec, -1")
def only_wave(w, fn):
    L = newlab("ow")
    a(f"s_cmp_lg_u32 {sr(sW)}, {w}"); a(f"s_cbranch_scc1 {L}")
    fn()
    a.label(L)
def hprio(p):
    a(f"s_setprio {p}")
vCNT, vONE = 2, 3


a.label(f"{NAME}_kernel")
a("s_cmp_ge_u32 s2, 0x100")
a("s_cbranch_scc1 L_end")
a(f"s_load_dwordx2 {sr(X,2)}, s[0:1], 0")
a(f"s_load_dwordx2 {sr(W,2)}, s[0:1], 8")
a(f"s_load_dwordx2 {sr(WS,2)}, s[0:1], 88")
if DIAG or OPT["spin"] or OPT["enc"]: a("s_memtime s[100:101]" if OPT["clk"] else "s_memrealtime s[100:101]")
a("s_getpc_b64 s[88:89]")
a.label("L_pc")
a(f"s_lshr_b32 {sr(sTBB)}, s2, 3")
a(f"s_and_b32 {sr(sDB)}, s2, 7")
a("v_lshrrev_b32 v6, 6, v0")
a(f"v_lshl_add_u32 v7, {sr(sTBB)}, 3, v6")
a("v_lshlrev_b32 v7, 7, v7")
a("v_min_u32 v7, L_end-L_pc, v7")
a("global_load_dword v4, v7, s[88:89]")
a(f"v_readfirstlane_b32 {sr(sW)}, v6")
a(f"s_and_b32 {sr(sT0)}, {sr(sTBB)}, 3")
a(f"s_lshr_b32 {sr(sT1)}, {sr(sTBB)}, 2")
a(f"s_add_u32 {sr(sROT)}, {sr(sT0)}, {sr(sT1)}")
a(f"s_and_b32 {sr(sHQ)}, {sr(sDB)}, 1")
a(f"s_lshl2_add_u32 {sr(sHQ)}, {sr(sHQ)}, {sr(sT0)}")
a(f"s_lshr_b32 {sr(sTB)}, {sr(sDB)}, 1")
a(f"s_lshl3_add_u32 {sr(sTB)}, {sr(sTB)}, {sr(sT1)}")
a(f"s_mov_b32 {sr(X+3)}, 0x20000")
a(f"s_and_b32 {sr(sHH)}, {sr(sW)}, 3")
a(f"s_cmp_lt_u32 {sr(sW)}, 4")
a("s_cbranch_scc1 L_main")

def common_setup():
    a("v_and_b32 v1, 63, v0")
    a(f"s_add_u32 s88, {sr(WS)}, {EP}")
    a(f"s_addc_u32 s89, {sr(WS+1)}, 0")
    a(f"s_load_dword {sr(sTAG)}, s[88:89], 0")
    a(f"s_mov_b32 {sr(WS+2)}, {hex(WS_SIZE)}"); a(f"s_mov_b32 {sr(WS+3)}, {sr(X+3)}")
    a(f"s_and_b32 {sr(sCT)}, {sr(sW)}, 1")
    a(f"s_bfe_u32 {sr(sTT)}, {sr(sW)}, 0x10001")
    if DIAG: a(f"s_mov_b64 {sr(sST,2)}, s[100:101]"); nstamp[0] = 1
def make_tag():
    a(f"s_mul_i32 {sr(sTAG)}, {sr(sTAG)}, 0x2c9277b5")
    a(f"s_add_u32 {sr(sTAG)}, {sr(sTAG)}, 0xac564b05")
def finish(n):
    a("s_mov_b64 exec, -1")
    set_stamp(n); stamp("end")
    if DIAG:
        a("s_waitcnt lgkmcnt(0)")
        for i in range(nstamp[0]): a(f"v_mov_b32 {vr(32+i)}, {sr(sST+2*i)}")
        a(f"s_lshl3_add_u32 {sr(sT0)}, s2, {sr(sW)}")
        a(f"s_lshl_b32 {sr(sT0)}, {sr(sT0)}, 6")
        a(f"s_add_u32 {sr(sT0)}, {sr(sT0)}, {STAMP}")
        a("v_mov_b32 v6, 0")
        a("s_mov_b64 exec, 1")
        for i in range(4): bstore(32 + 4*i, 4, 6, WS, sr(sT0), 16*i)
    a("s_endpgm")

vXS, vWS = 48, 49
a("v_and_b32 v0, 0xff, v0")
a(f"s_mov_b32 {sr(X+2)}, 0x200000")
a(f"s_mov_b32 {sr(W+2)}, 0x180000"); a(f"s_mov_b32 {sr(W+3)}, {sr(X+3)}")
a("v_lshrrev_b32 v6, 4, v0")
a("v_xor_b32 v32, v6, v0")
a("v_and_b32 v32, 15, v32")
a(f"v_lshl_add_u32 v6, {sr(sTB)}, 6, v6")
a("v_lshlrev_b32 v6, 10, v6")
a(f"v_lshl_add_u32 {vr(vXS)}, v32, 4, v6")
a("v_lshrrev_b32 v6, 2, v0")
a("v_and_b32 v6, 4, v6")
a("v_xor_b32 v6, v6, v0")
a("v_and_b32 v6, 7, v6")
a(f"v_lshl_add_u32 v6, {sr(sHQ)}, 3, v6")
a("v_lshrrev_b32 v32, 3, v0")
a("v_mul_u32_u24 v32, 0xc00, v32")
a(f"v_lshl_add_u32 {vr(vWS)}, v6, 4, v32")
a(f"s_lshl_b32 {sr(sM0)}, {sr(sHH)}, 10")
def chunk_offsets(c):
    if c: a(f"s_add_u32 {sr(sT0)}, {sr(sROT)}, {c}")
    a(f"s_and_b32 {sr(sT0)}, {sr(sT0) if c else sr(sROT)}, 3")
    a(f"s_mul_i32 {sr(sSW)}, {sr(sT0)}, {128*3072}")
def dma_run(vaddr, srd, sbase, off, step, ldsbase, n=4, wait=False):
    a(f"s_add_u32 m0, {sr(sM0)}, {ldsbase}")
    a(f"s_add_u32 {sr(sT2)}, {sr(sbase)}, {off}")
    if wait: a("s_waitcnt lgkmcnt(0)")
    for i in range(n):
        dma(vaddr, srd, sr(sT2))
        if i < n - 1:
            a("s_addk_i32 m0, 0x1000")
            a(f"s_add_u32 {sr(sT2)}, {sr(sT2)}, {step}")
def dma_half(j):
    if j >= 8: return dma_wq(j - 8)
    c, hf = j >> 1, j & 1
    s = SLOT[c % 3]
    if not hf:
        chunk_offsets(c)
        a(f"s_lshl_b32 {sr(sSX)}, {sr(sT0)}, 8")
        dma_run(vXS, X, sSX, 0, 16384, s, 4, c == 0)
    dma_run(vWS, W, sSW, 1024 + hf*64*3072, 32*3072, s + 16 * K1 + hf*8192, 2)
    dma_run(vWS, W, sSW, 2048 + hf*64*3072, 32*3072, s + 32 * K1 + hf*8192, 2)
HSZ = [8, 4] * 4 + [4, 4]
WQ = [EX, SLOT[1], SLOT[1] + 16 * K1, SLOT[1] + 32 * K1]
def dma_wq(c):
    chunk_offsets(c); dma_run(vWS, W, sSW, 0, 32*3072, WQ[c])
dma_half(0); dma_half(1)
a("s_load_dwordx8 s[80:87], s[0:1], 16")
a("s_load_dwordx8 s[92:99], s[0:1], 48")
common_setup()
UD = 16
vA, vH, vSH, vPW, vPR, vPG, vHS, vHP = 8, 9, 10, 11, 12, 13, 14, 15
vHW, vHA, vUA, vL16, vWO, vYS, vWR0, vWR1, vYR, vGO, vPO, vOO, vRW, vRR, vY8, vZ0 = range(32, 48)
vZ1, vFL, vTG, vMB = 50, 51, 52, 54
sUB, sCH = 64, 66
a("v_and_b32 v5, 31, v0")
a("v_lshlrev_b32 v5, 2, v5")
a(f"v_mov_b32 {vr(vCNT)}, {CNT}")
a(f"v_mov_b32 {vr(vONE)}, 1")
a(f"s_mov_b32 {sr(sHB)}, 0")
a(f"s_mov_b32 {sr(sMASK)}, 0xffff0000")
a("v_lshrrev_b32 v53, 5, v0")
a(f"v_lshl_add_u32 {vr(vA)}, v53, 13, v5")
a(f"v_lshl_add_u32 {vr(vGO)}, v53, 14, v5")
a(f"s_lshl_b32 {sr(sA)}, {sr(sTBB)}, 16")
a(f"s_lshl_b32 {sr(sT0)}, {sr(sDB)}, 7")
a(f"s_add_u32 {sr(sA)}, {sr(sA)}, {sr(sT0)}")
a(f"s_sub_u32 {sr(sT2)}, {sr(sA)}, 0xc00")
a(f"v_add_u32 {vr(vH)}, {sr(sT2)}, {vr(vA)}")
a(f"v_lshlrev_b32 {vr(vSH)}, 2, v5")
a("v_xor_b32 v6, 7, v53")
a("v_xor_b32 v6, v6, v0")
a("v_and_b32 v6, 7, v6")
a("v_lshlrev_b32 v6, 4, v6")
a(f"v_lshl_add_u32 {vr(vPW)}, v5, 5, v6")
a("v_lshrrev_b32 v7, 1, v0")
a("v_xor_b32 v7, v53, v7")
a("v_and_b32 v7, 7, v7")
a("v_lshlrev_b32 v7, 4, v7")
a("v_lshl_add_u32 v7, v5, 5, v7")
a(f"v_add_u32 {vr(vYR)}, {YB}, v7")
a("v_lshrrev_b32 v6, 3, v0")
a("v_xor_b32 v7, v6, v0")
a("v_and_b32 v7, 7, v7")
a("v_lshlrev_b32 v7, 4, v7")
a(f"v_lshl_add_u32 {vr(vPR)}, v6, 7, v7")
a("v_and_b32 v7, 7, v0")
a("v_lshlrev_b32 v7, 4, v7")
a(f"v_lshl_add_u32 {vr(vPG)}, v6, 13, v7")
a("v_lshrrev_b32 v7, 1, v6")
a("v_xor_b32 v7, v7, v0")
a("v_and_b32 v7, 7, v7")
a("v_lshlrev_b32 v7, 4, v7")
a(f"v_lshl_add_u32 {vr(vYS)}, v6, 13, v7")
a(f"v_lshlrev_b32 {vr(vHS)}, 4, v0")
a("v_cmp_eq_u32 vcc, 0, v0")
a(f"v_subrev_u32 v6, 8, {vr(vHS)}")
a("v_bfrev_b32 v7, 2")
a(f"v_cndmask_b32 {vr(vHP)}, v6, v7, vcc")
a(f"v_add_u32 {vr(vHW)}, {HB + 384}, {vr(vHS)}")
a("v_and_b32 v6, 3, v1")
a(f"v_mul_u32_u24 v6, {HSTR}, v6")
a("v_bfe_u32 v53, v1, 2, 2")
a("v_lshl_add_u32 v6, v53, 7, v6")
a("v_and_b32 v7, 0x30, v1")
a("v_add_u32 v6, v6, v7")
a(f"s_mul_i32 {sr(sT0)}, {sr(sCT)}, {4*HSTR}")
a(f"s_lshl_b32 {sr(sT1)}, {sr(sTT)}, 8")
a(f"s_add_u32 {sr(sT0)}, {sr(sT0)}, {sr(sT1)}")
a(f"s_add_u32 {sr(sT0)}, {sr(sT0)}, {HB}")
a(f"v_add_u32 {vr(vHA)}, {sr(sT0)}, v6")
a("v_and_b32 v6, 15, v1")
a("v_lshlrev_b32 v6, 3, v6")
a("v_sub_u32 v6, v7, v6")
a(f"s_mul_i32 {sr(sUB)}, {sr(sCT)}, {USTR}")
a(f"s_add_u32 {sr(sUB)}, {sr(sUB)}, {UB}")
a(f"s_add_u32 {sr(sT0)}, {sr(sUB)}, {sr(sT1)}")
a(f"s_add_u32 {sr(sT0)}, {sr(sT0)}, 120")
a(f"v_add_u32 {vr(vUA)}, {sr(sT0)}, v6")
a(f"v_lshlrev_b32 {vr(vL16)}, 4, v1")
a(f"v_lshlrev_b32 {vr(vY8)}, 3, v1")
a(f"v_lshlrev_b32 {vr(vFL)}, 9, v1")
a("v_and_b32 v6, 0x60, v5")
a("v_and_b32 v7, 28, v5")
a(f"v_lshl_add_u32 {vr(vMB)}, v6, 2, v7")
a(f"v_lshl_add_u32 {vr(vRW)}, {sr(sHH)}, 12, {vr(vL16)}")
a(f"v_xor_b32 {vr(vRR)}, 0x2000, {vr(vRW)}")
a(f"v_add_u32 {vr(vRW)}, {RED}, {vr(vRW)}")
a(f"v_add_u32 {vr(vRR)}, {RED}, {vr(vRR)}")
a("v_min_u32 v6, 23, v1")
a(f"s_mul_i32 {sr(sT0)}, {sr(sHH)}, {HSTR}")
a(f"s_add_u32 {sr(sT0)}, {sr(sT0)}, {HB}")
a(f"v_lshl_add_u32 {vr(vZ0)}, v6, 4, {sr(sT0)}")
a("v_and_b32 v6, 7, v1")
a(f"v_lshl_add_u32 {vr(vZ1)}, v6, 4, {sr(sUB)}")
a(f"s_lshl_b32 {sr(sT0)}, {sr(sDB)}, 5")
a(f"s_add_u32 {sr(sT0)}, {sr(sT0)}, {sr(sTBB)}")
a(f"s_lshl_b32 {sr(sCH)}, {sr(sT0)}, 13")
a("v_lshrrev_b32 v6, 4, v0")
a("v_lshlrev_b32 v7, 2, v6")
a("v_xor_b32 v7, v7, v0")
a("v_and_b32 v7, 15, v7")
a("v_lshlrev_b32 v7, 4, v7")
a("v_lshl_add_u32 v6, v6, 10, v7")
a(f"s_and_b32 {sr(sT0)}, {sr(sHQ)}, 3")
a(f"v_lshl_add_u32 {vr(vWO)}, {sr(sT0)}, 8, v6")
a("v_lshrrev_b32 v7, 5, v1")
a("v_lshl_add_u32 v7, v7, 2, v53")
a(f"v_xor_b32 v6, {sr(sHH)}, v53")
a("v_lshlrev_b32 v6, 6, v6")
a("v_lshl_add_u32 v6, v7, 8, v6")
a("v_and_b32 v7, 1, v1")
a("v_lshl_add_u32 v6, v7, 5, v6")
a("v_and_b32 v7, 16, v1")
a("v_add_u32 v6, v6, v7")
a("v_and_b32 v7, 2, v1")
a(f"v_lshl_add_u32 {vr(vWR0)}, v7, 2, v6")
a(f"v_add_u32 {vr(vWR1)}, 0x10000, {vr(vWR0)}")
a(f"v_and_b32 {vr(vPO)}, 28, v5")
a("v_and_b32 v6, 32, v1")
a(f"v_lshl_add_u32 {vr(vOO)}, v5, 9, v6")
CY, CB, CA = 64, 96, 56
for j in range(16): a(f"v_mov_b64 {vr(CY+2*j,2)}, 0")
a("s_waitcnt lgkmcnt(0)")
for r, p in ((WO, 80), (BQ, 82), (BK, 84), (BV, 86), (SH, 92), (HK, 94), (DD, 96), (OUT, 98)):
    a(f"s_mov_b64 {sr(r,2)}, {sr(p,2)}")
for r in (BK, BV, HK, BQ): a(f"s_mov_b64 {sr(r+2,2)}, {sr(X+2,2)}")
for r, n in ((SH, 4096), (DD, 1024), (WO, 0x80000), (OUT, 0x400000)):
    a(f"s_mov_b32 {sr(r+2)}, {hex(n)}"); a(f"s_mov_b32 {sr(r+3)}, {sr(X+3)}")
make_tag()
a(f"v_mov_b32 {vr(vTG)}, {sr(sTAG)}")
for j in range(8):
    dma_half(j + 2)
    a(f"s_waitcnt vmcnt({HSZ[j+1] + HSZ[j+2]})"); a("s_barrier")
    if j == 0: stamp("B1")
stamp("B4")
if OPT["wqe"]:
    dma_wq(2); dma_wq(3)
    a("s_waitcnt vmcnt(8)"); a("s_barrier")
else:
    a("s_waitcnt vmcnt(0)"); a("s_barrier")
    dma_wq(2); dma_wq(3)
KR, VR, SR, DR = 128, 140, 148, 139
KP, WJ, VP, DP, UU, HR = 160, 184, 192, 208, 212, 232
def p0_loads():
    a(f"s_add_u32 {sr(sT2)}, {sr(sA)}, 0x1000")
    a(f"s_lshl_b32 {sr(sT0)}, {sr(sDB)}, 7")
    a(f"s_lshl_b32 {sr(sT1)}, {sr(sDB)}, 9")
    bload(SR, 4, vSH, SH, sr(sT1))
    for i in range(3): bload(KR + i, 1, vH, BK, 0, 1024 * i)
    for i in range(8): bload(KR + 3 + i, 1, vA, BK, sr(sA if i < 4 else sT2), 1024 * (i & 3))
    for i in range(8): bload(VR + i, 1, vA, BV, sr(sA if i < 4 else sT2), 1024 * (i & 3))
    bload(DR, 1, 5, DD, sr(sT0))
    a(f"s_add_u32 {sr(sT2)}, {sr(sCH)}, 0x1000")
    for c in range(2):
        bload(HR + 6*c, 2, vHP, HK, sr(sT2 if c else sCH)); bload(HR + 6*c + 2, 4, vHS, HK, sr(sT2 if c else sCH))
if not OPT["p0late"]: p0_loads()
def mbox(base, grp, idx, sh):
    a(f"s_lshr_b32 {sr(sT0)}, {sr(idx)}, 3")
    a(f"s_mul_i32 {sr(sT0)}, {sr(sT0)}, 96")
    a(f"s_lshl2_add_u32 {sr(sT0)}, {sr(idx)}, {sr(sT0)}")
    a(f"s_lshl_b32 {sr(sT3)}, {sr(grp)}, {sh}")
    a(f"s_add_u32 {sr(sT3)}, {sr(sT3)}, {base}")
    a(f"s_add_u32 {sr(sT0)}, {sr(sT0)}, {sr(sT3)}")
mbox(MB_KV, sHQ, sTB, 11)
a(f"s_waitcnt vmcnt({0 if OPT['p0late'] else 25})"); a("s_barrier")
stamp("B5")
if OPT["p0late"]: p0_loads()
dsw("ds_write_b128", vZ0, CY, 4); dsw("ds_write_b128", vZ0, CY, 4, 4*HSTR); dsw("ds_write_b128", vZ1, CY, 4, 4096)
a("s_waitcnt vmcnt(13)")
lo(WJ+0, SR); lo(WJ+1, SR+2); hi(WJ+2, SR); hi(WJ+3, SR+2)
lo(WJ+4, SR+1); lo(WJ+5, SR+3); hi(WJ+6, SR+1); hi(WJ+7, SR+3)
for i in range(11): lo(KP + 2*i, KR + i); hi(KP + 2*i + 1, KR + i)
for j in range(8): a(f"v_pk_mul_f32 {vr(UU+2*j,2)}, {vr(KP+2*j,2)}, {vr(WJ+6,2)}")
for t in (2, 1, 0):
    for j in range(8):
        a(f"v_pk_fma_f32 {vr(UU+2*j,2)}, {vr(KP+2*(j+3-t),2)}, {vr(WJ+2*t,2)}, {vr(UU+2*j,2)}")
a("s_waitcnt vmcnt(4)")
for i in range(8): lo(VP + 2*i, VR + i); hi(VP + 2*i + 1, VR + i)
for j in range(8): a(f"v_pk_mul_f32 {vr(UU+2*j,2)}, {vr(UU+2*j,2)}, {vr(VP+2*j,2)}")
for c in range(2):
    for i in range(4): cvt(KP + 4*c + i, UU + 2*(7 - 2*i) + c, UU + 2*(6 - 2*i) + c)
dsw("ds_write_b128", vPW, KP, 4, P0S); dsw("ds_write_b128", vPW, KP + 4, 4, P0S + 4096)
a(f"s_lshr_b32 {sr(sT0)}, {sr(sTB)}, 3")
a(f"s_lshl_b32 {sr(sT0)}, {sr(sT0)}, 9")
a(f"s_add_u32 {sr(sT3)}, {sr(sT3)}, {sr(sT0)}")
a("s_waitcnt vmcnt(0)")
only_wave(5, lambda: bload(53, 1, vMB, WS, sr(sT3), flags="sc1"))
lo(DP, DR); hi(DP + 1, DR)
for j in range(8): a(f"v_pk_mul_f32 {vr(UD+2*j,2)}, {vr(UU+2*j,2)}, {vr(DP,2)}")
for c in range(2):
    D = [HR + 6*c + j for j in range(6)]
    T = VP if c == 0 else 168
    dsw("ds_write_b128", vHW, D[2], 4, (4*c + 3)*HSTR)
    for j in range(4): a(f"v_alignbit_b32 {vr(T+j)}, {vr(D[2+j])}, {vr(D[1+j])}, 16")
    for j in range(4): a(f"v_mov_b32 {vr(T+4+j)}, {vr(D[1+j])}")
    for j in range(4): a(f"v_alignbit_b32 {vr(T+8+j)}, {vr(D[1+j])}, {vr(D[j])}, 16")
    dsw("ds_write_b128", vHW, T, 4, (4*c + 2)*HSTR)
    dsw("ds_write_b128", vHW, T+4, 4, (4*c + 1)*HSTR)
    dsw("ds_write_b128", vHW, T+8, 4, (4*c)*HSTR)
stamp("p0 done")
def kvpoll():
    a("s_waitcnt vmcnt(0)"); poll(vMB, 53, sr(sT3), True, 1)
only_wave(5, kvpoll)
a(f"s_lshl_b32 {sr(sT0)}, {sr(sDB)}, 18")
a(f"s_sub_u32 {sr(sT1)}, 31, {sr(sTBB)}")
a(f"s_lshl_b32 {sr(sT1)}, {sr(sT1)}, 7")
a(f"s_add_u32 {sr(sT3)}, {sr(sT0)}, {sr(sT1)}")
a(f"s_add_u32 {sr(sT3)}, {sr(sT3)}, {UT}")
a(f"s_add_u32 {sr(sT2)}, {sr(sT3)}, 0x1000")
a("s_waitcnt lgkmcnt(0)"); a("s_barrier")
stamp("B6")
hprio(OPT["sp"])
dsr("ds_read_b128", KP, 4, vPR, P0S); dsr("ds_read_b128", KP + 4, 4, vPR, P0S + 4096)
a("s_waitcnt lgkmcnt(1)")
bstore(KP, 4, vPG, WS, sr(sT3), 0, "sc1")
a("s_waitcnt lgkmcnt(0)")
bstore(KP + 4, 4, vPG, WS, sr(sT2), 0, "sc1")
mbox(MB_U, sDB, sTBB, 9)
a("s_waitcnt vmcnt(0)")
hbar()
only_wave(4, lambda: push(1, vFL, vTG, sr(sT0)))
stamp("u pushed")
def wo_stage(first, n):
    L = newlab("wo")
    a(f"s_and_b32 {sr(sT0)}, {sr(sTB)}, 7")
    a(f"s_mul_i32 {sr(sT0)}, {sr(sT0)}, {n // 8 * 4096}")
    a(f"s_add_u32 {sr(sT0)}, {sr(sT0)}, {first * 4096}")
    a(f"s_mov_b32 {sr(sT1)}, 0")
    a.label(L)
    a(f"s_add_u32 m0, {sr(sM0)}, {sr(sT0)}")
    a(f"s_lshl_b32 {sr(sSX)}, {sr(sT0)}, 2")
    if "wo" not in OPT["skip"]: dma(vWO, WO, sr(sSX))
    a(f"s_add_u32 {sr(sT0)}, {sr(sT0)}, 0x1000")
    a(f"s_cmp_eq_u32 {sr(sT0)}, {(first + n) * 4096}")
    a(f"s_cselect_b32 {sr(sT0)}, {first * 4096}, {sr(sT0)}")
    a(f"s_add_u32 {sr(sT1)}, {sr(sT1)}, 1")
    a(f"s_cmp_lg_u32 {sr(sT1)}, {n}")
    a(f"s_waitcnt vmcnt({OPT['wpace']})")
    a(f"s_cbranch_scc1 {L}")
wo_stage(0, 24)
if OPT["usl"]: a(f"s_sleep {OPT['usl']}")
a(f"s_lshl_b32 {sr(sT0)}, {sr(sCT)}, 12")
a(f"s_add_u32 {sr(sCH)}, {sr(sCH)}, {sr(sT0)}")
if OPT["onepoll"]: only_wave(4, lambda: poll(vMB, 6, sr(sT3))); hbar()
else: poll(vMB, 6, sr(sT3))
a(f"s_add_u32 {sr(sT2)}, {sr(sCH)}, {UT}")
a(f"s_mov_b32 m0, {sr(sUB)}")
a(f"s_mov_b32 {sr(sPASS)}, 0")
for i in range(4):
    a(f"buffer_load_dwordx4 {vr(vL16)}, {sr(WS,4)}, {sr(sT2)} offen offset:{1024*i} sc1 lds")
QG = 128
a(f"s_add_u32 {sr(sT2)}, {sr(sA)}, 0x1000")
hprio(OPT["cp"])
a("s_waitcnt vmcnt(0)")
stamp("u landed")
a.label("L_conv")
for i in range(8):
    dsr("ds_read_b64", CB + 4*i, 2, vUA, 3584 - 512*i); dsr("ds_read_b64", CB + 4*i + 2, 2, vUA, 3584 - 512*i + 8)
for ai in range(8):
    dsr("ds_read_b128", CA, 4, vHA, 512*ai)
    a("s_waitcnt lgkmcnt(0)")
    for bi in range(8 - ai if "conv" not in OPT["skip"] else 0): mfma16(CY + 4*(ai + bi), CA, CB + 4*bi, CY + 4*(ai + bi))
a(f"v_add_u32 {vr(vUA)}, 64, {vr(vUA)}")
a(f"v_add_u32 {vr(vHA)}, 64, {vr(vHA)}")
a(f"s_add_u32 {sr(sPASS)}, {sr(sPASS)}, 1")
a(f"s_cmp_lg_u32 {sr(sPASS)}, 4")
a("s_cbranch_scc1 L_conv")
stamp("conv done")
hprio(OPT["sp"])
a(f"s_lshl_b32 {sr(sT0)}, {sr(sTT)}, 11")
a(f"s_add_u32 {sr(sCH)}, {sr(sCH)}, {sr(sT0)}")
a(f"s_add_u32 {sr(sCH)}, {sr(sCH)}, {YT}")
a(f"s_cmp_lg_u32 {sr(sTT)}, 0")
a("s_cbranch_scc1 L_red1")
def reduce_store(keep, send):
    for j in range(4): dsw("ds_write_b128", vRW, send + 4*j, 4, 1024*j)
    a("s_waitcnt lgkmcnt(0)")
    hbar()
    for j in range(4): dsr("ds_read_b128", CB + 4*j, 4, vRR, 1024*j)
    hprio(OPT["ep"])
    a("s_waitcnt lgkmcnt(0)")
    for j in range(8): a(f"v_pk_add_f32 {vr(CB + 2*j, 2)}, {vr(CB + 2*j, 2)}, {vr(keep + 2*j, 2)}")
reduce_store(CY, CY + 16)
a("s_branch L_red2")
a.label("L_red1")
reduce_store(CY + 16, CY)
a.label("L_red2")
for j in range(8): cvt(CY + j, CB + 2*j, CB + 2*j + 1)
hprio(OPT["sp"])
for j in range(4): bstore(CY + 2*j, 2, vY8, WS, sr(sCH), 512*j, "sc1")
QG = 56
for i in range(8): bload(QG + i, 1, vA, BQ, sr(sA if i < 4 else sT2), 1024 * (i & 3))
mbox(MB_Y, sDB, sTBB, 9)
a("s_waitcnt vmcnt(8)")
hbar()
only_wave(4, lambda: push(1, vFL, vTG, sr(sT0)))
wo_stage(24, 8)
if OPT["ysl"]: a(f"s_sleep {OPT['ysl']}")
if OPT["onepoll"]: only_wave(4, lambda: poll(vMB, 6, sr(sT3))); hbar()
else: poll(vMB, 6, sr(sT3))
a(f"s_lshl_b32 {sr(sT0)}, {sr(sDB)}, 18")
a(f"s_lshl_b32 {sr(sT1)}, {sr(sTBB)}, 7")
a(f"s_add_u32 {sr(sT0)}, {sr(sT0)}, {sr(sT1)}")
a(f"s_add_u32 m0, {sr(sM0)}, {YB}")
a(f"s_add_u32 {sr(sT0)}, {sr(sT0)}, {YT}")
dma(vYS, WS, sr(sT0), "sc1")
a(f"s_add_u32 m0, {sr(sM0)}, {YB + 4096}")
a(f"s_add_u32 {sr(sT0)}, {sr(sT0)}, 0x1000")
dma(vYS, WS, sr(sT0), "sc1")
a(f"s_lshr_b32 {sr(sT0)}, {sr(sHQ)}, 2")
a(f"s_lshl1_add_u32 {sr(sSX)}, {sr(sTB)}, {sr(sT0)}")
a(f"s_lshl2_add_u32 {sr(sT0)}, {sr(sSX)}, {sr(sHH)}")
a(f"s_lshl_b32 {sr(sT0)}, {sr(sT0)}, 7")
a(f"s_add_u32 {sr(sT3)}, {sr(sT0)}, {MB_O}")
a(f"s_lshl_b32 {sr(sT0)}, {sr(sSX)}, 15")
a(f"s_lshl3_add_u32 {sr(sT0)}, {sr(sM0)}, {sr(sT0)}")
a(f"s_add_u32 {sr(sSW)}, {sr(sT0)}, {OF}")
a(f"s_lshl_b32 {sr(sSX)}, {sr(sSX)}, 16")
a(f"s_and_b32 {sr(sT1)}, {sr(sHQ)}, 3")
a(f"s_lshl2_add_u32 {sr(sT1)}, {sr(sT1)}, {sr(sHH)}")
a(f"s_lshl_b32 {sr(sT1)}, {sr(sT1)}, 6")
a(f"s_add_u32 {sr(sSX)}, {sr(sSX)}, {sr(sT1)}")
a(f"s_lshl_b32 {sr(sA)}, {sr(sTBB)}, 17")
a(f"s_lshl_b32 {sr(sT2)}, {sr(sDB)}, 7")
a(f"s_add_u32 {sr(sA)}, {sr(sA)}, {sr(sT2)}")
a(f"s_lshl_b32 m0, {sr(sM0)}, 3")
a(f"s_add_u32 {sr(sT2)}, {sr(sSW)}, 0x1000")
a("s_waitcnt vmcnt(0)")
stamp("staged")
a("s_barrier")
GQ, GY, YY = 64, 80, 96
dsr("ds_read_b128", YY, 4, vYR); dsr("ds_read_b128", YY + 4, 4, vYR, 4096)
WOF = 128
gate = []
for j in range(8): gate += [lambda j=j: lo(GQ + 2*j, QG + j), lambda j=j: hi(GQ + 2*j + 1, QG + j)]
gate.append(lambda: a("s_waitcnt lgkmcnt(15)"))
for c in range(2):
    for i in range(4): gate += [lambda c=c, i=i: lo(GY + 4*i + c, YY + 4*c + i), lambda c=c, i=i: hi(GY + 4*i + 2 + c, YY + 4*c + i)]
for j in range(8): gate.append(lambda j=j: a(f"v_pk_add_f32 {vr(GY+2*j,2)}, {vr(GY+2*j,2)}, {vr(UD+2*j,2)}"))
for j in range(8): gate.append(lambda j=j: a(f"v_pk_mul_f32 {vr(GY+2*j,2)}, {vr(GY+2*j,2)}, {vr(GQ+2*j,2)}"))
for j in range(8): gate.append(lambda j=j: cvt(QG + j, GY + 2*j, GY + 2*j + 1))
for p in range(32):
    for part in range(2):
        dsr("ds_read_b64_tr_b16", WOF + 4*p + 2*part, 2, vWR0 + (p >> 4), ((p & 15) * 16 + 8*part) * 256)
        if gate: gate.pop(0)()
assert not gate
a("s_waitcnt lgkmcnt(0)")
stamp("gate done")
a("s_barrier")
poll(vPO, 6, sr(sT3), False, 1)
stamp("o flags")
for i in range(4):
    a(f"buffer_load_dwordx4 {vr(vL16)}, {sr(WS,4)}, {sr(sSW)} offen offset:{1024*i} sc1 lds")
a("s_addk_i32 m0, 0x1000")
a("s_nop 0")
for i in range(4):
    a(f"buffer_load_dwordx4 {vr(vL16)}, {sr(WS,4)}, {sr(sT2)} offen offset:{1024*i} sc1 lds")
gfl = OPT["gfl"].replace("_", " ")
a("s_waitcnt vmcnt(0)"); a("s_barrier")
stamp("o landed")
OFR, PA = 64, 16
for p in range(12): dsr("ds_read_b128", OFR + 4*p, 4, vL16, 1024*p)
for p in range(32):
    a(f"s_waitcnt lgkmcnt({min(32, p + 12) - p - 1})")
    mfma32(PA, WOF + 4*p, OFR + 4*(p & 15), None if p == 0 else PA)
    if p + 12 < 32: dsr("ds_read_b128", OFR + 4*((p + 12) & 15), 4, vL16, 1024*(p + 12))
    if p & 1 and p < 16:
        j = p >> 1
        bstore(QG + j, 1, vGO, OUT, sr(sA), 3072 if j & 1 else 1024, gfl)
        if j & 1 and j < 7: a(f"s_add_u32 {sr(sA)}, {sr(sA)}, 0x1000")
a(f"s_or_b32 {sr(sT0)}, s2, {sr(sHH)}")
a("s_cbranch_scc1 L_noep")
a(f"v_mov_b32 v6, {EP}")
a("s_mov_b64 exec, 1")
bstore(vTG, 1, 6, WS, 0, flags="sc1")
a("s_mov_b64 exec, -1")
a.label("L_noep")
a("s_nop 9")
pfl = OPT["pfl"].replace("_", " ")
for j in range(4): cvt(8 + j, PA + 2*j, PA + 2*j + 1)
bstore(8, 4, vOO, OUT, sr(sSX), 0, pfl)
for j in range(4, 8): cvt(8 + j, PA + 2*j, PA + 2*j + 1)
bstore(12, 4, vOO, OUT, sr(sSX), 16, pfl)
if DIAG or OPT["enc"] or OPT["spin"]: finish(13 if DIAG == 1 else 11)
else: a("s_endpgm")

a.label("L_main")
a("s_waitcnt lgkmcnt(0)")
common_setup()
XF, WF, ACK, ACV, ACQ = 128, 96, 64, 80, 64
vXR, vWR, vXB, vWB, vXT = 50, 51, 52, 53, 54
O0, O1, S0, S1, C0, C1 = 16, 32, 48, 64, 80, 96
Q0, Q1 = 112, 116
vIDX, vKA, vVA = 8, 9, 10
vCON = 12
vKS, vVS, vKL, vVL, vQW, vQR = 2, 3, 5, 11, 14, 15
RING = 128
def rK(i): return RING + 12 * (i & 7)
def rVa(i): return RING + 12 * (i & 7) + 4
def rVb(i): return RING + 12 * (i & 7) + 8
a("v_bfe_u32 v6, v1, 2, 2")
a("v_lshrrev_b32 v32, 5, v1")
a("v_lshl_add_u32 v33, v32, 3, v6")
a("v_lshrrev_b32 v6, 1, v6")
a(f"v_xor_b32 v6, {sr(sCT)}, v6")
a("v_lshlrev_b32 v6, 6, v6")
a("v_lshl_add_u32 v33, v33, 7, v6")
a("v_and_b32 v6, 16, v1")
a("v_lshl_add_u32 v33, v6, 1, v33")
a("v_and_b32 v6, 3, v1")
a(f"v_lshl_add_u32 {vr(vWR)}, v6, 3, v33")
a("v_and_b32 v6, 31, v1")
a("v_xor_b32 v33, v32, v6")
a("v_and_b32 v33, 15, v33")
a("v_lshlrev_b32 v33, 4, v33")
a(f"v_lshl_add_u32 v6, {sr(sTT)}, 5, v6")
a(f"v_lshl_add_u32 {vr(vXR)}, v6, 8, v33")
a("v_and_b32 v33, 0x33, v1")
a("v_and_b32 v7, 4, v1")
a("v_lshl_or_b32 v33, v7, 1, v33")
a("v_and_b32 v7, 8, v1")
a("v_lshrrev_b32 v7, 1, v7")
a("v_or_b32 v6, v7, v33")
a(f"v_lshlrev_b32 {vr(vKS)}, 4, v6")
a("v_and_b32 v7, 15, v1")
a("v_lshlrev_b32 v7, 4, v7")
a("v_lshl_add_u32 v33, v32, 8, v7")
a("v_bfe_u32 v6, v1, 4, 1")
a(f"v_lshl_add_u32 {vr(vVS)}, v6, 17, v33")
a(f"s_lshl2_add_u32 {sr(sT0)}, {sr(sCT)}, {sr(sTT)}")
a(f"s_lshl_b32 {sr(sT1)}, {sr(sT0)}, 11")
a(f"s_add_u32 {sr(sT1)}, {sr(sT1)}, {KVL}")
a(f"v_add_u32 {vr(vKL)}, {sr(sT1)}, {vr(vKS)}")
a("v_lshl_add_u32 v6, v6, 12, v33")
a(f"v_add_u32 {vr(vVL)}, {sr(sT1)}, v6")
a(f"s_lshl_b32 {sr(sT0)}, {sr(sT0)}, 10")
a(f"v_lshl_add_u32 {vr(vQW)}, v1, 4, {sr(sT0)}")
a(f"s_lshl_b32 {sr(sT0)}, {sr(sHH)}, 11")
a(f"v_lshl_add_u32 {vr(vQR)}, v1, 4, {sr(sT0)}")
a(f"s_lshl2_add_u32 {sr(sT0)}, {sr(sHQ)}, {sr(sHH)}")
a(f"s_lshl_b32 {sr(sT0)}, {sr(sT0)}, 17")
a(f"v_lshl_add_u32 {vr(vKA)}, v1, 4, {sr(sT0)}")
a(f"v_add_u32 {vr(vVA)}, {sr(sT0)}, v33")
a(f"s_lshl_b32 {sr(sT0)}, {sr(sHH)}, 12")
a(f"s_add_u32 {sr(sT0)}, {sr(sT0)}, {KVL}")
a(f"v_lshl_add_u32 v48, v1, 4, {sr(sT0)}")
a(f"v_add_u32 v49, {sr(sT0)}, v33")
a(f"v_mov_b32 {vr(vIDX)}, 0xdddddddd")
a(f"s_mov_b32 {sr(sHALF)}, 0xffff"); a(f"s_mov_b32 {sr(sHALF+1)}, {sr(sHALF)}")
a(f"s_mov_b32 {sr(sAND)}, 0x4001ffff")
a(f"s_mov_b32 {sr(sREDO)}, 0")
a("v_and_b32 v7, 0x1b, v1"); a("v_cmp_eq_u32 vcc, 16, v7")
a("v_mov_b32 v6, 0x3f803f80")
a(f"s_add_u32 {sr(sOFF)}, {sr(sTB)}, 1")
a(f"v_cndmask_b32 {vr(vCON)}, 0, v6, vcc")
a(f"v_cndmask_b32 {vr(vCON+1)}, 0, v6, vcc")
a(f"s_and_b32 {sr(sOFF)}, {sr(sOFF)}, 31")
a(f"s_lshl_b32 {sr(sOFF)}, {sr(sOFF)}, 12")
for j in range(8): a(f"v_mov_b64 {vr(O0+2*j,2)}, 0")
a(f"s_lshl1_add_u32 {sr(sT0)}, {sr(sHQ)}, {sr(sCT)}")
a(f"s_lshl_b32 {sr(sT0)}, {sr(sT0)}, 18")
a(f"s_lshl1_add_u32 {sr(sT1)}, {sr(sTB)}, {sr(sTT)}")
a(f"s_lshl_b32 {sr(sT1)}, {sr(sT1)}, 11")
a(f"s_add_u32 {sr(sT3)}, {sr(sT0)}, {sr(sT1)}")
a(f"s_add_u32 {sr(sT2)}, {sr(sT3)}, 0x20000")
a("s_waitcnt vmcnt(0) lgkmcnt(0)")
make_tag()

def kv_gemm():
    def rd(i):
        c, s = i >> 3, i & 7
        if s == 0:
            a(f"v_add_u32 {vr(vXB)}, {SLOT[c % 3]}, {vr(vXR)}")
            a(f"v_add_u32 {vr(vWB)}, {SLOT[c % 3] + 16*K1}, {vr(vWR)}")
        f = WF + 8*(i & 3); t = vXT + (s & 1)
        if s: a(f"v_xor_b32 {vr(t)}, {32*s}, {vr(vXB)}")
        if s & 3 == 0:
            a("s_barrier")
            if i == 0: stamp("B1")
            if i == 28: stamp("B4")
        dsr("ds_read_b128", XF + 4*i, 4, t if s else vXB)
        dsr("ds_read_b64_tr_b16", f, 2, vWB, 2048*s); dsr("ds_read_b64_tr_b16", f + 2, 2, vWB, 2048*s + 512)
    def rdv(i):
        s = i & 7; f = WF + 8*(i & 3) + 4
        dsr("ds_read_b64_tr_b16", f, 2, vWB, 16*K1 + 2048*s); dsr("ds_read_b64_tr_b16", f + 2, 2, vWB, 16*K1 + 2048*s + 512)
    for lo_, hi_, D in ((0, 28, OPT["gd"]), (28, 32, 3)):
        for i in range(lo_, lo_ + D): rd(i); rdv(i)
        for i in range(lo_, hi_):
            x, f = XF + 4*i, WF + 8*(i & 3)
            n = 5 * (min(hi_, i + D) - i - 1)
            a(f"s_waitcnt lgkmcnt({n + 2})")
            mfma32(ACK, f, x, None if i == 0 else ACK)
            if i + D < hi_: rd(i + D); n += 3
            a(f"s_waitcnt lgkmcnt({n})")
            mfma32(ACV, x, f + 4, None if i == 0 else ACV)
            if i + D < hi_: rdv(i + D)
def q_chunks(cs, side):
    steps = [(c, s) for c in cs for s in range(8)]
    side = list(side)
    def rd(i):
        c, s = steps[i]
        if s == 0: a(f"v_add_u32 {vr(vXT + (c & 1))}, {WQ[c]}, {vr(vWR)}")
        dsr("ds_read_b64_tr_b16", WF + 4*(i & 7), 2, vXT + (c & 1), 2048*s)
        dsr("ds_read_b64_tr_b16", WF + 4*(i & 7) + 2, 2, vXT + (c & 1), 2048*s + 512)
    D = 5
    for i in range(D): rd(i)
    for i, (c, s) in enumerate(steps):
        a(f"s_waitcnt lgkmcnt({2 * (min(len(steps), i + D) - i - 1)})")
        mfma32(ACQ, WF + 4*(i & 7), XF + 4*(8*c + s), None if (c == 0 and s == 0) else ACQ)
        if i + D < len(steps): rd(i + D)
        if side and side[0][0] <= i:
            for l in side.pop(0)[1]: a(l)
    assert not side
def vconst(i): return [f"v_mov_b64 {vr(rVa(i) + 2*j, 2)}, {vr(vCON,2)}" for j in range(4)]
def adv():
    a(f"s_add_u32 {sr(sOFF)}, {sr(sOFF)}, 0x800")
    a(f"s_and_b32 {sr(sOFF)}, {sr(sOFF)}, {sr(sAND)}")
def ring_fill(tiles):
    for i in tiles:
        bload(rK(i), 4, vKA, WS, sr(sOFF), 0, "sc1")
        a(f"s_mov_b64 exec, {sr(sHALF,2)}")
        bload(rVa(i), 4, vVA, WS, sr(sOFF), 1024, "sc1")
        bload(rVb(i), 4, vVA, WS, sr(sOFF), 1536, "sc1")
        a("s_mov_b64 exec, -1")
        adv()
def rowmax(S, m, acc):
    k = 0
    if not acc:
        a(f"v_max3_f32 {vr(m)}, {vr(S)}, {vr(S+1)}, {vr(S+2)}"); k = 3
    while k < 16:
        a(f"v_max3_f32 {vr(m)}, {vr(m)}, {vr(S+k)}, {vr(S+min(k+1,15))}"); k += 2

kv_gemm()
a(f"v_mov_b32 v56, {CNT}")
dsw("ds_write_b128", 56, O0, 4)
a("s_nop 7")
for j in range(8): cvt(32 + j, ACK + 2*j, ACK + 2*j + 1)
bstore(32, 4, vKS, WS, sr(sT3), 0, "sc1"); bstore(36, 4, vKS, WS, sr(sT2), 0, "sc1")
for j in range(8): cvt(40 + j, ACV + 2*j, ACV + 2*j + 1)
bstore(40, 4, vVS, WS, sr(sT3), 1024, "sc1"); bstore(44, 4, vVS, WS, sr(sT3), 1536, "sc1")
dsw("ds_write_b128", vKL, 32, 4); dsw("ds_write_b128", vKL, 36, 4, 4096)
dsw("ds_write_b128", vVL, 40, 4, 1024); dsw("ds_write_b128", vVL, 44, 4, 1536)
xstamp(9, "kv stored")
a("s_waitcnt lgkmcnt(0)"); a("s_barrier")
xstamp(10, "B5a")
q_chunks([0, 1], [(8, vconst(0)), (9, vconst(1))])
for i in range(2): dsr("ds_read_b128", rK(i), 4, 48, 2048*i)
a(f"s_mov_b64 exec, {sr(sHALF,2)}")
for i in range(2): dsr("ds_read_b128", rVa(i), 4, 49, 2048*i + 1024); dsr("ds_read_b128", rVb(i), 4, 49, 2048*i + 1536)
a("s_mov_b64 exec, -1")
xstamp(11, "q01")
mbox(MB_KV, sHQ, sTB, 11)
a("v_lshlrev_b32 v2, 9, v1"); a(f"v_mov_b32 v3, {sr(sTAG)}")
a("s_waitcnt vmcnt(0) lgkmcnt(0)")
xstamp(12, "acked")
arrive(8, 3, 6, 7, lambda: push(4, 2, 3, sr(sT0)))
a("s_barrier")
stamp("B5")
q_chunks([2, 3], [(0, vconst(2)), (1, vconst(3)), (2, vconst(4)), (3, [f"v_mov_b64 {vr(O1+2*j,2)}, 0" for j in range(4)]),
                  (4, [f"v_mov_b64 {vr(O1+2*j,2)}, 0" for j in range(4, 8)]), (8, vconst(5)), (9, vconst(6)), (10, vconst(7))])
if OPT["prio"]: a("s_setprio 1")
a(f"s_mov_b32 {sr(sT2)}, {f2h(0.25 * math.log2(math.e))}")
a(f"s_mov_b32 {sr(sT1)}, {sr(sT2)}")
a("s_nop 9")
for j in range(8): a(f"v_pk_mul_f32 {vr(ACQ+2*j,2)}, {vr(ACQ+2*j,2)}, {sr(sT1,2)}")
for j in range(8): cvt(56 + j, ACQ + 2*j, ACQ + 2*j + 1)
dsw("ds_write_b128", vQW, 56, 4, QF); dsw("ds_write_b128", vQW, 60, 4, QF + 2048)
a(f"v_mov_b32 {vr(vCNT)}, {CNT + 4}"); a(f"v_mov_b32 {vr(vONE)}, 1"); a(f"s_mov_b32 {sr(sHB)}, 0")
a("s_waitcnt lgkmcnt(0)")
hbar(0, 0)
dsr("ds_read_b128", Q0, 4, vQR, QF); dsr("ds_read_b128", Q1, 4, vQR, QF + 1024)
a("s_waitcnt lgkmcnt(1)")
mfma32(S0, rK(0), Q0, None)
a("s_waitcnt lgkmcnt(0)")
mfma32(S1, rK(0), Q1, None)
a("s_nop 9")
rowmax(S0, 6, False); rowmax(S1, 7, False)
a.label("L_havemax")
a("v_mov_b32 v4, v6"); a("v_mov_b32 v11, v7"); a("s_nop 0")
a("v_permlane32_swap_b32 v6, v4"); a("v_permlane32_swap_b32 v7, v11")
a(f"v_max_f32 v6, v6, v4"); a("v_max_f32 v7, v7, v11")
a(f"v_sub_f32 {vr(C0)}, 0, v6"); a(f"v_sub_f32 {vr(C0+1)}, 0, v6")
for j in range(1, 8): a(f"v_mov_b64 {vr(C0+2*j,2)}, {vr(C0,2)}")
a(f"v_sub_f32 {vr(C1)}, 0, v7"); a(f"v_sub_f32 {vr(C1+1)}, 0, v7")
mfma32(S0, rK(0), Q0, C0)
for j in range(1, 8): a(f"v_mov_b64 {vr(C1+2*j,2)}, {vr(C1,2)}")
for j in range(4): a(f"v_mov_b64 {vr(S1+8+2*j,2)}, 0")
a(f"s_mov_b32 {sr(sPASS)}, 0")
a(f"s_cmp_lg_u32 {sr(sREDO)}, 0")
a("s_cbranch_scc1 L_fill")
stamp("max done")
a("s_barrier")
stamp("B6")
a.label("L_fill")
ring_fill([2, 3, 4, 5, 6])
stamp("loop start")
def E(S, x, y):
    for k in range(x, y + 1): a(f"v_exp_f32 {vr(S+k)}, {vr(S+k)}")
def PV(O, V, S): a(f"v_smfmac_f32_32x32x32_bf16 {vr(O,16)}, {vr(V,4)}, {vr(S,8)}, {vr(vIDX)}")
a(".p2align 6")
a.label("L_loop")
for i in range(8):
    E(S0, 0, 1)
    PV(O1, rVb(i-1), S1 + 8)
    a(f"s_mov_b64 exec, {sr(sHALF,2)}")
    bload(rVa(i-1), 4, vVA, WS, sr(sOFF), 1024, "sc1")
    bload(rVb(i-1), 4, vVA, WS, sr(sOFF), 1536, "sc1")
    a("s_mov_b64 exec, -1")
    E(S0, 2, 5)
    mfma32(S1, rK(i), Q1, C1)
    bload(rK(i-1), 4, vKA, WS, sr(sOFF), 0, "sc1")
    E(S0, 6, 9)
    PV(O0, rVa(i), S0)
    adv()
    E(S0, 10, 15)
    E(S1, 0, 1)
    PV(O0, rVb(i), S0 + 8)
    a("s_waitcnt vmcnt(18)")
    if i == 0: a(f"s_cmp_eq_u32 {sr(sPASS)}, 7")
    if i == 7: a(f"s_add_u32 {sr(sPASS)}, {sr(sPASS)}, 1")
    E(S1, 2, 5)
    mfma32(S0, rK(i+1), Q0, C0)
    if i == 0: a(f"s_cselect_b32 {sr(sT0)}, 0x40000000, 0")
    elif i == 7: a(f"s_cmp_lg_u32 {sr(sPASS)}, 8")
    else: a("s_nop 0")
    E(S1, 6, 9)
    PV(O1, rVa(i), S1)
    if i == 0: a(f"s_or_b32 {sr(sOFF)}, {sr(sOFF)}, {sr(sT0)}")
    if OPT["pt"] and i == 0: a("s_memrealtime s[92:93]")
    if OPT["pt"] and i == 3: a("s_waitcnt lgkmcnt(0)"); a(f"s_mov_b32 m0, {sr(sPASS)}"); a("v_writelane_b32 v15, s92, m0")
    E(S1, 10, 15)
a("s_cbranch_scc1 L_loop")
a(f"v_rcp_f32 v6, {vr(O0+8)}")
PV(O1, rVb(7), S1 + 8)
stamp("loop end")
a(f"s_mov_b32 {sr(sT0)}, {f2h(2.0**24)}")
a(f"s_lshl2_add_u32 {sr(sT3)}, {sr(sHQ)}, {sr(sHH)}")
a(f"s_lshl_b32 {sr(sSX)}, {sr(sTB)}, 6")
a(f"s_add_u32 {sr(sSX)}, {sr(sSX)}, {sr(sT3)}")
a(f"s_lshl_b32 {sr(sSX)}, {sr(sSX)}, 10")
a(f"s_add_u32 {sr(sSX)}, {sr(sSX)}, {OF}")
a(f"s_add_u32 {sr(sSW)}, {sr(sSX)}, 0x8000")
a("v_lshlrev_b32 v4, 4, v1")
for j in range(8): a(f"v_mul_f32 {vr(S1+j)}, v6, {vr(O0+j)}")
a(f"v_rcp_f32 v7, {vr(O1+8)}")
a(f"v_cmp_nle_f32 vcc, {vr(O0+8)}, {sr(sT0)}")
a(f"v_cmp_nle_f32 {sr(sT1,2)}, {vr(O1+8)}, {sr(sT0)}")
for j in range(4): cvt(S0 + j, S1 + 2*j, S1 + 2*j + 1)
a(f"s_or_b64 vcc, vcc, {sr(sT1,2)}")
a("s_cbranch_vccnz L_fallback")
a.label("L_attn_done")
bstore(S0, 4, 4, WS, sr(sSX), 0, "sc1")
for j in range(8): a(f"v_mul_f32 {vr(S1+j)}, v7, {vr(O1+j)}")
for j in range(4): cvt(S0 + 4 + j, S1 + 2*j, S1 + 2*j + 1)
bstore(S0 + 4, 4, 4, WS, sr(sSW), 0, "sc1")
a("v_lshlrev_b32 v6, 9, v1")
a(f"v_mov_b32 v7, {sr(sTAG)}")
a("s_barrier")
a(f"s_mov_b32 {sr(sT2)}, {sr(sT3)}")
mbox(MB_O, sTB, sT2, 10)
a("s_mov_b64 exec, 3")
a("s_waitcnt vmcnt(0)")
bstore(7, 1, 6, WS, sr(sT0), flags="sc1")
stamp("o pushed")
if OPT["pt"]:
    a("s_waitcnt lgkmcnt(0)"); a("s_mov_b32 s94, s88")
    for i in range(8): a(f"v_readlane_b32 s{76 + 2*i}, v15, {i}")
    a("s_mov_b32 s92, s94")
if OPT["enc"] or OPT["spin"]: a("s_barrier"); a("s_barrier")
if DIAG or OPT["enc"] or OPT["spin"]: finish(13 if DIAG == 1 else 11)
else: a("s_endpgm")
a.label("L_fallback")
a(f"s_cmp_lg_u32 {sr(sREDO)}, 0")
a("s_cbranch_scc1 L_attn_done")
a(f"s_mov_b32 {sr(sREDO)}, 1")
a(f"s_mov_b32 {sr(sOFF)}, 0")
a("v_mov_b32 v6, 0xff800000"); a("v_mov_b32 v7, v6")
for j in range(16): a(f"v_mov_b64 {vr(O0+2*j,2)}, 0")
a("s_waitcnt vmcnt(0)")
a.label("L_fb")
bload(rK(0), 4, vKA, WS, sr(sOFF), 0, "sc1")
a(f"s_add_u32 {sr(sOFF)}, {sr(sOFF)}, 0x800")
a("s_waitcnt vmcnt(0)")
mfma32(S0, rK(0), Q0, None); mfma32(S1, rK(0), Q1, None)
a("s_nop 10")
rowmax(S0, 6, True); rowmax(S1, 7, True)
a(f"s_cmp_lg_u32 {sr(sOFF)}, 0x20000")
a("s_cbranch_scc1 L_fb")
a(f"s_lshl_b32 {sr(sOFF)}, {sr(sTB)}, 12")
ring_fill(range(2))
a("s_waitcnt vmcnt(0)")
a("s_branch L_havemax")
a.label("L_end")
a("s_endpgm")

nbad = check(a.lines)
ref = open(f"cdna_kernels/{NAME}.s.ref").read().split("\n")
head = [l for l in ref if l.startswith(";") and "@launch" not in l and "Override launch" not in l and "grid=ceil" not in l]
out = "\n".join(head) + f"""
; Fused single launch: 256 workgroups (one per CU) x 8 waves; generated by gen/gen.py.
; @launch grid=(256,1,1) block=(512,1,1) lds={LDS_BYTES}
.amdgcn_target "amdgcn-amd-amdhsa--gfx950"
.text
.globl {NAME}_kernel
.p2align 8
.type {NAME}_kernel,@function
""" + a.text() + f""".section .rodata,"a"
.p2align 6
.amdhsa_kernel {NAME}_kernel
  .amdhsa_next_free_vgpr 256
  .amdhsa_next_free_sgpr 102
  .amdhsa_accum_offset 256
  .amdhsa_group_segment_fixed_size 0
  .amdhsa_kernarg_size 96
  .amdhsa_user_sgpr_count 2
  .amdhsa_user_sgpr_kernarg_segment_ptr 1
  .amdhsa_system_sgpr_workgroup_id_x 1
.end_amdhsa_kernel
"""
open(sys.argv[1], "w").write(out)
print("hazards:", nbad, "lines:", len(a.lines), "stamps:", nstamp[0])
```

```python
import sys, math, struct
from asmlib import Asm, vr, sr, check

NAME = "concat_heads__mha_block__ssm_conv_h3__prompt"
OPT = dict(late=0, hlate=0, kvat=2, pace=1, two=0, pd=5, ackat=14, pollat=27, p0p=0, hst=0, wqe=1, ysl=24, usl=0, wpace=3, gd=2, p0late=1, hs=4, pt=0, slp=16, onepoll=1, skip="", cp=0, sp=0, ep=3, hp=0, enc="", encw=0, first=0, gfl="sc1", pfl="sc1", vz=1, noload=0, nopv=0, noqk=0, noexp=0, c0=0, prio=1, diag=0, spin=0, spinat="end", clk=0)
for arg in sys.argv[2:]:
    k, v = arg.split("=")
    try: OPT[k] = int(v, 0)
    except ValueError: OPT[k] = v
DIAG = OPT["diag"]

KV, UT, YT, OF, MB = 0, 0x400000, 0x600000, 0x800000, 0xA00000
MB_U, MB_KV, MB_Y, MB_O = MB, MB + 0x8000, MB + 0x10000, MB + 0x18000
EP = MB + 0x20000
STAMP = 0xA30000
WS_SIZE = 0xA50000
K1 = 1024
SLOT = [0, 48 * K1, 96 * K1]
EX = 144 * K1
P0S = 8 * K1
HB = SLOT[2]; HSTR = 4512
UB = HB + 8 * HSTR; USTR = 4224
CNT = UB + 2 * USTR
QF = 0; RED = 140 * K1; KVL = SLOT[2]
YB = 128 * K1; MG = 140 * K1
LDS_BYTES = 160 * K1
assert CNT + 16 <= MG
X, W, WO, BQ, BK, BV, SH, HK, DD, OUT, WS = 4, 8, 12, 16, 20, 24, 28, 32, 36, 40, 44
sW, sHQ, sTB, sDB, sTBB, sROT, sTAG, sMASK = 48, 49, 50, 51, 52, 53, 54, 55
sA, sT0, sT1, sT2, sT3, sSX, sSW, sM0 = 56, 57, 58, 59, 60, 61, 62, 63
sOFF, sPASS, sREDO, sSPIN, sAND = 64, 65, 66, 67, 68
sHALF = 70
sCT, sTT, sHH, sHB = 3, 69, 72, 73
sST = 74
SPINMAX = 0x20000
f2h = lambda x: hex(struct.unpack("<I", struct.pack("<f", x))[0])

a = Asm()
nstamp = [0]
def stamp(name):
    if OPT["enc"] and name.replace(" ", "_") == OPT["enc"]: a("s_memrealtime s[94:95]")
    if OPT["enc"] and name == "end":
        L, L2 = newlab("spin"), newlab("spin")
        a("s_waitcnt lgkmcnt(0)")
        a("s_sub_u32 s94, s94, s100"); a("s_lshl_b32 s94, s94, 2")
        a("s_lshr_b32 s95, s2, 3"); a(f"s_lshl3_add_u32 s95, s95, {sr(sW)}"); a(f"s_cmp_eq_u32 s95, {96 + OPT['encw']}")
        a("s_cselect_b32 s94, s94, 0"); a("s_add_u32 s94, s94, 4000")
        a.label(L)
        a("s_memrealtime s[98:99]"); a("s_waitcnt lgkmcnt(0)")
        a("s_sub_u32 s98, s98, s100"); a("s_cmp_lt_u32 s98, s94"); a(f"s_cbranch_scc1 {L}")
    if OPT["spin"] and name.replace(" ", "_") == OPT["spinat"]:
        L = newlab("spin")
        if OPT["first"]:
            a("v_mov_b32 v6, 0"); a("global_load_dword v6, v6, s[96:97] sc1"); a("s_waitcnt vmcnt(0)")
            a("v_readfirstlane_b32 s100, v6"); a("s_nop 3"); a("s_not_b32 s100, s100")
        a.label(L)
        a("s_memrealtime s[98:99]"); a("s_waitcnt lgkmcnt(0)")
        a("s_sub_u32 s98, s98, s100"); a(f"s_cmp_lt_u32 s98, {OPT['spin'] * 100}"); a(f"s_cbranch_scc1 {L}")
    if DIAG == 2:
        if name in ("B1", "B5", "B6", "loop start", "loop end", "end"):
            i = nstamp[0]; nstamp[0] += 2
            a(f"s_memrealtime {sr(sST + 2 * i, 2)}")
            a(f"s_memtime {sr(sST + 2 * i + 2, 2)}")
    elif DIAG:
        i = nstamp[0]; nstamp[0] += 1
        assert sST + 2 * i + 1 <= 101, "too many stamps"
        a(f"{'s_memtime' if OPT['clk'] else 's_memrealtime'} {sr(sST + 2 * i, 2)} ; stamp {i} {name}")
def set_stamp(i): nstamp[0] = i
def xstamp(i, name):
    if DIAG == 1 and not OPT["pt"]:
        k = nstamp[0]; nstamp[0] = i; stamp(name); nstamp[0] = k
    elif OPT["enc"]: stamp(name)
lab = [0]
def newlab(p):
    lab[0] += 1; return f"L_{p}{lab[0]}"

def bload(dst, n, vaddr, srd, soff, off=0, flags=""):
    op = {1: "dword", 2: "dwordx2", 4: "dwordx4"}[n]
    a(f"buffer_load_{op} {vr(dst, n)}, {vr(vaddr)}, {sr(srd, 4)}, {soff} offen" + (f" offset:{off}" if off else "") + (" " + flags if flags else ""))
def bstore(src, n, vaddr, srd, soff, off=0, flags=""):
    op = {1: "dword", 2: "dwordx2", 4: "dwordx4"}[n]
    a(f"buffer_store_{op} {vr(src, n)}, {vr(vaddr)}, {sr(srd, 4)}, {soff} offen" + (f" offset:{off}" if off else "") + (" " + flags if flags else ""))
def dma(vaddr, srd, soff, flags=""):
    a(f"buffer_load_dwordx4 {vr(vaddr)}, {sr(srd, 4)}, {soff} offen" + (" " + flags if flags else "") + " lds")
def dsr(op, dst, n, vaddr, off=0):
    assert 0 <= off < 65536
    a(f"{op} {vr(dst, n)}, {vr(vaddr)}" + (f" offset:{off}" if off else ""))
def dsw(op, vaddr, src, n, off=0):
    assert 0 <= off < 65536
    a(f"{op} {vr(vaddr)}, {vr(src, n)}" + (f" offset:{off}" if off else ""))
def mfma32(d, A, B, c): a(f"v_mfma_f32_32x32x16_bf16 {vr(d,16)}, {vr(A,4)}, {vr(B,4)}, " + ("0" if c is None else vr(c, 16)))
def mfma16(d, A, B, c): a(f"v_mfma_f32_16x16x32_bf16 {vr(d,4)}, {vr(A,4)}, {vr(B,4)}, " + ("0" if c is None else vr(c, 4)))
def cvt(d, x, y): a(f"v_cvt_pk_bf16_f32 {vr(d)}, {vr(x)}, {vr(y)}")
def lo(d, s): a(f"v_lshlrev_b32 {vr(d)}, 16, {vr(s)}")
def hi(d, s): a(f"v_and_b32 {vr(d)}, {sr(sMASK)}, {vr(s)}")

bload_, mfma32_ = bload, mfma32
def poll(vaddr, vtmp, soff, first_issued=False, slp=None):
    L, Lo = newlab("poll"), newlab("pollok")
    a(f"s_mov_b32 {sr(sSPIN)}, 0")
    if first_issued:
        a(f"v_cmp_ne_u32 vcc, {sr(sTAG)}, {vr(vtmp)}")
        a(f"s_cbranch_vccz {Lo}")
    a.label(L)
    bload(vtmp, 1, vaddr, WS, soff, flags="sc1")
    a(f"s_add_u32 {sr(sSPIN)}, {sr(sSPIN)}, 1")
    a(f"s_cmp_ge_u32 {sr(sSPIN)}, {SPINMAX}")
    a("s_waitcnt vmcnt(0)")
    a(f"s_cbranch_scc1 {Lo}")
    a(f"v_cmp_ne_u32 vcc, {sr(sTAG)}, {vr(vtmp)}")
    a(f"s_cbranch_vccz {Lo}")
    a(f"s_sleep {OPT['slp'] if slp is None else slp}")
    a(f"s_branch {L}")
    a.label(Lo)

def push(nl, vt0, vt1, soff):
    a(f"s_mov_b64 exec, {hex((1 << nl) - 1)}")
    bstore(vt1, 1, vt0, WS, soff, flags="sc1")
    a("s_mov_b64 exec, -1")

def arrive(cntoff, last, vt0, vt1, pushfn):
    L = newlab("arr")
    a(f"v_mov_b32 {vr(vt0)}, {CNT + cntoff}")
    a(f"v_mov_b32 {vr(vt1)}, 1")
    a("s_mov_b64 exec, 1")
    a(f"ds_add_rtn_u32 {vr(vt1)}, {vr(vt0)}, {vr(vt1)}")
    a("s_waitcnt lgkmcnt(0)")
    a(f"v_cmp_ne_u32 vcc, {last}, {vr(vt1)}")
    a("s_mov_b64 exec, -1")
    a(f"s_cbranch_vccnz {L}")
    pushfn()
    a.label(L)


def hbar(extra=0, slp=None):
    L = newlab("hb")
    a(f"s_add_u32 {sr(sHB)}, {sr(sHB)}, {4 + extra}")
    a("s_mov_b64 exec, 1")
    a(f"ds_add_u32 {vr(vCNT)}, {vr(vONE)}")
    a.label(L)
    dsr("ds_read_b32", 6, 1, vCNT)
    a("s_waitcnt lgkmcnt(0)")
    a(f"v_cmp_gt_u32 vcc, {sr(sHB)}, v6")
    a(f"s_cbranch_vccz {L}x")
    if slp != 0: a(f"s_sleep {OPT['hs']}")
    a(f"s_branch {L}")
    a.label(L + "x")
    a("s_mov_b64 exec, -1")
def only_wave(w, fn):
    L = newlab("ow")
    a(f"s_cmp_lg_u32 {sr(sW)}, {w}"); a(f"s_cbranch_scc1 {L}")
    fn()
    a.label(L)
def hprio(p):
    a(f"s_setprio {p}")
vCNT, vONE = 2, 3


a.label(f"{NAME}_kernel")
a("s_cmp_ge_u32 s2, 0x100")
a("s_cbranch_scc1 L_end")
a(f"s_load_dwordx2 {sr(X,2)}, s[0:1], 0")
a(f"s_load_dwordx2 {sr(W,2)}, s[0:1], 8")
a(f"s_load_dwordx2 {sr(WS,2)}, s[0:1], 88")
if DIAG or OPT["spin"] or OPT["enc"]: a("s_memtime s[100:101]" if OPT["clk"] else "s_memrealtime s[100:101]")
a("s_getpc_b64 s[88:89]")
a.label("L_pc")
a(f"s_lshr_b32 {sr(sTBB)}, s2, 3")
a(f"s_and_b32 {sr(sDB)}, s2, 7")
a("v_lshrrev_b32 v6, 6, v0")
a(f"v_lshl_add_u32 v7, {sr(sTBB)}, 3, v6")
a("v_lshlrev_b32 v7, 7, v7")
a("v_min_u32 v7, L_end-L_pc, v7")
a("global_load_dword v4, v7, s[88:89]")
a(f"v_readfirstlane_b32 {sr(sW)}, v6")
a(f"s_and_b32 {sr(sT0)}, {sr(sTBB)}, 3")
a(f"s_lshr_b32 {sr(sT1)}, {sr(sTBB)}, 2")
a(f"s_add_u32 {sr(sROT)}, {sr(sT0)}, {sr(sT1)}")
a(f"s_and_b32 {sr(sHQ)}, {sr(sDB)}, 1")
a(f"s_lshl2_add_u32 {sr(sHQ)}, {sr(sHQ)}, {sr(sT0)}")
a(f"s_lshr_b32 {sr(sTB)}, {sr(sDB)}, 1")
a(f"s_lshl3_add_u32 {sr(sTB)}, {sr(sTB)}, {sr(sT1)}")
a(f"s_mov_b32 {sr(X+3)}, 0x20000")
a(f"s_and_b32 {sr(sHH)}, {sr(sW)}, 3")
a(f"s_cmp_lt_u32 {sr(sW)}, 4")
a("s_cbranch_scc1 L_main")

def mbox(base, grp, idx, sh):
    a(f"s_lshr_b32 {sr(sT0)}, {sr(idx)}, 3")
    a(f"s_mul_i32 {sr(sT0)}, {sr(sT0)}, 96")
    a(f"s_lshl2_add_u32 {sr(sT0)}, {sr(idx)}, {sr(sT0)}")
    a(f"s_lshl_b32 {sr(sT3)}, {sr(grp)}, {sh}")
    a(f"s_add_u32 {sr(sT3)}, {sr(sT3)}, {base}")
    a(f"s_add_u32 {sr(sT0)}, {sr(sT0)}, {sr(sT3)}")
def common_setup():
    a("v_and_b32 v1, 63, v0")
    a(f"s_add_u32 s88, {sr(WS)}, {EP}")
    a(f"s_addc_u32 s89, {sr(WS+1)}, 0")
    a(f"s_load_dword {sr(sTAG)}, s[88:89], 0")
    a(f"s_mov_b32 {sr(WS+2)}, {hex(WS_SIZE)}"); a(f"s_mov_b32 {sr(WS+3)}, {sr(X+3)}")
    a(f"s_and_b32 {sr(sCT)}, {sr(sW)}, 1")
    a(f"s_bfe_u32 {sr(sTT)}, {sr(sW)}, 0x10001")
    if DIAG: a(f"s_mov_b64 {sr(sST,2)}, s[100:101]"); nstamp[0] = 1
def make_tag():
    a(f"s_mul_i32 {sr(sTAG)}, {sr(sTAG)}, 0x2c9277b5")
    a(f"s_add_u32 {sr(sTAG)}, {sr(sTAG)}, 0xac564b05")
def finish(n):
    a("s_mov_b64 exec, -1")
    set_stamp(n); stamp("end")
    if DIAG:
        a("s_waitcnt lgkmcnt(0)")
        for i in range(nstamp[0]): a(f"v_mov_b32 {vr(32+i)}, {sr(sST+2*i)}")
        a(f"s_lshl3_add_u32 {sr(sT0)}, s2, {sr(sW)}")
        a(f"s_lshl_b32 {sr(sT0)}, {sr(sT0)}, 6")
        a(f"s_add_u32 {sr(sT0)}, {sr(sT0)}, {STAMP}")
        a("v_mov_b32 v6, 0")
        a("s_mov_b64 exec, 1")
        for i in range(4): bstore(32 + 4*i, 4, 6, WS, sr(sT0), 16*i)
    a("s_endpgm")

vXS, vWS = 48, 49
a("v_and_b32 v0, 0xff, v0")
a(f"s_mov_b32 {sr(X+2)}, 0x200000")
a(f"s_mov_b32 {sr(W+2)}, 0x180000"); a(f"s_mov_b32 {sr(W+3)}, {sr(X+3)}")
a("v_lshrrev_b32 v6, 4, v0")
a("v_xor_b32 v32, v6, v0")
a("v_and_b32 v32, 15, v32")
a(f"v_lshl_add_u32 v6, {sr(sTB)}, 6, v6")
a("v_lshlrev_b32 v6, 10, v6")
a(f"v_lshl_add_u32 {vr(vXS)}, v32, 4, v6")
a("v_lshrrev_b32 v6, 2, v0")
a("v_and_b32 v6, 4, v6")
a("v_xor_b32 v6, v6, v0")
a("v_and_b32 v6, 7, v6")
a(f"v_lshl_add_u32 v6, {sr(sHQ)}, 3, v6")
a("v_lshrrev_b32 v32, 3, v0")
a("v_mul_u32_u24 v32, 0xc00, v32")
a(f"v_lshl_add_u32 {vr(vWS)}, v6, 4, v32")
a(f"s_lshl_b32 {sr(sM0)}, {sr(sHH)}, 10")
def chunk_offsets(c):
    if c: a(f"s_add_u32 {sr(sT0)}, {sr(sROT)}, {c}")
    a(f"s_and_b32 {sr(sT0)}, {sr(sT0) if c else sr(sROT)}, 3")
    a(f"s_mul_i32 {sr(sSW)}, {sr(sT0)}, {128*3072}")
def dma_run(vaddr, srd, sbase, off, step, ldsbase, n=4, wait=False):
    a(f"s_add_u32 m0, {sr(sM0)}, {ldsbase}")
    a(f"s_add_u32 {sr(sT2)}, {sr(sbase)}, {off}")
    if wait: a("s_waitcnt lgkmcnt(0)")
    for i in range(n):
        dma(vaddr, srd, sr(sT2))
        if i < n - 1:
            a("s_addk_i32 m0, 0x1000")
            a(f"s_add_u32 {sr(sT2)}, {sr(sT2)}, {step}")
def dma_half(j):
    if j >= 8: return dma_wq(j - 8)
    c, hf = j >> 1, j & 1
    s = SLOT[c % 3]
    if not hf:
        chunk_offsets(c)
        a(f"s_lshl_b32 {sr(sSX)}, {sr(sT0)}, 8")
        dma_run(vXS, X, sSX, 0, 16384, s, 4, c == 0)
    dma_run(vWS, W, sSW, 1024 + hf*64*3072, 32*3072, s + 16 * K1 + hf*8192, 2)
    dma_run(vWS, W, sSW, 2048 + hf*64*3072, 32*3072, s + 32 * K1 + hf*8192, 2)
HSZ = [8, 4] * 4 + [4, 4]
WQ = [EX, SLOT[1], SLOT[1] + 16 * K1, SLOT[1] + 32 * K1]
def dma_wq(c):
    chunk_offsets(c); dma_run(vWS, W, sSW, 0, 32*3072, WQ[c])
dma_half(0); dma_half(1)
a("s_load_dwordx8 s[80:87], s[0:1], 16")
a("s_load_dwordx8 s[92:99], s[0:1], 48")
common_setup()
UD = 16
vA, vH, vSH, vPW, vPR, vPG, vHS, vHP = 8, 9, 10, 11, 12, 13, 14, 15
vHW, vHA, vUA, vL16, vWO, vYS, vWR0, vWR1, vYR, vGO, vPO, vOO, vRW, vRR, vY8, vZ0 = range(32, 48)
vZ1, vFL, vTG, vMB = 50, 51, 52, 54
sUB, sCH = 64, 66
a("v_and_b32 v5, 31, v0")
a("v_lshlrev_b32 v5, 2, v5")
a(f"v_mov_b32 {vr(vCNT)}, {CNT}")
a(f"v_mov_b32 {vr(vONE)}, 1")
a(f"s_mov_b32 {sr(sHB)}, 0")
a(f"s_mov_b32 {sr(sMASK)}, 0xffff0000")
a("v_lshrrev_b32 v53, 5, v0")
a(f"v_lshl_add_u32 {vr(vA)}, v53, 13, v5")
a(f"v_lshl_add_u32 {vr(vGO)}, v53, 14, v5")
a(f"s_lshl_b32 {sr(sA)}, {sr(sTBB)}, 16")
a(f"s_lshl_b32 {sr(sT0)}, {sr(sDB)}, 7")
a(f"s_add_u32 {sr(sA)}, {sr(sA)}, {sr(sT0)}")
a(f"s_sub_u32 {sr(sT2)}, {sr(sA)}, 0xc00")
a(f"v_add_u32 {vr(vH)}, {sr(sT2)}, {vr(vA)}")
a(f"v_lshlrev_b32 {vr(vSH)}, 2, v5")
a("v_xor_b32 v6, 7, v53")
a("v_xor_b32 v6, v6, v0")
a("v_and_b32 v6, 7, v6")
a("v_lshlrev_b32 v6, 4, v6")
a(f"v_lshl_add_u32 {vr(vPW)}, v5, 5, v6")
a("v_lshrrev_b32 v7, 1, v0")
a("v_xor_b32 v7, v53, v7")
a("v_and_b32 v7, 7, v7")
a("v_lshlrev_b32 v7, 4, v7")
a("v_lshl_add_u32 v7, v5, 5, v7")
a(f"v_add_u32 {vr(vYR)}, {YB}, v7")
a("v_lshrrev_b32 v6, 3, v0")
a("v_xor_b32 v7, v6, v0")
a("v_and_b32 v7, 7, v7")
a("v_lshlrev_b32 v7, 4, v7")
a(f"v_lshl_add_u32 {vr(vPR)}, v6, 7, v7")
a("v_and_b32 v7, 7, v0")
a("v_lshlrev_b32 v7, 4, v7")
a(f"v_lshl_add_u32 {vr(vPG)}, v6, 13, v7")
a("v_lshrrev_b32 v7, 1, v6")
a("v_xor_b32 v7, v7, v0")
a("v_and_b32 v7, 7, v7")
a("v_lshlrev_b32 v7, 4, v7")
a(f"v_lshl_add_u32 {vr(vYS)}, v6, 13, v7")
a(f"v_lshlrev_b32 {vr(vHS)}, 4, v0")
a("v_cmp_eq_u32 vcc, 0, v0")
a(f"v_subrev_u32 v6, 8, {vr(vHS)}")
a("v_bfrev_b32 v7, 2")
a(f"v_cndmask_b32 {vr(vHP)}, v6, v7, vcc")
a(f"v_add_u32 {vr(vHW)}, {HB + 384}, {vr(vHS)}")
a("v_and_b32 v6, 3, v1")
a(f"v_mul_u32_u24 v6, {HSTR}, v6")
a("v_bfe_u32 v53, v1, 2, 2")
a("v_lshl_add_u32 v6, v53, 7, v6")
a("v_and_b32 v7, 0x30, v1")
a("v_add_u32 v6, v6, v7")
a(f"s_mul_i32 {sr(sT0)}, {sr(sCT)}, {4*HSTR}")
a(f"s_lshl_b32 {sr(sT1)}, {sr(sTT)}, 8")
a(f"s_add_u32 {sr(sT0)}, {sr(sT0)}, {sr(sT1)}")
a(f"s_add_u32 {sr(sT0)}, {sr(sT0)}, {HB}")
a(f"v_add_u32 {vr(vHA)}, {sr(sT0)}, v6")
a("v_and_b32 v6, 15, v1")
a("v_lshlrev_b32 v6, 3, v6")
a("v_sub_u32 v6, v7, v6")
a(f"s_mul_i32 {sr(sUB)}, {sr(sCT)}, {USTR}")
a(f"s_add_u32 {sr(sUB)}, {sr(sUB)}, {UB}")
a(f"s_add_u32 {sr(sT0)}, {sr(sUB)}, {sr(sT1)}")
a(f"s_add_u32 {sr(sT0)}, {sr(sT0)}, 120")
a(f"v_add_u32 {vr(vUA)}, {sr(sT0)}, v6")
a(f"v_lshlrev_b32 {vr(vL16)}, 4, v1")
a(f"v_lshlrev_b32 {vr(vY8)}, 3, v1")
a(f"v_lshlrev_b32 {vr(vFL)}, 9, v1")
a("v_and_b32 v6, 0x60, v5")
a("v_and_b32 v7, 28, v5")
a(f"v_lshl_add_u32 {vr(vMB)}, v6, 2, v7")
a(f"v_lshl_add_u32 {vr(vRW)}, {sr(sHH)}, 12, {vr(vL16)}")
a(f"v_xor_b32 {vr(vRR)}, 0x2000, {vr(vRW)}")
a(f"v_add_u32 {vr(vRW)}, {RED}, {vr(vRW)}")
a(f"v_add_u32 {vr(vRR)}, {RED}, {vr(vRR)}")
a("v_min_u32 v6, 23, v1")
a(f"s_mul_i32 {sr(sT0)}, {sr(sHH)}, {HSTR}")
a(f"s_add_u32 {sr(sT0)}, {sr(sT0)}, {HB}")
a(f"v_lshl_add_u32 {vr(vZ0)}, v6, 4, {sr(sT0)}")
a("v_and_b32 v6, 7, v1")
a(f"v_lshl_add_u32 {vr(vZ1)}, v6, 4, {sr(sUB)}")
a(f"s_lshl_b32 {sr(sT0)}, {sr(sDB)}, 5")
a(f"s_add_u32 {sr(sT0)}, {sr(sT0)}, {sr(sTBB)}")
a(f"s_lshl_b32 {sr(sCH)}, {sr(sT0)}, 13")
a("v_lshrrev_b32 v6, 4, v0")
a("v_lshlrev_b32 v7, 2, v6")
a("v_xor_b32 v7, v7, v0")
a("v_and_b32 v7, 15, v7")
a("v_lshlrev_b32 v7, 4, v7")
a("v_lshl_add_u32 v6, v6, 10, v7")
a(f"s_and_b32 {sr(sT0)}, {sr(sHQ)}, 3")
a(f"v_lshl_add_u32 {vr(vWO)}, {sr(sT0)}, 8, v6")
a("v_lshrrev_b32 v7, 5, v1")
a("v_lshl_add_u32 v7, v7, 2, v53")
a(f"v_xor_b32 v6, {sr(sHH)}, v53")
a("v_lshlrev_b32 v6, 6, v6")
a("v_lshl_add_u32 v6, v7, 8, v6")
a("v_and_b32 v7, 1, v1")
a("v_lshl_add_u32 v6, v7, 5, v6")
a("v_and_b32 v7, 16, v1")
a("v_add_u32 v6, v6, v7")
a("v_and_b32 v7, 2, v1")
a(f"v_lshl_add_u32 {vr(vWR0)}, v7, 2, v6")
a(f"v_add_u32 {vr(vWR1)}, 0x10000, {vr(vWR0)}")
a(f"v_and_b32 {vr(vPO)}, 28, v5")
a("v_and_b32 v6, 32, v1")
a(f"v_lshl_add_u32 {vr(vOO)}, v5, 9, v6")
CY, CB, CA = 64, 96, 56
for j in range(16): a(f"v_mov_b64 {vr(CY+2*j,2)}, 0")
a("s_waitcnt lgkmcnt(0)")
for r, p in ((WO, 80), (BQ, 82), (BK, 84), (BV, 86), (SH, 92), (HK, 94), (DD, 96), (OUT, 98)):
    a(f"s_mov_b64 {sr(r,2)}, {sr(p,2)}")
for r in (BK, BV, HK, BQ): a(f"s_mov_b64 {sr(r+2,2)}, {sr(X+2,2)}")
for r, n in ((SH, 4096), (DD, 1024), (WO, 0x80000), (OUT, 0x400000)):
    a(f"s_mov_b32 {sr(r+2)}, {hex(n)}"); a(f"s_mov_b32 {sr(r+3)}, {sr(X+3)}")
make_tag()
a(f"v_mov_b32 {vr(vTG)}, {sr(sTAG)}")
for j in range(8):
    dma_half(j + 2)
    a(f"s_waitcnt vmcnt({HSZ[j+1] + HSZ[j+2]})"); a("s_barrier")
    if j == 0: stamp("B1")
stamp("B4")
KR, VR, SR, DR = 128, 140, 148, 139
KP, WJ, VP, DP, UU, HR = 160, 184, 192, 208, 212, 232
def p0_loads():
    a(f"s_add_u32 {sr(sT2)}, {sr(sA)}, 0x1000")
    a(f"s_lshl_b32 {sr(sT0)}, {sr(sDB)}, 7")
    a(f"s_lshl_b32 {sr(sT1)}, {sr(sDB)}, 9")
    bload(SR, 4, vSH, SH, sr(sT1))
    for i in range(3): bload(KR + i, 1, vH, BK, 0, 1024 * i)
    for i in range(8): bload(KR + 3 + i, 1, vA, BK, sr(sA if i < 4 else sT2), 1024 * (i & 3))
    for i in range(8): bload(VR + i, 1, vA, BV, sr(sA if i < 4 else sT2), 1024 * (i & 3))
    bload(DR, 1, 5, DD, sr(sT0))
def h_loads():
    a(f"s_add_u32 {sr(sT2)}, {sr(sCH)}, 0x1000")
    for c in range(2):
        bload(HR + 6*c, 2, vHP, HK, sr(sT2 if c else sCH)); bload(HR + 6*c + 2, 4, vHS, HK, sr(sT2 if c else sCH))
NKV = 21
if OPT["kvat"] == 0: p0_loads()
if OPT["pace"]: a("s_waitcnt vmcnt(4)")
dma_wq(2)
if OPT["pace"]: a("s_waitcnt vmcnt(4)")
dma_wq(3)
if OPT["kvat"] == 1: p0_loads()
if OPT["two"]: a(f"s_waitcnt vmcnt({8 + (NKV if OPT['kvat'] < 2 else 0)})"); a("s_barrier")
mbox(MB_KV, sHQ, sTB, 11)
a(f"s_waitcnt vmcnt({NKV if OPT['kvat'] == 1 else 4 * OPT['late']})"); a("s_barrier")
only_wave(4, lambda: push(4, vFL, vTG, sr(sT0)))
stamp("B5")
if OPT["kvat"] == 2: p0_loads()
NH = 0 if OPT["hlate"] else 4
if not OPT["hlate"]: h_loads()
if OPT["late"]: a(f"s_waitcnt vmcnt({NKV + NH})"); a("s_barrier")
hprio(OPT["p0p"])
a(f"s_waitcnt vmcnt({9 + NH})")
if OPT["hst"]: xstamp(9, "k landed")
lo(WJ+0, SR); lo(WJ+1, SR+2); hi(WJ+2, SR); hi(WJ+3, SR+2)
lo(WJ+4, SR+1); lo(WJ+5, SR+3); hi(WJ+6, SR+1); hi(WJ+7, SR+3)
for i in range(11): lo(KP + 2*i, KR + i); hi(KP + 2*i + 1, KR + i)
for j in range(8): a(f"v_pk_mul_f32 {vr(UU+2*j,2)}, {vr(KP+2*j,2)}, {vr(WJ+6,2)}")
for t in (2, 1, 0):
    for j in range(8):
        a(f"v_pk_fma_f32 {vr(UU+2*j,2)}, {vr(KP+2*(j+3-t),2)}, {vr(WJ+2*t,2)}, {vr(UU+2*j,2)}")
if OPT["hst"]: xstamp(10, "conv4")
a(f"s_waitcnt vmcnt({NH})")
if OPT["hst"]: xstamp(11, "v landed")
for i in range(8): lo(VP + 2*i, VR + i); hi(VP + 2*i + 1, VR + i)
for j in range(8): a(f"v_pk_mul_f32 {vr(UU+2*j,2)}, {vr(UU+2*j,2)}, {vr(VP+2*j,2)}")
for c in range(2):
    for i in range(4): cvt(KP + 4*c + i, UU + 2*(7 - 2*i) + c, UU + 2*(6 - 2*i) + c)
dsw("ds_write_b128", vPW, KP, 4, P0S); dsw("ds_write_b128", vPW, KP + 4, 4, P0S + 4096)
lo(DP, DR); hi(DP + 1, DR)
for j in range(8): a(f"v_pk_mul_f32 {vr(UD+2*j,2)}, {vr(UU+2*j,2)}, {vr(DP,2)}")
HT = [VP, 168]
def h_shift():
    for c in range(2):
        D = [HR + 6*c + j for j in range(6)]
        for j in range(4): a(f"v_alignbit_b32 {vr(HT[c]+j)}, {vr(D[2+j])}, {vr(D[1+j])}, 16")
        for j in range(4): a(f"v_mov_b32 {vr(HT[c]+4+j)}, {vr(D[1+j])}")
        for j in range(4): a(f"v_alignbit_b32 {vr(HT[c]+8+j)}, {vr(D[1+j])}, {vr(D[j])}, 16")
if not OPT["hlate"]:
    a("s_waitcnt vmcnt(0)")
    if OPT["hst"]: xstamp(12, "h landed")
    h_shift()
stamp("p0 done")
hprio(OPT["sp"])
a(f"s_lshl_b32 {sr(sT0)}, {sr(sDB)}, 18")
a(f"s_sub_u32 {sr(sT1)}, 31, {sr(sTBB)}")
a(f"s_lshl_b32 {sr(sT1)}, {sr(sT1)}, 7")
a(f"s_add_u32 {sr(sT3)}, {sr(sT0)}, {sr(sT1)}")
a(f"s_add_u32 {sr(sT3)}, {sr(sT3)}, {UT}")
a(f"s_add_u32 {sr(sT2)}, {sr(sT3)}, 0x1000")
a("s_waitcnt lgkmcnt(0)")
hbar(4)
stamp("hb1")
dsr("ds_read_b128", KP, 4, vPR, P0S); dsr("ds_read_b128", KP + 4, 4, vPR, P0S + 4096)
a("s_waitcnt lgkmcnt(1)")
bstore(KP, 4, vPG, WS, sr(sT3), 0, "sc1")
a("s_waitcnt lgkmcnt(0)")
bstore(KP + 4, 4, vPG, WS, sr(sT2), 0, "sc1")
dsw("ds_write_b128", vZ0, CY, 4); dsw("ds_write_b128", vZ0, CY, 4, 4*HSTR); dsw("ds_write_b128", vZ1, CY, 4, 4096)
if OPT["hlate"]:
    h_loads(); hprio(OPT["ep"]); a("s_waitcnt vmcnt(0)"); h_shift(); hprio(OPT["sp"])
for c in range(2):
    dsw("ds_write_b128", vHW, HR + 6*c + 2, 4, (4*c + 3)*HSTR)
    dsw("ds_write_b128", vHW, HT[c], 4, (4*c + 2)*HSTR)
    dsw("ds_write_b128", vHW, HT[c]+4, 4, (4*c + 1)*HSTR)
    dsw("ds_write_b128", vHW, HT[c]+8, 4, (4*c)*HSTR)
mbox(MB_U, sDB, sTBB, 9)
a("s_waitcnt vmcnt(0) lgkmcnt(0)")
hbar()
only_wave(4, lambda: push(1, vFL, vTG, sr(sT0)))
stamp("u pushed")
def wo_stage(first, n):
    L = newlab("wo")
    a(f"s_and_b32 {sr(sT0)}, {sr(sTB)}, 7")
    a(f"s_mul_i32 {sr(sT0)}, {sr(sT0)}, {n // 8 * 4096}")
    a(f"s_add_u32 {sr(sT0)}, {sr(sT0)}, {first * 4096}")
    a(f"s_mov_b32 {sr(sT1)}, 0")
    a.label(L)
    a(f"s_add_u32 m0, {sr(sM0)}, {sr(sT0)}")
    a(f"s_lshl_b32 {sr(sSX)}, {sr(sT0)}, 2")
    if "wo" not in OPT["skip"]: dma(vWO, WO, sr(sSX))
    a(f"s_add_u32 {sr(sT0)}, {sr(sT0)}, 0x1000")
    a(f"s_cmp_eq_u32 {sr(sT0)}, {(first + n) * 4096}")
    a(f"s_cselect_b32 {sr(sT0)}, {first * 4096}, {sr(sT0)}")
    a(f"s_add_u32 {sr(sT1)}, {sr(sT1)}, 1")
    a(f"s_cmp_lg_u32 {sr(sT1)}, {n}")
    a(f"s_waitcnt vmcnt({OPT['wpace']})")
    a(f"s_cbranch_scc1 {L}")
wo_stage(0, 24)
if OPT["usl"]: a(f"s_sleep {OPT['usl']}")
a(f"s_lshl_b32 {sr(sT0)}, {sr(sCT)}, 12")
a(f"s_add_u32 {sr(sCH)}, {sr(sCH)}, {sr(sT0)}")
if OPT["onepoll"]: only_wave(4, lambda: poll(vMB, 6, sr(sT3))); hbar()
else: poll(vMB, 6, sr(sT3))
a(f"s_add_u32 {sr(sT2)}, {sr(sCH)}, {UT}")
a(f"s_mov_b32 m0, {sr(sUB)}")
a(f"s_mov_b32 {sr(sPASS)}, 0")
for i in range(4):
    a(f"buffer_load_dwordx4 {vr(vL16)}, {sr(WS,4)}, {sr(sT2)} offen offset:{1024*i} sc1 lds")
QG = 128
a(f"s_add_u32 {sr(sT2)}, {sr(sA)}, 0x1000")
hprio(OPT["cp"])
a("s_waitcnt vmcnt(0)")
stamp("u landed")
a.label("L_conv")
for i in range(8):
    dsr("ds_read_b64", CB + 4*i, 2, vUA, 3584 - 512*i); dsr("ds_read_b64", CB + 4*i + 2, 2, vUA, 3584 - 512*i + 8)
for ai in range(8):
    dsr("ds_read_b128", CA, 4, vHA, 512*ai)
    a("s_waitcnt lgkmcnt(0)")
    for bi in range(8 - ai if "conv" not in OPT["skip"] else 0): mfma16(CY + 4*(ai + bi), CA, CB + 4*bi, CY + 4*(ai + bi))
a(f"v_add_u32 {vr(vUA)}, 64, {vr(vUA)}")
a(f"v_add_u32 {vr(vHA)}, 64, {vr(vHA)}")
a(f"s_add_u32 {sr(sPASS)}, {sr(sPASS)}, 1")
a(f"s_cmp_lg_u32 {sr(sPASS)}, 4")
a("s_cbranch_scc1 L_conv")
stamp("conv done")
hprio(OPT["sp"])
a(f"s_lshl_b32 {sr(sT0)}, {sr(sTT)}, 11")
a(f"s_add_u32 {sr(sCH)}, {sr(sCH)}, {sr(sT0)}")
a(f"s_add_u32 {sr(sCH)}, {sr(sCH)}, {YT}")
a(f"s_cmp_lg_u32 {sr(sTT)}, 0")
a("s_cbranch_scc1 L_red1")
def reduce_store(keep, send):
    for j in range(4): dsw("ds_write_b128", vRW, send + 4*j, 4, 1024*j)
    a("s_waitcnt lgkmcnt(0)")
    hbar()
    for j in range(4): dsr("ds_read_b128", CB + 4*j, 4, vRR, 1024*j)
    hprio(OPT["ep"])
    a("s_waitcnt lgkmcnt(0)")
    for j in range(8): a(f"v_pk_add_f32 {vr(CB + 2*j, 2)}, {vr(CB + 2*j, 2)}, {vr(keep + 2*j, 2)}")
reduce_store(CY, CY + 16)
a("s_branch L_red2")
a.label("L_red1")
reduce_store(CY + 16, CY)
a.label("L_red2")
for j in range(8): cvt(CY + j, CB + 2*j, CB + 2*j + 1)
hprio(OPT["sp"])
for j in range(4): bstore(CY + 2*j, 2, vY8, WS, sr(sCH), 512*j, "sc1")
QG = 56
for i in range(8): bload(QG + i, 1, vA, BQ, sr(sA if i < 4 else sT2), 1024 * (i & 3))
mbox(MB_Y, sDB, sTBB, 9)
a("s_waitcnt vmcnt(8)")
hbar()
only_wave(4, lambda: push(1, vFL, vTG, sr(sT0)))
wo_stage(24, 8)
if OPT["ysl"]: a(f"s_sleep {OPT['ysl']}")
if OPT["onepoll"]: only_wave(4, lambda: poll(vMB, 6, sr(sT3))); hbar()
else: poll(vMB, 6, sr(sT3))
a(f"s_lshl_b32 {sr(sT0)}, {sr(sDB)}, 18")
a(f"s_lshl_b32 {sr(sT1)}, {sr(sTBB)}, 7")
a(f"s_add_u32 {sr(sT0)}, {sr(sT0)}, {sr(sT1)}")
a(f"s_add_u32 m0, {sr(sM0)}, {YB}")
a(f"s_add_u32 {sr(sT0)}, {sr(sT0)}, {YT}")
dma(vYS, WS, sr(sT0), "sc1")
a(f"s_add_u32 m0, {sr(sM0)}, {YB + 4096}")
a(f"s_add_u32 {sr(sT0)}, {sr(sT0)}, 0x1000")
dma(vYS, WS, sr(sT0), "sc1")
a(f"s_lshr_b32 {sr(sT0)}, {sr(sHQ)}, 2")
a(f"s_lshl1_add_u32 {sr(sSX)}, {sr(sTB)}, {sr(sT0)}")
a(f"s_lshl2_add_u32 {sr(sT0)}, {sr(sSX)}, {sr(sHH)}")
a(f"s_lshl_b32 {sr(sT0)}, {sr(sT0)}, 7")
a(f"s_add_u32 {sr(sT3)}, {sr(sT0)}, {MB_O}")
a(f"s_lshl_b32 {sr(sT0)}, {sr(sSX)}, 15")
a(f"s_lshl3_add_u32 {sr(sT0)}, {sr(sM0)}, {sr(sT0)}")
a(f"s_add_u32 {sr(sSW)}, {sr(sT0)}, {OF}")
a(f"s_lshl_b32 {sr(sSX)}, {sr(sSX)}, 16")
a(f"s_and_b32 {sr(sT1)}, {sr(sHQ)}, 3")
a(f"s_lshl2_add_u32 {sr(sT1)}, {sr(sT1)}, {sr(sHH)}")
a(f"s_lshl_b32 {sr(sT1)}, {sr(sT1)}, 6")
a(f"s_add_u32 {sr(sSX)}, {sr(sSX)}, {sr(sT1)}")
a(f"s_lshl_b32 {sr(sA)}, {sr(sTBB)}, 17")
a(f"s_lshl_b32 {sr(sT2)}, {sr(sDB)}, 7")
a(f"s_add_u32 {sr(sA)}, {sr(sA)}, {sr(sT2)}")
a(f"s_lshl_b32 m0, {sr(sM0)}, 3")
a(f"s_add_u32 {sr(sT2)}, {sr(sSW)}, 0x1000")
a("s_waitcnt vmcnt(0)")
if not OPT["hst"]: stamp("staged")
a("s_barrier")
GQ, GY, YY = 64, 80, 96
dsr("ds_read_b128", YY, 4, vYR); dsr("ds_read_b128", YY + 4, 4, vYR, 4096)
WOF = 128
gate = []
for j in range(8): gate += [lambda j=j: lo(GQ + 2*j, QG + j), lambda j=j: hi(GQ + 2*j + 1, QG + j)]
gate.append(lambda: a("s_waitcnt lgkmcnt(15)"))
for c in range(2):
    for i in range(4): gate += [lambda c=c, i=i: lo(GY + 4*i + c, YY + 4*c + i), lambda c=c, i=i: hi(GY + 4*i + 2 + c, YY + 4*c + i)]
for j in range(8): gate.append(lambda j=j: a(f"v_pk_add_f32 {vr(GY+2*j,2)}, {vr(GY+2*j,2)}, {vr(UD+2*j,2)}"))
for j in range(8): gate.append(lambda j=j: a(f"v_pk_mul_f32 {vr(GY+2*j,2)}, {vr(GY+2*j,2)}, {vr(GQ+2*j,2)}"))
for j in range(8): gate.append(lambda j=j: cvt(QG + j, GY + 2*j, GY + 2*j + 1))
for p in range(32):
    for part in range(2):
        dsr("ds_read_b64_tr_b16", WOF + 4*p + 2*part, 2, vWR0 + (p >> 4), ((p & 15) * 16 + 8*part) * 256)
        if gate: gate.pop(0)()
assert not gate
a("s_waitcnt lgkmcnt(0)")
if not OPT["hst"]: stamp("gate done")
a("s_barrier")
poll(vPO, 6, sr(sT3), False, 1)
if not OPT["hst"]: stamp("o flags")
for i in range(4):
    a(f"buffer_load_dwordx4 {vr(vL16)}, {sr(WS,4)}, {sr(sSW)} offen offset:{1024*i} sc1 lds")
a("s_addk_i32 m0, 0x1000")
a("s_nop 0")
for i in range(4):
    a(f"buffer_load_dwordx4 {vr(vL16)}, {sr(WS,4)}, {sr(sT2)} offen offset:{1024*i} sc1 lds")
gfl = OPT["gfl"].replace("_", " ")
a("s_waitcnt vmcnt(0)"); a("s_barrier")
if not OPT["hst"]: stamp("o landed")
OFR, PA = 64, 16
for p in range(12): dsr("ds_read_b128", OFR + 4*p, 4, vL16, 1024*p)
for p in range(32):
    a(f"s_waitcnt lgkmcnt({min(32, p + 12) - p - 1})")
    mfma32(PA, WOF + 4*p, OFR + 4*(p & 15), None if p == 0 else PA)
    if p + 12 < 32: dsr("ds_read_b128", OFR + 4*((p + 12) & 15), 4, vL16, 1024*(p + 12))
    if p & 1 and p < 16:
        j = p >> 1
        bstore(QG + j, 1, vGO, OUT, sr(sA), 3072 if j & 1 else 1024, gfl)
        if j & 1 and j < 7: a(f"s_add_u32 {sr(sA)}, {sr(sA)}, 0x1000")
a(f"s_or_b32 {sr(sT0)}, s2, {sr(sHH)}")
a("s_cbranch_scc1 L_noep")
a(f"v_mov_b32 v6, {EP}")
a("s_mov_b64 exec, 1")
bstore(vTG, 1, 6, WS, 0, flags="sc1")
a("s_mov_b64 exec, -1")
a.label("L_noep")
a("s_nop 9")
pfl = OPT["pfl"].replace("_", " ")
for j in range(4): cvt(8 + j, PA + 2*j, PA + 2*j + 1)
bstore(8, 4, vOO, OUT, sr(sSX), 0, pfl)
for j in range(4, 8): cvt(8 + j, PA + 2*j, PA + 2*j + 1)
bstore(12, 4, vOO, OUT, sr(sSX), 16, pfl)
if DIAG or OPT["enc"] or OPT["spin"]: finish(13 if DIAG == 1 else 11)
else: a("s_endpgm")

a.label("L_main")
a("s_waitcnt lgkmcnt(0)")
common_setup()
XF, WF, ACK, ACV, ACQ = 128, 96, 64, 80, 64
vXR, vWR, vXB, vWB, vXT = 50, 51, 52, 53, 54
O0, O1, S0, S1, C0, C1 = 16, 32, 48, 64, 80, 96
Q0, Q1 = 112, 116
vIDX, vKA, vVA = 8, 9, 10
vCON = 12
vKS, vVS, vKL, vVL, vQW, vQR = 2, 3, 5, 11, 14, 15
RING = 128
def rK(i): return RING + 12 * (i & 7)
def rVa(i): return RING + 12 * (i & 7) + 4
def rVb(i): return RING + 12 * (i & 7) + 8
a("v_bfe_u32 v6, v1, 2, 2")
a("v_lshrrev_b32 v32, 5, v1")
a("v_lshl_add_u32 v33, v32, 3, v6")
a("v_lshrrev_b32 v6, 1, v6")
a(f"v_xor_b32 v6, {sr(sCT)}, v6")
a("v_lshlrev_b32 v6, 6, v6")
a("v_lshl_add_u32 v33, v33, 7, v6")
a("v_and_b32 v6, 16, v1")
a("v_lshl_add_u32 v33, v6, 1, v33")
a("v_and_b32 v6, 3, v1")
a(f"v_lshl_add_u32 {vr(vWR)}, v6, 3, v33")
a("v_and_b32 v6, 31, v1")
a("v_xor_b32 v33, v32, v6")
a("v_and_b32 v33, 15, v33")
a("v_lshlrev_b32 v33, 4, v33")
a(f"v_lshl_add_u32 v6, {sr(sTT)}, 5, v6")
a(f"v_lshl_add_u32 {vr(vXR)}, v6, 8, v33")
a("v_and_b32 v33, 0x33, v1")
a("v_and_b32 v7, 4, v1")
a("v_lshl_or_b32 v33, v7, 1, v33")
a("v_and_b32 v7, 8, v1")
a("v_lshrrev_b32 v7, 1, v7")
a("v_or_b32 v6, v7, v33")
a(f"v_lshlrev_b32 {vr(vKS)}, 4, v6")
a("v_and_b32 v7, 15, v1")
a("v_lshlrev_b32 v7, 4, v7")
a("v_lshl_add_u32 v33, v32, 8, v7")
a("v_bfe_u32 v6, v1, 4, 1")
a(f"v_lshl_add_u32 {vr(vVS)}, v6, 17, v33")
a(f"s_lshl2_add_u32 {sr(sT0)}, {sr(sCT)}, {sr(sTT)}")
a(f"s_lshl_b32 {sr(sT1)}, {sr(sT0)}, 11")
a(f"s_add_u32 {sr(sT1)}, {sr(sT1)}, {KVL}")
a(f"v_add_u32 {vr(vKL)}, {sr(sT1)}, {vr(vKS)}")
a("v_lshl_add_u32 v6, v6, 12, v33")
a(f"v_add_u32 {vr(vVL)}, {sr(sT1)}, v6")
a(f"s_lshl_b32 {sr(sT0)}, {sr(sT0)}, 10")
a(f"v_lshl_add_u32 {vr(vQW)}, v1, 4, {sr(sT0)}")
a(f"s_lshl_b32 {sr(sT0)}, {sr(sHH)}, 11")
a(f"v_lshl_add_u32 {vr(vQR)}, v1, 4, {sr(sT0)}")
a(f"s_lshl2_add_u32 {sr(sT0)}, {sr(sHQ)}, {sr(sHH)}")
a(f"s_lshl_b32 {sr(sT0)}, {sr(sT0)}, 17")
a(f"v_lshl_add_u32 {vr(vKA)}, v1, 4, {sr(sT0)}")
a(f"v_add_u32 {vr(vVA)}, {sr(sT0)}, v33")
a(f"s_lshl_b32 {sr(sT0)}, {sr(sHH)}, 12")
a(f"s_add_u32 {sr(sT0)}, {sr(sT0)}, {KVL}")
a(f"v_lshl_add_u32 v48, v1, 4, {sr(sT0)}")
a(f"v_add_u32 v49, {sr(sT0)}, v33")
a(f"v_mov_b32 {vr(vIDX)}, 0xdddddddd")
a(f"s_mov_b32 {sr(sHALF)}, 0xffff"); a(f"s_mov_b32 {sr(sHALF+1)}, {sr(sHALF)}")
a(f"s_mov_b32 {sr(sAND)}, 0x1ffff")
a(f"s_mov_b32 {sr(sREDO)}, 0")
a("v_and_b32 v7, 0x1b, v1"); a("v_cmp_eq_u32 vcc, 16, v7")
a("v_mov_b32 v6, 0x3f803f80")
a(f"s_add_u32 {sr(sOFF)}, {sr(sTB)}, 1")
a(f"v_cndmask_b32 {vr(vCON)}, 0, v6, vcc")
a(f"v_cndmask_b32 {vr(vCON+1)}, 0, v6, vcc")
a(f"s_and_b32 {sr(sOFF)}, {sr(sOFF)}, 31")
a(f"s_lshl_b32 {sr(sOFF)}, {sr(sOFF)}, 12")
for j in range(8): a(f"v_mov_b64 {vr(O0+2*j,2)}, 0")
a(f"s_lshl1_add_u32 {sr(sT0)}, {sr(sHQ)}, {sr(sCT)}")
a(f"s_lshl_b32 {sr(sT0)}, {sr(sT0)}, 18")
a(f"s_lshl1_add_u32 {sr(sT1)}, {sr(sTB)}, {sr(sTT)}")
a(f"s_lshl_b32 {sr(sT1)}, {sr(sT1)}, 11")
a(f"s_add_u32 {sr(sT3)}, {sr(sT0)}, {sr(sT1)}")
a(f"s_add_u32 {sr(sT2)}, {sr(sT3)}, 0x20000")
a("s_waitcnt vmcnt(0) lgkmcnt(0)")
make_tag()

def kv_gemm():
    def rd(i):
        c, s = i >> 3, i & 7
        if s == 0:
            a(f"v_add_u32 {vr(vXB)}, {SLOT[c % 3]}, {vr(vXR)}")
            a(f"v_add_u32 {vr(vWB)}, {SLOT[c % 3] + 16*K1}, {vr(vWR)}")
        f = WF + 8*(i & 3); t = vXT + (s & 1)
        if s: a(f"v_xor_b32 {vr(t)}, {32*s}, {vr(vXB)}")
        if s & 3 == 0:
            a("s_barrier")
            if i == 0: stamp("B1")
            if i == 28: stamp("B4")
        dsr("ds_read_b128", XF + 4*i, 4, t if s else vXB)
        dsr("ds_read_b64_tr_b16", f, 2, vWB, 2048*s); dsr("ds_read_b64_tr_b16", f + 2, 2, vWB, 2048*s + 512)
    def rdv(i):
        s = i & 7; f = WF + 8*(i & 3) + 4
        dsr("ds_read_b64_tr_b16", f, 2, vWB, 16*K1 + 2048*s); dsr("ds_read_b64_tr_b16", f + 2, 2, vWB, 16*K1 + 2048*s + 512)
    for lo_, hi_, D in ((0, 28, OPT["gd"]), (28, 32, 3)):
        for i in range(lo_, lo_ + D): rd(i); rdv(i)
        for i in range(lo_, hi_):
            x, f = XF + 4*i, WF + 8*(i & 3)
            n = 5 * (min(hi_, i + D) - i - 1)
            a(f"s_waitcnt lgkmcnt({n + 2})")
            mfma32(ACK, f, x, None if i == 0 else ACK)
            if i + D < hi_: rd(i + D); n += 3
            a(f"s_waitcnt lgkmcnt({n})")
            mfma32(ACV, x, f + 4, None if i == 0 else ACV)
            if i + D < hi_: rdv(i + D)
def q_gemm(side):
    def rd(i):
        c, s = i >> 3, i & 7
        if s == 0: a(f"v_add_u32 {vr(vXT + (c & 1))}, {WQ[c]}, {vr(vWR)}")
        if OPT["late"] and i == 32 - 8 * OPT["late"]: a("s_barrier")
        if i == 16 and OPT["two"]:
            a("s_waitcnt vmcnt(0)"); xstamp(10, "acked"); a("s_barrier"); stamp("B5")
        dsr("ds_read_b64_tr_b16", WF + 4*(i & 7), 2, vXT + (c & 1), 2048*s)
        dsr("ds_read_b64_tr_b16", WF + 4*(i & 7) + 2, 2, vXT + (c & 1), 2048*s + 512)
    D = 4
    for i in range(D): rd(i)
    for i in range(32):
        extra = sum(side[j][1] for j in range(max(0, i - D), i) if j in side)
        a(f"s_waitcnt lgkmcnt({2 * (min(32, i + D) - i - 1) + extra})")
        mfma32(ACQ, WF + 4*(i & 7), XF + 4*i, None if i == 0 else ACQ)
        if i + D < 32: rd(i + D)
        if i in side: side[i][0]()
def vconst(i): return [f"v_mov_b64 {vr(rVa(i) + 2*j, 2)}, {vr(vCON,2)}" for j in range(4)]
sGB = 12
def gload(dst, vaddr, off): a(f"global_load_dwordx4 {vr(dst,4)}, {vr(vaddr)}, {sr(sGB,2)} offset:{off} sc1")
def adv1():
    a(f"s_add_u32 {sr(sOFF)}, {sr(sOFF)}, 0x1000")
    a(f"s_and_b32 {sr(sOFF)}, {sr(sOFF)}, {sr(sAND)}")
def adv2():
    a(f"s_add_u32 {sr(sGB)}, {sr(WS)}, {sr(sOFF)}")
    a(f"s_addc_u32 {sr(sGB+1)}, {sr(WS+1)}, 0")
def ring_fill(tiles):
    for i in tiles:
        o = 2048 * (i & 1)
        if not o: adv2()
        gload(rK(i), vKA, o)
        a(f"s_mov_b64 exec, {sr(sHALF,2)}")
        gload(rVa(i), vVA, o + 1024); gload(rVb(i), vVA, o + 1536)
        a("s_mov_b64 exec, -1")
        if o: adv1()
def rowmax(S, m, acc):
    k = 0
    if not acc:
        a(f"v_max3_f32 {vr(m)}, {vr(S)}, {vr(S+1)}, {vr(S+2)}"); k = 3
    while k < 16:
        a(f"v_max3_f32 {vr(m)}, {vr(m)}, {vr(S+k)}, {vr(S+min(k+1,15))}"); k += 2

kv_gemm()
a(f"v_mov_b32 v56, {CNT}")
dsw("ds_write_b128", 56, O0, 4)
a("s_nop 7")
for j in range(8): cvt(32 + j, ACK + 2*j, ACK + 2*j + 1)
bstore(32, 4, vKS, WS, sr(sT3), 0, "sc1"); bstore(36, 4, vKS, WS, sr(sT2), 0, "sc1")
for j in range(8): cvt(40 + j, ACV + 2*j, ACV + 2*j + 1)
bstore(40, 4, vVS, WS, sr(sT3), 1024, "sc1"); bstore(44, 4, vVS, WS, sr(sT3), 1536, "sc1")
dsw("ds_write_b128", vKL, 32, 4); dsw("ds_write_b128", vKL, 36, 4, 4096)
dsw("ds_write_b128", vVL, 40, 4, 1024); dsw("ds_write_b128", vVL, 44, 4, 1536)
xstamp(9, "kv stored")
mbox(MB_KV, sHQ, sTB, 11)
a(f"s_lshr_b32 {sr(sT1)}, {sr(sTB)}, 3")
a(f"s_lshl_b32 {sr(sT1)}, {sr(sT1)}, 9")
a(f"s_add_u32 {sr(sT3)}, {sr(sT3)}, {sr(sT1)}")
if OPT["two"]: a("s_waitcnt lgkmcnt(0)"); a("s_barrier"); xstamp(11, "B5a")
else: a("s_waitcnt vmcnt(0) lgkmcnt(0)"); xstamp(10, "acked"); a("s_barrier"); stamp("B5")
NK = 80
def lines(ls): return (lambda: [a(l) for l in ls], 0)
def own_k():
    for i in range(2): dsr("ds_read_b128", rK(i), 4, 48, 2048*i)
def own_v(i):
    a(f"s_mov_b64 exec, {sr(sHALF,2)}")
    dsr("ds_read_b128", rVa(i), 4, 49, 2048*i + 1024); dsr("ds_read_b128", rVb(i), 4, 49, 2048*i + 1536)
    a("s_mov_b64 exec, -1")
def ack():
    a("s_waitcnt vmcnt(0)")
    xstamp(10, "acked")
    a("s_mov_b64 exec, 1"); a("ds_add_rtn_u32 v7, v56, v7 offset:8"); a("s_mov_b64 exec, -1")
def signal():
    L = newlab("sig")
    a("v_readfirstlane_b32 s14, v7"); a("s_cmp_lg_u32 s14, 3"); a(f"s_cbranch_scc1 {L}")
    push(4, 2, 3, sr(sT0))
    a.label(L)
A_ = OPT["ackat"]
side = {0: (lambda: (a("v_and_b32 v6, 0xfffffe00, v48"), dsr("ds_read_b128", NK, 4, 6)), 1),
        2: lines(["v_bfe_u32 v6, v1, 3, 2", "v_and_b32 v5, 7, v1", "v_lshlrev_b32 v5, 2, v5", "v_lshl_add_u32 v5, v6, 7, v5"]),
        6: lines([f"v_xor_b32 {vr(NK+j)}, 0x80008000, {vr(NK+j)}" for j in range(4)]),
        8: lines(vconst(0)), 9: lines(vconst(1)), 10: (own_k, 2), 11: (lambda: own_v(0), 2), 12: (lambda: own_v(1), 2),
        21: lines(vconst(2)), 22: lines(vconst(3)), 23: lines(vconst(4)), 24: lines(vconst(5)), 25: lines(vconst(6)), 26: lines(vconst(7)),
        min(OPT["pollat"], 31): (lambda: only_wave(0, lambda: bload(4, 1, 5, WS, sr(sT3), flags="sc1")), 0),
        28: lines([f"v_mov_b64 {vr(O1+2*j,2)}, 0" for j in range(4)]), 29: lines([f"v_mov_b64 {vr(O1+2*j,2)}, 0" for j in range(4, 8)])}
q_gemm(side)
if OPT["prio"]: a("s_setprio 1")
a(f"s_mov_b32 {sr(sT2)}, {f2h(0.25 * math.log2(math.e))}")
a(f"s_mov_b32 {sr(sT1)}, {sr(sT2)}")
a(f"v_mov_b32 {vr(vCNT)}, {CNT + 4}"); a(f"v_mov_b32 {vr(vONE)}, 1"); a(f"s_mov_b32 {sr(sHB)}, 0")
a(f"s_mov_b32 {sr(sPASS)}, 0")
a("s_nop 4")
for j in range(8): a(f"v_pk_mul_f32 {vr(ACQ+2*j,2)}, {vr(ACQ+2*j,2)}, {sr(sT1,2)}")
for j in range(8): cvt(120 + j, ACQ + 2*j, ACQ + 2*j + 1)
dsw("ds_write_b128", vQW, 120, 4, QF); dsw("ds_write_b128", vQW, 124, 4, QF + 2048)
for j in range(4): a(f"v_mov_b64 {vr(S1+8+2*j,2)}, 0")
for j in range(2): a(f"v_mov_b64 {vr(S1+2*j,2)}, {vr(NK+2*j,2)}")
stamp("q done")
def kvpoll():
    a("s_waitcnt vmcnt(0)"); poll(5, 4, sr(sT3), True, 1)
only_wave(0, kvpoll)
a("s_waitcnt lgkmcnt(0)")
hbar(0, 0)
stamp("B6")
PD = OPT["pd"]
dsr("ds_read_b128", Q0, 4, vQR, QF); dsr("ds_read_b128", Q1, 4, vQR, QF + 1024)
ring_fill([2])
a("s_waitcnt lgkmcnt(0)")
mfma32(C0, S1, Q0, None)
a("s_mov_b64 exec, 1"); a(f"ds_add_u32 v56, {vr(vONE)}"); a("s_mov_b64 exec, -1")
mfma32(S0, rK(0), Q0, C0)
mfma32(C1, S1, Q1, None)
a.label("L_fill")
ring_fill(range(3, PD))
stamp("loop start")
def E(S, x, y):
    for k in range(x, y + 1): a(f"v_exp_f32 {vr(S+k)}, {vr(S+k)}")
def PV(O, V, S): a(f"v_smfmac_f32_32x32x32_bf16 {vr(O,16)}, {vr(V,4)}, {vr(S,8)}, {vr(vIDX)}")
def iteration(i, last):
    ld = not last or i + PD < 8
    o = 2048 * ((i + PD) & 1)
    t = i + PD
    E(S0, 0, 1)
    PV(O1, rVb(i-1), S1 + 8)
    if ld:
        a(f"s_mov_b64 exec, {sr(sHALF,2)}")
        gload(rVa(t), vVA, o + 1024); gload(rVb(t), vVA, o + 1536)
        a("s_mov_b64 exec, -1")
    E(S0, 2, 5)
    mfma32(S1, rK(i), Q1, C1)
    if ld: gload(rK(t), vKA, o)
    else: a("s_nop 0")
    E(S0, 6, 9)
    PV(O0, rVa(i), S0)
    if o and ld: adv1()
    E(S0, 10, 15)
    E(S1, 0, 1)
    PV(O0, rVb(i), S0 + 8)
    if not (last and i == 7): a(f"s_waitcnt vmcnt({3 * (PD - 1) if ld else 18 - 3 * i})")
    if i == 7 and not last: a(f"s_add_u32 {sr(sPASS)}, {sr(sPASS)}, 1")
    E(S1, 2, 5)
    if not (last and i == 7):
        mfma32(S0, rK(i+1), Q0, C0)
        if i == 7: a(f"s_cmp_lg_u32 {sr(sPASS)}, 7")
        else: a("s_nop 0")
    E(S1, 6, 9)
    PV(O1, rVa(i), S1)
    if o and ld: adv2()
    if OPT["pt"] and i == 1: a("s_memrealtime s[92:93]")
    if OPT["pt"] and i == 3: a("s_waitcnt lgkmcnt(0)"); a(f"s_mov_b32 m0, {sr(sPASS)}"); a("v_writelane_b32 v15, s92, m0")
    E(S1, 10, 15)
a(".p2align 6")
a.label("L_loop")
for i in range(8): iteration(i, False)
a("s_cbranch_scc1 L_loop")
for i in range(8): iteration(i, True)
a("v_lshlrev_b32 v4, 4, v1")
a(f"v_rcp_f32 v6, {vr(O0+8)}")
PV(O1, rVb(7), S1 + 8)
stamp("loop end")
a(f"s_mov_b32 {sr(sT0)}, {f2h(2.0**40)}")
a(f"s_lshl2_add_u32 {sr(sT3)}, {sr(sHQ)}, {sr(sHH)}")
a(f"s_lshl_b32 {sr(sSX)}, {sr(sTB)}, 6")
a(f"s_add_u32 {sr(sSX)}, {sr(sSX)}, {sr(sT3)}")
a(f"s_lshl_b32 {sr(sSX)}, {sr(sSX)}, 10")
a(f"s_add_u32 {sr(sSX)}, {sr(sSX)}, {OF}")
a(f"s_add_u32 {sr(sSW)}, {sr(sSX)}, 0x8000")
for j in range(8): a(f"v_mul_f32 {vr(S1+j)}, v6, {vr(O0+j)}")
a(f"v_rcp_f32 v7, {vr(O1+8)}")
a(f"v_cmp_nle_f32 vcc, {vr(O0+8)}, {sr(sT0)}")
a(f"v_cmp_nle_f32 {sr(sT1,2)}, {vr(O1+8)}, {sr(sT0)}")
for j in range(4): cvt(S0 + j, S1 + 2*j, S1 + 2*j + 1)
a(f"s_or_b64 vcc, vcc, {sr(sT1,2)}")
a("s_cbranch_vccnz L_fallback")
a.label("L_attn_done")
bstore(S0, 4, 4, WS, sr(sSX), 0, "sc1")
for j in range(8): a(f"v_mul_f32 {vr(S1+j)}, v7, {vr(O1+j)}")
for j in range(4): cvt(S0 + 4 + j, S1 + 2*j, S1 + 2*j + 1)
bstore(S0 + 4, 4, 4, WS, sr(sSW), 0, "sc1")
a("v_lshlrev_b32 v6, 9, v1")
a(f"v_mov_b32 v7, {sr(sTAG)}")
a("s_barrier")
a(f"s_mov_b32 {sr(sT2)}, {sr(sT3)}")
mbox(MB_O, sTB, sT2, 10)
a("s_mov_b64 exec, 3")
a("s_waitcnt vmcnt(0)")
bstore(7, 1, 6, WS, sr(sT0), flags="sc1")
stamp("o pushed")
if OPT["pt"]:
    a("s_waitcnt lgkmcnt(0)"); a("s_mov_b32 s94, s88")
    for i in range(8): a(f"v_readlane_b32 s{76 + 2*i}, v15, {i}")
    a("s_mov_b32 s92, s94")
if OPT["enc"] or OPT["spin"]: a("s_barrier"); a("s_barrier")
if DIAG or OPT["enc"] or OPT["spin"]: finish(13 if DIAG == 1 else 11)
else: a("s_endpgm")
a.label("L_fallback")
a(f"s_cmp_lg_u32 {sr(sREDO)}, 0")
a("s_cbranch_scc1 L_attn_done")
a(f"s_mov_b32 {sr(sREDO)}, 1")
a(f"s_mov_b32 {sr(sOFF)}, 0")
a("v_mov_b32 v6, 0xff800000"); a("v_mov_b32 v7, v6")
for j in range(16): a(f"v_mov_b64 {vr(O0+2*j,2)}, 0")
a("s_waitcnt vmcnt(0)")
a.label("L_fb")
bload(rK(0), 4, vKA, WS, sr(sOFF), 0, "sc1")
a(f"s_add_u32 {sr(sOFF)}, {sr(sOFF)}, 0x800")
a("s_waitcnt vmcnt(0)")
mfma32(S0, rK(0), Q0, None); mfma32(S1, rK(0), Q1, None)
a("s_nop 10")
rowmax(S0, 6, True); rowmax(S1, 7, True)
a(f"s_cmp_lg_u32 {sr(sOFF)}, 0x20000")
a("s_cbranch_scc1 L_fb")
a(f"s_lshl_b32 {sr(sOFF)}, {sr(sTB)}, 12")
ring_fill(range(3))
a("v_mov_b32 v4, v6"); a("v_mov_b32 v11, v7"); a("s_nop 0")
a("v_permlane32_swap_b32 v6, v4"); a("v_permlane32_swap_b32 v7, v11")
a(f"v_max_f32 v6, v6, v4"); a("v_max_f32 v7, v7, v11")
for j in range(16): a(f"v_sub_f32 {vr(C0+j)}, 0, v6"); a(f"v_sub_f32 {vr(C1+j)}, 0, v7")
for j in range(4): a(f"v_mov_b64 {vr(S1+8+2*j,2)}, 0")
a(f"s_mov_b32 {sr(sPASS)}, 0")
a("s_waitcnt vmcnt(0)")
mfma32(S0, rK(0), Q0, C0)
a("s_nop 11")
a("s_branch L_fill")
a.label("L_end")
a("s_endpgm")

nbad = check(a.lines)
ref = open(f"cdna_kernels/{NAME}.s.ref").read().split("\n")
head = [l for l in ref if l.startswith(";") and "@launch" not in l and "Override launch" not in l and "grid=ceil" not in l]
out = "\n".join(head) + f"""
; Fused single launch: 256 workgroups (one per CU) x 8 waves; generated by gen/gen.py.
; @launch grid=(256,1,1) block=(512,1,1) lds={LDS_BYTES}
.amdgcn_target "amdgcn-amd-amdhsa--gfx950"
.text
.globl {NAME}_kernel
.p2align 8
.type {NAME}_kernel,@function
""" + a.text() + f""".section .rodata,"a"
.p2align 6
.amdhsa_kernel {NAME}_kernel
  .amdhsa_next_free_vgpr 256
  .amdhsa_next_free_sgpr 102
  .amdhsa_accum_offset 256
  .amdhsa_group_segment_fixed_size 0
  .amdhsa_kernarg_size 96
  .amdhsa_user_sgpr_count 2
  .amdhsa_user_sgpr_kernarg_segment_ptr 1
  .amdhsa_system_sgpr_workgroup_id_x 1
.end_amdhsa_kernel
"""
open(sys.argv[1], "w").write(out)
print("hazards:", nbad, "lines:", len(a.lines), "stamps:", nstamp[0])
```

```python
import sys, math, struct
from asmlib import Asm, vr, sr, check

NAME = "concat_heads__mha_block__ssm_conv_h3__prompt"
OPT = dict(wsoff=0, tlb=0, prew=0, late=0, hlate=0, kvat=2, pace=1, two=0, pd=5, ackat=14, pollat=27, p0p=0, hst=0, wqe=1, ysl=24, usl=0, wpace=3, gd=2, p0late=1, hs=4, pt=0, slp=16, onepoll=1, skip="", cp=0, sp=0, ep=3, hp=0, enc="", encw=0, first=0, gfl="sc1", pfl="sc1", vz=1, noload=0, nopv=0, noqk=0, noexp=0, c0=0, prio=1, diag=0, spin=0, spinat="end", clk=0)
for arg in sys.argv[2:]:
    k, v = arg.split("=")
    try: OPT[k] = int(v, 0)
    except ValueError: OPT[k] = v
DIAG = OPT["diag"]

KV, UT, YT, OF, MB = 0, 0x400000, 0x600000, 0x800000, 0xA00000
MB_U, MB_KV, MB_Y, MB_O = MB, MB + 0x8000, MB + 0x10000, MB + 0x18000
EP = MB + 0x20000
STAMP = 0xA30000
WS_SIZE = 0xA50000
K1 = 1024
SLOT = [0, 48 * K1, 96 * K1]
EX = 144 * K1
P0S = 8 * K1
HB = SLOT[2]; HSTR = 4512
UB = HB + 8 * HSTR; USTR = 4224
CNT = UB + 2 * USTR
QF = 0; RED = 140 * K1; KVL = SLOT[2]
YB = 128 * K1; MG = 140 * K1
LDS_BYTES = 160 * K1
assert CNT + 16 <= MG
X, W, WO, BQ, BK, BV, SH, HK, DD, OUT, WS = 4, 8, 12, 16, 20, 24, 28, 32, 36, 40, 44
sW, sHQ, sTB, sDB, sTBB, sROT, sTAG, sMASK = 48, 49, 50, 51, 52, 53, 54, 55
sA, sT0, sT1, sT2, sT3, sSX, sSW, sM0 = 56, 57, 58, 59, 60, 61, 62, 63
sOFF, sPASS, sREDO, sSPIN, sAND = 64, 65, 66, 67, 68
sHALF = 70
sCT, sTT, sHH, sHB = 3, 69, 72, 73
sST = 74
SPINMAX = 0x20000
f2h = lambda x: hex(struct.unpack("<I", struct.pack("<f", x))[0])

a = Asm()
nstamp = [0]
def stamp(name):
    if OPT["enc"] and name.replace(" ", "_") == OPT["enc"]: a("s_memrealtime s[94:95]")
    if OPT["enc"] and name == "end":
        L, L2 = newlab("spin"), newlab("spin")
        a("s_waitcnt lgkmcnt(0)")
        a("s_sub_u32 s94, s94, s100"); a("s_lshl_b32 s94, s94, 2")
        a("s_lshr_b32 s95, s2, 3"); a(f"s_lshl3_add_u32 s95, s95, {sr(sW)}"); a(f"s_cmp_eq_u32 s95, {96 + OPT['encw']}")
        a("s_cselect_b32 s94, s94, 0"); a("s_add_u32 s94, s94, 4000")
        a.label(L)
        a("s_memrealtime s[98:99]"); a("s_waitcnt lgkmcnt(0)")
        a("s_sub_u32 s98, s98, s100"); a("s_cmp_lt_u32 s98, s94"); a(f"s_cbranch_scc1 {L}")
    if OPT["spin"] and name.replace(" ", "_") == OPT["spinat"]:
        L = newlab("spin")
        if OPT["first"]:
            a("v_mov_b32 v6, 0"); a("global_load_dword v6, v6, s[96:97] sc1"); a("s_waitcnt vmcnt(0)")
            a("v_readfirstlane_b32 s100, v6"); a("s_nop 3"); a("s_not_b32 s100, s100")
        a.label(L)
        a("s_memrealtime s[98:99]"); a("s_waitcnt lgkmcnt(0)")
        a("s_sub_u32 s98, s98, s100"); a(f"s_cmp_lt_u32 s98, {OPT['spin'] * 100}"); a(f"s_cbranch_scc1 {L}")
    if DIAG == 2:
        if name in ("B1", "B5", "B6", "loop start", "loop end", "end"):
            i = nstamp[0]; nstamp[0] += 2
            a(f"s_memrealtime {sr(sST + 2 * i, 2)}")
            a(f"s_memtime {sr(sST + 2 * i + 2, 2)}")
    elif DIAG:
        i = nstamp[0]; nstamp[0] += 1
        assert sST + 2 * i + 1 <= 101, "too many stamps"
        a(f"{'s_memtime' if OPT['clk'] else 's_memrealtime'} {sr(sST + 2 * i, 2)} ; stamp {i} {name}")
def set_stamp(i): nstamp[0] = i
def xstamp(i, name):
    if DIAG == 1 and not OPT["pt"]:
        k = nstamp[0]; nstamp[0] = i; stamp(name); nstamp[0] = k
    elif OPT["enc"]: stamp(name)
lab = [0]
def newlab(p):
    lab[0] += 1; return f"L_{p}{lab[0]}"

def bload(dst, n, vaddr, srd, soff, off=0, flags=""):
    op = {1: "dword", 2: "dwordx2", 4: "dwordx4"}[n]
    a(f"buffer_load_{op} {vr(dst, n)}, {vr(vaddr)}, {sr(srd, 4)}, {soff} offen" + (f" offset:{off}" if off else "") + (" " + flags if flags else ""))
def bstore(src, n, vaddr, srd, soff, off=0, flags=""):
    op = {1: "dword", 2: "dwordx2", 4: "dwordx4"}[n]
    a(f"buffer_store_{op} {vr(src, n)}, {vr(vaddr)}, {sr(srd, 4)}, {soff} offen" + (f" offset:{off}" if off else "") + (" " + flags if flags else ""))
def dma(vaddr, srd, soff, flags=""):
    a(f"buffer_load_dwordx4 {vr(vaddr)}, {sr(srd, 4)}, {soff} offen" + (" " + flags if flags else "") + " lds")
def dsr(op, dst, n, vaddr, off=0):
    assert 0 <= off < 65536
    a(f"{op} {vr(dst, n)}, {vr(vaddr)}" + (f" offset:{off}" if off else ""))
def dsw(op, vaddr, src, n, off=0):
    assert 0 <= off < 65536
    a(f"{op} {vr(vaddr)}, {vr(src, n)}" + (f" offset:{off}" if off else ""))
def mfma32(d, A, B, c): a(f"v_mfma_f32_32x32x16_bf16 {vr(d,16)}, {vr(A,4)}, {vr(B,4)}, " + ("0" if c is None else vr(c, 16)))
def mfma16(d, A, B, c): a(f"v_mfma_f32_16x16x32_bf16 {vr(d,4)}, {vr(A,4)}, {vr(B,4)}, " + ("0" if c is None else vr(c, 4)))
def cvt(d, x, y): a(f"v_cvt_pk_bf16_f32 {vr(d)}, {vr(x)}, {vr(y)}")
def lo(d, s): a(f"v_lshlrev_b32 {vr(d)}, 16, {vr(s)}")
def hi(d, s): a(f"v_and_b32 {vr(d)}, {sr(sMASK)}, {vr(s)}")

bload_, mfma32_ = bload, mfma32
def poll(vaddr, vtmp, soff, first_issued=False, slp=None):
    L, Lo = newlab("poll"), newlab("pollok")
    a(f"s_mov_b32 {sr(sSPIN)}, 0")
    if first_issued:
        a(f"v_cmp_ne_u32 vcc, {sr(sTAG)}, {vr(vtmp)}")
        a(f"s_cbranch_vccz {Lo}")
    a.label(L)
    bload(vtmp, 1, vaddr, WS, soff, flags="sc1")
    a(f"s_add_u32 {sr(sSPIN)}, {sr(sSPIN)}, 1")
    a(f"s_cmp_ge_u32 {sr(sSPIN)}, {SPINMAX}")
    a("s_waitcnt vmcnt(0)")
    a(f"s_cbranch_scc1 {Lo}")
    a(f"v_cmp_ne_u32 vcc, {sr(sTAG)}, {vr(vtmp)}")
    a(f"s_cbranch_vccz {Lo}")
    a(f"s_sleep {OPT['slp'] if slp is None else slp}")
    a(f"s_branch {L}")
    a.label(Lo)

def push(nl, vt0, vt1, soff):
    a(f"s_mov_b64 exec, {hex((1 << nl) - 1)}")
    bstore(vt1, 1, vt0, WS, soff, flags="sc1")
    a("s_mov_b64 exec, -1")

def arrive(cntoff, last, vt0, vt1, pushfn):
    L = newlab("arr")
    a(f"v_mov_b32 {vr(vt0)}, {CNT + cntoff}")
    a(f"v_mov_b32 {vr(vt1)}, 1")
    a("s_mov_b64 exec, 1")
    a(f"ds_add_rtn_u32 {vr(vt1)}, {vr(vt0)}, {vr(vt1)}")
    a("s_waitcnt lgkmcnt(0)")
    a(f"v_cmp_ne_u32 vcc, {last}, {vr(vt1)}")
    a("s_mov_b64 exec, -1")
    a(f"s_cbranch_vccnz {L}")
    pushfn()
    a.label(L)


def hbar(extra=0, slp=None):
    L = newlab("hb")
    a(f"s_add_u32 {sr(sHB)}, {sr(sHB)}, {4 + extra}")
    a("s_mov_b64 exec, 1")
    a(f"ds_add_u32 {vr(vCNT)}, {vr(vONE)}")
    a.label(L)
    dsr("ds_read_b32", 6, 1, vCNT)
    a("s_waitcnt lgkmcnt(0)")
    a(f"v_cmp_gt_u32 vcc, {sr(sHB)}, v6")
    a(f"s_cbranch_vccz {L}x")
    if slp != 0: a(f"s_sleep {OPT['hs']}")
    a(f"s_branch {L}")
    a.label(L + "x")
    a("s_mov_b64 exec, -1")
def only_wave(w, fn):
    L = newlab("ow")
    a(f"s_cmp_lg_u32 {sr(sW)}, {w}"); a(f"s_cbranch_scc1 {L}")
    fn()
    a.label(L)
def hprio(p):
    a(f"s_setprio {p}")
vCNT, vONE = 2, 3


a.label(f"{NAME}_kernel")
a("s_cmp_ge_u32 s2, 0x100")
a("s_cbranch_scc1 L_end")
a(f"s_load_dwordx2 {sr(X,2)}, s[0:1], 0")
a(f"s_load_dwordx2 {sr(W,2)}, s[0:1], 8")
a(f"s_load_dwordx2 {sr(WS,2)}, s[0:1], 88")
if DIAG or OPT["spin"] or OPT["enc"]: a("s_memtime s[100:101]" if OPT["clk"] else "s_memrealtime s[100:101]")
a("s_getpc_b64 s[88:89]")
a.label("L_pc")
a(f"s_lshr_b32 {sr(sTBB)}, s2, 3")
a(f"s_and_b32 {sr(sDB)}, s2, 7")
a("v_lshrrev_b32 v6, 6, v0")
a(f"v_lshl_add_u32 v7, {sr(sTBB)}, 3, v6")
a("v_lshlrev_b32 v7, 7, v7")
a("v_min_u32 v7, L_end-L_pc, v7")
a("global_load_dword v4, v7, s[88:89]")
a(f"v_readfirstlane_b32 {sr(sW)}, v6")
a(f"s_and_b32 {sr(sT0)}, {sr(sTBB)}, 3")
a(f"s_lshr_b32 {sr(sT1)}, {sr(sTBB)}, 2")
a(f"s_add_u32 {sr(sROT)}, {sr(sT0)}, {sr(sT1)}")
a(f"s_and_b32 {sr(sHQ)}, {sr(sDB)}, 1")
a(f"s_lshl2_add_u32 {sr(sHQ)}, {sr(sHQ)}, {sr(sT0)}")
a(f"s_lshr_b32 {sr(sTB)}, {sr(sDB)}, 1")
a(f"s_lshl3_add_u32 {sr(sTB)}, {sr(sTB)}, {sr(sT1)}")
a(f"s_mov_b32 {sr(X+3)}, 0x20000")
a(f"s_and_b32 {sr(sHH)}, {sr(sW)}, 3")
a(f"s_cmp_lt_u32 {sr(sW)}, 4")
a("s_cbranch_scc1 L_main")

def mbox(base, grp, idx, sh):
    a(f"s_lshr_b32 {sr(sT0)}, {sr(idx)}, 3")
    a(f"s_mul_i32 {sr(sT0)}, {sr(sT0)}, 96")
    a(f"s_lshl2_add_u32 {sr(sT0)}, {sr(idx)}, {sr(sT0)}")
    a(f"s_lshl_b32 {sr(sT3)}, {sr(grp)}, {sh}")
    a(f"s_add_u32 {sr(sT3)}, {sr(sT3)}, {base}")
    a(f"s_add_u32 {sr(sT0)}, {sr(sT0)}, {sr(sT3)}")
def common_setup():
    a("v_and_b32 v1, 63, v0")
    if OPT["wsoff"]:
        a(f"s_add_u32 {sr(WS)}, {sr(WS)}, {hex(OPT['wsoff'])}"); a(f"s_addc_u32 {sr(WS+1)}, {sr(WS+1)}, 0")
    a(f"s_add_u32 s88, {sr(WS)}, {EP}")
    a(f"s_addc_u32 s89, {sr(WS+1)}, 0")
    a(f"s_load_dword {sr(sTAG)}, s[88:89], 0")
    a(f"s_mov_b32 {sr(WS+2)}, {hex(WS_SIZE)}"); a(f"s_mov_b32 {sr(WS+3)}, {sr(X+3)}")
    a(f"s_and_b32 {sr(sCT)}, {sr(sW)}, 1")
    a(f"s_bfe_u32 {sr(sTT)}, {sr(sW)}, 0x10001")
    if DIAG: a(f"s_mov_b64 {sr(sST,2)}, s[100:101]"); nstamp[0] = 1
def make_tag():
    a(f"s_mul_i32 {sr(sTAG)}, {sr(sTAG)}, 0x2c9277b5")
    a(f"s_add_u32 {sr(sTAG)}, {sr(sTAG)}, 0xac564b05")
def finish(n):
    a("s_mov_b64 exec, -1")
    set_stamp(n); stamp("end")
    if DIAG:
        a("s_waitcnt lgkmcnt(0)")
        for i in range(nstamp[0]): a(f"v_mov_b32 {vr(32+i)}, {sr(sST+2*i)}")
        a(f"s_lshl3_add_u32 {sr(sT0)}, s2, {sr(sW)}")
        a(f"s_lshl_b32 {sr(sT0)}, {sr(sT0)}, 6")
        a(f"s_add_u32 {sr(sT0)}, {sr(sT0)}, {STAMP}")
        a("v_mov_b32 v6, 0")
        a("s_mov_b64 exec, 1")
        for i in range(4): bstore(32 + 4*i, 4, 6, WS, sr(sT0), 16*i)
    a("s_endpgm")

vXS, vWS = 48, 49
a("v_and_b32 v0, 0xff, v0")
a(f"s_mov_b32 {sr(X+2)}, 0x200000")
a(f"s_mov_b32 {sr(W+2)}, 0x180000"); a(f"s_mov_b32 {sr(W+3)}, {sr(X+3)}")
a("v_lshrrev_b32 v6, 4, v0")
a("v_xor_b32 v32, v6, v0")
a("v_and_b32 v32, 15, v32")
a(f"v_lshl_add_u32 v6, {sr(sTB)}, 6, v6")
a("v_lshlrev_b32 v6, 10, v6")
a(f"v_lshl_add_u32 {vr(vXS)}, v32, 4, v6")
a("v_lshrrev_b32 v6, 2, v0")
a("v_and_b32 v6, 4, v6")
a("v_xor_b32 v6, v6, v0")
a("v_and_b32 v6, 7, v6")
a(f"v_lshl_add_u32 v6, {sr(sHQ)}, 3, v6")
a("v_lshrrev_b32 v32, 3, v0")
a("v_mul_u32_u24 v32, 0xc00, v32")
a(f"v_lshl_add_u32 {vr(vWS)}, v6, 4, v32")
a(f"s_lshl_b32 {sr(sM0)}, {sr(sHH)}, 10")
def chunk_offsets(c):
    if c: a(f"s_add_u32 {sr(sT0)}, {sr(sROT)}, {c}")
    a(f"s_and_b32 {sr(sT0)}, {sr(sT0) if c else sr(sROT)}, 3")
    a(f"s_mul_i32 {sr(sSW)}, {sr(sT0)}, {128*3072}")
def dma_run(vaddr, srd, sbase, off, step, ldsbase, n=4, wait=False):
    a(f"s_add_u32 m0, {sr(sM0)}, {ldsbase}")
    a(f"s_add_u32 {sr(sT2)}, {sr(sbase)}, {off}")
    if wait: a("s_waitcnt lgkmcnt(0)")
    for i in range(n):
        dma(vaddr, srd, sr(sT2))
        if i < n - 1:
            a("s_addk_i32 m0, 0x1000")
            a(f"s_add_u32 {sr(sT2)}, {sr(sT2)}, {step}")
def dma_half(j):
    if j >= 8: return dma_wq(j - 8)
    c, hf = j >> 1, j & 1
    s = SLOT[c % 3]
    if not hf:
        chunk_offsets(c)
        a(f"s_lshl_b32 {sr(sSX)}, {sr(sT0)}, 8")
        dma_run(vXS, X, sSX, 0, 16384, s, 4, c == 0)
    dma_run(vWS, W, sSW, 1024 + hf*64*3072, 32*3072, s + 16 * K1 + hf*8192, 2)
    dma_run(vWS, W, sSW, 2048 + hf*64*3072, 32*3072, s + 32 * K1 + hf*8192, 2)
HSZ = [8, 4] * 4 + [4, 4]
WQ = [EX, SLOT[1], SLOT[1] + 16 * K1, SLOT[1] + 32 * K1]
def dma_wq(c):
    chunk_offsets(c); dma_run(vWS, W, sSW, 0, 32*3072, WQ[c])
dma_half(0); dma_half(1)
a("s_load_dwordx8 s[80:87], s[0:1], 16")
a("s_load_dwordx8 s[92:99], s[0:1], 48")
common_setup()
UD = 16
vA, vH, vSH, vPW, vPR, vPG, vHS, vHP = 8, 9, 10, 11, 12, 13, 14, 15
vHW, vHA, vUA, vL16, vWO, vYS, vWR0, vWR1, vYR, vGO, vPO, vOO, vRW, vRR, vY8, vZ0 = range(32, 48)
vZ1, vFL, vTG, vMB = 50, 51, 52, 54
sUB, sCH = 64, 66
a("v_and_b32 v5, 31, v0")
a("v_lshlrev_b32 v5, 2, v5")
a(f"v_mov_b32 {vr(vCNT)}, {CNT}")
a(f"v_mov_b32 {vr(vONE)}, 1")
a(f"s_mov_b32 {sr(sHB)}, 0")
a(f"s_mov_b32 {sr(sMASK)}, 0xffff0000")
a("v_lshrrev_b32 v53, 5, v0")
a(f"v_lshl_add_u32 {vr(vA)}, v53, 13, v5")
a(f"v_lshl_add_u32 {vr(vGO)}, v53, 14, v5")
a(f"s_lshl_b32 {sr(sA)}, {sr(sTBB)}, 16")
a(f"s_lshl_b32 {sr(sT0)}, {sr(sDB)}, 7")
a(f"s_add_u32 {sr(sA)}, {sr(sA)}, {sr(sT0)}")
a(f"s_sub_u32 {sr(sT2)}, {sr(sA)}, 0xc00")
a(f"v_add_u32 {vr(vH)}, {sr(sT2)}, {vr(vA)}")
a(f"v_lshlrev_b32 {vr(vSH)}, 2, v5")
a("v_xor_b32 v6, 7, v53")
a("v_xor_b32 v6, v6, v0")
a("v_and_b32 v6, 7, v6")
a("v_lshlrev_b32 v6, 4, v6")
a(f"v_lshl_add_u32 {vr(vPW)}, v5, 5, v6")
a("v_lshrrev_b32 v7, 1, v0")
a("v_xor_b32 v7, v53, v7")
a("v_and_b32 v7, 7, v7")
a("v_lshlrev_b32 v7, 4, v7")
a("v_lshl_add_u32 v7, v5, 5, v7")
a(f"v_add_u32 {vr(vYR)}, {YB}, v7")
a("v_lshrrev_b32 v6, 3, v0")
a("v_xor_b32 v7, v6, v0")
a("v_and_b32 v7, 7, v7")
a("v_lshlrev_b32 v7, 4, v7")
a(f"v_lshl_add_u32 {vr(vPR)}, v6, 7, v7")
a("v_and_b32 v7, 7, v0")
a("v_lshlrev_b32 v7, 4, v7")
a(f"v_lshl_add_u32 {vr(vPG)}, v6, 13, v7")
a("v_lshrrev_b32 v7, 1, v6")
a("v_xor_b32 v7, v7, v0")
a("v_and_b32 v7, 7, v7")
a("v_lshlrev_b32 v7, 4, v7")
a(f"v_lshl_add_u32 {vr(vYS)}, v6, 13, v7")
a(f"v_lshlrev_b32 {vr(vHS)}, 4, v0")
a("v_cmp_eq_u32 vcc, 0, v0")
a(f"v_subrev_u32 v6, 8, {vr(vHS)}")
a("v_bfrev_b32 v7, 2")
a(f"v_cndmask_b32 {vr(vHP)}, v6, v7, vcc")
a(f"v_add_u32 {vr(vHW)}, {HB + 384}, {vr(vHS)}")
a("v_and_b32 v6, 3, v1")
a(f"v_mul_u32_u24 v6, {HSTR}, v6")
a("v_bfe_u32 v53, v1, 2, 2")
a("v_lshl_add_u32 v6, v53, 7, v6")
a("v_and_b32 v7, 0x30, v1")
a("v_add_u32 v6, v6, v7")
a(f"s_mul_i32 {sr(sT0)}, {sr(sCT)}, {4*HSTR}")
a(f"s_lshl_b32 {sr(sT1)}, {sr(sTT)}, 8")
a(f"s_add_u32 {sr(sT0)}, {sr(sT0)}, {sr(sT1)}")
a(f"s_add_u32 {sr(sT0)}, {sr(sT0)}, {HB}")
a(f"v_add_u32 {vr(vHA)}, {sr(sT0)}, v6")
a("v_and_b32 v6, 15, v1")
a("v_lshlrev_b32 v6, 3, v6")
a("v_sub_u32 v6, v7, v6")
a(f"s_mul_i32 {sr(sUB)}, {sr(sCT)}, {USTR}")
a(f"s_add_u32 {sr(sUB)}, {sr(sUB)}, {UB}")
a(f"s_add_u32 {sr(sT0)}, {sr(sUB)}, {sr(sT1)}")
a(f"s_add_u32 {sr(sT0)}, {sr(sT0)}, 120")
a(f"v_add_u32 {vr(vUA)}, {sr(sT0)}, v6")
a(f"v_lshlrev_b32 {vr(vL16)}, 4, v1")
a(f"v_lshlrev_b32 {vr(vY8)}, 3, v1")
a(f"v_lshlrev_b32 {vr(vFL)}, 9, v1")
a("v_and_b32 v6, 0x60, v5")
a("v_and_b32 v7, 28, v5")
a(f"v_lshl_add_u32 {vr(vMB)}, v6, 2, v7")
a(f"v_lshl_add_u32 {vr(vRW)}, {sr(sHH)}, 12, {vr(vL16)}")
a(f"v_xor_b32 {vr(vRR)}, 0x2000, {vr(vRW)}")
a(f"v_add_u32 {vr(vRW)}, {RED}, {vr(vRW)}")
a(f"v_add_u32 {vr(vRR)}, {RED}, {vr(vRR)}")
a("v_min_u32 v6, 23, v1")
a(f"s_mul_i32 {sr(sT0)}, {sr(sHH)}, {HSTR}")
a(f"s_add_u32 {sr(sT0)}, {sr(sT0)}, {HB}")
a(f"v_lshl_add_u32 {vr(vZ0)}, v6, 4, {sr(sT0)}")
a("v_and_b32 v6, 7, v1")
a(f"v_lshl_add_u32 {vr(vZ1)}, v6, 4, {sr(sUB)}")
a(f"s_lshl_b32 {sr(sT0)}, {sr(sDB)}, 5")
a(f"s_add_u32 {sr(sT0)}, {sr(sT0)}, {sr(sTBB)}")
a(f"s_lshl_b32 {sr(sCH)}, {sr(sT0)}, 13")
a("v_lshrrev_b32 v6, 4, v0")
a("v_lshlrev_b32 v7, 2, v6")
a("v_xor_b32 v7, v7, v0")
a("v_and_b32 v7, 15, v7")
a("v_lshlrev_b32 v7, 4, v7")
a("v_lshl_add_u32 v6, v6, 10, v7")
a(f"s_and_b32 {sr(sT0)}, {sr(sHQ)}, 3")
a(f"v_lshl_add_u32 {vr(vWO)}, {sr(sT0)}, 8, v6")
a("v_lshrrev_b32 v7, 5, v1")
a("v_lshl_add_u32 v7, v7, 2, v53")
a(f"v_xor_b32 v6, {sr(sHH)}, v53")
a("v_lshlrev_b32 v6, 6, v6")
a("v_lshl_add_u32 v6, v7, 8, v6")
a("v_and_b32 v7, 1, v1")
a("v_lshl_add_u32 v6, v7, 5, v6")
a("v_and_b32 v7, 16, v1")
a("v_add_u32 v6, v6, v7")
a("v_and_b32 v7, 2, v1")
a(f"v_lshl_add_u32 {vr(vWR0)}, v7, 2, v6")
a(f"v_add_u32 {vr(vWR1)}, 0x10000, {vr(vWR0)}")
a(f"v_and_b32 {vr(vPO)}, 28, v5")
a("v_and_b32 v6, 32, v1")
a(f"v_lshl_add_u32 {vr(vOO)}, v5, 9, v6")
CY, CB, CA = 64, 96, 56
for j in range(16): a(f"v_mov_b64 {vr(CY+2*j,2)}, 0")
a("s_waitcnt lgkmcnt(0)")
for r, p in ((WO, 80), (BQ, 82), (BK, 84), (BV, 86), (SH, 92), (HK, 94), (DD, 96), (OUT, 98)):
    a(f"s_mov_b64 {sr(r,2)}, {sr(p,2)}")
for r in (BK, BV, HK, BQ): a(f"s_mov_b64 {sr(r+2,2)}, {sr(X+2,2)}")
for r, n in ((SH, 4096), (DD, 1024), (WO, 0x80000), (OUT, 0x400000)):
    a(f"s_mov_b32 {sr(r+2)}, {hex(n)}"); a(f"s_mov_b32 {sr(r+3)}, {sr(X+3)}")
make_tag()
a(f"v_mov_b32 {vr(vTG)}, {sr(sTAG)}")
for j in range(8):
    dma_half(j + 2)
    a(f"s_waitcnt vmcnt({HSZ[j+1] + HSZ[j+2]})"); a("s_barrier")
    if j == 0: stamp("B1")
stamp("B4")
KR, VR, SR, DR = 128, 140, 148, 139
KP, WJ, VP, DP, UU, HR = 160, 184, 192, 208, 212, 232
def p0_loads():
    a(f"s_add_u32 {sr(sT2)}, {sr(sA)}, 0x1000")
    a(f"s_lshl_b32 {sr(sT0)}, {sr(sDB)}, 7")
    a(f"s_lshl_b32 {sr(sT1)}, {sr(sDB)}, 9")
    bload(SR, 4, vSH, SH, sr(sT1))
    for i in range(3): bload(KR + i, 1, vH, BK, 0, 1024 * i)
    for i in range(8): bload(KR + 3 + i, 1, vA, BK, sr(sA if i < 4 else sT2), 1024 * (i & 3))
    for i in range(8): bload(VR + i, 1, vA, BV, sr(sA if i < 4 else sT2), 1024 * (i & 3))
    bload(DR, 1, 5, DD, sr(sT0))
def h_loads():
    a(f"s_add_u32 {sr(sT2)}, {sr(sCH)}, 0x1000")
    for c in range(2):
        bload(HR + 6*c, 2, vHP, HK, sr(sT2 if c else sCH)); bload(HR + 6*c + 2, 4, vHS, HK, sr(sT2 if c else sCH))
NKV = 21
if OPT["kvat"] == 0: p0_loads()
if OPT["pace"]: a("s_waitcnt vmcnt(4)")
dma_wq(2)
if OPT["pace"]: a("s_waitcnt vmcnt(4)")
dma_wq(3)
if OPT["kvat"] == 1: p0_loads()
if OPT["two"]: a(f"s_waitcnt vmcnt({8 + (NKV if OPT['kvat'] < 2 else 0)})"); a("s_barrier")
mbox(MB_KV, sHQ, sTB, 11)
a(f"s_waitcnt vmcnt({NKV if OPT['kvat'] == 1 else 4 * OPT['late']})"); a("s_barrier")
only_wave(4, lambda: push(4, vFL, vTG, sr(sT0)))
stamp("B5")
if OPT["kvat"] == 2: p0_loads()
NH = 0 if OPT["hlate"] else 4
if not OPT["hlate"]: h_loads()
if OPT["late"]: a(f"s_waitcnt vmcnt({NKV + NH})"); a("s_barrier")
hprio(OPT["p0p"])
a(f"s_waitcnt vmcnt({9 + NH})")
if OPT["hst"]: xstamp(9, "k landed")
lo(WJ+0, SR); lo(WJ+1, SR+2); hi(WJ+2, SR); hi(WJ+3, SR+2)
lo(WJ+4, SR+1); lo(WJ+5, SR+3); hi(WJ+6, SR+1); hi(WJ+7, SR+3)
for i in range(11): lo(KP + 2*i, KR + i); hi(KP + 2*i + 1, KR + i)
for j in range(8): a(f"v_pk_mul_f32 {vr(UU+2*j,2)}, {vr(KP+2*j,2)}, {vr(WJ+6,2)}")
for t in (2, 1, 0):
    for j in range(8):
        a(f"v_pk_fma_f32 {vr(UU+2*j,2)}, {vr(KP+2*(j+3-t),2)}, {vr(WJ+2*t,2)}, {vr(UU+2*j,2)}")
if OPT["hst"]: xstamp(10, "conv4")
a(f"s_waitcnt vmcnt({NH})")
if OPT["hst"]: xstamp(11, "v landed")
for i in range(8): lo(VP + 2*i, VR + i); hi(VP + 2*i + 1, VR + i)
for j in range(8): a(f"v_pk_mul_f32 {vr(UU+2*j,2)}, {vr(UU+2*j,2)}, {vr(VP+2*j,2)}")
for c in range(2):
    for i in range(4): cvt(KP + 4*c + i, UU + 2*(7 - 2*i) + c, UU + 2*(6 - 2*i) + c)
dsw("ds_write_b128", vPW, KP, 4, P0S); dsw("ds_write_b128", vPW, KP + 4, 4, P0S + 4096)
lo(DP, DR); hi(DP + 1, DR)
for j in range(8): a(f"v_pk_mul_f32 {vr(UD+2*j,2)}, {vr(UU+2*j,2)}, {vr(DP,2)}")
HT = [VP, 168]
def h_shift():
    for c in range(2):
        D = [HR + 6*c + j for j in range(6)]
        for j in range(4): a(f"v_alignbit_b32 {vr(HT[c]+j)}, {vr(D[2+j])}, {vr(D[1+j])}, 16")
        for j in range(4): a(f"v_mov_b32 {vr(HT[c]+4+j)}, {vr(D[1+j])}")
        for j in range(4): a(f"v_alignbit_b32 {vr(HT[c]+8+j)}, {vr(D[1+j])}, {vr(D[j])}, 16")
if not OPT["hlate"]:
    a("s_waitcnt vmcnt(0)")
    if OPT["hst"]: xstamp(12, "h landed")
    h_shift()
stamp("p0 done")
hprio(OPT["sp"])
a(f"s_lshl_b32 {sr(sT0)}, {sr(sDB)}, 18")
a(f"s_sub_u32 {sr(sT1)}, 31, {sr(sTBB)}")
a(f"s_lshl_b32 {sr(sT1)}, {sr(sT1)}, 7")
a(f"s_add_u32 {sr(sT3)}, {sr(sT0)}, {sr(sT1)}")
a(f"s_add_u32 {sr(sT3)}, {sr(sT3)}, {UT}")
a(f"s_add_u32 {sr(sT2)}, {sr(sT3)}, 0x1000")
a("s_waitcnt lgkmcnt(0)")
hbar(4)
stamp("hb1")
dsr("ds_read_b128", KP, 4, vPR, P0S); dsr("ds_read_b128", KP + 4, 4, vPR, P0S + 4096)
a("s_waitcnt lgkmcnt(1)")
bstore(KP, 4, vPG, WS, sr(sT3), 0, "sc1")
a("s_waitcnt lgkmcnt(0)")
bstore(KP + 4, 4, vPG, WS, sr(sT2), 0, "sc1")
dsw("ds_write_b128", vZ0, CY, 4); dsw("ds_write_b128", vZ0, CY, 4, 4*HSTR); dsw("ds_write_b128", vZ1, CY, 4, 4096)
if OPT["hlate"]:
    h_loads(); hprio(OPT["ep"]); a("s_waitcnt vmcnt(0)"); h_shift(); hprio(OPT["sp"])
for c in range(2):
    dsw("ds_write_b128", vHW, HR + 6*c + 2, 4, (4*c + 3)*HSTR)
    dsw("ds_write_b128", vHW, HT[c], 4, (4*c + 2)*HSTR)
    dsw("ds_write_b128", vHW, HT[c]+4, 4, (4*c + 1)*HSTR)
    dsw("ds_write_b128", vHW, HT[c]+8, 4, (4*c)*HSTR)
mbox(MB_U, sDB, sTBB, 9)
a("s_waitcnt vmcnt(0) lgkmcnt(0)")
hbar()
only_wave(4, lambda: push(1, vFL, vTG, sr(sT0)))
stamp("u pushed")
def wo_stage(first, n):
    L = newlab("wo")
    a(f"s_and_b32 {sr(sT0)}, {sr(sTB)}, 7")
    a(f"s_mul_i32 {sr(sT0)}, {sr(sT0)}, {n // 8 * 4096}")
    a(f"s_add_u32 {sr(sT0)}, {sr(sT0)}, {first * 4096}")
    a(f"s_mov_b32 {sr(sT1)}, 0")
    a.label(L)
    a(f"s_add_u32 m0, {sr(sM0)}, {sr(sT0)}")
    a(f"s_lshl_b32 {sr(sSX)}, {sr(sT0)}, 2")
    if "wo" not in OPT["skip"]: dma(vWO, WO, sr(sSX))
    a(f"s_add_u32 {sr(sT0)}, {sr(sT0)}, 0x1000")
    a(f"s_cmp_eq_u32 {sr(sT0)}, {(first + n) * 4096}")
    a(f"s_cselect_b32 {sr(sT0)}, {first * 4096}, {sr(sT0)}")
    a(f"s_add_u32 {sr(sT1)}, {sr(sT1)}, 1")
    a(f"s_cmp_lg_u32 {sr(sT1)}, {n}")
    a(f"s_waitcnt vmcnt({OPT['wpace']})")
    a(f"s_cbranch_scc1 {L}")
wo_stage(0, 24)
if OPT["usl"]: a(f"s_sleep {OPT['usl']}")
a(f"s_lshl_b32 {sr(sT0)}, {sr(sCT)}, 12")
a(f"s_add_u32 {sr(sCH)}, {sr(sCH)}, {sr(sT0)}")
if OPT["onepoll"]: only_wave(4, lambda: poll(vMB, 6, sr(sT3))); hbar()
else: poll(vMB, 6, sr(sT3))
a(f"s_add_u32 {sr(sT2)}, {sr(sCH)}, {UT}")
a(f"s_mov_b32 m0, {sr(sUB)}")
a(f"s_mov_b32 {sr(sPASS)}, 0")
for i in range(4):
    a(f"buffer_load_dwordx4 {vr(vL16)}, {sr(WS,4)}, {sr(sT2)} offen offset:{1024*i} sc1 lds")
QG = 128
a(f"s_add_u32 {sr(sT2)}, {sr(sA)}, 0x1000")
hprio(OPT["cp"])
a("s_waitcnt vmcnt(0)")
stamp("u landed")
a.label("L_conv")
for i in range(8):
    dsr("ds_read_b64", CB + 4*i, 2, vUA, 3584 - 512*i); dsr("ds_read_b64", CB + 4*i + 2, 2, vUA, 3584 - 512*i + 8)
for ai in range(8):
    dsr("ds_read_b128", CA, 4, vHA, 512*ai)
    a("s_waitcnt lgkmcnt(0)")
    for bi in range(8 - ai if "conv" not in OPT["skip"] else 0): mfma16(CY + 4*(ai + bi), CA, CB + 4*bi, CY + 4*(ai + bi))
a(f"v_add_u32 {vr(vUA)}, 64, {vr(vUA)}")
a(f"v_add_u32 {vr(vHA)}, 64, {vr(vHA)}")
a(f"s_add_u32 {sr(sPASS)}, {sr(sPASS)}, 1")
a(f"s_cmp_lg_u32 {sr(sPASS)}, 4")
a("s_cbranch_scc1 L_conv")
stamp("conv done")
hprio(OPT["sp"])
a(f"s_lshl_b32 {sr(sT0)}, {sr(sTT)}, 11")
a(f"s_add_u32 {sr(sCH)}, {sr(sCH)}, {sr(sT0)}")
a(f"s_add_u32 {sr(sCH)}, {sr(sCH)}, {YT}")
a(f"s_cmp_lg_u32 {sr(sTT)}, 0")
a("s_cbranch_scc1 L_red1")
def reduce_store(keep, send):
    for j in range(4): dsw("ds_write_b128", vRW, send + 4*j, 4, 1024*j)
    a("s_waitcnt lgkmcnt(0)")
    hbar()
    for j in range(4): dsr("ds_read_b128", CB + 4*j, 4, vRR, 1024*j)
    hprio(OPT["ep"])
    a("s_waitcnt lgkmcnt(0)")
    for j in range(8): a(f"v_pk_add_f32 {vr(CB + 2*j, 2)}, {vr(CB + 2*j, 2)}, {vr(keep + 2*j, 2)}")
reduce_store(CY, CY + 16)
a("s_branch L_red2")
a.label("L_red1")
reduce_store(CY + 16, CY)
a.label("L_red2")
for j in range(8): cvt(CY + j, CB + 2*j, CB + 2*j + 1)
hprio(OPT["sp"])
for j in range(4): bstore(CY + 2*j, 2, vY8, WS, sr(sCH), 512*j, "sc1")
QG = 56
for i in range(8): bload(QG + i, 1, vA, BQ, sr(sA if i < 4 else sT2), 1024 * (i & 3))
mbox(MB_Y, sDB, sTBB, 9)
a("s_waitcnt vmcnt(8)")
hbar()
only_wave(4, lambda: push(1, vFL, vTG, sr(sT0)))
wo_stage(24, 8)
if OPT["ysl"]: a(f"s_sleep {OPT['ysl']}")
if OPT["onepoll"]: only_wave(4, lambda: poll(vMB, 6, sr(sT3))); hbar()
else: poll(vMB, 6, sr(sT3))
a(f"s_lshl_b32 {sr(sT0)}, {sr(sDB)}, 18")
a(f"s_lshl_b32 {sr(sT1)}, {sr(sTBB)}, 7")
a(f"s_add_u32 {sr(sT0)}, {sr(sT0)}, {sr(sT1)}")
a(f"s_add_u32 m0, {sr(sM0)}, {YB}")
a(f"s_add_u32 {sr(sT0)}, {sr(sT0)}, {YT}")
dma(vYS, WS, sr(sT0), "sc1")
a(f"s_add_u32 m0, {sr(sM0)}, {YB + 4096}")
a(f"s_add_u32 {sr(sT0)}, {sr(sT0)}, 0x1000")
dma(vYS, WS, sr(sT0), "sc1")
a(f"s_lshr_b32 {sr(sT0)}, {sr(sHQ)}, 2")
a(f"s_lshl1_add_u32 {sr(sSX)}, {sr(sTB)}, {sr(sT0)}")
a(f"s_lshl2_add_u32 {sr(sT0)}, {sr(sSX)}, {sr(sHH)}")
a(f"s_lshl_b32 {sr(sT0)}, {sr(sT0)}, 7")
a(f"s_add_u32 {sr(sT3)}, {sr(sT0)}, {MB_O}")
a(f"s_lshl_b32 {sr(sT0)}, {sr(sSX)}, 15")
a(f"s_lshl3_add_u32 {sr(sT0)}, {sr(sM0)}, {sr(sT0)}")
a(f"s_add_u32 {sr(sSW)}, {sr(sT0)}, {OF}")
a(f"s_lshl_b32 {sr(sSX)}, {sr(sSX)}, 16")
a(f"s_and_b32 {sr(sT1)}, {sr(sHQ)}, 3")
a(f"s_lshl2_add_u32 {sr(sT1)}, {sr(sT1)}, {sr(sHH)}")
a(f"s_lshl_b32 {sr(sT1)}, {sr(sT1)}, 6")
a(f"s_add_u32 {sr(sSX)}, {sr(sSX)}, {sr(sT1)}")
a(f"s_lshl_b32 {sr(sA)}, {sr(sTBB)}, 17")
a(f"s_lshl_b32 {sr(sT2)}, {sr(sDB)}, 7")
a(f"s_add_u32 {sr(sA)}, {sr(sA)}, {sr(sT2)}")
a(f"s_lshl_b32 m0, {sr(sM0)}, 3")
a(f"s_add_u32 {sr(sT2)}, {sr(sSW)}, 0x1000")
a("s_waitcnt vmcnt(0)")
if not OPT["hst"]: stamp("staged")
a("s_barrier")
GQ, GY, YY = 64, 80, 96
dsr("ds_read_b128", YY, 4, vYR); dsr("ds_read_b128", YY + 4, 4, vYR, 4096)
WOF = 128
gate = []
for j in range(8): gate += [lambda j=j: lo(GQ + 2*j, QG + j), lambda j=j: hi(GQ + 2*j + 1, QG + j)]
gate.append(lambda: a("s_waitcnt lgkmcnt(15)"))
for c in range(2):
    for i in range(4): gate += [lambda c=c, i=i: lo(GY + 4*i + c, YY + 4*c + i), lambda c=c, i=i: hi(GY + 4*i + 2 + c, YY + 4*c + i)]
for j in range(8): gate.append(lambda j=j: a(f"v_pk_add_f32 {vr(GY+2*j,2)}, {vr(GY+2*j,2)}, {vr(UD+2*j,2)}"))
for j in range(8): gate.append(lambda j=j: a(f"v_pk_mul_f32 {vr(GY+2*j,2)}, {vr(GY+2*j,2)}, {vr(GQ+2*j,2)}"))
for j in range(8): gate.append(lambda j=j: cvt(QG + j, GY + 2*j, GY + 2*j + 1))
for p in range(32):
    for part in range(2):
        dsr("ds_read_b64_tr_b16", WOF + 4*p + 2*part, 2, vWR0 + (p >> 4), ((p & 15) * 16 + 8*part) * 256)
        if gate: gate.pop(0)()
assert not gate
a("s_waitcnt lgkmcnt(0)")
if not OPT["hst"]: stamp("gate done")
a("s_barrier")
poll(vPO, 6, sr(sT3), False, 1)
if not OPT["hst"]: stamp("o flags")
for i in range(4):
    a(f"buffer_load_dwordx4 {vr(vL16)}, {sr(WS,4)}, {sr(sSW)} offen offset:{1024*i} sc1 lds")
a("s_addk_i32 m0, 0x1000")
a("s_nop 0")
for i in range(4):
    a(f"buffer_load_dwordx4 {vr(vL16)}, {sr(WS,4)}, {sr(sT2)} offen offset:{1024*i} sc1 lds")
gfl = OPT["gfl"].replace("_", " ")
a("s_waitcnt vmcnt(0)"); a("s_barrier")
if not OPT["hst"]: stamp("o landed")
OFR, PA = 64, 16
for p in range(12): dsr("ds_read_b128", OFR + 4*p, 4, vL16, 1024*p)
for p in range(32):
    a(f"s_waitcnt lgkmcnt({min(32, p + 12) - p - 1})")
    mfma32(PA, WOF + 4*p, OFR + 4*(p & 15), None if p == 0 else PA)
    if p + 12 < 32: dsr("ds_read_b128", OFR + 4*((p + 12) & 15), 4, vL16, 1024*(p + 12))
    if p & 1 and p < 16:
        j = p >> 1
        bstore(QG + j, 1, vGO, OUT, sr(sA), 3072 if j & 1 else 1024, gfl)
        if j & 1 and j < 7: a(f"s_add_u32 {sr(sA)}, {sr(sA)}, 0x1000")
a(f"s_or_b32 {sr(sT0)}, s2, {sr(sHH)}")
a("s_cbranch_scc1 L_noep")
a(f"v_mov_b32 v6, {EP}")
a("s_mov_b64 exec, 1")
bstore(vTG, 1, 6, WS, 0, flags="sc1")
a("s_mov_b64 exec, -1")
a.label("L_noep")
a("s_nop 9")
pfl = OPT["pfl"].replace("_", " ")
for j in range(4): cvt(8 + j, PA + 2*j, PA + 2*j + 1)
bstore(8, 4, vOO, OUT, sr(sSX), 0, pfl)
for j in range(4, 8): cvt(8 + j, PA + 2*j, PA + 2*j + 1)
bstore(12, 4, vOO, OUT, sr(sSX), 16, pfl)
if DIAG or OPT["enc"] or OPT["spin"]: finish(13 if DIAG == 1 else 11)
else: a("s_endpgm")

a.label("L_main")
a("s_waitcnt lgkmcnt(0)")
common_setup()
XF, WF, ACK, ACV, ACQ = 128, 96, 64, 80, 64
vXR, vWR, vXB, vWB, vXT = 50, 51, 52, 53, 54
O0, O1, S0, S1, C0, C1 = 16, 32, 48, 64, 80, 96
Q0, Q1 = 112, 116
vIDX, vKA, vVA = 8, 9, 10
vCON = 12
vKS, vVS, vKL, vVL, vQW, vQR = 2, 3, 5, 11, 14, 15
RING = 128
def rK(i): return RING + 12 * (i & 7)
def rVa(i): return RING + 12 * (i & 7) + 4
def rVb(i): return RING + 12 * (i & 7) + 8
a("v_bfe_u32 v6, v1, 2, 2")
a("v_lshrrev_b32 v32, 5, v1")
a("v_lshl_add_u32 v33, v32, 3, v6")
a("v_lshrrev_b32 v6, 1, v6")
a(f"v_xor_b32 v6, {sr(sCT)}, v6")
a("v_lshlrev_b32 v6, 6, v6")
a("v_lshl_add_u32 v33, v33, 7, v6")
a("v_and_b32 v6, 16, v1")
a("v_lshl_add_u32 v33, v6, 1, v33")
a("v_and_b32 v6, 3, v1")
a(f"v_lshl_add_u32 {vr(vWR)}, v6, 3, v33")
a("v_and_b32 v6, 31, v1")
a("v_xor_b32 v33, v32, v6")
a("v_and_b32 v33, 15, v33")
a("v_lshlrev_b32 v33, 4, v33")
a(f"v_lshl_add_u32 v6, {sr(sTT)}, 5, v6")
a(f"v_lshl_add_u32 {vr(vXR)}, v6, 8, v33")
a("v_and_b32 v33, 0x33, v1")
a("v_and_b32 v7, 4, v1")
a("v_lshl_or_b32 v33, v7, 1, v33")
a("v_and_b32 v7, 8, v1")
a("v_lshrrev_b32 v7, 1, v7")
a("v_or_b32 v6, v7, v33")
a(f"v_lshlrev_b32 {vr(vKS)}, 4, v6")
a("v_and_b32 v7, 15, v1")
a("v_lshlrev_b32 v7, 4, v7")
a("v_lshl_add_u32 v33, v32, 8, v7")
a("v_bfe_u32 v6, v1, 4, 1")
a(f"v_lshl_add_u32 {vr(vVS)}, v6, 17, v33")
a(f"s_lshl2_add_u32 {sr(sT0)}, {sr(sCT)}, {sr(sTT)}")
a(f"s_lshl_b32 {sr(sT1)}, {sr(sT0)}, 11")
a(f"s_add_u32 {sr(sT1)}, {sr(sT1)}, {KVL}")
a(f"v_add_u32 {vr(vKL)}, {sr(sT1)}, {vr(vKS)}")
a("v_lshl_add_u32 v6, v6, 12, v33")
a(f"v_add_u32 {vr(vVL)}, {sr(sT1)}, v6")
a(f"s_lshl_b32 {sr(sT0)}, {sr(sT0)}, 10")
a(f"v_lshl_add_u32 {vr(vQW)}, v1, 4, {sr(sT0)}")
a(f"s_lshl_b32 {sr(sT0)}, {sr(sHH)}, 11")
a(f"v_lshl_add_u32 {vr(vQR)}, v1, 4, {sr(sT0)}")
a(f"s_lshl2_add_u32 {sr(sT0)}, {sr(sHQ)}, {sr(sHH)}")
a(f"s_lshl_b32 {sr(sT0)}, {sr(sT0)}, 17")
a(f"v_lshl_add_u32 {vr(vKA)}, v1, 4, {sr(sT0)}")
a(f"v_add_u32 {vr(vVA)}, {sr(sT0)}, v33")
a(f"s_lshl_b32 {sr(sT0)}, {sr(sHH)}, 12")
a(f"s_add_u32 {sr(sT0)}, {sr(sT0)}, {KVL}")
a(f"v_lshl_add_u32 v48, v1, 4, {sr(sT0)}")
a(f"v_add_u32 v49, {sr(sT0)}, v33")
a(f"v_mov_b32 {vr(vIDX)}, 0xdddddddd")
a(f"s_mov_b32 {sr(sHALF)}, 0xffff"); a(f"s_mov_b32 {sr(sHALF+1)}, {sr(sHALF)}")
a(f"s_mov_b32 {sr(sAND)}, 0x1ffff")
a(f"s_mov_b32 {sr(sREDO)}, 0")
a("v_and_b32 v7, 0x1b, v1"); a("v_cmp_eq_u32 vcc, 16, v7")
a("v_mov_b32 v6, 0x3f803f80")
a(f"s_add_u32 {sr(sOFF)}, {sr(sTB)}, 1")
a(f"v_cndmask_b32 {vr(vCON)}, 0, v6, vcc")
a(f"v_cndmask_b32 {vr(vCON+1)}, 0, v6, vcc")
a(f"s_and_b32 {sr(sOFF)}, {sr(sOFF)}, 31")
a(f"s_lshl_b32 {sr(sOFF)}, {sr(sOFF)}, 12")
for j in range(8): a(f"v_mov_b64 {vr(O0+2*j,2)}, 0")
a(f"s_lshl1_add_u32 {sr(sT0)}, {sr(sHQ)}, {sr(sCT)}")
a(f"s_lshl_b32 {sr(sT0)}, {sr(sT0)}, 18")
a(f"s_lshl1_add_u32 {sr(sT1)}, {sr(sTB)}, {sr(sTT)}")
a(f"s_lshl_b32 {sr(sT1)}, {sr(sT1)}, 11")
a(f"s_add_u32 {sr(sT3)}, {sr(sT0)}, {sr(sT1)}")
a(f"s_add_u32 {sr(sT2)}, {sr(sT3)}, 0x20000")
if OPT["tlb"]:
    for r, o in ((14, sT3), (15, sT2)): a(f"s_load_dword s{r}, {sr(WS,2)}, {sr(o)}")
if OPT["prew"]:
    fl = {1: "sc1", 2: ""}[OPT["prew"]]
    bstore(O0, 4, vKS, WS, sr(sT3), 0, fl); bstore(O0, 4, vKS, WS, sr(sT2), 0, fl)
    bstore(O0, 4, vVS, WS, sr(sT3), 1024, fl); bstore(O0, 4, vVS, WS, sr(sT3), 1536, fl)
    a("s_waitcnt vmcnt(4) lgkmcnt(0)")
else: a("s_waitcnt vmcnt(0) lgkmcnt(0)")
make_tag()

def kv_gemm():
    def rd(i):
        c, s = i >> 3, i & 7
        if s == 0:
            a(f"v_add_u32 {vr(vXB)}, {SLOT[c % 3]}, {vr(vXR)}")
            a(f"v_add_u32 {vr(vWB)}, {SLOT[c % 3] + 16*K1}, {vr(vWR)}")
        f = WF + 8*(i & 3); t = vXT + (s & 1)
        if s: a(f"v_xor_b32 {vr(t)}, {32*s}, {vr(vXB)}")
        if s & 3 == 0:
            a("s_barrier")
            if i == 0: stamp("B1")
            if i == 28: stamp("B4")
        dsr("ds_read_b128", XF + 4*i, 4, t if s else vXB)
        dsr("ds_read_b64_tr_b16", f, 2, vWB, 2048*s); dsr("ds_read_b64_tr_b16", f + 2, 2, vWB, 2048*s + 512)
    def rdv(i):
        s = i & 7; f = WF + 8*(i & 3) + 4
        dsr("ds_read_b64_tr_b16", f, 2, vWB, 16*K1 + 2048*s); dsr("ds_read_b64_tr_b16", f + 2, 2, vWB, 16*K1 + 2048*s + 512)
    for lo_, hi_, D in ((0, 28, OPT["gd"]), (28, 32, 3)):
        for i in range(lo_, lo_ + D): rd(i); rdv(i)
        for i in range(lo_, hi_):
            x, f = XF + 4*i, WF + 8*(i & 3)
            n = 5 * (min(hi_, i + D) - i - 1)
            a(f"s_waitcnt lgkmcnt({n + 2})")
            mfma32(ACK, f, x, None if i == 0 else ACK)
            if i + D < hi_: rd(i + D); n += 3
            a(f"s_waitcnt lgkmcnt({n})")
            mfma32(ACV, x, f + 4, None if i == 0 else ACV)
            if i + D < hi_: rdv(i + D)
def q_gemm(side):
    def rd(i):
        c, s = i >> 3, i & 7
        if s == 0: a(f"v_add_u32 {vr(vXT + (c & 1))}, {WQ[c]}, {vr(vWR)}")
        if OPT["late"] and i == 32 - 8 * OPT["late"]: a("s_barrier")
        if i == 16 and OPT["two"]:
            a("s_waitcnt vmcnt(0)"); xstamp(10, "acked"); a("s_barrier"); stamp("B5")
        dsr("ds_read_b64_tr_b16", WF + 4*(i & 7), 2, vXT + (c & 1), 2048*s)
        dsr("ds_read_b64_tr_b16", WF + 4*(i & 7) + 2, 2, vXT + (c & 1), 2048*s + 512)
    D = 4
    for i in range(D): rd(i)
    for i in range(32):
        extra = sum(side[j][1] for j in range(max(0, i - D), i) if j in side)
        a(f"s_waitcnt lgkmcnt({2 * (min(32, i + D) - i - 1) + extra})")
        mfma32(ACQ, WF + 4*(i & 7), XF + 4*i, None if i == 0 else ACQ)
        if i + D < 32: rd(i + D)
        if i in side: side[i][0]()
def vconst(i): return [f"v_mov_b64 {vr(rVa(i) + 2*j, 2)}, {vr(vCON,2)}" for j in range(4)]
sGB = 12
def gload(dst, vaddr, off): a(f"global_load_dwordx4 {vr(dst,4)}, {vr(vaddr)}, {sr(sGB,2)} offset:{off} sc1")
def adv1():
    a(f"s_add_u32 {sr(sOFF)}, {sr(sOFF)}, 0x1000")
    a(f"s_and_b32 {sr(sOFF)}, {sr(sOFF)}, {sr(sAND)}")
def adv2():
    a(f"s_add_u32 {sr(sGB)}, {sr(WS)}, {sr(sOFF)}")
    a(f"s_addc_u32 {sr(sGB+1)}, {sr(WS+1)}, 0")
def ring_fill(tiles):
    for i in tiles:
        o = 2048 * (i & 1)
        if not o: adv2()
        gload(rK(i), vKA, o)
        a(f"s_mov_b64 exec, {sr(sHALF,2)}")
        gload(rVa(i), vVA, o + 1024); gload(rVb(i), vVA, o + 1536)
        a("s_mov_b64 exec, -1")
        if o: adv1()
def rowmax(S, m, acc):
    k = 0
    if not acc:
        a(f"v_max3_f32 {vr(m)}, {vr(S)}, {vr(S+1)}, {vr(S+2)}"); k = 3
    while k < 16:
        a(f"v_max3_f32 {vr(m)}, {vr(m)}, {vr(S+k)}, {vr(S+min(k+1,15))}"); k += 2

kv_gemm()
a(f"v_mov_b32 v56, {CNT}")
dsw("ds_write_b128", 56, O0, 4)
a("s_nop 7")
for j in range(8): cvt(32 + j, ACK + 2*j, ACK + 2*j + 1)
bstore(32, 4, vKS, WS, sr(sT3), 0, "sc1"); bstore(36, 4, vKS, WS, sr(sT2), 0, "sc1")
for j in range(8): cvt(40 + j, ACV + 2*j, ACV + 2*j + 1)
bstore(40, 4, vVS, WS, sr(sT3), 1024, "sc1"); bstore(44, 4, vVS, WS, sr(sT3), 1536, "sc1")
dsw("ds_write_b128", vKL, 32, 4); dsw("ds_write_b128", vKL, 36, 4, 4096)
dsw("ds_write_b128", vVL, 40, 4, 1024); dsw("ds_write_b128", vVL, 44, 4, 1536)
xstamp(9, "kv stored")
mbox(MB_KV, sHQ, sTB, 11)
a(f"s_lshr_b32 {sr(sT1)}, {sr(sTB)}, 3")
a(f"s_lshl_b32 {sr(sT1)}, {sr(sT1)}, 9")
a(f"s_add_u32 {sr(sT3)}, {sr(sT3)}, {sr(sT1)}")
if OPT["two"]: a("s_waitcnt lgkmcnt(0)"); a("s_barrier"); xstamp(11, "B5a")
else: a("s_waitcnt vmcnt(0) lgkmcnt(0)"); xstamp(10, "acked"); a("s_barrier"); stamp("B5")
NK = 80
def lines(ls): return (lambda: [a(l) for l in ls], 0)
def own_k():
    for i in range(2): dsr("ds_read_b128", rK(i), 4, 48, 2048*i)
def own_v(i):
    a(f"s_mov_b64 exec, {sr(sHALF,2)}")
    dsr("ds_read_b128", rVa(i), 4, 49, 2048*i + 1024); dsr("ds_read_b128", rVb(i), 4, 49, 2048*i + 1536)
    a("s_mov_b64 exec, -1")
def ack():
    a("s_waitcnt vmcnt(0)")
    xstamp(10, "acked")
    a("s_mov_b64 exec, 1"); a("ds_add_rtn_u32 v7, v56, v7 offset:8"); a("s_mov_b64 exec, -1")
def signal():
    L = newlab("sig")
    a("v_readfirstlane_b32 s14, v7"); a("s_cmp_lg_u32 s14, 3"); a(f"s_cbranch_scc1 {L}")
    push(4, 2, 3, sr(sT0))
    a.label(L)
A_ = OPT["ackat"]
side = {0: (lambda: (a("v_and_b32 v6, 0xfffffe00, v48"), dsr("ds_read_b128", NK, 4, 6)), 1),
        2: lines(["v_bfe_u32 v6, v1, 3, 2", "v_and_b32 v5, 7, v1", "v_lshlrev_b32 v5, 2, v5", "v_lshl_add_u32 v5, v6, 7, v5"]),
        6: lines([f"v_xor_b32 {vr(NK+j)}, 0x80008000, {vr(NK+j)}" for j in range(4)]),
        8: lines(vconst(0)), 9: lines(vconst(1)), 10: (own_k, 2), 11: (lambda: own_v(0), 2), 12: (lambda: own_v(1), 2),
        21: lines(vconst(2)), 22: lines(vconst(3)), 23: lines(vconst(4)), 24: lines(vconst(5)), 25: lines(vconst(6)), 26: lines(vconst(7)),
        min(OPT["pollat"], 31): (lambda: only_wave(0, lambda: bload(4, 1, 5, WS, sr(sT3), flags="sc1")), 0),
        28: lines([f"v_mov_b64 {vr(O1+2*j,2)}, 0" for j in range(4)]), 29: lines([f"v_mov_b64 {vr(O1+2*j,2)}, 0" for j in range(4, 8)])}
q_gemm(side)
if OPT["prio"]: a("s_setprio 1")
a(f"s_mov_b32 {sr(sT2)}, {f2h(0.25 * math.log2(math.e))}")
a(f"s_mov_b32 {sr(sT1)}, {sr(sT2)}")
a(f"v_mov_b32 {vr(vCNT)}, {CNT + 4}"); a(f"v_mov_b32 {vr(vONE)}, 1"); a(f"s_mov_b32 {sr(sHB)}, 0")
a(f"s_mov_b32 {sr(sPASS)}, 0")
a("s_nop 4")
for j in range(8): a(f"v_pk_mul_f32 {vr(ACQ+2*j,2)}, {vr(ACQ+2*j,2)}, {sr(sT1,2)}")
for j in range(8): cvt(120 + j, ACQ + 2*j, ACQ + 2*j + 1)
dsw("ds_write_b128", vQW, 120, 4, QF); dsw("ds_write_b128", vQW, 124, 4, QF + 2048)
for j in range(4): a(f"v_mov_b64 {vr(S1+8+2*j,2)}, 0")
for j in range(2): a(f"v_mov_b64 {vr(S1+2*j,2)}, {vr(NK+2*j,2)}")
stamp("q done")
def kvpoll():
    a("s_waitcnt vmcnt(0)"); poll(5, 4, sr(sT3), True, 1)
only_wave(0, kvpoll)
a("s_waitcnt lgkmcnt(0)")
hbar(0, 0)
stamp("B6")
PD = OPT["pd"]
dsr("ds_read_b128", Q0, 4, vQR, QF); dsr("ds_read_b128", Q1, 4, vQR, QF + 1024)
ring_fill([2])
a("s_waitcnt lgkmcnt(0)")
mfma32(C0, S1, Q0, None)
a("s_mov_b64 exec, 1"); a(f"ds_add_u32 v56, {vr(vONE)}"); a("s_mov_b64 exec, -1")
mfma32(S0, rK(0), Q0, C0)
mfma32(C1, S1, Q1, None)
a.label("L_fill")
ring_fill(range(3, PD))
stamp("loop start")
def E(S, x, y):
    for k in range(x, y + 1): a(f"v_exp_f32 {vr(S+k)}, {vr(S+k)}")
def PV(O, V, S): a(f"v_smfmac_f32_32x32x32_bf16 {vr(O,16)}, {vr(V,4)}, {vr(S,8)}, {vr(vIDX)}")
def iteration(i, last):
    ld = not last or i + PD < 8
    o = 2048 * ((i + PD) & 1)
    t = i + PD
    E(S0, 0, 1)
    PV(O1, rVb(i-1), S1 + 8)
    if ld:
        a(f"s_mov_b64 exec, {sr(sHALF,2)}")
        gload(rVa(t), vVA, o + 1024); gload(rVb(t), vVA, o + 1536)
        a("s_mov_b64 exec, -1")
    E(S0, 2, 5)
    mfma32(S1, rK(i), Q1, C1)
    if ld: gload(rK(t), vKA, o)
    else: a("s_nop 0")
    E(S0, 6, 9)
    PV(O0, rVa(i), S0)
    if o and ld: adv1()
    E(S0, 10, 15)
    E(S1, 0, 1)
    PV(O0, rVb(i), S0 + 8)
    if not (last and i == 7): a(f"s_waitcnt vmcnt({3 * (PD - 1) if ld else 18 - 3 * i})")
    if i == 7 and not last: a(f"s_add_u32 {sr(sPASS)}, {sr(sPASS)}, 1")
    E(S1, 2, 5)
    if not (last and i == 7):
        mfma32(S0, rK(i+1), Q0, C0)
        if i == 7: a(f"s_cmp_lg_u32 {sr(sPASS)}, 7")
        else: a("s_nop 0")
    E(S1, 6, 9)
    PV(O1, rVa(i), S1)
    if o and ld: adv2()
    if OPT["pt"] and i == 1: a("s_memrealtime s[92:93]")
    if OPT["pt"] and i == 3: a("s_waitcnt lgkmcnt(0)"); a(f"s_mov_b32 m0, {sr(sPASS)}"); a("v_writelane_b32 v15, s92, m0")
    E(S1, 10, 15)
a(".p2align 6")
a.label("L_loop")
for i in range(8): iteration(i, False)
a("s_cbranch_scc1 L_loop")
for i in range(8): iteration(i, True)
a("v_lshlrev_b32 v4, 4, v1")
a(f"v_rcp_f32 v6, {vr(O0+8)}")
PV(O1, rVb(7), S1 + 8)
stamp("loop end")
a(f"s_mov_b32 {sr(sT0)}, {f2h(2.0**40)}")
a(f"s_lshl2_add_u32 {sr(sT3)}, {sr(sHQ)}, {sr(sHH)}")
a(f"s_lshl_b32 {sr(sSX)}, {sr(sTB)}, 6")
a(f"s_add_u32 {sr(sSX)}, {sr(sSX)}, {sr(sT3)}")
a(f"s_lshl_b32 {sr(sSX)}, {sr(sSX)}, 10")
a(f"s_add_u32 {sr(sSX)}, {sr(sSX)}, {OF}")
a(f"s_add_u32 {sr(sSW)}, {sr(sSX)}, 0x8000")
for j in range(8): a(f"v_mul_f32 {vr(S1+j)}, v6, {vr(O0+j)}")
a(f"v_rcp_f32 v7, {vr(O1+8)}")
a(f"v_cmp_nle_f32 vcc, {vr(O0+8)}, {sr(sT0)}")
a(f"v_cmp_nle_f32 {sr(sT1,2)}, {vr(O1+8)}, {sr(sT0)}")
for j in range(4): cvt(S0 + j, S1 + 2*j, S1 + 2*j + 1)
a(f"s_or_b64 vcc, vcc, {sr(sT1,2)}")
a("s_cbranch_vccnz L_fallback")
a.label("L_attn_done")
bstore(S0, 4, 4, WS, sr(sSX), 0, "sc1")
for j in range(8): a(f"v_mul_f32 {vr(S1+j)}, v7, {vr(O1+j)}")
for j in range(4): cvt(S0 + 4 + j, S1 + 2*j, S1 + 2*j + 1)
bstore(S0 + 4, 4, 4, WS, sr(sSW), 0, "sc1")
a("v_lshlrev_b32 v6, 9, v1")
a(f"v_mov_b32 v7, {sr(sTAG)}")
a("s_barrier")
a(f"s_mov_b32 {sr(sT2)}, {sr(sT3)}")
mbox(MB_O, sTB, sT2, 10)
a("s_mov_b64 exec, 3")
a("s_waitcnt vmcnt(0)")
bstore(7, 1, 6, WS, sr(sT0), flags="sc1")
stamp("o pushed")
if OPT["pt"]:
    a("s_waitcnt lgkmcnt(0)"); a("s_mov_b32 s94, s88")
    for i in range(8): a(f"v_readlane_b32 s{76 + 2*i}, v15, {i}")
    a("s_mov_b32 s92, s94")
if OPT["enc"] or OPT["spin"]: a("s_barrier"); a("s_barrier")
if DIAG or OPT["enc"] or OPT["spin"]: finish(13 if DIAG == 1 else 11)
else: a("s_endpgm")
a.label("L_fallback")
a(f"s_cmp_lg_u32 {sr(sREDO)}, 0")
a("s_cbranch_scc1 L_attn_done")
a(f"s_mov_b32 {sr(sREDO)}, 1")
a(f"s_mov_b32 {sr(sOFF)}, 0")
a("v_mov_b32 v6, 0xff800000"); a("v_mov_b32 v7, v6")
for j in range(16): a(f"v_mov_b64 {vr(O0+2*j,2)}, 0")
a("s_waitcnt vmcnt(0)")
a.label("L_fb")
bload(rK(0), 4, vKA, WS, sr(sOFF), 0, "sc1")
a(f"s_add_u32 {sr(sOFF)}, {sr(sOFF)}, 0x800")
a("s_waitcnt vmcnt(0)")
mfma32(S0, rK(0), Q0, None); mfma32(S1, rK(0), Q1, None)
a("s_nop 10")
rowmax(S0, 6, True); rowmax(S1, 7, True)
a(f"s_cmp_lg_u32 {sr(sOFF)}, 0x20000")
a("s_cbranch_scc1 L_fb")
a(f"s_lshl_b32 {sr(sOFF)}, {sr(sTB)}, 12")
ring_fill(range(3))
a("v_mov_b32 v4, v6"); a("v_mov_b32 v11, v7"); a("s_nop 0")
a("v_permlane32_swap_b32 v6, v4"); a("v_permlane32_swap_b32 v7, v11")
a(f"v_max_f32 v6, v6, v4"); a("v_max_f32 v7, v7, v11")
for j in range(16): a(f"v_sub_f32 {vr(C0+j)}, 0, v6"); a(f"v_sub_f32 {vr(C1+j)}, 0, v7")
for j in range(4): a(f"v_mov_b64 {vr(S1+8+2*j,2)}, 0")
a(f"s_mov_b32 {sr(sPASS)}, 0")
a("s_waitcnt vmcnt(0)")
mfma32(S0, rK(0), Q0, C0)
a("s_nop 11")
a("s_branch L_fill")
a.label("L_end")
a("s_endpgm")

nbad = check(a.lines)
ref = open(f"cdna_kernels/{NAME}.s.ref").read().split("\n")
head = [l for l in ref if l.startswith(";") and "@launch" not in l and "Override launch" not in l and "grid=ceil" not in l]
out = "\n".join(head) + f"""
; Fused single launch: 256 workgroups (one per CU) x 8 waves; generated by gen/gen.py.
; @launch grid=(256,1,1) block=(512,1,1) lds={LDS_BYTES}
.amdgcn_target "amdgcn-amd-amdhsa--gfx950"
.text
.globl {NAME}_kernel
.p2align 8
.type {NAME}_kernel,@function
""" + a.text() + f""".section .rodata,"a"
.p2align 6
.amdhsa_kernel {NAME}_kernel
  .amdhsa_next_free_vgpr 256
  .amdhsa_next_free_sgpr 102
  .amdhsa_accum_offset 256
  .amdhsa_group_segment_fixed_size 0
  .amdhsa_kernarg_size 96
  .amdhsa_user_sgpr_count 2
  .amdhsa_user_sgpr_kernarg_segment_ptr 1
  .amdhsa_system_sgpr_workgroup_id_x 1
.end_amdhsa_kernel
"""
open(sys.argv[1], "w").write(out)
print("hazards:", nbad, "lines:", len(a.lines), "stamps:", nstamp[0])
```

```python
import sys, math, struct
from asmlib import Asm, vr, sr, check

NAME = "concat_heads__mha_block__ssm_conv_h3__prompt"
OPT = dict(kvfl="sc1", wsoff=0, tlb=0, prew=0, late=0, hlate=0, kvat=2, pace=1, two=0, pd=5, ackat=14, pollat=27, p0p=0, hst=0, wqe=1, ysl=24, usl=0, wpace=3, gd=2, p0late=1, hs=4, pt=0, slp=16, onepoll=1, skip="", cp=0, sp=0, ep=3, hp=0, enc="", encw=0, first=0, gfl="sc1", pfl="sc1", vz=1, noload=0, nopv=0, noqk=0, noexp=0, c0=0, prio=1, diag=0, spin=0, spinat="end", clk=0)
for arg in sys.argv[2:]:
    k, v = arg.split("=")
    try: OPT[k] = int(v, 0)
    except ValueError: OPT[k] = v
DIAG = OPT["diag"]

KV, UT, YT, OF, MB = 0, 0x400000, 0x600000, 0x800000, 0xA00000
MB_U, MB_KV, MB_Y, MB_O = MB, MB + 0x8000, MB + 0x10000, MB + 0x18000
EP = MB + 0x20000
STAMP = 0xA30000
WS_SIZE = 0xA50000
K1 = 1024
SLOT = [0, 48 * K1, 96 * K1]
EX = 144 * K1
P0S = 8 * K1
HB = SLOT[2]; HSTR = 4512
UB = HB + 8 * HSTR; USTR = 4224
CNT = UB + 2 * USTR
QF = 0; RED = 140 * K1; KVL = SLOT[2]
YB = 128 * K1; MG = 140 * K1
LDS_BYTES = 160 * K1
assert CNT + 16 <= MG
X, W, WO, BQ, BK, BV, SH, HK, DD, OUT, WS = 4, 8, 12, 16, 20, 24, 28, 32, 36, 40, 44
sW, sHQ, sTB, sDB, sTBB, sROT, sTAG, sMASK = 48, 49, 50, 51, 52, 53, 54, 55
sA, sT0, sT1, sT2, sT3, sSX, sSW, sM0 = 56, 57, 58, 59, 60, 61, 62, 63
sOFF, sPASS, sREDO, sSPIN, sAND = 64, 65, 66, 67, 68
sHALF = 70
sCT, sTT, sHH, sHB = 3, 69, 72, 73
sST = 74
SPINMAX = 0x20000
f2h = lambda x: hex(struct.unpack("<I", struct.pack("<f", x))[0])

a = Asm()
nstamp = [0]
def stamp(name):
    if OPT["enc"] and name.replace(" ", "_") == OPT["enc"]: a("s_memrealtime s[94:95]")
    if OPT["enc"] and name == "end":
        L, L2 = newlab("spin"), newlab("spin")
        a("s_waitcnt lgkmcnt(0)")
        a("s_sub_u32 s94, s94, s100"); a("s_lshl_b32 s94, s94, 2")
        a("s_lshr_b32 s95, s2, 3"); a(f"s_lshl3_add_u32 s95, s95, {sr(sW)}"); a(f"s_cmp_eq_u32 s95, {96 + OPT['encw']}")
        a("s_cselect_b32 s94, s94, 0"); a("s_add_u32 s94, s94, 4000")
        a.label(L)
        a("s_memrealtime s[98:99]"); a("s_waitcnt lgkmcnt(0)")
        a("s_sub_u32 s98, s98, s100"); a("s_cmp_lt_u32 s98, s94"); a(f"s_cbranch_scc1 {L}")
    if OPT["spin"] and name.replace(" ", "_") == OPT["spinat"]:
        L = newlab("spin")
        if OPT["first"]:
            a("v_mov_b32 v6, 0"); a("global_load_dword v6, v6, s[96:97] sc1"); a("s_waitcnt vmcnt(0)")
            a("v_readfirstlane_b32 s100, v6"); a("s_nop 3"); a("s_not_b32 s100, s100")
        a.label(L)
        a("s_memrealtime s[98:99]"); a("s_waitcnt lgkmcnt(0)")
        a("s_sub_u32 s98, s98, s100"); a(f"s_cmp_lt_u32 s98, {OPT['spin'] * 100}"); a(f"s_cbranch_scc1 {L}")
    if DIAG == 2:
        if name in ("B1", "B5", "B6", "loop start", "loop end", "end"):
            i = nstamp[0]; nstamp[0] += 2
            a(f"s_memrealtime {sr(sST + 2 * i, 2)}")
            a(f"s_memtime {sr(sST + 2 * i + 2, 2)}")
    elif DIAG:
        i = nstamp[0]; nstamp[0] += 1
        assert sST + 2 * i + 1 <= 101, "too many stamps"
        a(f"{'s_memtime' if OPT['clk'] else 's_memrealtime'} {sr(sST + 2 * i, 2)} ; stamp {i} {name}")
def set_stamp(i): nstamp[0] = i
def xstamp(i, name):
    if DIAG == 1 and not OPT["pt"]:
        k = nstamp[0]; nstamp[0] = i; stamp(name); nstamp[0] = k
    elif OPT["enc"]: stamp(name)
lab = [0]
def newlab(p):
    lab[0] += 1; return f"L_{p}{lab[0]}"

def bload(dst, n, vaddr, srd, soff, off=0, flags=""):
    op = {1: "dword", 2: "dwordx2", 4: "dwordx4"}[n]
    a(f"buffer_load_{op} {vr(dst, n)}, {vr(vaddr)}, {sr(srd, 4)}, {soff} offen" + (f" offset:{off}" if off else "") + (" " + flags if flags else ""))
def bstore(src, n, vaddr, srd, soff, off=0, flags=""):
    op = {1: "dword", 2: "dwordx2", 4: "dwordx4"}[n]
    a(f"buffer_store_{op} {vr(src, n)}, {vr(vaddr)}, {sr(srd, 4)}, {soff} offen" + (f" offset:{off}" if off else "") + (" " + flags if flags else ""))
def dma(vaddr, srd, soff, flags=""):
    a(f"buffer_load_dwordx4 {vr(vaddr)}, {sr(srd, 4)}, {soff} offen" + (" " + flags if flags else "") + " lds")
def dsr(op, dst, n, vaddr, off=0):
    assert 0 <= off < 65536
    a(f"{op} {vr(dst, n)}, {vr(vaddr)}" + (f" offset:{off}" if off else ""))
def dsw(op, vaddr, src, n, off=0):
    assert 0 <= off < 65536
    a(f"{op} {vr(vaddr)}, {vr(src, n)}" + (f" offset:{off}" if off else ""))
def mfma32(d, A, B, c): a(f"v_mfma_f32_32x32x16_bf16 {vr(d,16)}, {vr(A,4)}, {vr(B,4)}, " + ("0" if c is None else vr(c, 16)))
def mfma16(d, A, B, c): a(f"v_mfma_f32_16x16x32_bf16 {vr(d,4)}, {vr(A,4)}, {vr(B,4)}, " + ("0" if c is None else vr(c, 4)))
def cvt(d, x, y): a(f"v_cvt_pk_bf16_f32 {vr(d)}, {vr(x)}, {vr(y)}")
def lo(d, s): a(f"v_lshlrev_b32 {vr(d)}, 16, {vr(s)}")
def hi(d, s): a(f"v_and_b32 {vr(d)}, {sr(sMASK)}, {vr(s)}")

bload_, mfma32_ = bload, mfma32
def poll(vaddr, vtmp, soff, first_issued=False, slp=None):
    L, Lo = newlab("poll"), newlab("pollok")
    a(f"s_mov_b32 {sr(sSPIN)}, 0")
    if first_issued:
        a(f"v_cmp_ne_u32 vcc, {sr(sTAG)}, {vr(vtmp)}")
        a(f"s_cbranch_vccz {Lo}")
    a.label(L)
    bload(vtmp, 1, vaddr, WS, soff, flags="sc1")
    a(f"s_add_u32 {sr(sSPIN)}, {sr(sSPIN)}, 1")
    a(f"s_cmp_ge_u32 {sr(sSPIN)}, {SPINMAX}")
    a("s_waitcnt vmcnt(0)")
    a(f"s_cbranch_scc1 {Lo}")
    a(f"v_cmp_ne_u32 vcc, {sr(sTAG)}, {vr(vtmp)}")
    a(f"s_cbranch_vccz {Lo}")
    a(f"s_sleep {OPT['slp'] if slp is None else slp}")
    a(f"s_branch {L}")
    a.label(Lo)

def push(nl, vt0, vt1, soff):
    a(f"s_mov_b64 exec, {hex((1 << nl) - 1)}")
    bstore(vt1, 1, vt0, WS, soff, flags="sc1")
    a("s_mov_b64 exec, -1")

def arrive(cntoff, last, vt0, vt1, pushfn):
    L = newlab("arr")
    a(f"v_mov_b32 {vr(vt0)}, {CNT + cntoff}")
    a(f"v_mov_b32 {vr(vt1)}, 1")
    a("s_mov_b64 exec, 1")
    a(f"ds_add_rtn_u32 {vr(vt1)}, {vr(vt0)}, {vr(vt1)}")
    a("s_waitcnt lgkmcnt(0)")
    a(f"v_cmp_ne_u32 vcc, {last}, {vr(vt1)}")
    a("s_mov_b64 exec, -1")
    a(f"s_cbranch_vccnz {L}")
    pushfn()
    a.label(L)


def hbar(extra=0, slp=None):
    L = newlab("hb")
    a(f"s_add_u32 {sr(sHB)}, {sr(sHB)}, {4 + extra}")
    a("s_mov_b64 exec, 1")
    a(f"ds_add_u32 {vr(vCNT)}, {vr(vONE)}")
    a.label(L)
    dsr("ds_read_b32", 6, 1, vCNT)
    a("s_waitcnt lgkmcnt(0)")
    a(f"v_cmp_gt_u32 vcc, {sr(sHB)}, v6")
    a(f"s_cbranch_vccz {L}x")
    if slp != 0: a(f"s_sleep {OPT['hs']}")
    a(f"s_branch {L}")
    a.label(L + "x")
    a("s_mov_b64 exec, -1")
def only_wave(w, fn):
    L = newlab("ow")
    a(f"s_cmp_lg_u32 {sr(sW)}, {w}"); a(f"s_cbranch_scc1 {L}")
    fn()
    a.label(L)
def hprio(p):
    a(f"s_setprio {p}")
vCNT, vONE = 2, 3


a.label(f"{NAME}_kernel")
a("s_cmp_ge_u32 s2, 0x100")
a("s_cbranch_scc1 L_end")
a(f"s_load_dwordx2 {sr(X,2)}, s[0:1], 0")
a(f"s_load_dwordx2 {sr(W,2)}, s[0:1], 8")
a(f"s_load_dwordx2 {sr(WS,2)}, s[0:1], 88")
if DIAG or OPT["spin"] or OPT["enc"]: a("s_memtime s[100:101]" if OPT["clk"] else "s_memrealtime s[100:101]")
a("s_getpc_b64 s[88:89]")
a.label("L_pc")
a(f"s_lshr_b32 {sr(sTBB)}, s2, 3")
a(f"s_and_b32 {sr(sDB)}, s2, 7")
a("v_lshrrev_b32 v6, 6, v0")
a(f"v_lshl_add_u32 v7, {sr(sTBB)}, 3, v6")
a("v_lshlrev_b32 v7, 7, v7")
a("v_min_u32 v7, L_end-L_pc, v7")
a("global_load_dword v4, v7, s[88:89]")
a(f"v_readfirstlane_b32 {sr(sW)}, v6")
a(f"s_and_b32 {sr(sT0)}, {sr(sTBB)}, 3")
a(f"s_lshr_b32 {sr(sT1)}, {sr(sTBB)}, 2")
a(f"s_add_u32 {sr(sROT)}, {sr(sT0)}, {sr(sT1)}")
a(f"s_and_b32 {sr(sHQ)}, {sr(sDB)}, 1")
a(f"s_lshl2_add_u32 {sr(sHQ)}, {sr(sHQ)}, {sr(sT0)}")
a(f"s_lshr_b32 {sr(sTB)}, {sr(sDB)}, 1")
a(f"s_lshl3_add_u32 {sr(sTB)}, {sr(sTB)}, {sr(sT1)}")
a(f"s_mov_b32 {sr(X+3)}, 0x20000")
a(f"s_and_b32 {sr(sHH)}, {sr(sW)}, 3")
a(f"s_cmp_lt_u32 {sr(sW)}, 4")
a("s_cbranch_scc1 L_main")

def mbox(base, grp, idx, sh):
    a(f"s_lshr_b32 {sr(sT0)}, {sr(idx)}, 3")
    a(f"s_mul_i32 {sr(sT0)}, {sr(sT0)}, 96")
    a(f"s_lshl2_add_u32 {sr(sT0)}, {sr(idx)}, {sr(sT0)}")
    a(f"s_lshl_b32 {sr(sT3)}, {sr(grp)}, {sh}")
    a(f"s_add_u32 {sr(sT3)}, {sr(sT3)}, {base}")
    a(f"s_add_u32 {sr(sT0)}, {sr(sT0)}, {sr(sT3)}")
def common_setup():
    a("v_and_b32 v1, 63, v0")
    if OPT["wsoff"]:
        a(f"s_add_u32 {sr(WS)}, {sr(WS)}, {hex(OPT['wsoff'])}"); a(f"s_addc_u32 {sr(WS+1)}, {sr(WS+1)}, 0")
    a(f"s_add_u32 s88, {sr(WS)}, {EP}")
    a(f"s_addc_u32 s89, {sr(WS+1)}, 0")
    a(f"s_load_dword {sr(sTAG)}, s[88:89], 0")
    a(f"s_mov_b32 {sr(WS+2)}, {hex(WS_SIZE)}"); a(f"s_mov_b32 {sr(WS+3)}, {sr(X+3)}")
    a(f"s_and_b32 {sr(sCT)}, {sr(sW)}, 1")
    a(f"s_bfe_u32 {sr(sTT)}, {sr(sW)}, 0x10001")
    if DIAG: a(f"s_mov_b64 {sr(sST,2)}, s[100:101]"); nstamp[0] = 1
def make_tag():
    a(f"s_mul_i32 {sr(sTAG)}, {sr(sTAG)}, 0x2c9277b5")
    a(f"s_add_u32 {sr(sTAG)}, {sr(sTAG)}, 0xac564b05")
def finish(n):
    a("s_mov_b64 exec, -1")
    set_stamp(n); stamp("end")
    if DIAG:
        a("s_waitcnt lgkmcnt(0)")
        for i in range(nstamp[0]): a(f"v_mov_b32 {vr(32+i)}, {sr(sST+2*i)}")
        a(f"s_lshl3_add_u32 {sr(sT0)}, s2, {sr(sW)}")
        a(f"s_lshl_b32 {sr(sT0)}, {sr(sT0)}, 6")
        a(f"s_add_u32 {sr(sT0)}, {sr(sT0)}, {STAMP}")
        a("v_mov_b32 v6, 0")
        a("s_mov_b64 exec, 1")
        for i in range(4): bstore(32 + 4*i, 4, 6, WS, sr(sT0), 16*i)
    a("s_endpgm")

vXS, vWS = 48, 49
a("v_and_b32 v0, 0xff, v0")
a(f"s_mov_b32 {sr(X+2)}, 0x200000")
a(f"s_mov_b32 {sr(W+2)}, 0x180000"); a(f"s_mov_b32 {sr(W+3)}, {sr(X+3)}")
a("v_lshrrev_b32 v6, 4, v0")
a("v_xor_b32 v32, v6, v0")
a("v_and_b32 v32, 15, v32")
a(f"v_lshl_add_u32 v6, {sr(sTB)}, 6, v6")
a("v_lshlrev_b32 v6, 10, v6")
a(f"v_lshl_add_u32 {vr(vXS)}, v32, 4, v6")
a("v_lshrrev_b32 v6, 2, v0")
a("v_and_b32 v6, 4, v6")
a("v_xor_b32 v6, v6, v0")
a("v_and_b32 v6, 7, v6")
a(f"v_lshl_add_u32 v6, {sr(sHQ)}, 3, v6")
a("v_lshrrev_b32 v32, 3, v0")
a("v_mul_u32_u24 v32, 0xc00, v32")
a(f"v_lshl_add_u32 {vr(vWS)}, v6, 4, v32")
a(f"s_lshl_b32 {sr(sM0)}, {sr(sHH)}, 10")
def chunk_offsets(c):
    if c: a(f"s_add_u32 {sr(sT0)}, {sr(sROT)}, {c}")
    a(f"s_and_b32 {sr(sT0)}, {sr(sT0) if c else sr(sROT)}, 3")
    a(f"s_mul_i32 {sr(sSW)}, {sr(sT0)}, {128*3072}")
def dma_run(vaddr, srd, sbase, off, step, ldsbase, n=4, wait=False):
    a(f"s_add_u32 m0, {sr(sM0)}, {ldsbase}")
    a(f"s_add_u32 {sr(sT2)}, {sr(sbase)}, {off}")
    if wait: a("s_waitcnt lgkmcnt(0)")
    for i in range(n):
        dma(vaddr, srd, sr(sT2))
        if i < n - 1:
            a("s_addk_i32 m0, 0x1000")
            a(f"s_add_u32 {sr(sT2)}, {sr(sT2)}, {step}")
def dma_half(j):
    if j >= 8: return dma_wq(j - 8)
    c, hf = j >> 1, j & 1
    s = SLOT[c % 3]
    if not hf:
        chunk_offsets(c)
        a(f"s_lshl_b32 {sr(sSX)}, {sr(sT0)}, 8")
        dma_run(vXS, X, sSX, 0, 16384, s, 4, c == 0)
    dma_run(vWS, W, sSW, 1024 + hf*64*3072, 32*3072, s + 16 * K1 + hf*8192, 2)
    dma_run(vWS, W, sSW, 2048 + hf*64*3072, 32*3072, s + 32 * K1 + hf*8192, 2)
HSZ = [8, 4] * 4 + [4, 4]
WQ = [EX, SLOT[1], SLOT[1] + 16 * K1, SLOT[1] + 32 * K1]
def dma_wq(c):
    chunk_offsets(c); dma_run(vWS, W, sSW, 0, 32*3072, WQ[c])
dma_half(0); dma_half(1)
a("s_load_dwordx8 s[80:87], s[0:1], 16")
a("s_load_dwordx8 s[92:99], s[0:1], 48")
common_setup()
UD = 16
vA, vH, vSH, vPW, vPR, vPG, vHS, vHP = 8, 9, 10, 11, 12, 13, 14, 15
vHW, vHA, vUA, vL16, vWO, vYS, vWR0, vWR1, vYR, vGO, vPO, vOO, vRW, vRR, vY8, vZ0 = range(32, 48)
vZ1, vFL, vTG, vMB = 50, 51, 52, 54
sUB, sCH = 64, 66
a("v_and_b32 v5, 31, v0")
a("v_lshlrev_b32 v5, 2, v5")
a(f"v_mov_b32 {vr(vCNT)}, {CNT}")
a(f"v_mov_b32 {vr(vONE)}, 1")
a(f"s_mov_b32 {sr(sHB)}, 0")
a(f"s_mov_b32 {sr(sMASK)}, 0xffff0000")
a("v_lshrrev_b32 v53, 5, v0")
a(f"v_lshl_add_u32 {vr(vA)}, v53, 13, v5")
a(f"v_lshl_add_u32 {vr(vGO)}, v53, 14, v5")
a(f"s_lshl_b32 {sr(sA)}, {sr(sTBB)}, 16")
a(f"s_lshl_b32 {sr(sT0)}, {sr(sDB)}, 7")
a(f"s_add_u32 {sr(sA)}, {sr(sA)}, {sr(sT0)}")
a(f"s_sub_u32 {sr(sT2)}, {sr(sA)}, 0xc00")
a(f"v_add_u32 {vr(vH)}, {sr(sT2)}, {vr(vA)}")
a(f"v_lshlrev_b32 {vr(vSH)}, 2, v5")
a("v_xor_b32 v6, 7, v53")
a("v_xor_b32 v6, v6, v0")
a("v_and_b32 v6, 7, v6")
a("v_lshlrev_b32 v6, 4, v6")
a(f"v_lshl_add_u32 {vr(vPW)}, v5, 5, v6")
a("v_lshrrev_b32 v7, 1, v0")
a("v_xor_b32 v7, v53, v7")
a("v_and_b32 v7, 7, v7")
a("v_lshlrev_b32 v7, 4, v7")
a("v_lshl_add_u32 v7, v5, 5, v7")
a(f"v_add_u32 {vr(vYR)}, {YB}, v7")
a("v_lshrrev_b32 v6, 3, v0")
a("v_xor_b32 v7, v6, v0")
a("v_and_b32 v7, 7, v7")
a("v_lshlrev_b32 v7, 4, v7")
a(f"v_lshl_add_u32 {vr(vPR)}, v6, 7, v7")
a("v_and_b32 v7, 7, v0")
a("v_lshlrev_b32 v7, 4, v7")
a(f"v_lshl_add_u32 {vr(vPG)}, v6, 13, v7")
a("v_lshrrev_b32 v7, 1, v6")
a("v_xor_b32 v7, v7, v0")
a("v_and_b32 v7, 7, v7")
a("v_lshlrev_b32 v7, 4, v7")
a(f"v_lshl_add_u32 {vr(vYS)}, v6, 13, v7")
a(f"v_lshlrev_b32 {vr(vHS)}, 4, v0")
a("v_cmp_eq_u32 vcc, 0, v0")
a(f"v_subrev_u32 v6, 8, {vr(vHS)}")
a("v_bfrev_b32 v7, 2")
a(f"v_cndmask_b32 {vr(vHP)}, v6, v7, vcc")
a(f"v_add_u32 {vr(vHW)}, {HB + 384}, {vr(vHS)}")
a("v_and_b32 v6, 3, v1")
a(f"v_mul_u32_u24 v6, {HSTR}, v6")
a("v_bfe_u32 v53, v1, 2, 2")
a("v_lshl_add_u32 v6, v53, 7, v6")
a("v_and_b32 v7, 0x30, v1")
a("v_add_u32 v6, v6, v7")
a(f"s_mul_i32 {sr(sT0)}, {sr(sCT)}, {4*HSTR}")
a(f"s_lshl_b32 {sr(sT1)}, {sr(sTT)}, 8")
a(f"s_add_u32 {sr(sT0)}, {sr(sT0)}, {sr(sT1)}")
a(f"s_add_u32 {sr(sT0)}, {sr(sT0)}, {HB}")
a(f"v_add_u32 {vr(vHA)}, {sr(sT0)}, v6")
a("v_and_b32 v6, 15, v1")
a("v_lshlrev_b32 v6, 3, v6")
a("v_sub_u32 v6, v7, v6")
a(f"s_mul_i32 {sr(sUB)}, {sr(sCT)}, {USTR}")
a(f"s_add_u32 {sr(sUB)}, {sr(sUB)}, {UB}")
a(f"s_add_u32 {sr(sT0)}, {sr(sUB)}, {sr(sT1)}")
a(f"s_add_u32 {sr(sT0)}, {sr(sT0)}, 120")
a(f"v_add_u32 {vr(vUA)}, {sr(sT0)}, v6")
a(f"v_lshlrev_b32 {vr(vL16)}, 4, v1")
a(f"v_lshlrev_b32 {vr(vY8)}, 3, v1")
a(f"v_lshlrev_b32 {vr(vFL)}, 9, v1")
a("v_and_b32 v6, 0x60, v5")
a("v_and_b32 v7, 28, v5")
a(f"v_lshl_add_u32 {vr(vMB)}, v6, 2, v7")
a(f"v_lshl_add_u32 {vr(vRW)}, {sr(sHH)}, 12, {vr(vL16)}")
a(f"v_xor_b32 {vr(vRR)}, 0x2000, {vr(vRW)}")
a(f"v_add_u32 {vr(vRW)}, {RED}, {vr(vRW)}")
a(f"v_add_u32 {vr(vRR)}, {RED}, {vr(vRR)}")
a("v_min_u32 v6, 23, v1")
a(f"s_mul_i32 {sr(sT0)}, {sr(sHH)}, {HSTR}")
a(f"s_add_u32 {sr(sT0)}, {sr(sT0)}, {HB}")
a(f"v_lshl_add_u32 {vr(vZ0)}, v6, 4, {sr(sT0)}")
a("v_and_b32 v6, 7, v1")
a(f"v_lshl_add_u32 {vr(vZ1)}, v6, 4, {sr(sUB)}")
a(f"s_lshl_b32 {sr(sT0)}, {sr(sDB)}, 5")
a(f"s_add_u32 {sr(sT0)}, {sr(sT0)}, {sr(sTBB)}")
a(f"s_lshl_b32 {sr(sCH)}, {sr(sT0)}, 13")
a("v_lshrrev_b32 v6, 4, v0")
a("v_lshlrev_b32 v7, 2, v6")
a("v_xor_b32 v7, v7, v0")
a("v_and_b32 v7, 15, v7")
a("v_lshlrev_b32 v7, 4, v7")
a("v_lshl_add_u32 v6, v6, 10, v7")
a(f"s_and_b32 {sr(sT0)}, {sr(sHQ)}, 3")
a(f"v_lshl_add_u32 {vr(vWO)}, {sr(sT0)}, 8, v6")
a("v_lshrrev_b32 v7, 5, v1")
a("v_lshl_add_u32 v7, v7, 2, v53")
a(f"v_xor_b32 v6, {sr(sHH)}, v53")
a("v_lshlrev_b32 v6, 6, v6")
a("v_lshl_add_u32 v6, v7, 8, v6")
a("v_and_b32 v7, 1, v1")
a("v_lshl_add_u32 v6, v7, 5, v6")
a("v_and_b32 v7, 16, v1")
a("v_add_u32 v6, v6, v7")
a("v_and_b32 v7, 2, v1")
a(f"v_lshl_add_u32 {vr(vWR0)}, v7, 2, v6")
a(f"v_add_u32 {vr(vWR1)}, 0x10000, {vr(vWR0)}")
a(f"v_and_b32 {vr(vPO)}, 28, v5")
a("v_and_b32 v6, 32, v1")
a(f"v_lshl_add_u32 {vr(vOO)}, v5, 9, v6")
CY, CB, CA = 64, 96, 56
for j in range(16): a(f"v_mov_b64 {vr(CY+2*j,2)}, 0")
a("s_waitcnt lgkmcnt(0)")
for r, p in ((WO, 80), (BQ, 82), (BK, 84), (BV, 86), (SH, 92), (HK, 94), (DD, 96), (OUT, 98)):
    a(f"s_mov_b64 {sr(r,2)}, {sr(p,2)}")
for r in (BK, BV, HK, BQ): a(f"s_mov_b64 {sr(r+2,2)}, {sr(X+2,2)}")
for r, n in ((SH, 4096), (DD, 1024), (WO, 0x80000), (OUT, 0x400000)):
    a(f"s_mov_b32 {sr(r+2)}, {hex(n)}"); a(f"s_mov_b32 {sr(r+3)}, {sr(X+3)}")
make_tag()
a(f"v_mov_b32 {vr(vTG)}, {sr(sTAG)}")
for j in range(8):
    dma_half(j + 2)
    a(f"s_waitcnt vmcnt({HSZ[j+1] + HSZ[j+2]})"); a("s_barrier")
    if j == 0: stamp("B1")
stamp("B4")
KR, VR, SR, DR = 128, 140, 148, 139
KP, WJ, VP, DP, UU, HR = 160, 184, 192, 208, 212, 232
def p0_loads():
    a(f"s_add_u32 {sr(sT2)}, {sr(sA)}, 0x1000")
    a(f"s_lshl_b32 {sr(sT0)}, {sr(sDB)}, 7")
    a(f"s_lshl_b32 {sr(sT1)}, {sr(sDB)}, 9")
    bload(SR, 4, vSH, SH, sr(sT1))
    for i in range(3): bload(KR + i, 1, vH, BK, 0, 1024 * i)
    for i in range(8): bload(KR + 3 + i, 1, vA, BK, sr(sA if i < 4 else sT2), 1024 * (i & 3))
    for i in range(8): bload(VR + i, 1, vA, BV, sr(sA if i < 4 else sT2), 1024 * (i & 3))
    bload(DR, 1, 5, DD, sr(sT0))
def h_loads():
    a(f"s_add_u32 {sr(sT2)}, {sr(sCH)}, 0x1000")
    for c in range(2):
        bload(HR + 6*c, 2, vHP, HK, sr(sT2 if c else sCH)); bload(HR + 6*c + 2, 4, vHS, HK, sr(sT2 if c else sCH))
NKV = 21
if OPT["kvat"] == 0: p0_loads()
if OPT["pace"]: a("s_waitcnt vmcnt(4)")
dma_wq(2)
if OPT["pace"]: a("s_waitcnt vmcnt(4)")
dma_wq(3)
if OPT["kvat"] == 1: p0_loads()
if OPT["two"]: a(f"s_waitcnt vmcnt({8 + (NKV if OPT['kvat'] < 2 else 0)})"); a("s_barrier")
mbox(MB_KV, sHQ, sTB, 11)
a(f"s_waitcnt vmcnt({NKV if OPT['kvat'] == 1 else 4 * OPT['late']})"); a("s_barrier")
only_wave(4, lambda: push(4, vFL, vTG, sr(sT0)))
stamp("B5")
if OPT["kvat"] == 2: p0_loads()
NH = 0 if OPT["hlate"] else 4
if not OPT["hlate"]: h_loads()
if OPT["late"]: a(f"s_waitcnt vmcnt({NKV + NH})"); a("s_barrier")
hprio(OPT["p0p"])
a(f"s_waitcnt vmcnt({9 + NH})")
if OPT["hst"]: xstamp(9, "k landed")
lo(WJ+0, SR); lo(WJ+1, SR+2); hi(WJ+2, SR); hi(WJ+3, SR+2)
lo(WJ+4, SR+1); lo(WJ+5, SR+3); hi(WJ+6, SR+1); hi(WJ+7, SR+3)
for i in range(11): lo(KP + 2*i, KR + i); hi(KP + 2*i + 1, KR + i)
for j in range(8): a(f"v_pk_mul_f32 {vr(UU+2*j,2)}, {vr(KP+2*j,2)}, {vr(WJ+6,2)}")
for t in (2, 1, 0):
    for j in range(8):
        a(f"v_pk_fma_f32 {vr(UU+2*j,2)}, {vr(KP+2*(j+3-t),2)}, {vr(WJ+2*t,2)}, {vr(UU+2*j,2)}")
if OPT["hst"]: xstamp(10, "conv4")
a(f"s_waitcnt vmcnt({NH})")
if OPT["hst"]: xstamp(11, "v landed")
for i in range(8): lo(VP + 2*i, VR + i); hi(VP + 2*i + 1, VR + i)
for j in range(8): a(f"v_pk_mul_f32 {vr(UU+2*j,2)}, {vr(UU+2*j,2)}, {vr(VP+2*j,2)}")
for c in range(2):
    for i in range(4): cvt(KP + 4*c + i, UU + 2*(7 - 2*i) + c, UU + 2*(6 - 2*i) + c)
dsw("ds_write_b128", vPW, KP, 4, P0S); dsw("ds_write_b128", vPW, KP + 4, 4, P0S + 4096)
lo(DP, DR); hi(DP + 1, DR)
for j in range(8): a(f"v_pk_mul_f32 {vr(UD+2*j,2)}, {vr(UU+2*j,2)}, {vr(DP,2)}")
HT = [VP, 168]
def h_shift():
    for c in range(2):
        D = [HR + 6*c + j for j in range(6)]
        for j in range(4): a(f"v_alignbit_b32 {vr(HT[c]+j)}, {vr(D[2+j])}, {vr(D[1+j])}, 16")
        for j in range(4): a(f"v_mov_b32 {vr(HT[c]+4+j)}, {vr(D[1+j])}")
        for j in range(4): a(f"v_alignbit_b32 {vr(HT[c]+8+j)}, {vr(D[1+j])}, {vr(D[j])}, 16")
if not OPT["hlate"]:
    a("s_waitcnt vmcnt(0)")
    if OPT["hst"]: xstamp(12, "h landed")
    h_shift()
stamp("p0 done")
hprio(OPT["sp"])
a(f"s_lshl_b32 {sr(sT0)}, {sr(sDB)}, 18")
a(f"s_sub_u32 {sr(sT1)}, 31, {sr(sTBB)}")
a(f"s_lshl_b32 {sr(sT1)}, {sr(sT1)}, 7")
a(f"s_add_u32 {sr(sT3)}, {sr(sT0)}, {sr(sT1)}")
a(f"s_add_u32 {sr(sT3)}, {sr(sT3)}, {UT}")
a(f"s_add_u32 {sr(sT2)}, {sr(sT3)}, 0x1000")
a("s_waitcnt lgkmcnt(0)")
hbar(4)
stamp("hb1")
dsr("ds_read_b128", KP, 4, vPR, P0S); dsr("ds_read_b128", KP + 4, 4, vPR, P0S + 4096)
a("s_waitcnt lgkmcnt(1)")
bstore(KP, 4, vPG, WS, sr(sT3), 0, "sc1")
a("s_waitcnt lgkmcnt(0)")
bstore(KP + 4, 4, vPG, WS, sr(sT2), 0, "sc1")
dsw("ds_write_b128", vZ0, CY, 4); dsw("ds_write_b128", vZ0, CY, 4, 4*HSTR); dsw("ds_write_b128", vZ1, CY, 4, 4096)
if OPT["hlate"]:
    h_loads(); hprio(OPT["ep"]); a("s_waitcnt vmcnt(0)"); h_shift(); hprio(OPT["sp"])
for c in range(2):
    dsw("ds_write_b128", vHW, HR + 6*c + 2, 4, (4*c + 3)*HSTR)
    dsw("ds_write_b128", vHW, HT[c], 4, (4*c + 2)*HSTR)
    dsw("ds_write_b128", vHW, HT[c]+4, 4, (4*c + 1)*HSTR)
    dsw("ds_write_b128", vHW, HT[c]+8, 4, (4*c)*HSTR)
mbox(MB_U, sDB, sTBB, 9)
a("s_waitcnt vmcnt(0) lgkmcnt(0)")
hbar()
only_wave(4, lambda: push(1, vFL, vTG, sr(sT0)))
stamp("u pushed")
def wo_stage(first, n):
    L = newlab("wo")
    a(f"s_and_b32 {sr(sT0)}, {sr(sTB)}, 7")
    a(f"s_mul_i32 {sr(sT0)}, {sr(sT0)}, {n // 8 * 4096}")
    a(f"s_add_u32 {sr(sT0)}, {sr(sT0)}, {first * 4096}")
    a(f"s_mov_b32 {sr(sT1)}, 0")
    a.label(L)
    a(f"s_add_u32 m0, {sr(sM0)}, {sr(sT0)}")
    a(f"s_lshl_b32 {sr(sSX)}, {sr(sT0)}, 2")
    if "wo" not in OPT["skip"]: dma(vWO, WO, sr(sSX))
    a(f"s_add_u32 {sr(sT0)}, {sr(sT0)}, 0x1000")
    a(f"s_cmp_eq_u32 {sr(sT0)}, {(first + n) * 4096}")
    a(f"s_cselect_b32 {sr(sT0)}, {first * 4096}, {sr(sT0)}")
    a(f"s_add_u32 {sr(sT1)}, {sr(sT1)}, 1")
    a(f"s_cmp_lg_u32 {sr(sT1)}, {n}")
    a(f"s_waitcnt vmcnt({OPT['wpace']})")
    a(f"s_cbranch_scc1 {L}")
wo_stage(0, 24)
if OPT["usl"]: a(f"s_sleep {OPT['usl']}")
a(f"s_lshl_b32 {sr(sT0)}, {sr(sCT)}, 12")
a(f"s_add_u32 {sr(sCH)}, {sr(sCH)}, {sr(sT0)}")
if OPT["onepoll"]: only_wave(4, lambda: poll(vMB, 6, sr(sT3))); hbar()
else: poll(vMB, 6, sr(sT3))
a(f"s_add_u32 {sr(sT2)}, {sr(sCH)}, {UT}")
a(f"s_mov_b32 m0, {sr(sUB)}")
a(f"s_mov_b32 {sr(sPASS)}, 0")
for i in range(4):
    a(f"buffer_load_dwordx4 {vr(vL16)}, {sr(WS,4)}, {sr(sT2)} offen offset:{1024*i} sc1 lds")
QG = 128
a(f"s_add_u32 {sr(sT2)}, {sr(sA)}, 0x1000")
hprio(OPT["cp"])
a("s_waitcnt vmcnt(0)")
stamp("u landed")
a.label("L_conv")
for i in range(8):
    dsr("ds_read_b64", CB + 4*i, 2, vUA, 3584 - 512*i); dsr("ds_read_b64", CB + 4*i + 2, 2, vUA, 3584 - 512*i + 8)
for ai in range(8):
    dsr("ds_read_b128", CA, 4, vHA, 512*ai)
    a("s_waitcnt lgkmcnt(0)")
    for bi in range(8 - ai if "conv" not in OPT["skip"] else 0): mfma16(CY + 4*(ai + bi), CA, CB + 4*bi, CY + 4*(ai + bi))
a(f"v_add_u32 {vr(vUA)}, 64, {vr(vUA)}")
a(f"v_add_u32 {vr(vHA)}, 64, {vr(vHA)}")
a(f"s_add_u32 {sr(sPASS)}, {sr(sPASS)}, 1")
a(f"s_cmp_lg_u32 {sr(sPASS)}, 4")
a("s_cbranch_scc1 L_conv")
stamp("conv done")
hprio(OPT["sp"])
a(f"s_lshl_b32 {sr(sT0)}, {sr(sTT)}, 11")
a(f"s_add_u32 {sr(sCH)}, {sr(sCH)}, {sr(sT0)}")
a(f"s_add_u32 {sr(sCH)}, {sr(sCH)}, {YT}")
a(f"s_cmp_lg_u32 {sr(sTT)}, 0")
a("s_cbranch_scc1 L_red1")
def reduce_store(keep, send):
    for j in range(4): dsw("ds_write_b128", vRW, send + 4*j, 4, 1024*j)
    a("s_waitcnt lgkmcnt(0)")
    hbar()
    for j in range(4): dsr("ds_read_b128", CB + 4*j, 4, vRR, 1024*j)
    hprio(OPT["ep"])
    a("s_waitcnt lgkmcnt(0)")
    for j in range(8): a(f"v_pk_add_f32 {vr(CB + 2*j, 2)}, {vr(CB + 2*j, 2)}, {vr(keep + 2*j, 2)}")
reduce_store(CY, CY + 16)
a("s_branch L_red2")
a.label("L_red1")
reduce_store(CY + 16, CY)
a.label("L_red2")
for j in range(8): cvt(CY + j, CB + 2*j, CB + 2*j + 1)
hprio(OPT["sp"])
for j in range(4): bstore(CY + 2*j, 2, vY8, WS, sr(sCH), 512*j, "sc1")
QG = 56
for i in range(8): bload(QG + i, 1, vA, BQ, sr(sA if i < 4 else sT2), 1024 * (i & 3))
mbox(MB_Y, sDB, sTBB, 9)
a("s_waitcnt vmcnt(8)")
hbar()
only_wave(4, lambda: push(1, vFL, vTG, sr(sT0)))
wo_stage(24, 8)
if OPT["ysl"]: a(f"s_sleep {OPT['ysl']}")
if OPT["onepoll"]: only_wave(4, lambda: poll(vMB, 6, sr(sT3))); hbar()
else: poll(vMB, 6, sr(sT3))
a(f"s_lshl_b32 {sr(sT0)}, {sr(sDB)}, 18")
a(f"s_lshl_b32 {sr(sT1)}, {sr(sTBB)}, 7")
a(f"s_add_u32 {sr(sT0)}, {sr(sT0)}, {sr(sT1)}")
a(f"s_add_u32 m0, {sr(sM0)}, {YB}")
a(f"s_add_u32 {sr(sT0)}, {sr(sT0)}, {YT}")
dma(vYS, WS, sr(sT0), "sc1")
a(f"s_add_u32 m0, {sr(sM0)}, {YB + 4096}")
a(f"s_add_u32 {sr(sT0)}, {sr(sT0)}, 0x1000")
dma(vYS, WS, sr(sT0), "sc1")
a(f"s_lshr_b32 {sr(sT0)}, {sr(sHQ)}, 2")
a(f"s_lshl1_add_u32 {sr(sSX)}, {sr(sTB)}, {sr(sT0)}")
a(f"s_lshl2_add_u32 {sr(sT0)}, {sr(sSX)}, {sr(sHH)}")
a(f"s_lshl_b32 {sr(sT0)}, {sr(sT0)}, 7")
a(f"s_add_u32 {sr(sT3)}, {sr(sT0)}, {MB_O}")
a(f"s_lshl_b32 {sr(sT0)}, {sr(sSX)}, 15")
a(f"s_lshl3_add_u32 {sr(sT0)}, {sr(sM0)}, {sr(sT0)}")
a(f"s_add_u32 {sr(sSW)}, {sr(sT0)}, {OF}")
a(f"s_lshl_b32 {sr(sSX)}, {sr(sSX)}, 16")
a(f"s_and_b32 {sr(sT1)}, {sr(sHQ)}, 3")
a(f"s_lshl2_add_u32 {sr(sT1)}, {sr(sT1)}, {sr(sHH)}")
a(f"s_lshl_b32 {sr(sT1)}, {sr(sT1)}, 6")
a(f"s_add_u32 {sr(sSX)}, {sr(sSX)}, {sr(sT1)}")
a(f"s_lshl_b32 {sr(sA)}, {sr(sTBB)}, 17")
a(f"s_lshl_b32 {sr(sT2)}, {sr(sDB)}, 7")
a(f"s_add_u32 {sr(sA)}, {sr(sA)}, {sr(sT2)}")
a(f"s_lshl_b32 m0, {sr(sM0)}, 3")
a(f"s_add_u32 {sr(sT2)}, {sr(sSW)}, 0x1000")
a("s_waitcnt vmcnt(0)")
if not OPT["hst"]: stamp("staged")
a("s_barrier")
GQ, GY, YY = 64, 80, 96
dsr("ds_read_b128", YY, 4, vYR); dsr("ds_read_b128", YY + 4, 4, vYR, 4096)
WOF = 128
gate = []
for j in range(8): gate += [lambda j=j: lo(GQ + 2*j, QG + j), lambda j=j: hi(GQ + 2*j + 1, QG + j)]
gate.append(lambda: a("s_waitcnt lgkmcnt(15)"))
for c in range(2):
    for i in range(4): gate += [lambda c=c, i=i: lo(GY + 4*i + c, YY + 4*c + i), lambda c=c, i=i: hi(GY + 4*i + 2 + c, YY + 4*c + i)]
for j in range(8): gate.append(lambda j=j: a(f"v_pk_add_f32 {vr(GY+2*j,2)}, {vr(GY+2*j,2)}, {vr(UD+2*j,2)}"))
for j in range(8): gate.append(lambda j=j: a(f"v_pk_mul_f32 {vr(GY+2*j,2)}, {vr(GY+2*j,2)}, {vr(GQ+2*j,2)}"))
for j in range(8): gate.append(lambda j=j: cvt(QG + j, GY + 2*j, GY + 2*j + 1))
for p in range(32):
    for part in range(2):
        dsr("ds_read_b64_tr_b16", WOF + 4*p + 2*part, 2, vWR0 + (p >> 4), ((p & 15) * 16 + 8*part) * 256)
        if gate: gate.pop(0)()
assert not gate
a("s_waitcnt lgkmcnt(0)")
if not OPT["hst"]: stamp("gate done")
a("s_barrier")
poll(vPO, 6, sr(sT3), False, 1)
if not OPT["hst"]: stamp("o flags")
for i in range(4):
    a(f"buffer_load_dwordx4 {vr(vL16)}, {sr(WS,4)}, {sr(sSW)} offen offset:{1024*i} sc1 lds")
a("s_addk_i32 m0, 0x1000")
a("s_nop 0")
for i in range(4):
    a(f"buffer_load_dwordx4 {vr(vL16)}, {sr(WS,4)}, {sr(sT2)} offen offset:{1024*i} sc1 lds")
gfl = OPT["gfl"].replace("_", " ")
a("s_waitcnt vmcnt(0)"); a("s_barrier")
if not OPT["hst"]: stamp("o landed")
OFR, PA = 64, 16
for p in range(12): dsr("ds_read_b128", OFR + 4*p, 4, vL16, 1024*p)
for p in range(32):
    a(f"s_waitcnt lgkmcnt({min(32, p + 12) - p - 1})")
    mfma32(PA, WOF + 4*p, OFR + 4*(p & 15), None if p == 0 else PA)
    if p + 12 < 32: dsr("ds_read_b128", OFR + 4*((p + 12) & 15), 4, vL16, 1024*(p + 12))
    if p & 1 and p < 16:
        j = p >> 1
        bstore(QG + j, 1, vGO, OUT, sr(sA), 3072 if j & 1 else 1024, gfl)
        if j & 1 and j < 7: a(f"s_add_u32 {sr(sA)}, {sr(sA)}, 0x1000")
a(f"s_or_b32 {sr(sT0)}, s2, {sr(sHH)}")
a("s_cbranch_scc1 L_noep")
a(f"v_mov_b32 v6, {EP}")
a("s_mov_b64 exec, 1")
bstore(vTG, 1, 6, WS, 0, flags="sc1")
a("s_mov_b64 exec, -1")
a.label("L_noep")
a("s_nop 9")
pfl = OPT["pfl"].replace("_", " ")
for j in range(4): cvt(8 + j, PA + 2*j, PA + 2*j + 1)
bstore(8, 4, vOO, OUT, sr(sSX), 0, pfl)
for j in range(4, 8): cvt(8 + j, PA + 2*j, PA + 2*j + 1)
bstore(12, 4, vOO, OUT, sr(sSX), 16, pfl)
if DIAG or OPT["enc"] or OPT["spin"]: finish(13 if DIAG == 1 else 11)
else: a("s_endpgm")

a.label("L_main")
a("s_waitcnt lgkmcnt(0)")
common_setup()
XF, WF, ACK, ACV, ACQ = 128, 96, 64, 80, 64
vXR, vWR, vXB, vWB, vXT = 50, 51, 52, 53, 54
O0, O1, S0, S1, C0, C1 = 16, 32, 48, 64, 80, 96
Q0, Q1 = 112, 116
vIDX, vKA, vVA = 8, 9, 10
vCON = 12
vKS, vVS, vKL, vVL, vQW, vQR = 2, 3, 5, 11, 14, 15
RING = 128
def rK(i): return RING + 12 * (i & 7)
def rVa(i): return RING + 12 * (i & 7) + 4
def rVb(i): return RING + 12 * (i & 7) + 8
a("v_bfe_u32 v6, v1, 2, 2")
a("v_lshrrev_b32 v32, 5, v1")
a("v_lshl_add_u32 v33, v32, 3, v6")
a("v_lshrrev_b32 v6, 1, v6")
a(f"v_xor_b32 v6, {sr(sCT)}, v6")
a("v_lshlrev_b32 v6, 6, v6")
a("v_lshl_add_u32 v33, v33, 7, v6")
a("v_and_b32 v6, 16, v1")
a("v_lshl_add_u32 v33, v6, 1, v33")
a("v_and_b32 v6, 3, v1")
a(f"v_lshl_add_u32 {vr(vWR)}, v6, 3, v33")
a("v_and_b32 v6, 31, v1")
a("v_xor_b32 v33, v32, v6")
a("v_and_b32 v33, 15, v33")
a("v_lshlrev_b32 v33, 4, v33")
a(f"v_lshl_add_u32 v6, {sr(sTT)}, 5, v6")
a(f"v_lshl_add_u32 {vr(vXR)}, v6, 8, v33")
a("v_and_b32 v33, 0x33, v1")
a("v_and_b32 v7, 4, v1")
a("v_lshl_or_b32 v33, v7, 1, v33")
a("v_and_b32 v7, 8, v1")
a("v_lshrrev_b32 v7, 1, v7")
a("v_or_b32 v6, v7, v33")
a(f"v_lshlrev_b32 {vr(vKS)}, 4, v6")
a("v_and_b32 v7, 15, v1")
a("v_lshlrev_b32 v7, 4, v7")
a("v_lshl_add_u32 v33, v32, 8, v7")
a("v_bfe_u32 v6, v1, 4, 1")
a(f"v_lshl_add_u32 {vr(vVS)}, v6, 17, v33")
a(f"s_lshl2_add_u32 {sr(sT0)}, {sr(sCT)}, {sr(sTT)}")
a(f"s_lshl_b32 {sr(sT1)}, {sr(sT0)}, 11")
a(f"s_add_u32 {sr(sT1)}, {sr(sT1)}, {KVL}")
a(f"v_add_u32 {vr(vKL)}, {sr(sT1)}, {vr(vKS)}")
a("v_lshl_add_u32 v6, v6, 12, v33")
a(f"v_add_u32 {vr(vVL)}, {sr(sT1)}, v6")
a(f"s_lshl_b32 {sr(sT0)}, {sr(sT0)}, 10")
a(f"v_lshl_add_u32 {vr(vQW)}, v1, 4, {sr(sT0)}")
a(f"s_lshl_b32 {sr(sT0)}, {sr(sHH)}, 11")
a(f"v_lshl_add_u32 {vr(vQR)}, v1, 4, {sr(sT0)}")
a(f"s_lshl2_add_u32 {sr(sT0)}, {sr(sHQ)}, {sr(sHH)}")
a(f"s_lshl_b32 {sr(sT0)}, {sr(sT0)}, 17")
a(f"v_lshl_add_u32 {vr(vKA)}, v1, 4, {sr(sT0)}")
a(f"v_add_u32 {vr(vVA)}, {sr(sT0)}, v33")
a(f"s_lshl_b32 {sr(sT0)}, {sr(sHH)}, 12")
a(f"s_add_u32 {sr(sT0)}, {sr(sT0)}, {KVL}")
a(f"v_lshl_add_u32 v48, v1, 4, {sr(sT0)}")
a(f"v_add_u32 v49, {sr(sT0)}, v33")
a(f"v_mov_b32 {vr(vIDX)}, 0xdddddddd")
a(f"s_mov_b32 {sr(sHALF)}, 0xffff"); a(f"s_mov_b32 {sr(sHALF+1)}, {sr(sHALF)}")
a(f"s_mov_b32 {sr(sAND)}, 0x1ffff")
a(f"s_mov_b32 {sr(sREDO)}, 0")
a("v_and_b32 v7, 0x1b, v1"); a("v_cmp_eq_u32 vcc, 16, v7")
a("v_mov_b32 v6, 0x3f803f80")
a(f"s_add_u32 {sr(sOFF)}, {sr(sTB)}, 1")
a(f"v_cndmask_b32 {vr(vCON)}, 0, v6, vcc")
a(f"v_cndmask_b32 {vr(vCON+1)}, 0, v6, vcc")
a(f"s_and_b32 {sr(sOFF)}, {sr(sOFF)}, 31")
a(f"s_lshl_b32 {sr(sOFF)}, {sr(sOFF)}, 12")
for j in range(8): a(f"v_mov_b64 {vr(O0+2*j,2)}, 0")
a(f"s_lshl1_add_u32 {sr(sT0)}, {sr(sHQ)}, {sr(sCT)}")
a(f"s_lshl_b32 {sr(sT0)}, {sr(sT0)}, 18")
a(f"s_lshl1_add_u32 {sr(sT1)}, {sr(sTB)}, {sr(sTT)}")
a(f"s_lshl_b32 {sr(sT1)}, {sr(sT1)}, 11")
a(f"s_add_u32 {sr(sT3)}, {sr(sT0)}, {sr(sT1)}")
a(f"s_add_u32 {sr(sT2)}, {sr(sT3)}, 0x20000")
if OPT["tlb"]:
    for r, o in ((14, sT3), (15, sT2)): a(f"s_load_dword s{r}, {sr(WS,2)}, {sr(o)}")
if OPT["prew"] >= 3:
    a("s_mov_b64 exec, 1")
    if OPT["prew"] == 3: bstore(O0, 4, vKS, WS, sr(sT3), 0, "sc1")
    if OPT["prew"] == 4: bload(56, 1, vKS, WS, sr(sT3), 0, "sc1")
    if OPT["prew"] == 5: bstore(O0, 4, vKS, WS, sr(sT3), 0, "")
    a("s_mov_b64 exec, -1")
    a("s_waitcnt vmcnt(1) lgkmcnt(0)")
elif OPT["prew"]:
    fl = {1: "sc1", 2: ""}[OPT["prew"]]
    bstore(O0, 4, vKS, WS, sr(sT3), 0, fl); bstore(O0, 4, vKS, WS, sr(sT2), 0, fl)
    bstore(O0, 4, vVS, WS, sr(sT3), 1024, fl); bstore(O0, 4, vVS, WS, sr(sT3), 1536, fl)
    a("s_waitcnt vmcnt(4) lgkmcnt(0)")
else: a("s_waitcnt vmcnt(0) lgkmcnt(0)")
make_tag()

def kv_gemm():
    def rd(i):
        c, s = i >> 3, i & 7
        if s == 0:
            a(f"v_add_u32 {vr(vXB)}, {SLOT[c % 3]}, {vr(vXR)}")
            a(f"v_add_u32 {vr(vWB)}, {SLOT[c % 3] + 16*K1}, {vr(vWR)}")
        f = WF + 8*(i & 3); t = vXT + (s & 1)
        if s: a(f"v_xor_b32 {vr(t)}, {32*s}, {vr(vXB)}")
        if s & 3 == 0:
            a("s_barrier")
            if i == 0: stamp("B1")
            if i == 28: stamp("B4")
        dsr("ds_read_b128", XF + 4*i, 4, t if s else vXB)
        dsr("ds_read_b64_tr_b16", f, 2, vWB, 2048*s); dsr("ds_read_b64_tr_b16", f + 2, 2, vWB, 2048*s + 512)
    def rdv(i):
        s = i & 7; f = WF + 8*(i & 3) + 4
        dsr("ds_read_b64_tr_b16", f, 2, vWB, 16*K1 + 2048*s); dsr("ds_read_b64_tr_b16", f + 2, 2, vWB, 16*K1 + 2048*s + 512)
    for lo_, hi_, D in ((0, 28, OPT["gd"]), (28, 32, 3)):
        for i in range(lo_, lo_ + D): rd(i); rdv(i)
        for i in range(lo_, hi_):
            x, f = XF + 4*i, WF + 8*(i & 3)
            n = 5 * (min(hi_, i + D) - i - 1)
            a(f"s_waitcnt lgkmcnt({n + 2})")
            mfma32(ACK, f, x, None if i == 0 else ACK)
            if i + D < hi_: rd(i + D); n += 3
            a(f"s_waitcnt lgkmcnt({n})")
            mfma32(ACV, x, f + 4, None if i == 0 else ACV)
            if i + D < hi_: rdv(i + D)
def q_gemm(side):
    def rd(i):
        c, s = i >> 3, i & 7
        if s == 0: a(f"v_add_u32 {vr(vXT + (c & 1))}, {WQ[c]}, {vr(vWR)}")
        if OPT["late"] and i == 32 - 8 * OPT["late"]: a("s_barrier")
        if i == 16 and OPT["two"]:
            a("s_waitcnt vmcnt(0)"); xstamp(10, "acked"); a("s_barrier"); stamp("B5")
        dsr("ds_read_b64_tr_b16", WF + 4*(i & 7), 2, vXT + (c & 1), 2048*s)
        dsr("ds_read_b64_tr_b16", WF + 4*(i & 7) + 2, 2, vXT + (c & 1), 2048*s + 512)
    D = 4
    for i in range(D): rd(i)
    for i in range(32):
        extra = sum(side[j][1] for j in range(max(0, i - D), i) if j in side)
        a(f"s_waitcnt lgkmcnt({2 * (min(32, i + D) - i - 1) + extra})")
        mfma32(ACQ, WF + 4*(i & 7), XF + 4*i, None if i == 0 else ACQ)
        if i + D < 32: rd(i + D)
        if i in side: side[i][0]()
def vconst(i): return [f"v_mov_b64 {vr(rVa(i) + 2*j, 2)}, {vr(vCON,2)}" for j in range(4)]
sGB = 12
def gload(dst, vaddr, off): a(f"global_load_dwordx4 {vr(dst,4)}, {vr(vaddr)}, {sr(sGB,2)} offset:{off} sc1")
def adv1():
    a(f"s_add_u32 {sr(sOFF)}, {sr(sOFF)}, 0x1000")
    a(f"s_and_b32 {sr(sOFF)}, {sr(sOFF)}, {sr(sAND)}")
def adv2():
    a(f"s_add_u32 {sr(sGB)}, {sr(WS)}, {sr(sOFF)}")
    a(f"s_addc_u32 {sr(sGB+1)}, {sr(WS+1)}, 0")
def ring_fill(tiles):
    for i in tiles:
        o = 2048 * (i & 1)
        if not o: adv2()
        gload(rK(i), vKA, o)
        a(f"s_mov_b64 exec, {sr(sHALF,2)}")
        gload(rVa(i), vVA, o + 1024); gload(rVb(i), vVA, o + 1536)
        a("s_mov_b64 exec, -1")
        if o: adv1()
def rowmax(S, m, acc):
    k = 0
    if not acc:
        a(f"v_max3_f32 {vr(m)}, {vr(S)}, {vr(S+1)}, {vr(S+2)}"); k = 3
    while k < 16:
        a(f"v_max3_f32 {vr(m)}, {vr(m)}, {vr(S+k)}, {vr(S+min(k+1,15))}"); k += 2

kv_gemm()
a(f"v_mov_b32 v56, {CNT}")
dsw("ds_write_b128", 56, O0, 4)
a("s_nop 7")
for j in range(8): cvt(32 + j, ACK + 2*j, ACK + 2*j + 1)
kvfl = OPT["kvfl"].replace("_", " ")
bstore(32, 4, vKS, WS, sr(sT3), 0, kvfl); bstore(36, 4, vKS, WS, sr(sT2), 0, kvfl)
for j in range(8): cvt(40 + j, ACV + 2*j, ACV + 2*j + 1)
bstore(40, 4, vVS, WS, sr(sT3), 1024, kvfl); bstore(44, 4, vVS, WS, sr(sT3), 1536, kvfl)
dsw("ds_write_b128", vKL, 32, 4); dsw("ds_write_b128", vKL, 36, 4, 4096)
dsw("ds_write_b128", vVL, 40, 4, 1024); dsw("ds_write_b128", vVL, 44, 4, 1536)
xstamp(9, "kv stored")
mbox(MB_KV, sHQ, sTB, 11)
a(f"s_lshr_b32 {sr(sT1)}, {sr(sTB)}, 3")
a(f"s_lshl_b32 {sr(sT1)}, {sr(sT1)}, 9")
a(f"s_add_u32 {sr(sT3)}, {sr(sT3)}, {sr(sT1)}")
if OPT["two"]: a("s_waitcnt lgkmcnt(0)"); a("s_barrier"); xstamp(11, "B5a")
else: a("s_waitcnt vmcnt(0) lgkmcnt(0)"); xstamp(10, "acked"); a("s_barrier"); stamp("B5")
NK = 80
def lines(ls): return (lambda: [a(l) for l in ls], 0)
def own_k():
    for i in range(2): dsr("ds_read_b128", rK(i), 4, 48, 2048*i)
def own_v(i):
    a(f"s_mov_b64 exec, {sr(sHALF,2)}")
    dsr("ds_read_b128", rVa(i), 4, 49, 2048*i + 1024); dsr("ds_read_b128", rVb(i), 4, 49, 2048*i + 1536)
    a("s_mov_b64 exec, -1")
def ack():
    a("s_waitcnt vmcnt(0)")
    xstamp(10, "acked")
    a("s_mov_b64 exec, 1"); a("ds_add_rtn_u32 v7, v56, v7 offset:8"); a("s_mov_b64 exec, -1")
def signal():
    L = newlab("sig")
    a("v_readfirstlane_b32 s14, v7"); a("s_cmp_lg_u32 s14, 3"); a(f"s_cbranch_scc1 {L}")
    push(4, 2, 3, sr(sT0))
    a.label(L)
A_ = OPT["ackat"]
side = {0: (lambda: (a("v_and_b32 v6, 0xfffffe00, v48"), dsr("ds_read_b128", NK, 4, 6)), 1),
        2: lines(["v_bfe_u32 v6, v1, 3, 2", "v_and_b32 v5, 7, v1", "v_lshlrev_b32 v5, 2, v5", "v_lshl_add_u32 v5, v6, 7, v5"]),
        6: lines([f"v_xor_b32 {vr(NK+j)}, 0x80008000, {vr(NK+j)}" for j in range(4)]),
        8: lines(vconst(0)), 9: lines(vconst(1)), 10: (own_k, 2), 11: (lambda: own_v(0), 2), 12: (lambda: own_v(1), 2),
        21: lines(vconst(2)), 22: lines(vconst(3)), 23: lines(vconst(4)), 24: lines(vconst(5)), 25: lines(vconst(6)), 26: lines(vconst(7)),
        min(OPT["pollat"], 31): (lambda: only_wave(0, lambda: bload(4, 1, 5, WS, sr(sT3), flags="sc1")), 0),
        28: lines([f"v_mov_b64 {vr(O1+2*j,2)}, 0" for j in range(4)]), 29: lines([f"v_mov_b64 {vr(O1+2*j,2)}, 0" for j in range(4, 8)])}
q_gemm(side)
if OPT["prio"]: a("s_setprio 1")
a(f"s_mov_b32 {sr(sT2)}, {f2h(0.25 * math.log2(math.e))}")
a(f"s_mov_b32 {sr(sT1)}, {sr(sT2)}")
a(f"v_mov_b32 {vr(vCNT)}, {CNT + 4}"); a(f"v_mov_b32 {vr(vONE)}, 1"); a(f"s_mov_b32 {sr(sHB)}, 0")
a(f"s_mov_b32 {sr(sPASS)}, 0")
a("s_nop 4")
for j in range(8): a(f"v_pk_mul_f32 {vr(ACQ+2*j,2)}, {vr(ACQ+2*j,2)}, {sr(sT1,2)}")
for j in range(8): cvt(120 + j, ACQ + 2*j, ACQ + 2*j + 1)
dsw("ds_write_b128", vQW, 120, 4, QF); dsw("ds_write_b128", vQW, 124, 4, QF + 2048)
for j in range(4): a(f"v_mov_b64 {vr(S1+8+2*j,2)}, 0")
for j in range(2): a(f"v_mov_b64 {vr(S1+2*j,2)}, {vr(NK+2*j,2)}")
stamp("q done")
def kvpoll():
    a("s_waitcnt vmcnt(0)"); poll(5, 4, sr(sT3), True, 1)
only_wave(0, kvpoll)
a("s_waitcnt lgkmcnt(0)")
hbar(0, 0)
stamp("B6")
PD = OPT["pd"]
dsr("ds_read_b128", Q0, 4, vQR, QF); dsr("ds_read_b128", Q1, 4, vQR, QF + 1024)
ring_fill([2])
a("s_waitcnt lgkmcnt(0)")
mfma32(C0, S1, Q0, None)
a("s_mov_b64 exec, 1"); a(f"ds_add_u32 v56, {vr(vONE)}"); a("s_mov_b64 exec, -1")
mfma32(S0, rK(0), Q0, C0)
mfma32(C1, S1, Q1, None)
a.label("L_fill")
ring_fill(range(3, PD))
stamp("loop start")
def E(S, x, y):
    for k in range(x, y + 1): a(f"v_exp_f32 {vr(S+k)}, {vr(S+k)}")
def PV(O, V, S): a(f"v_smfmac_f32_32x32x32_bf16 {vr(O,16)}, {vr(V,4)}, {vr(S,8)}, {vr(vIDX)}")
def iteration(i, last):
    ld = not last or i + PD < 8
    o = 2048 * ((i + PD) & 1)
    t = i + PD
    E(S0, 0, 1)
    PV(O1, rVb(i-1), S1 + 8)
    if ld:
        a(f"s_mov_b64 exec, {sr(sHALF,2)}")
        gload(rVa(t), vVA, o + 1024); gload(rVb(t), vVA, o + 1536)
        a("s_mov_b64 exec, -1")
    E(S0, 2, 5)
    mfma32(S1, rK(i), Q1, C1)
    if ld: gload(rK(t), vKA, o)
    else: a("s_nop 0")
    E(S0, 6, 9)
    PV(O0, rVa(i), S0)
    if o and ld: adv1()
    E(S0, 10, 15)
    E(S1, 0, 1)
    PV(O0, rVb(i), S0 + 8)
    if not (last and i == 7): a(f"s_waitcnt vmcnt({3 * (PD - 1) if ld else 18 - 3 * i})")
    if i == 7 and not last: a(f"s_add_u32 {sr(sPASS)}, {sr(sPASS)}, 1")
    E(S1, 2, 5)
    if not (last and i == 7):
        mfma32(S0, rK(i+1), Q0, C0)
        if i == 7: a(f"s_cmp_lg_u32 {sr(sPASS)}, 7")
        else: a("s_nop 0")
    E(S1, 6, 9)
    PV(O1, rVa(i), S1)
    if o and ld: adv2()
    if OPT["pt"] and i == 1: a("s_memrealtime s[92:93]")
    if OPT["pt"] and i == 3: a("s_waitcnt lgkmcnt(0)"); a(f"s_mov_b32 m0, {sr(sPASS)}"); a("v_writelane_b32 v15, s92, m0")
    E(S1, 10, 15)
a(".p2align 6")
a.label("L_loop")
for i in range(8): iteration(i, False)
a("s_cbranch_scc1 L_loop")
for i in range(8): iteration(i, True)
a("v_lshlrev_b32 v4, 4, v1")
a(f"v_rcp_f32 v6, {vr(O0+8)}")
PV(O1, rVb(7), S1 + 8)
stamp("loop end")
a(f"s_mov_b32 {sr(sT0)}, {f2h(2.0**40)}")
a(f"s_lshl2_add_u32 {sr(sT3)}, {sr(sHQ)}, {sr(sHH)}")
a(f"s_lshl_b32 {sr(sSX)}, {sr(sTB)}, 6")
a(f"s_add_u32 {sr(sSX)}, {sr(sSX)}, {sr(sT3)}")
a(f"s_lshl_b32 {sr(sSX)}, {sr(sSX)}, 10")
a(f"s_add_u32 {sr(sSX)}, {sr(sSX)}, {OF}")
a(f"s_add_u32 {sr(sSW)}, {sr(sSX)}, 0x8000")
for j in range(8): a(f"v_mul_f32 {vr(S1+j)}, v6, {vr(O0+j)}")
a(f"v_rcp_f32 v7, {vr(O1+8)}")
a(f"v_cmp_nle_f32 vcc, {vr(O0+8)}, {sr(sT0)}")
a(f"v_cmp_nle_f32 {sr(sT1,2)}, {vr(O1+8)}, {sr(sT0)}")
for j in range(4): cvt(S0 + j, S1 + 2*j, S1 + 2*j + 1)
a(f"s_or_b64 vcc, vcc, {sr(sT1,2)}")
a("s_cbranch_vccnz L_fallback")
a.label("L_attn_done")
bstore(S0, 4, 4, WS, sr(sSX), 0, "sc1")
for j in range(8): a(f"v_mul_f32 {vr(S1+j)}, v7, {vr(O1+j)}")
for j in range(4): cvt(S0 + 4 + j, S1 + 2*j, S1 + 2*j + 1)
bstore(S0 + 4, 4, 4, WS, sr(sSW), 0, "sc1")
a("v_lshlrev_b32 v6, 9, v1")
a(f"v_mov_b32 v7, {sr(sTAG)}")
a("s_barrier")
a(f"s_mov_b32 {sr(sT2)}, {sr(sT3)}")
mbox(MB_O, sTB, sT2, 10)
a("s_mov_b64 exec, 3")
a("s_waitcnt vmcnt(0)")
bstore(7, 1, 6, WS, sr(sT0), flags="sc1")
stamp("o pushed")
if OPT["pt"]:
    a("s_waitcnt lgkmcnt(0)"); a("s_mov_b32 s94, s88")
    for i in range(8): a(f"v_readlane_b32 s{76 + 2*i}, v15, {i}")
    a("s_mov_b32 s92, s94")
if OPT["enc"] or OPT["spin"]: a("s_barrier"); a("s_barrier")
if DIAG or OPT["enc"] or OPT["spin"]: finish(13 if DIAG == 1 else 11)
else: a("s_endpgm")
a.label("L_fallback")
a(f"s_cmp_lg_u32 {sr(sREDO)}, 0")
a("s_cbranch_scc1 L_attn_done")
a(f"s_mov_b32 {sr(sREDO)}, 1")
a(f"s_mov_b32 {sr(sOFF)}, 0")
a("v_mov_b32 v6, 0xff800000"); a("v_mov_b32 v7, v6")
for j in range(16): a(f"v_mov_b64 {vr(O0+2*j,2)}, 0")
a("s_waitcnt vmcnt(0)")
a.label("L_fb")
bload(rK(0), 4, vKA, WS, sr(sOFF), 0, "sc1")
a(f"s_add_u32 {sr(sOFF)}, {sr(sOFF)}, 0x800")
a("s_waitcnt vmcnt(0)")
mfma32(S0, rK(0), Q0, None); mfma32(S1, rK(0), Q1, None)
a("s_nop 10")
rowmax(S0, 6, True); rowmax(S1, 7, True)
a(f"s_cmp_lg_u32 {sr(sOFF)}, 0x20000")
a("s_cbranch_scc1 L_fb")
a(f"s_lshl_b32 {sr(sOFF)}, {sr(sTB)}, 12")
ring_fill(range(3))
a("v_mov_b32 v4, v6"); a("v_mov_b32 v11, v7"); a("s_nop 0")
a("v_permlane32_swap_b32 v6, v4"); a("v_permlane32_swap_b32 v7, v11")
a(f"v_max_f32 v6, v6, v4"); a("v_max_f32 v7, v7, v11")
for j in range(16): a(f"v_sub_f32 {vr(C0+j)}, 0, v6"); a(f"v_sub_f32 {vr(C1+j)}, 0, v7")
for j in range(4): a(f"v_mov_b64 {vr(S1+8+2*j,2)}, 0")
a(f"s_mov_b32 {sr(sPASS)}, 0")
a("s_waitcnt vmcnt(0)")
mfma32(S0, rK(0), Q0, C0)
a("s_nop 11")
a("s_branch L_fill")
a.label("L_end")
a("s_endpgm")

nbad = check(a.lines)
ref = open(f"cdna_kernels/{NAME}.s.ref").read().split("\n")
head = [l for l in ref if l.startswith(";") and "@launch" not in l and "Override launch" not in l and "grid=ceil" not in l]
out = "\n".join(head) + f"""
; Fused single launch: 256 workgroups (one per CU) x 8 waves; generated by gen/gen.py.
; @launch grid=(256,1,1) block=(512,1,1) lds={LDS_BYTES}
.amdgcn_target "amdgcn-amd-amdhsa--gfx950"
.text
.globl {NAME}_kernel
.p2align 8
.type {NAME}_kernel,@function
""" + a.text() + f""".section .rodata,"a"
.p2align 6
.amdhsa_kernel {NAME}_kernel
  .amdhsa_next_free_vgpr 256
  .amdhsa_next_free_sgpr 102
  .amdhsa_accum_offset 256
  .amdhsa_group_segment_fixed_size 0
  .amdhsa_kernarg_size 96
  .amdhsa_user_sgpr_count 2
  .amdhsa_user_sgpr_kernarg_segment_ptr 1
  .amdhsa_system_sgpr_workgroup_id_x 1
.end_amdhsa_kernel
"""
open(sys.argv[1], "w").write(out)
print("hazards:", nbad, "lines:", len(a.lines), "stamps:", nstamp[0])
```

```python
import sys, math, struct
from asmlib import Asm, vr, sr, check

NAME = "concat_heads__mha_block__ssm_conv_h3__prompt"
OPT = dict(map=1, ldfl="sc1", kvfl="sc1", wsoff=0, tlb=0, prew=0, late=0, hlate=0, kvat=2, pace=1, two=0, pd=5, ackat=14, pollat=27, p0p=0, hst=0, wqe=1, ysl=24, usl=0, wpace=3, gd=2, p0late=1, hs=4, pt=0, slp=16, onepoll=1, skip="", cp=0, sp=0, ep=3, hp=0, enc="", encw=0, first=0, gfl="sc1", pfl="sc1", vz=1, noload=0, nopv=0, noqk=0, noexp=0, c0=0, prio=1, diag=0, spin=0, spinat="end", clk=0)
for arg in sys.argv[2:]:
    k, v = arg.split("=")
    try: OPT[k] = int(v, 0)
    except ValueError: OPT[k] = v
DIAG = OPT["diag"]

KV, UT, YT, OF, MB = 0, 0x400000, 0x600000, 0x800000, 0xA00000
MB_U, MB_KV, MB_Y, MB_O = MB, MB + 0x8000, MB + 0x10000, MB + 0x18000
EP = MB + 0x20000
STAMP = 0xA30000
WS_SIZE = 0xA50000
K1 = 1024
SLOT = [0, 48 * K1, 96 * K1]
EX = 144 * K1
P0S = 8 * K1
HB = SLOT[2]; HSTR = 4512
UB = HB + 8 * HSTR; USTR = 4224
CNT = UB + 2 * USTR
QF = 0; RED = 140 * K1; KVL = SLOT[2]
YB = 128 * K1; MG = 140 * K1
LDS_BYTES = 160 * K1
assert CNT + 16 <= MG
X, W, WO, BQ, BK, BV, SH, HK, DD, OUT, WS = 4, 8, 12, 16, 20, 24, 28, 32, 36, 40, 44
sW, sHQ, sTB, sDB, sTBB, sROT, sTAG, sMASK = 48, 49, 50, 51, 52, 53, 54, 55
sA, sT0, sT1, sT2, sT3, sSX, sSW, sM0 = 56, 57, 58, 59, 60, 61, 62, 63
sOFF, sPASS, sREDO, sSPIN, sAND = 64, 65, 66, 67, 68
sHALF = 70
sCT, sTT, sHH, sHB = 3, 69, 72, 73
sST = 74
SPINMAX = 0x20000
f2h = lambda x: hex(struct.unpack("<I", struct.pack("<f", x))[0])

a = Asm()
nstamp = [0]
def stamp(name):
    if OPT["enc"] and name.replace(" ", "_") == OPT["enc"]: a("s_memrealtime s[94:95]")
    if OPT["enc"] and name == "end":
        L, L2 = newlab("spin"), newlab("spin")
        a("s_waitcnt lgkmcnt(0)")
        a("s_sub_u32 s94, s94, s100"); a("s_lshl_b32 s94, s94, 2")
        a("s_lshr_b32 s95, s2, 3"); a(f"s_lshl3_add_u32 s95, s95, {sr(sW)}"); a(f"s_cmp_eq_u32 s95, {96 + OPT['encw']}")
        a("s_cselect_b32 s94, s94, 0"); a("s_add_u32 s94, s94, 4000")
        a.label(L)
        a("s_memrealtime s[98:99]"); a("s_waitcnt lgkmcnt(0)")
        a("s_sub_u32 s98, s98, s100"); a("s_cmp_lt_u32 s98, s94"); a(f"s_cbranch_scc1 {L}")
    if OPT["spin"] and name.replace(" ", "_") == OPT["spinat"]:
        L = newlab("spin")
        if OPT["first"]:
            a("v_mov_b32 v6, 0"); a("global_load_dword v6, v6, s[96:97] sc1"); a("s_waitcnt vmcnt(0)")
            a("v_readfirstlane_b32 s100, v6"); a("s_nop 3"); a("s_not_b32 s100, s100")
        a.label(L)
        a("s_memrealtime s[98:99]"); a("s_waitcnt lgkmcnt(0)")
        a("s_sub_u32 s98, s98, s100"); a(f"s_cmp_lt_u32 s98, {OPT['spin'] * 100}"); a(f"s_cbranch_scc1 {L}")
    if DIAG == 2:
        if name in ("B1", "B5", "B6", "loop start", "loop end", "end"):
            i = nstamp[0]; nstamp[0] += 2
            a(f"s_memrealtime {sr(sST + 2 * i, 2)}")
            a(f"s_memtime {sr(sST + 2 * i + 2, 2)}")
    elif DIAG:
        i = nstamp[0]; nstamp[0] += 1
        assert sST + 2 * i + 1 <= 101, "too many stamps"
        a(f"{'s_memtime' if OPT['clk'] else 's_memrealtime'} {sr(sST + 2 * i, 2)} ; stamp {i} {name}")
def set_stamp(i): nstamp[0] = i
def xstamp(i, name):
    if DIAG == 1 and not OPT["pt"]:
        k = nstamp[0]; nstamp[0] = i; stamp(name); nstamp[0] = k
    elif OPT["enc"]: stamp(name)
lab = [0]
def newlab(p):
    lab[0] += 1; return f"L_{p}{lab[0]}"

def bload(dst, n, vaddr, srd, soff, off=0, flags=""):
    op = {1: "dword", 2: "dwordx2", 4: "dwordx4"}[n]
    a(f"buffer_load_{op} {vr(dst, n)}, {vr(vaddr)}, {sr(srd, 4)}, {soff} offen" + (f" offset:{off}" if off else "") + (" " + flags if flags else ""))
def bstore(src, n, vaddr, srd, soff, off=0, flags=""):
    op = {1: "dword", 2: "dwordx2", 4: "dwordx4"}[n]
    a(f"buffer_store_{op} {vr(src, n)}, {vr(vaddr)}, {sr(srd, 4)}, {soff} offen" + (f" offset:{off}" if off else "") + (" " + flags if flags else ""))
def dma(vaddr, srd, soff, flags=""):
    a(f"buffer_load_dwordx4 {vr(vaddr)}, {sr(srd, 4)}, {soff} offen" + (" " + flags if flags else "") + " lds")
def dsr(op, dst, n, vaddr, off=0):
    assert 0 <= off < 65536
    a(f"{op} {vr(dst, n)}, {vr(vaddr)}" + (f" offset:{off}" if off else ""))
def dsw(op, vaddr, src, n, off=0):
    assert 0 <= off < 65536
    a(f"{op} {vr(vaddr)}, {vr(src, n)}" + (f" offset:{off}" if off else ""))
def mfma32(d, A, B, c): a(f"v_mfma_f32_32x32x16_bf16 {vr(d,16)}, {vr(A,4)}, {vr(B,4)}, " + ("0" if c is None else vr(c, 16)))
def mfma16(d, A, B, c): a(f"v_mfma_f32_16x16x32_bf16 {vr(d,4)}, {vr(A,4)}, {vr(B,4)}, " + ("0" if c is None else vr(c, 4)))
def cvt(d, x, y): a(f"v_cvt_pk_bf16_f32 {vr(d)}, {vr(x)}, {vr(y)}")
def lo(d, s): a(f"v_lshlrev_b32 {vr(d)}, 16, {vr(s)}")
def hi(d, s): a(f"v_and_b32 {vr(d)}, {sr(sMASK)}, {vr(s)}")

bload_, mfma32_ = bload, mfma32
def poll(vaddr, vtmp, soff, first_issued=False, slp=None):
    L, Lo = newlab("poll"), newlab("pollok")
    a(f"s_mov_b32 {sr(sSPIN)}, 0")
    if first_issued:
        a(f"v_cmp_ne_u32 vcc, {sr(sTAG)}, {vr(vtmp)}")
        a(f"s_cbranch_vccz {Lo}")
    a.label(L)
    bload(vtmp, 1, vaddr, WS, soff, flags="sc1")
    a(f"s_add_u32 {sr(sSPIN)}, {sr(sSPIN)}, 1")
    a(f"s_cmp_ge_u32 {sr(sSPIN)}, {SPINMAX}")
    a("s_waitcnt vmcnt(0)")
    a(f"s_cbranch_scc1 {Lo}")
    a(f"v_cmp_ne_u32 vcc, {sr(sTAG)}, {vr(vtmp)}")
    a(f"s_cbranch_vccz {Lo}")
    a(f"s_sleep {OPT['slp'] if slp is None else slp}")
    a(f"s_branch {L}")
    a.label(Lo)

def push(nl, vt0, vt1, soff):
    a(f"s_mov_b64 exec, {hex((1 << nl) - 1)}")
    bstore(vt1, 1, vt0, WS, soff, flags="sc1")
    a("s_mov_b64 exec, -1")

def arrive(cntoff, last, vt0, vt1, pushfn):
    L = newlab("arr")
    a(f"v_mov_b32 {vr(vt0)}, {CNT + cntoff}")
    a(f"v_mov_b32 {vr(vt1)}, 1")
    a("s_mov_b64 exec, 1")
    a(f"ds_add_rtn_u32 {vr(vt1)}, {vr(vt0)}, {vr(vt1)}")
    a("s_waitcnt lgkmcnt(0)")
    a(f"v_cmp_ne_u32 vcc, {last}, {vr(vt1)}")
    a("s_mov_b64 exec, -1")
    a(f"s_cbranch_vccnz {L}")
    pushfn()
    a.label(L)


def hbar(extra=0, slp=None):
    L = newlab("hb")
    a(f"s_add_u32 {sr(sHB)}, {sr(sHB)}, {4 + extra}")
    a("s_mov_b64 exec, 1")
    a(f"ds_add_u32 {vr(vCNT)}, {vr(vONE)}")
    a.label(L)
    dsr("ds_read_b32", 6, 1, vCNT)
    a("s_waitcnt lgkmcnt(0)")
    a(f"v_cmp_gt_u32 vcc, {sr(sHB)}, v6")
    a(f"s_cbranch_vccz {L}x")
    if slp != 0: a(f"s_sleep {OPT['hs']}")
    a(f"s_branch {L}")
    a.label(L + "x")
    a("s_mov_b64 exec, -1")
def only_wave(w, fn):
    L = newlab("ow")
    a(f"s_cmp_lg_u32 {sr(sW)}, {w}"); a(f"s_cbranch_scc1 {L}")
    fn()
    a.label(L)
def hprio(p):
    a(f"s_setprio {p}")
vCNT, vONE = 2, 3


a.label(f"{NAME}_kernel")
a("s_cmp_ge_u32 s2, 0x100")
a("s_cbranch_scc1 L_end")
a(f"s_load_dwordx2 {sr(X,2)}, s[0:1], 0")
a(f"s_load_dwordx2 {sr(W,2)}, s[0:1], 8")
a(f"s_load_dwordx2 {sr(WS,2)}, s[0:1], 88")
if DIAG or OPT["spin"] or OPT["enc"]: a("s_memtime s[100:101]" if OPT["clk"] else "s_memrealtime s[100:101]")
a("s_getpc_b64 s[88:89]")
a.label("L_pc")
a(f"s_lshr_b32 {sr(sTBB)}, s2, 3")
a(f"s_and_b32 {sr(sDB)}, s2, 7")
a("v_lshrrev_b32 v6, 6, v0")
a(f"v_lshl_add_u32 v7, {sr(sTBB)}, 3, v6")
a("v_lshlrev_b32 v7, 7, v7")
a("v_min_u32 v7, L_end-L_pc, v7")
a("global_load_dword v4, v7, s[88:89]")
a(f"v_readfirstlane_b32 {sr(sW)}, v6")
if OPT["map"] == 1:
    sHQ, sTB, sROT = sDB, sTBB, sTBB
elif OPT["map"] == 2:
    a(f"s_and_b32 {sr(sT0)}, {sr(sTBB)}, 1")
    a(f"s_lshr_b32 {sr(sT1)}, {sr(sTBB)}, 1")
    a(f"s_lshl1_add_u32 {sr(sROT)}, {sr(sT0)}, {sr(sT1)}")
    a(f"s_and_b32 {sr(sHQ)}, {sr(sDB)}, 3")
    a(f"s_lshl1_add_u32 {sr(sHQ)}, {sr(sHQ)}, {sr(sT0)}")
    a(f"s_lshr_b32 {sr(sTB)}, {sr(sDB)}, 2")
    a(f"s_lshl4_add_u32 {sr(sTB)}, {sr(sTB)}, {sr(sT1)}")
else:
    a(f"s_and_b32 {sr(sT0)}, {sr(sTBB)}, 3")
    a(f"s_lshr_b32 {sr(sT1)}, {sr(sTBB)}, 2")
    a(f"s_add_u32 {sr(sROT)}, {sr(sT0)}, {sr(sT1)}")
    a(f"s_and_b32 {sr(sHQ)}, {sr(sDB)}, 1")
    a(f"s_lshl2_add_u32 {sr(sHQ)}, {sr(sHQ)}, {sr(sT0)}")
    a(f"s_lshr_b32 {sr(sTB)}, {sr(sDB)}, 1")
    a(f"s_lshl3_add_u32 {sr(sTB)}, {sr(sTB)}, {sr(sT1)}")
a(f"s_mov_b32 {sr(X+3)}, 0x20000")
a(f"s_and_b32 {sr(sHH)}, {sr(sW)}, 3")
a(f"s_cmp_lt_u32 {sr(sW)}, 4")
a("s_cbranch_scc1 L_main")

def mbox(base, grp, idx, sh):
    a(f"s_lshr_b32 {sr(sT0)}, {sr(idx)}, 3")
    a(f"s_mul_i32 {sr(sT0)}, {sr(sT0)}, 96")
    a(f"s_lshl2_add_u32 {sr(sT0)}, {sr(idx)}, {sr(sT0)}")
    a(f"s_lshl_b32 {sr(sT3)}, {sr(grp)}, {sh}")
    a(f"s_add_u32 {sr(sT3)}, {sr(sT3)}, {base}")
    a(f"s_add_u32 {sr(sT0)}, {sr(sT0)}, {sr(sT3)}")
def common_setup():
    a("v_and_b32 v1, 63, v0")
    if OPT["wsoff"]:
        a(f"s_add_u32 {sr(WS)}, {sr(WS)}, {hex(OPT['wsoff'])}"); a(f"s_addc_u32 {sr(WS+1)}, {sr(WS+1)}, 0")
    a(f"s_add_u32 s88, {sr(WS)}, {EP}")
    a(f"s_addc_u32 s89, {sr(WS+1)}, 0")
    a(f"s_load_dword {sr(sTAG)}, s[88:89], 0")
    a(f"s_mov_b32 {sr(WS+2)}, {hex(WS_SIZE)}"); a(f"s_mov_b32 {sr(WS+3)}, {sr(X+3)}")
    a(f"s_and_b32 {sr(sCT)}, {sr(sW)}, 1")
    a(f"s_bfe_u32 {sr(sTT)}, {sr(sW)}, 0x10001")
    if DIAG: a(f"s_mov_b64 {sr(sST,2)}, s[100:101]"); nstamp[0] = 1
def make_tag():
    a(f"s_mul_i32 {sr(sTAG)}, {sr(sTAG)}, 0x2c9277b5")
    a(f"s_add_u32 {sr(sTAG)}, {sr(sTAG)}, 0xac564b05")
def finish(n):
    a("s_mov_b64 exec, -1")
    set_stamp(n); stamp("end")
    if DIAG:
        a("s_waitcnt lgkmcnt(0)")
        for i in range(nstamp[0]): a(f"v_mov_b32 {vr(32+i)}, {sr(sST+2*i)}")
        a(f"s_lshl3_add_u32 {sr(sT0)}, s2, {sr(sW)}")
        a(f"s_lshl_b32 {sr(sT0)}, {sr(sT0)}, 6")
        a(f"s_add_u32 {sr(sT0)}, {sr(sT0)}, {STAMP}")
        a("v_mov_b32 v6, 0")
        a("s_mov_b64 exec, 1")
        for i in range(4): bstore(32 + 4*i, 4, 6, WS, sr(sT0), 16*i)
    a("s_endpgm")

vXS, vWS = 48, 49
a("v_and_b32 v0, 0xff, v0")
a(f"s_mov_b32 {sr(X+2)}, 0x200000")
a(f"s_mov_b32 {sr(W+2)}, 0x180000"); a(f"s_mov_b32 {sr(W+3)}, {sr(X+3)}")
a("v_lshrrev_b32 v6, 4, v0")
a("v_xor_b32 v32, v6, v0")
a("v_and_b32 v32, 15, v32")
a(f"v_lshl_add_u32 v6, {sr(sTB)}, 6, v6")
a("v_lshlrev_b32 v6, 10, v6")
a(f"v_lshl_add_u32 {vr(vXS)}, v32, 4, v6")
a("v_lshrrev_b32 v6, 2, v0")
a("v_and_b32 v6, 4, v6")
a("v_xor_b32 v6, v6, v0")
a("v_and_b32 v6, 7, v6")
a(f"v_lshl_add_u32 v6, {sr(sHQ)}, 3, v6")
a("v_lshrrev_b32 v32, 3, v0")
a("v_mul_u32_u24 v32, 0xc00, v32")
a(f"v_lshl_add_u32 {vr(vWS)}, v6, 4, v32")
a(f"s_lshl_b32 {sr(sM0)}, {sr(sHH)}, 10")
def chunk_offsets(c):
    if c: a(f"s_add_u32 {sr(sT0)}, {sr(sROT)}, {c}")
    a(f"s_and_b32 {sr(sT0)}, {sr(sT0) if c else sr(sROT)}, 3")
    a(f"s_mul_i32 {sr(sSW)}, {sr(sT0)}, {128*3072}")
def dma_run(vaddr, srd, sbase, off, step, ldsbase, n=4, wait=False):
    a(f"s_add_u32 m0, {sr(sM0)}, {ldsbase}")
    a(f"s_add_u32 {sr(sT2)}, {sr(sbase)}, {off}")
    if wait: a("s_waitcnt lgkmcnt(0)")
    for i in range(n):
        dma(vaddr, srd, sr(sT2))
        if i < n - 1:
            a("s_addk_i32 m0, 0x1000")
            a(f"s_add_u32 {sr(sT2)}, {sr(sT2)}, {step}")
def dma_half(j):
    if j >= 8: return dma_wq(j - 8)
    c, hf = j >> 1, j & 1
    s = SLOT[c % 3]
    if not hf:
        chunk_offsets(c)
        a(f"s_lshl_b32 {sr(sSX)}, {sr(sT0)}, 8")
        dma_run(vXS, X, sSX, 0, 16384, s, 4, c == 0)
    dma_run(vWS, W, sSW, 1024 + hf*64*3072, 32*3072, s + 16 * K1 + hf*8192, 2)
    dma_run(vWS, W, sSW, 2048 + hf*64*3072, 32*3072, s + 32 * K1 + hf*8192, 2)
HSZ = [8, 4] * 4 + [4, 4]
WQ = [EX, SLOT[1], SLOT[1] + 16 * K1, SLOT[1] + 32 * K1]
def dma_wq(c):
    chunk_offsets(c); dma_run(vWS, W, sSW, 0, 32*3072, WQ[c])
dma_half(0); dma_half(1)
a("s_load_dwordx8 s[80:87], s[0:1], 16")
a("s_load_dwordx8 s[92:99], s[0:1], 48")
common_setup()
UD = 16
vA, vH, vSH, vPW, vPR, vPG, vHS, vHP = 8, 9, 10, 11, 12, 13, 14, 15
vHW, vHA, vUA, vL16, vWO, vYS, vWR0, vWR1, vYR, vGO, vPO, vOO, vRW, vRR, vY8, vZ0 = range(32, 48)
vZ1, vFL, vTG, vMB = 50, 51, 52, 54
sUB, sCH = 64, 66
a("v_and_b32 v5, 31, v0")
a("v_lshlrev_b32 v5, 2, v5")
a(f"v_mov_b32 {vr(vCNT)}, {CNT}")
a(f"v_mov_b32 {vr(vONE)}, 1")
a(f"s_mov_b32 {sr(sHB)}, 0")
a(f"s_mov_b32 {sr(sMASK)}, 0xffff0000")
a("v_lshrrev_b32 v53, 5, v0")
a(f"v_lshl_add_u32 {vr(vA)}, v53, 13, v5")
a(f"v_lshl_add_u32 {vr(vGO)}, v53, 14, v5")
a(f"s_lshl_b32 {sr(sA)}, {sr(sTBB)}, 16")
a(f"s_lshl_b32 {sr(sT0)}, {sr(sDB)}, 7")
a(f"s_add_u32 {sr(sA)}, {sr(sA)}, {sr(sT0)}")
a(f"s_sub_u32 {sr(sT2)}, {sr(sA)}, 0xc00")
a(f"v_add_u32 {vr(vH)}, {sr(sT2)}, {vr(vA)}")
a(f"v_lshlrev_b32 {vr(vSH)}, 2, v5")
a("v_xor_b32 v6, 7, v53")
a("v_xor_b32 v6, v6, v0")
a("v_and_b32 v6, 7, v6")
a("v_lshlrev_b32 v6, 4, v6")
a(f"v_lshl_add_u32 {vr(vPW)}, v5, 5, v6")
a("v_lshrrev_b32 v7, 1, v0")
a("v_xor_b32 v7, v53, v7")
a("v_and_b32 v7, 7, v7")
a("v_lshlrev_b32 v7, 4, v7")
a("v_lshl_add_u32 v7, v5, 5, v7")
a(f"v_add_u32 {vr(vYR)}, {YB}, v7")
a("v_lshrrev_b32 v6, 3, v0")
a("v_xor_b32 v7, v6, v0")
a("v_and_b32 v7, 7, v7")
a("v_lshlrev_b32 v7, 4, v7")
a(f"v_lshl_add_u32 {vr(vPR)}, v6, 7, v7")
a("v_and_b32 v7, 7, v0")
a("v_lshlrev_b32 v7, 4, v7")
a(f"v_lshl_add_u32 {vr(vPG)}, v6, 13, v7")
a("v_lshrrev_b32 v7, 1, v6")
a("v_xor_b32 v7, v7, v0")
a("v_and_b32 v7, 7, v7")
a("v_lshlrev_b32 v7, 4, v7")
a(f"v_lshl_add_u32 {vr(vYS)}, v6, 13, v7")
a(f"v_lshlrev_b32 {vr(vHS)}, 4, v0")
a("v_cmp_eq_u32 vcc, 0, v0")
a(f"v_subrev_u32 v6, 8, {vr(vHS)}")
a("v_bfrev_b32 v7, 2")
a(f"v_cndmask_b32 {vr(vHP)}, v6, v7, vcc")
a(f"v_add_u32 {vr(vHW)}, {HB + 384}, {vr(vHS)}")
a("v_and_b32 v6, 3, v1")
a(f"v_mul_u32_u24 v6, {HSTR}, v6")
a("v_bfe_u32 v53, v1, 2, 2")
a("v_lshl_add_u32 v6, v53, 7, v6")
a("v_and_b32 v7, 0x30, v1")
a("v_add_u32 v6, v6, v7")
a(f"s_mul_i32 {sr(sT0)}, {sr(sCT)}, {4*HSTR}")
a(f"s_lshl_b32 {sr(sT1)}, {sr(sTT)}, 8")
a(f"s_add_u32 {sr(sT0)}, {sr(sT0)}, {sr(sT1)}")
a(f"s_add_u32 {sr(sT0)}, {sr(sT0)}, {HB}")
a(f"v_add_u32 {vr(vHA)}, {sr(sT0)}, v6")
a("v_and_b32 v6, 15, v1")
a("v_lshlrev_b32 v6, 3, v6")
a("v_sub_u32 v6, v7, v6")
a(f"s_mul_i32 {sr(sUB)}, {sr(sCT)}, {USTR}")
a(f"s_add_u32 {sr(sUB)}, {sr(sUB)}, {UB}")
a(f"s_add_u32 {sr(sT0)}, {sr(sUB)}, {sr(sT1)}")
a(f"s_add_u32 {sr(sT0)}, {sr(sT0)}, 120")
a(f"v_add_u32 {vr(vUA)}, {sr(sT0)}, v6")
a(f"v_lshlrev_b32 {vr(vL16)}, 4, v1")
a(f"v_lshlrev_b32 {vr(vY8)}, 3, v1")
a(f"v_lshlrev_b32 {vr(vFL)}, 9, v1")
a("v_and_b32 v6, 0x60, v5")
a("v_and_b32 v7, 28, v5")
a(f"v_lshl_add_u32 {vr(vMB)}, v6, 2, v7")
a(f"v_lshl_add_u32 {vr(vRW)}, {sr(sHH)}, 12, {vr(vL16)}")
a(f"v_xor_b32 {vr(vRR)}, 0x2000, {vr(vRW)}")
a(f"v_add_u32 {vr(vRW)}, {RED}, {vr(vRW)}")
a(f"v_add_u32 {vr(vRR)}, {RED}, {vr(vRR)}")
a("v_min_u32 v6, 23, v1")
a(f"s_mul_i32 {sr(sT0)}, {sr(sHH)}, {HSTR}")
a(f"s_add_u32 {sr(sT0)}, {sr(sT0)}, {HB}")
a(f"v_lshl_add_u32 {vr(vZ0)}, v6, 4, {sr(sT0)}")
a("v_and_b32 v6, 7, v1")
a(f"v_lshl_add_u32 {vr(vZ1)}, v6, 4, {sr(sUB)}")
a(f"s_lshl_b32 {sr(sT0)}, {sr(sDB)}, 5")
a(f"s_add_u32 {sr(sT0)}, {sr(sT0)}, {sr(sTBB)}")
a(f"s_lshl_b32 {sr(sCH)}, {sr(sT0)}, 13")
a("v_lshrrev_b32 v6, 4, v0")
a("v_lshlrev_b32 v7, 2, v6")
a("v_xor_b32 v7, v7, v0")
a("v_and_b32 v7, 15, v7")
a("v_lshlrev_b32 v7, 4, v7")
a("v_lshl_add_u32 v6, v6, 10, v7")
a(f"s_and_b32 {sr(sT0)}, {sr(sTBB)}, 3")
a(f"v_lshl_add_u32 {vr(vWO)}, {sr(sT0)}, 8, v6")
a("v_lshrrev_b32 v7, 5, v1")
a("v_lshl_add_u32 v7, v7, 2, v53")
a(f"v_xor_b32 v6, {sr(sHH)}, v53")
a("v_lshlrev_b32 v6, 6, v6")
a("v_lshl_add_u32 v6, v7, 8, v6")
a("v_and_b32 v7, 1, v1")
a("v_lshl_add_u32 v6, v7, 5, v6")
a("v_and_b32 v7, 16, v1")
a("v_add_u32 v6, v6, v7")
a("v_and_b32 v7, 2, v1")
a(f"v_lshl_add_u32 {vr(vWR0)}, v7, 2, v6")
a(f"v_add_u32 {vr(vWR1)}, 0x10000, {vr(vWR0)}")
a(f"v_and_b32 {vr(vPO)}, 28, v5")
a("v_and_b32 v6, 32, v1")
a(f"v_lshl_add_u32 {vr(vOO)}, v5, 9, v6")
CY, CB, CA = 64, 96, 56
for j in range(16): a(f"v_mov_b64 {vr(CY+2*j,2)}, 0")
a("s_waitcnt lgkmcnt(0)")
for r, p in ((WO, 80), (BQ, 82), (BK, 84), (BV, 86), (SH, 92), (HK, 94), (DD, 96), (OUT, 98)):
    a(f"s_mov_b64 {sr(r,2)}, {sr(p,2)}")
for r in (BK, BV, HK, BQ): a(f"s_mov_b64 {sr(r+2,2)}, {sr(X+2,2)}")
for r, n in ((SH, 4096), (DD, 1024), (WO, 0x80000), (OUT, 0x400000)):
    a(f"s_mov_b32 {sr(r+2)}, {hex(n)}"); a(f"s_mov_b32 {sr(r+3)}, {sr(X+3)}")
make_tag()
a(f"v_mov_b32 {vr(vTG)}, {sr(sTAG)}")
for j in range(8):
    dma_half(j + 2)
    a(f"s_waitcnt vmcnt({HSZ[j+1] + HSZ[j+2]})"); a("s_barrier")
    if j == 0: stamp("B1")
stamp("B4")
KR, VR, SR, DR = 128, 140, 148, 139
KP, WJ, VP, DP, UU, HR = 160, 184, 192, 208, 212, 232
def p0_loads():
    a(f"s_add_u32 {sr(sT2)}, {sr(sA)}, 0x1000")
    a(f"s_lshl_b32 {sr(sT0)}, {sr(sDB)}, 7")
    a(f"s_lshl_b32 {sr(sT1)}, {sr(sDB)}, 9")
    bload(SR, 4, vSH, SH, sr(sT1))
    for i in range(3): bload(KR + i, 1, vH, BK, 0, 1024 * i)
    for i in range(8): bload(KR + 3 + i, 1, vA, BK, sr(sA if i < 4 else sT2), 1024 * (i & 3))
    for i in range(8): bload(VR + i, 1, vA, BV, sr(sA if i < 4 else sT2), 1024 * (i & 3))
    bload(DR, 1, 5, DD, sr(sT0))
def h_loads():
    a(f"s_add_u32 {sr(sT2)}, {sr(sCH)}, 0x1000")
    for c in range(2):
        bload(HR + 6*c, 2, vHP, HK, sr(sT2 if c else sCH)); bload(HR + 6*c + 2, 4, vHS, HK, sr(sT2 if c else sCH))
NKV = 21
if OPT["kvat"] == 0: p0_loads()
if OPT["pace"]: a("s_waitcnt vmcnt(4)")
dma_wq(2)
if OPT["pace"]: a("s_waitcnt vmcnt(4)")
dma_wq(3)
if OPT["kvat"] == 1: p0_loads()
if OPT["two"]: a(f"s_waitcnt vmcnt({8 + (NKV if OPT['kvat'] < 2 else 0)})"); a("s_barrier")
mbox(MB_KV, sHQ, sTB, 11)
a(f"s_waitcnt vmcnt({NKV if OPT['kvat'] == 1 else 4 * OPT['late']})"); a("s_barrier")
only_wave(4, lambda: push(4, vFL, vTG, sr(sT0)))
stamp("B5")
if OPT["kvat"] == 2: p0_loads()
NH = 0 if OPT["hlate"] else 4
if not OPT["hlate"]: h_loads()
if OPT["late"]: a(f"s_waitcnt vmcnt({NKV + NH})"); a("s_barrier")
hprio(OPT["p0p"])
a(f"s_waitcnt vmcnt({9 + NH})")
if OPT["hst"]: xstamp(9, "k landed")
lo(WJ+0, SR); lo(WJ+1, SR+2); hi(WJ+2, SR); hi(WJ+3, SR+2)
lo(WJ+4, SR+1); lo(WJ+5, SR+3); hi(WJ+6, SR+1); hi(WJ+7, SR+3)
for i in range(11): lo(KP + 2*i, KR + i); hi(KP + 2*i + 1, KR + i)
for j in range(8): a(f"v_pk_mul_f32 {vr(UU+2*j,2)}, {vr(KP+2*j,2)}, {vr(WJ+6,2)}")
for t in (2, 1, 0):
    for j in range(8):
        a(f"v_pk_fma_f32 {vr(UU+2*j,2)}, {vr(KP+2*(j+3-t),2)}, {vr(WJ+2*t,2)}, {vr(UU+2*j,2)}")
if OPT["hst"]: xstamp(10, "conv4")
a(f"s_waitcnt vmcnt({NH})")
if OPT["hst"]: xstamp(11, "v landed")
for i in range(8): lo(VP + 2*i, VR + i); hi(VP + 2*i + 1, VR + i)
for j in range(8): a(f"v_pk_mul_f32 {vr(UU+2*j,2)}, {vr(UU+2*j,2)}, {vr(VP+2*j,2)}")
for c in range(2):
    for i in range(4): cvt(KP + 4*c + i, UU + 2*(7 - 2*i) + c, UU + 2*(6 - 2*i) + c)
dsw("ds_write_b128", vPW, KP, 4, P0S); dsw("ds_write_b128", vPW, KP + 4, 4, P0S + 4096)
lo(DP, DR); hi(DP + 1, DR)
for j in range(8): a(f"v_pk_mul_f32 {vr(UD+2*j,2)}, {vr(UU+2*j,2)}, {vr(DP,2)}")
HT = [VP, 168]
def h_shift():
    for c in range(2):
        D = [HR + 6*c + j for j in range(6)]
        for j in range(4): a(f"v_alignbit_b32 {vr(HT[c]+j)}, {vr(D[2+j])}, {vr(D[1+j])}, 16")
        for j in range(4): a(f"v_mov_b32 {vr(HT[c]+4+j)}, {vr(D[1+j])}")
        for j in range(4): a(f"v_alignbit_b32 {vr(HT[c]+8+j)}, {vr(D[1+j])}, {vr(D[j])}, 16")
if not OPT["hlate"]:
    a("s_waitcnt vmcnt(0)")
    if OPT["hst"]: xstamp(12, "h landed")
    h_shift()
stamp("p0 done")
hprio(OPT["sp"])
a(f"s_lshl_b32 {sr(sT0)}, {sr(sDB)}, 18")
a(f"s_sub_u32 {sr(sT1)}, 31, {sr(sTBB)}")
a(f"s_lshl_b32 {sr(sT1)}, {sr(sT1)}, 7")
a(f"s_add_u32 {sr(sT3)}, {sr(sT0)}, {sr(sT1)}")
a(f"s_add_u32 {sr(sT3)}, {sr(sT3)}, {UT}")
a(f"s_add_u32 {sr(sT2)}, {sr(sT3)}, 0x1000")
a("s_waitcnt lgkmcnt(0)")
hbar(4)
stamp("hb1")
dsr("ds_read_b128", KP, 4, vPR, P0S); dsr("ds_read_b128", KP + 4, 4, vPR, P0S + 4096)
a("s_waitcnt lgkmcnt(1)")
bstore(KP, 4, vPG, WS, sr(sT3), 0, "sc1")
a("s_waitcnt lgkmcnt(0)")
bstore(KP + 4, 4, vPG, WS, sr(sT2), 0, "sc1")
dsw("ds_write_b128", vZ0, CY, 4); dsw("ds_write_b128", vZ0, CY, 4, 4*HSTR); dsw("ds_write_b128", vZ1, CY, 4, 4096)
if OPT["hlate"]:
    h_loads(); hprio(OPT["ep"]); a("s_waitcnt vmcnt(0)"); h_shift(); hprio(OPT["sp"])
for c in range(2):
    dsw("ds_write_b128", vHW, HR + 6*c + 2, 4, (4*c + 3)*HSTR)
    dsw("ds_write_b128", vHW, HT[c], 4, (4*c + 2)*HSTR)
    dsw("ds_write_b128", vHW, HT[c]+4, 4, (4*c + 1)*HSTR)
    dsw("ds_write_b128", vHW, HT[c]+8, 4, (4*c)*HSTR)
mbox(MB_U, sDB, sTBB, 9)
a("s_waitcnt vmcnt(0) lgkmcnt(0)")
hbar()
only_wave(4, lambda: push(1, vFL, vTG, sr(sT0)))
stamp("u pushed")
def wo_stage(first, n):
    L = newlab("wo")
    a(f"s_lshr_b32 {sr(sT0)}, {sr(sTBB)}, 2")
    a(f"s_mul_i32 {sr(sT0)}, {sr(sT0)}, {n // 8 * 4096}")
    a(f"s_add_u32 {sr(sT0)}, {sr(sT0)}, {first * 4096}")
    a(f"s_mov_b32 {sr(sT1)}, 0")
    a.label(L)
    a(f"s_add_u32 m0, {sr(sM0)}, {sr(sT0)}")
    a(f"s_lshl_b32 {sr(sSX)}, {sr(sT0)}, 2")
    if "wo" not in OPT["skip"]: dma(vWO, WO, sr(sSX))
    a(f"s_add_u32 {sr(sT0)}, {sr(sT0)}, 0x1000")
    a(f"s_cmp_eq_u32 {sr(sT0)}, {(first + n) * 4096}")
    a(f"s_cselect_b32 {sr(sT0)}, {first * 4096}, {sr(sT0)}")
    a(f"s_add_u32 {sr(sT1)}, {sr(sT1)}, 1")
    a(f"s_cmp_lg_u32 {sr(sT1)}, {n}")
    a(f"s_waitcnt vmcnt({OPT['wpace']})")
    a(f"s_cbranch_scc1 {L}")
wo_stage(0, 24)
if OPT["usl"]: a(f"s_sleep {OPT['usl']}")
a(f"s_lshl_b32 {sr(sT0)}, {sr(sCT)}, 12")
a(f"s_add_u32 {sr(sCH)}, {sr(sCH)}, {sr(sT0)}")
if OPT["onepoll"]: only_wave(4, lambda: poll(vMB, 6, sr(sT3))); hbar()
else: poll(vMB, 6, sr(sT3))
a(f"s_add_u32 {sr(sT2)}, {sr(sCH)}, {UT}")
a(f"s_mov_b32 m0, {sr(sUB)}")
a(f"s_mov_b32 {sr(sPASS)}, 0")
for i in range(4):
    a(f"buffer_load_dwordx4 {vr(vL16)}, {sr(WS,4)}, {sr(sT2)} offen offset:{1024*i} sc1 lds")
QG = 128
a(f"s_add_u32 {sr(sT2)}, {sr(sA)}, 0x1000")
hprio(OPT["cp"])
a("s_waitcnt vmcnt(0)")
stamp("u landed")
a.label("L_conv")
for i in range(8):
    dsr("ds_read_b64", CB + 4*i, 2, vUA, 3584 - 512*i); dsr("ds_read_b64", CB + 4*i + 2, 2, vUA, 3584 - 512*i + 8)
for ai in range(8):
    dsr("ds_read_b128", CA, 4, vHA, 512*ai)
    a("s_waitcnt lgkmcnt(0)")
    for bi in range(8 - ai if "conv" not in OPT["skip"] else 0): mfma16(CY + 4*(ai + bi), CA, CB + 4*bi, CY + 4*(ai + bi))
a(f"v_add_u32 {vr(vUA)}, 64, {vr(vUA)}")
a(f"v_add_u32 {vr(vHA)}, 64, {vr(vHA)}")
a(f"s_add_u32 {sr(sPASS)}, {sr(sPASS)}, 1")
a(f"s_cmp_lg_u32 {sr(sPASS)}, 4")
a("s_cbranch_scc1 L_conv")
stamp("conv done")
hprio(OPT["sp"])
a(f"s_lshl_b32 {sr(sT0)}, {sr(sTT)}, 11")
a(f"s_add_u32 {sr(sCH)}, {sr(sCH)}, {sr(sT0)}")
a(f"s_add_u32 {sr(sCH)}, {sr(sCH)}, {YT}")
a(f"s_cmp_lg_u32 {sr(sTT)}, 0")
a("s_cbranch_scc1 L_red1")
def reduce_store(keep, send):
    for j in range(4): dsw("ds_write_b128", vRW, send + 4*j, 4, 1024*j)
    a("s_waitcnt lgkmcnt(0)")
    hbar()
    for j in range(4): dsr("ds_read_b128", CB + 4*j, 4, vRR, 1024*j)
    hprio(OPT["ep"])
    a("s_waitcnt lgkmcnt(0)")
    for j in range(8): a(f"v_pk_add_f32 {vr(CB + 2*j, 2)}, {vr(CB + 2*j, 2)}, {vr(keep + 2*j, 2)}")
reduce_store(CY, CY + 16)
a("s_branch L_red2")
a.label("L_red1")
reduce_store(CY + 16, CY)
a.label("L_red2")
for j in range(8): cvt(CY + j, CB + 2*j, CB + 2*j + 1)
hprio(OPT["sp"])
for j in range(4): bstore(CY + 2*j, 2, vY8, WS, sr(sCH), 512*j, "sc1")
QG = 56
for i in range(8): bload(QG + i, 1, vA, BQ, sr(sA if i < 4 else sT2), 1024 * (i & 3))
mbox(MB_Y, sDB, sTBB, 9)
a("s_waitcnt vmcnt(8)")
hbar()
only_wave(4, lambda: push(1, vFL, vTG, sr(sT0)))
wo_stage(24, 8)
if OPT["ysl"]: a(f"s_sleep {OPT['ysl']}")
if OPT["onepoll"]: only_wave(4, lambda: poll(vMB, 6, sr(sT3))); hbar()
else: poll(vMB, 6, sr(sT3))
a(f"s_lshl_b32 {sr(sT0)}, {sr(sDB)}, 18")
a(f"s_lshl_b32 {sr(sT1)}, {sr(sTBB)}, 7")
a(f"s_add_u32 {sr(sT0)}, {sr(sT0)}, {sr(sT1)}")
a(f"s_add_u32 m0, {sr(sM0)}, {YB}")
a(f"s_add_u32 {sr(sT0)}, {sr(sT0)}, {YT}")
dma(vYS, WS, sr(sT0), "sc1")
a(f"s_add_u32 m0, {sr(sM0)}, {YB + 4096}")
a(f"s_add_u32 {sr(sT0)}, {sr(sT0)}, 0x1000")
dma(vYS, WS, sr(sT0), "sc1")
if OPT["map"]:
    a(f"s_lshr_b32 {sr(sT0)}, {sr(sTBB)}, 2")
    a(f"s_lshl3_add_u32 {sr(sSX)}, {sr(sDB)}, {sr(sT0)}")
else:
    a(f"s_lshr_b32 {sr(sT0)}, {sr(sHQ)}, 2")
    a(f"s_lshl1_add_u32 {sr(sSX)}, {sr(sTB)}, {sr(sT0)}")
a(f"s_lshl2_add_u32 {sr(sT0)}, {sr(sSX)}, {sr(sHH)}")
a(f"s_lshl_b32 {sr(sT0)}, {sr(sT0)}, 7")
a(f"s_add_u32 {sr(sT3)}, {sr(sT0)}, {MB_O}")
a(f"s_lshl_b32 {sr(sT0)}, {sr(sSX)}, 15")
a(f"s_lshl3_add_u32 {sr(sT0)}, {sr(sM0)}, {sr(sT0)}")
a(f"s_add_u32 {sr(sSW)}, {sr(sT0)}, {OF}")
a(f"s_lshl_b32 {sr(sSX)}, {sr(sSX)}, 16")
a(f"s_and_b32 {sr(sT1)}, {sr(sTBB)}, 3")
a(f"s_lshl2_add_u32 {sr(sT1)}, {sr(sT1)}, {sr(sHH)}")
a(f"s_lshl_b32 {sr(sT1)}, {sr(sT1)}, 6")
a(f"s_add_u32 {sr(sSX)}, {sr(sSX)}, {sr(sT1)}")
a(f"s_lshl_b32 {sr(sA)}, {sr(sTBB)}, 17")
a(f"s_lshl_b32 {sr(sT2)}, {sr(sDB)}, 7")
a(f"s_add_u32 {sr(sA)}, {sr(sA)}, {sr(sT2)}")
a(f"s_lshl_b32 m0, {sr(sM0)}, 3")
a(f"s_add_u32 {sr(sT2)}, {sr(sSW)}, 0x1000")
a("s_waitcnt vmcnt(0)")
if not OPT["hst"]: stamp("staged")
a("s_barrier")
GQ, GY, YY = 64, 80, 96
dsr("ds_read_b128", YY, 4, vYR); dsr("ds_read_b128", YY + 4, 4, vYR, 4096)
WOF = 128
gate = []
for j in range(8): gate += [lambda j=j: lo(GQ + 2*j, QG + j), lambda j=j: hi(GQ + 2*j + 1, QG + j)]
gate.append(lambda: a("s_waitcnt lgkmcnt(15)"))
for c in range(2):
    for i in range(4): gate += [lambda c=c, i=i: lo(GY + 4*i + c, YY + 4*c + i), lambda c=c, i=i: hi(GY + 4*i + 2 + c, YY + 4*c + i)]
for j in range(8): gate.append(lambda j=j: a(f"v_pk_add_f32 {vr(GY+2*j,2)}, {vr(GY+2*j,2)}, {vr(UD+2*j,2)}"))
for j in range(8): gate.append(lambda j=j: a(f"v_pk_mul_f32 {vr(GY+2*j,2)}, {vr(GY+2*j,2)}, {vr(GQ+2*j,2)}"))
for j in range(8): gate.append(lambda j=j: cvt(QG + j, GY + 2*j, GY + 2*j + 1))
for p in range(32):
    for part in range(2):
        dsr("ds_read_b64_tr_b16", WOF + 4*p + 2*part, 2, vWR0 + (p >> 4), ((p & 15) * 16 + 8*part) * 256)
        if gate: gate.pop(0)()
assert not gate
a("s_waitcnt lgkmcnt(0)")
if not OPT["hst"]: stamp("gate done")
a("s_barrier")
poll(vPO, 6, sr(sT3), False, 1)
if not OPT["hst"]: stamp("o flags")
for i in range(4):
    a(f"buffer_load_dwordx4 {vr(vL16)}, {sr(WS,4)}, {sr(sSW)} offen offset:{1024*i} sc1 lds")
a("s_addk_i32 m0, 0x1000")
a("s_nop 0")
for i in range(4):
    a(f"buffer_load_dwordx4 {vr(vL16)}, {sr(WS,4)}, {sr(sT2)} offen offset:{1024*i} sc1 lds")
gfl = OPT["gfl"].replace("_", " ")
a("s_waitcnt vmcnt(0)"); a("s_barrier")
if not OPT["hst"]: stamp("o landed")
OFR, PA = 64, 16
for p in range(12): dsr("ds_read_b128", OFR + 4*p, 4, vL16, 1024*p)
for p in range(32):
    a(f"s_waitcnt lgkmcnt({min(32, p + 12) - p - 1})")
    mfma32(PA, WOF + 4*p, OFR + 4*(p & 15), None if p == 0 else PA)
    if p + 12 < 32: dsr("ds_read_b128", OFR + 4*((p + 12) & 15), 4, vL16, 1024*(p + 12))
    if p & 1 and p < 16:
        j = p >> 1
        bstore(QG + j, 1, vGO, OUT, sr(sA), 3072 if j & 1 else 1024, gfl)
        if j & 1 and j < 7: a(f"s_add_u32 {sr(sA)}, {sr(sA)}, 0x1000")
a(f"s_or_b32 {sr(sT0)}, s2, {sr(sHH)}")
a("s_cbranch_scc1 L_noep")
a(f"v_mov_b32 v6, {EP}")
a("s_mov_b64 exec, 1")
bstore(vTG, 1, 6, WS, 0, flags="sc1")
a("s_mov_b64 exec, -1")
a.label("L_noep")
a("s_nop 9")
pfl = OPT["pfl"].replace("_", " ")
for j in range(4): cvt(8 + j, PA + 2*j, PA + 2*j + 1)
bstore(8, 4, vOO, OUT, sr(sSX), 0, pfl)
for j in range(4, 8): cvt(8 + j, PA + 2*j, PA + 2*j + 1)
bstore(12, 4, vOO, OUT, sr(sSX), 16, pfl)
if DIAG or OPT["enc"] or OPT["spin"]: finish(13 if DIAG == 1 else 11)
else: a("s_endpgm")

a.label("L_main")
a("s_waitcnt lgkmcnt(0)")
common_setup()
XF, WF, ACK, ACV, ACQ = 128, 96, 64, 80, 64
vXR, vWR, vXB, vWB, vXT = 50, 51, 52, 53, 54
O0, O1, S0, S1, C0, C1 = 16, 32, 48, 64, 80, 96
Q0, Q1 = 112, 116
vIDX, vKA, vVA = 8, 9, 10
vCON = 12
vKS, vVS, vKL, vVL, vQW, vQR = 2, 3, 5, 11, 14, 15
RING = 128
def rK(i): return RING + 12 * (i & 7)
def rVa(i): return RING + 12 * (i & 7) + 4
def rVb(i): return RING + 12 * (i & 7) + 8
a("v_bfe_u32 v6, v1, 2, 2")
a("v_lshrrev_b32 v32, 5, v1")
a("v_lshl_add_u32 v33, v32, 3, v6")
a("v_lshrrev_b32 v6, 1, v6")
a(f"v_xor_b32 v6, {sr(sCT)}, v6")
a("v_lshlrev_b32 v6, 6, v6")
a("v_lshl_add_u32 v33, v33, 7, v6")
a("v_and_b32 v6, 16, v1")
a("v_lshl_add_u32 v33, v6, 1, v33")
a("v_and_b32 v6, 3, v1")
a(f"v_lshl_add_u32 {vr(vWR)}, v6, 3, v33")
a("v_and_b32 v6, 31, v1")
a("v_xor_b32 v33, v32, v6")
a("v_and_b32 v33, 15, v33")
a("v_lshlrev_b32 v33, 4, v33")
a(f"v_lshl_add_u32 v6, {sr(sTT)}, 5, v6")
a(f"v_lshl_add_u32 {vr(vXR)}, v6, 8, v33")
a("v_and_b32 v33, 0x33, v1")
a("v_and_b32 v7, 4, v1")
a("v_lshl_or_b32 v33, v7, 1, v33")
a("v_and_b32 v7, 8, v1")
a("v_lshrrev_b32 v7, 1, v7")
a("v_or_b32 v6, v7, v33")
a(f"v_lshlrev_b32 {vr(vKS)}, 4, v6")
a("v_and_b32 v7, 15, v1")
a("v_lshlrev_b32 v7, 4, v7")
a("v_lshl_add_u32 v33, v32, 8, v7")
a("v_bfe_u32 v6, v1, 4, 1")
a(f"v_lshl_add_u32 {vr(vVS)}, v6, 17, v33")
a(f"s_lshl2_add_u32 {sr(sT0)}, {sr(sCT)}, {sr(sTT)}")
a(f"s_lshl_b32 {sr(sT1)}, {sr(sT0)}, 11")
a(f"s_add_u32 {sr(sT1)}, {sr(sT1)}, {KVL}")
a(f"v_add_u32 {vr(vKL)}, {sr(sT1)}, {vr(vKS)}")
a("v_lshl_add_u32 v6, v6, 12, v33")
a(f"v_add_u32 {vr(vVL)}, {sr(sT1)}, v6")
a(f"s_lshl_b32 {sr(sT0)}, {sr(sT0)}, 10")
a(f"v_lshl_add_u32 {vr(vQW)}, v1, 4, {sr(sT0)}")
a(f"s_lshl_b32 {sr(sT0)}, {sr(sHH)}, 11")
a(f"v_lshl_add_u32 {vr(vQR)}, v1, 4, {sr(sT0)}")
a(f"s_lshl2_add_u32 {sr(sT0)}, {sr(sHQ)}, {sr(sHH)}")
a(f"s_lshl_b32 {sr(sT0)}, {sr(sT0)}, 17")
a(f"v_lshl_add_u32 {vr(vKA)}, v1, 4, {sr(sT0)}")
a(f"v_add_u32 {vr(vVA)}, {sr(sT0)}, v33")
a(f"s_lshl_b32 {sr(sT0)}, {sr(sHH)}, 12")
a(f"s_add_u32 {sr(sT0)}, {sr(sT0)}, {KVL}")
a(f"v_lshl_add_u32 v48, v1, 4, {sr(sT0)}")
a(f"v_add_u32 v49, {sr(sT0)}, v33")
a(f"v_mov_b32 {vr(vIDX)}, 0xdddddddd")
a(f"s_mov_b32 {sr(sHALF)}, 0xffff"); a(f"s_mov_b32 {sr(sHALF+1)}, {sr(sHALF)}")
a(f"s_mov_b32 {sr(sAND)}, 0x1ffff")
a(f"s_mov_b32 {sr(sREDO)}, 0")
a("v_and_b32 v7, 0x1b, v1"); a("v_cmp_eq_u32 vcc, 16, v7")
a("v_mov_b32 v6, 0x3f803f80")
a(f"s_add_u32 {sr(sOFF)}, {sr(sTB)}, 1")
a(f"v_cndmask_b32 {vr(vCON)}, 0, v6, vcc")
a(f"v_cndmask_b32 {vr(vCON+1)}, 0, v6, vcc")
a(f"s_and_b32 {sr(sOFF)}, {sr(sOFF)}, 31")
a(f"s_lshl_b32 {sr(sOFF)}, {sr(sOFF)}, 12")
for j in range(8): a(f"v_mov_b64 {vr(O0+2*j,2)}, 0")
a(f"s_lshl1_add_u32 {sr(sT0)}, {sr(sHQ)}, {sr(sCT)}")
a(f"s_lshl_b32 {sr(sT0)}, {sr(sT0)}, 18")
a(f"s_lshl1_add_u32 {sr(sT1)}, {sr(sTB)}, {sr(sTT)}")
a(f"s_lshl_b32 {sr(sT1)}, {sr(sT1)}, 11")
a(f"s_add_u32 {sr(sT3)}, {sr(sT0)}, {sr(sT1)}")
a(f"s_add_u32 {sr(sT2)}, {sr(sT3)}, 0x20000")
if OPT["tlb"]:
    for r, o in ((14, sT3), (15, sT2)): a(f"s_load_dword s{r}, {sr(WS,2)}, {sr(o)}")
if OPT["prew"] >= 3:
    a("s_mov_b64 exec, 1")
    if OPT["prew"] == 3: bstore(O0, 4, vKS, WS, sr(sT3), 0, "sc1")
    if OPT["prew"] == 4: bload(56, 1, vKS, WS, sr(sT3), 0, "sc1")
    if OPT["prew"] == 5: bstore(O0, 4, vKS, WS, sr(sT3), 0, "")
    a("s_mov_b64 exec, -1")
    a("s_waitcnt vmcnt(1) lgkmcnt(0)")
elif OPT["prew"]:
    fl = {1: "sc1", 2: ""}[OPT["prew"]]
    bstore(O0, 4, vKS, WS, sr(sT3), 0, fl); bstore(O0, 4, vKS, WS, sr(sT2), 0, fl)
    bstore(O0, 4, vVS, WS, sr(sT3), 1024, fl); bstore(O0, 4, vVS, WS, sr(sT3), 1536, fl)
    a("s_waitcnt vmcnt(4) lgkmcnt(0)")
else: a("s_waitcnt vmcnt(0) lgkmcnt(0)")
make_tag()

def kv_gemm():
    def rd(i):
        c, s = i >> 3, i & 7
        if s == 0:
            a(f"v_add_u32 {vr(vXB)}, {SLOT[c % 3]}, {vr(vXR)}")
            a(f"v_add_u32 {vr(vWB)}, {SLOT[c % 3] + 16*K1}, {vr(vWR)}")
        f = WF + 8*(i & 3); t = vXT + (s & 1)
        if s: a(f"v_xor_b32 {vr(t)}, {32*s}, {vr(vXB)}")
        if s & 3 == 0:
            a("s_barrier")
            if i == 0: stamp("B1")
            if i == 28: stamp("B4")
        dsr("ds_read_b128", XF + 4*i, 4, t if s else vXB)
        dsr("ds_read_b64_tr_b16", f, 2, vWB, 2048*s); dsr("ds_read_b64_tr_b16", f + 2, 2, vWB, 2048*s + 512)
    def rdv(i):
        s = i & 7; f = WF + 8*(i & 3) + 4
        dsr("ds_read_b64_tr_b16", f, 2, vWB, 16*K1 + 2048*s); dsr("ds_read_b64_tr_b16", f + 2, 2, vWB, 16*K1 + 2048*s + 512)
    for lo_, hi_, D in ((0, 28, OPT["gd"]), (28, 32, 3)):
        for i in range(lo_, lo_ + D): rd(i); rdv(i)
        for i in range(lo_, hi_):
            x, f = XF + 4*i, WF + 8*(i & 3)
            n = 5 * (min(hi_, i + D) - i - 1)
            a(f"s_waitcnt lgkmcnt({n + 2})")
            mfma32(ACK, f, x, None if i == 0 else ACK)
            if i + D < hi_: rd(i + D); n += 3
            a(f"s_waitcnt lgkmcnt({n})")
            mfma32(ACV, x, f + 4, None if i == 0 else ACV)
            if i + D < hi_: rdv(i + D)
def q_gemm(side):
    def rd(i):
        c, s = i >> 3, i & 7
        if s == 0: a(f"v_add_u32 {vr(vXT + (c & 1))}, {WQ[c]}, {vr(vWR)}")
        if OPT["late"] and i == 32 - 8 * OPT["late"]: a("s_barrier")
        if i == 16 and OPT["two"]:
            a("s_waitcnt vmcnt(0)"); xstamp(10, "acked"); a("s_barrier"); stamp("B5")
        dsr("ds_read_b64_tr_b16", WF + 4*(i & 7), 2, vXT + (c & 1), 2048*s)
        dsr("ds_read_b64_tr_b16", WF + 4*(i & 7) + 2, 2, vXT + (c & 1), 2048*s + 512)
    D = 4
    for i in range(D): rd(i)
    for i in range(32):
        extra = sum(side[j][1] for j in range(max(0, i - D), i) if j in side)
        a(f"s_waitcnt lgkmcnt({2 * (min(32, i + D) - i - 1) + extra})")
        mfma32(ACQ, WF + 4*(i & 7), XF + 4*i, None if i == 0 else ACQ)
        if i + D < 32: rd(i + D)
        if i in side: side[i][0]()
def vconst(i): return [f"v_mov_b64 {vr(rVa(i) + 2*j, 2)}, {vr(vCON,2)}" for j in range(4)]
sGB = 12
def gload(dst, vaddr, off): a(f"global_load_dwordx4 {vr(dst,4)}, {vr(vaddr)}, {sr(sGB,2)} offset:{off} " + OPT["ldfl"].replace("_", " "))
def adv1():
    a(f"s_add_u32 {sr(sOFF)}, {sr(sOFF)}, 0x1000")
    a(f"s_and_b32 {sr(sOFF)}, {sr(sOFF)}, {sr(sAND)}")
def adv2():
    a(f"s_add_u32 {sr(sGB)}, {sr(WS)}, {sr(sOFF)}")
    a(f"s_addc_u32 {sr(sGB+1)}, {sr(WS+1)}, 0")
def ring_fill(tiles):
    for i in tiles:
        o = 2048 * (i & 1)
        if not o: adv2()
        gload(rK(i), vKA, o)
        a(f"s_mov_b64 exec, {sr(sHALF,2)}")
        gload(rVa(i), vVA, o + 1024); gload(rVb(i), vVA, o + 1536)
        a("s_mov_b64 exec, -1")
        if o: adv1()
def rowmax(S, m, acc):
    k = 0
    if not acc:
        a(f"v_max3_f32 {vr(m)}, {vr(S)}, {vr(S+1)}, {vr(S+2)}"); k = 3
    while k < 16:
        a(f"v_max3_f32 {vr(m)}, {vr(m)}, {vr(S+k)}, {vr(S+min(k+1,15))}"); k += 2

kv_gemm()
a(f"v_mov_b32 v56, {CNT}")
dsw("ds_write_b128", 56, O0, 4)
a("s_nop 7")
for j in range(8): cvt(32 + j, ACK + 2*j, ACK + 2*j + 1)
kvfl = OPT["kvfl"].replace("_", " ")
bstore(32, 4, vKS, WS, sr(sT3), 0, kvfl); bstore(36, 4, vKS, WS, sr(sT2), 0, kvfl)
for j in range(8): cvt(40 + j, ACV + 2*j, ACV + 2*j + 1)
bstore(40, 4, vVS, WS, sr(sT3), 1024, kvfl); bstore(44, 4, vVS, WS, sr(sT3), 1536, kvfl)
dsw("ds_write_b128", vKL, 32, 4); dsw("ds_write_b128", vKL, 36, 4, 4096)
dsw("ds_write_b128", vVL, 40, 4, 1024); dsw("ds_write_b128", vVL, 44, 4, 1536)
xstamp(9, "kv stored")
mbox(MB_KV, sHQ, sTB, 11)
a(f"s_lshr_b32 {sr(sT1)}, {sr(sTB)}, 3")
a(f"s_lshl_b32 {sr(sT1)}, {sr(sT1)}, 9")
a(f"s_add_u32 {sr(sT3)}, {sr(sT3)}, {sr(sT1)}")
if OPT["two"]: a("s_waitcnt lgkmcnt(0)"); a("s_barrier"); xstamp(11, "B5a")
else: a("s_waitcnt vmcnt(0) lgkmcnt(0)"); xstamp(10, "acked"); a("s_barrier"); stamp("B5")
NK = 80
def lines(ls): return (lambda: [a(l) for l in ls], 0)
def own_k():
    for i in range(2): dsr("ds_read_b128", rK(i), 4, 48, 2048*i)
def own_v(i):
    a(f"s_mov_b64 exec, {sr(sHALF,2)}")
    dsr("ds_read_b128", rVa(i), 4, 49, 2048*i + 1024); dsr("ds_read_b128", rVb(i), 4, 49, 2048*i + 1536)
    a("s_mov_b64 exec, -1")
def ack():
    a("s_waitcnt vmcnt(0)")
    xstamp(10, "acked")
    a("s_mov_b64 exec, 1"); a("ds_add_rtn_u32 v7, v56, v7 offset:8"); a("s_mov_b64 exec, -1")
def signal():
    L = newlab("sig")
    a("v_readfirstlane_b32 s14, v7"); a("s_cmp_lg_u32 s14, 3"); a(f"s_cbranch_scc1 {L}")
    push(4, 2, 3, sr(sT0))
    a.label(L)
A_ = OPT["ackat"]
side = {0: (lambda: (a("v_and_b32 v6, 0xfffffe00, v48"), dsr("ds_read_b128", NK, 4, 6)), 1),
        2: lines(["v_bfe_u32 v6, v1, 3, 2", "v_and_b32 v5, 7, v1", "v_lshlrev_b32 v5, 2, v5", "v_lshl_add_u32 v5, v6, 7, v5"]),
        6: lines([f"v_xor_b32 {vr(NK+j)}, 0x80008000, {vr(NK+j)}" for j in range(4)]),
        8: lines(vconst(0)), 9: lines(vconst(1)), 10: (own_k, 2), 11: (lambda: own_v(0), 2), 12: (lambda: own_v(1), 2),
        21: lines(vconst(2)), 22: lines(vconst(3)), 23: lines(vconst(4)), 24: lines(vconst(5)), 25: lines(vconst(6)), 26: lines(vconst(7)),
        min(OPT["pollat"], 31): (lambda: only_wave(0, lambda: bload(4, 1, 5, WS, sr(sT3), flags="sc1")), 0),
        28: lines([f"v_mov_b64 {vr(O1+2*j,2)}, 0" for j in range(4)]), 29: lines([f"v_mov_b64 {vr(O1+2*j,2)}, 0" for j in range(4, 8)])}
q_gemm(side)
if OPT["prio"]: a("s_setprio 1")
a(f"s_mov_b32 {sr(sT2)}, {f2h(0.25 * math.log2(math.e))}")
a(f"s_mov_b32 {sr(sT1)}, {sr(sT2)}")
a(f"v_mov_b32 {vr(vCNT)}, {CNT + 4}"); a(f"v_mov_b32 {vr(vONE)}, 1"); a(f"s_mov_b32 {sr(sHB)}, 0")
a(f"s_mov_b32 {sr(sPASS)}, 0")
a("s_nop 4")
for j in range(8): a(f"v_pk_mul_f32 {vr(ACQ+2*j,2)}, {vr(ACQ+2*j,2)}, {sr(sT1,2)}")
for j in range(8): cvt(120 + j, ACQ + 2*j, ACQ + 2*j + 1)
dsw("ds_write_b128", vQW, 120, 4, QF); dsw("ds_write_b128", vQW, 124, 4, QF + 2048)
for j in range(4): a(f"v_mov_b64 {vr(S1+8+2*j,2)}, 0")
for j in range(2): a(f"v_mov_b64 {vr(S1+2*j,2)}, {vr(NK+2*j,2)}")
stamp("q done")
def kvpoll():
    a("s_waitcnt vmcnt(0)"); poll(5, 4, sr(sT3), True, 1)
only_wave(0, kvpoll)
a("s_waitcnt lgkmcnt(0)")
hbar(0, 0)
stamp("B6")
PD = OPT["pd"]
dsr("ds_read_b128", Q0, 4, vQR, QF); dsr("ds_read_b128", Q1, 4, vQR, QF + 1024)
ring_fill([2])
a("s_waitcnt lgkmcnt(0)")
mfma32(C0, S1, Q0, None)
a("s_mov_b64 exec, 1"); a(f"ds_add_u32 v56, {vr(vONE)}"); a("s_mov_b64 exec, -1")
mfma32(S0, rK(0), Q0, C0)
mfma32(C1, S1, Q1, None)
a.label("L_fill")
ring_fill(range(3, PD))
stamp("loop start")
def E(S, x, y):
    for k in range(x, y + 1): a(f"v_exp_f32 {vr(S+k)}, {vr(S+k)}")
def PV(O, V, S): a(f"v_smfmac_f32_32x32x32_bf16 {vr(O,16)}, {vr(V,4)}, {vr(S,8)}, {vr(vIDX)}")
def iteration(i, last):
    ld = not last or i + PD < 8
    o = 2048 * ((i + PD) & 1)
    t = i + PD
    E(S0, 0, 1)
    PV(O1, rVb(i-1), S1 + 8)
    if ld:
        a(f"s_mov_b64 exec, {sr(sHALF,2)}")
        gload(rVa(t), vVA, o + 1024); gload(rVb(t), vVA, o + 1536)
        a("s_mov_b64 exec, -1")
    E(S0, 2, 5)
    mfma32(S1, rK(i), Q1, C1)
    if ld: gload(rK(t), vKA, o)
    else: a("s_nop 0")
    E(S0, 6, 9)
    PV(O0, rVa(i), S0)
    if o and ld: adv1()
    E(S0, 10, 15)
    E(S1, 0, 1)
    PV(O0, rVb(i), S0 + 8)
    if not (last and i == 7): a(f"s_waitcnt vmcnt({3 * (PD - 1) if ld else 18 - 3 * i})")
    if i == 7 and not last: a(f"s_add_u32 {sr(sPASS)}, {sr(sPASS)}, 1")
    E(S1, 2, 5)
    if not (last and i == 7):
        mfma32(S0, rK(i+1), Q0, C0)
        if i == 7: a(f"s_cmp_lg_u32 {sr(sPASS)}, 7")
        else: a("s_nop 0")
    E(S1, 6, 9)
    PV(O1, rVa(i), S1)
    if o and ld: adv2()
    if OPT["pt"] and i == 1: a("s_memrealtime s[92:93]")
    if OPT["pt"] and i == 3: a("s_waitcnt lgkmcnt(0)"); a(f"s_mov_b32 m0, {sr(sPASS)}"); a("v_writelane_b32 v15, s92, m0")
    E(S1, 10, 15)
a(".p2align 6")
a.label("L_loop")
for i in range(8): iteration(i, False)
a("s_cbranch_scc1 L_loop")
for i in range(8): iteration(i, True)
a("v_lshlrev_b32 v4, 4, v1")
a(f"v_rcp_f32 v6, {vr(O0+8)}")
PV(O1, rVb(7), S1 + 8)
stamp("loop end")
a(f"s_mov_b32 {sr(sT0)}, {f2h(2.0**40)}")
a(f"s_lshl2_add_u32 {sr(sT3)}, {sr(sHQ)}, {sr(sHH)}")
a(f"s_lshl_b32 {sr(sSX)}, {sr(sTB)}, 6")
a(f"s_add_u32 {sr(sSX)}, {sr(sSX)}, {sr(sT3)}")
a(f"s_lshl_b32 {sr(sSX)}, {sr(sSX)}, 10")
a(f"s_add_u32 {sr(sSX)}, {sr(sSX)}, {OF}")
a(f"s_add_u32 {sr(sSW)}, {sr(sSX)}, 0x8000")
for j in range(8): a(f"v_mul_f32 {vr(S1+j)}, v6, {vr(O0+j)}")
a(f"v_rcp_f32 v7, {vr(O1+8)}")
a(f"v_cmp_nle_f32 vcc, {vr(O0+8)}, {sr(sT0)}")
a(f"v_cmp_nle_f32 {sr(sT1,2)}, {vr(O1+8)}, {sr(sT0)}")
for j in range(4): cvt(S0 + j, S1 + 2*j, S1 + 2*j + 1)
a(f"s_or_b64 vcc, vcc, {sr(sT1,2)}")
a("s_cbranch_vccnz L_fallback")
a.label("L_attn_done")
bstore(S0, 4, 4, WS, sr(sSX), 0, "sc1")
for j in range(8): a(f"v_mul_f32 {vr(S1+j)}, v7, {vr(O1+j)}")
for j in range(4): cvt(S0 + 4 + j, S1 + 2*j, S1 + 2*j + 1)
bstore(S0 + 4, 4, 4, WS, sr(sSW), 0, "sc1")
a("v_lshlrev_b32 v6, 9, v1")
a(f"v_mov_b32 v7, {sr(sTAG)}")
a("s_barrier")
a(f"s_mov_b32 {sr(sT2)}, {sr(sT3)}")
mbox(MB_O, sTB, sT2, 10)
a("s_mov_b64 exec, 3")
a("s_waitcnt vmcnt(0)")
bstore(7, 1, 6, WS, sr(sT0), flags="sc1")
stamp("o pushed")
if OPT["pt"]:
    a("s_waitcnt lgkmcnt(0)"); a("s_mov_b32 s94, s88")
    for i in range(8): a(f"v_readlane_b32 s{76 + 2*i}, v15, {i}")
    a("s_mov_b32 s92, s94")
if OPT["enc"] or OPT["spin"]: a("s_barrier"); a("s_barrier")
if DIAG or OPT["enc"] or OPT["spin"]: finish(13 if DIAG == 1 else 11)
else: a("s_endpgm")
a.label("L_fallback")
a(f"s_cmp_lg_u32 {sr(sREDO)}, 0")
a("s_cbranch_scc1 L_attn_done")
a(f"s_mov_b32 {sr(sREDO)}, 1")
a(f"s_mov_b32 {sr(sOFF)}, 0")
a("v_mov_b32 v6, 0xff800000"); a("v_mov_b32 v7, v6")
for j in range(16): a(f"v_mov_b64 {vr(O0+2*j,2)}, 0")
a("s_waitcnt vmcnt(0)")
a.label("L_fb")
bload(rK(0), 4, vKA, WS, sr(sOFF), 0, "sc1")
a(f"s_add_u32 {sr(sOFF)}, {sr(sOFF)}, 0x800")
a("s_waitcnt vmcnt(0)")
mfma32(S0, rK(0), Q0, None); mfma32(S1, rK(0), Q1, None)
a("s_nop 10")
rowmax(S0, 6, True); rowmax(S1, 7, True)
a(f"s_cmp_lg_u32 {sr(sOFF)}, 0x20000")
a("s_cbranch_scc1 L_fb")
a(f"s_lshl_b32 {sr(sOFF)}, {sr(sTB)}, 12")
ring_fill(range(3))
a("v_mov_b32 v4, v6"); a("v_mov_b32 v11, v7"); a("s_nop 0")
a("v_permlane32_swap_b32 v6, v4"); a("v_permlane32_swap_b32 v7, v11")
a(f"v_max_f32 v6, v6, v4"); a("v_max_f32 v7, v7, v11")
for j in range(16): a(f"v_sub_f32 {vr(C0+j)}, 0, v6"); a(f"v_sub_f32 {vr(C1+j)}, 0, v7")
for j in range(4): a(f"v_mov_b64 {vr(S1+8+2*j,2)}, 0")
a(f"s_mov_b32 {sr(sPASS)}, 0")
a("s_waitcnt vmcnt(0)")
mfma32(S0, rK(0), Q0, C0)
a("s_nop 11")
a("s_branch L_fill")
a.label("L_end")
a("s_endpgm")

nbad = check(a.lines)
ref = open(f"cdna_kernels/{NAME}.s.ref").read().split("\n")
head = [l for l in ref if l.startswith(";") and "@launch" not in l and "Override launch" not in l and "grid=ceil" not in l]
out = "\n".join(head) + f"""
; Fused single launch: 256 workgroups (one per CU) x 8 waves; generated by gen/gen.py.
; @launch grid=(256,1,1) block=(512,1,1) lds={LDS_BYTES}
.amdgcn_target "amdgcn-amd-amdhsa--gfx950"
.text
.globl {NAME}_kernel
.p2align 8
.type {NAME}_kernel,@function
""" + a.text() + f""".section .rodata,"a"
.p2align 6
.amdhsa_kernel {NAME}_kernel
  .amdhsa_next_free_vgpr 256
  .amdhsa_next_free_sgpr 102
  .amdhsa_accum_offset 256
  .amdhsa_group_segment_fixed_size 0
  .amdhsa_kernarg_size 96
  .amdhsa_user_sgpr_count 2
  .amdhsa_user_sgpr_kernarg_segment_ptr 1
  .amdhsa_system_sgpr_workgroup_id_x 1
.end_amdhsa_kernel
"""
open(sys.argv[1], "w").write(out)
print("hazards:", nbad, "lines:", len(a.lines), "stamps:", nstamp[0])
```

```python
import sys, math, struct
from asmlib import Asm, vr, sr, check

NAME = "concat_heads__mha_block__ssm_conv_h3__prompt"
OPT = dict(wpf=1, wfirst=0, hat=0, p0w=8, wo1=24, map=2, ldfl="sc1", kvfl="sc1", wsoff=0, tlb=0, prew=0, late=0, hlate=0, kvat=2, pace=1, two=0, pd=5, ackat=14, pollat=27, p0p=0, hst=0, wqe=1, ysl=20, usl=16, wpace=3, gd=2, p0late=1, hs=4, pt=0, slp=24, onepoll=1, skip="", cp=0, sp=3, ep=3, hp=0, enc="", encw=0, first=0, gfl="sc1", pfl="sc1", vz=1, noload=0, nopv=0, noqk=0, noexp=0, c0=0, prio=1, diag=0, spin=0, spinat="end", clk=0)
for arg in sys.argv[2:]:
    k, v = arg.split("=")
    try: OPT[k] = int(v, 0)
    except ValueError: OPT[k] = v
DIAG = OPT["diag"]

KV, UT, YT, OF, MB = 0, 0x400000, 0x600000, 0x800000, 0xA00000
MB_U, MB_KV, MB_Y, MB_O = MB, MB + 0x8000, MB + 0x10000, MB + 0x18000
EP = MB + 0x20000
STAMP = 0xA30000
WS_SIZE = 0xA50000
K1 = 1024
SLOT = [0, 48 * K1, 96 * K1]
EX = 144 * K1
P0S = 8 * K1
HB = SLOT[2]; HSTR = 4512
UB = HB + 8 * HSTR; USTR = 4224
CNT = UB + 2 * USTR
QF = 0; RED = 140 * K1; KVL = SLOT[2]
YB = 128 * K1; MG = 140 * K1
LDS_BYTES = 160 * K1
assert CNT + 16 <= MG
X, W, WO, BQ, BK, BV, SH, HK, DD, OUT, WS = 4, 8, 12, 16, 20, 24, 28, 32, 36, 40, 44
sW, sHQ, sTB, sDB, sTBB, sROT, sTAG, sMASK = 48, 49, 50, 51, 52, 53, 54, 55
sA, sT0, sT1, sT2, sT3, sSX, sSW, sM0 = 56, 57, 58, 59, 60, 61, 62, 63
sOFF, sPASS, sREDO, sSPIN, sAND = 64, 65, 66, 67, 68
sHALF = 70
sCT, sTT, sHH, sHB = 3, 69, 72, 73
sST = 74
SPINMAX = 0x20000
f2h = lambda x: hex(struct.unpack("<I", struct.pack("<f", x))[0])

a = Asm()
nstamp = [0]
def stamp(name):
    if OPT["enc"] and name.replace(" ", "_") == OPT["enc"]: a("s_memrealtime s[94:95]")
    if OPT["enc"] and name == "end":
        L, L2 = newlab("spin"), newlab("spin")
        a("s_waitcnt lgkmcnt(0)")
        a("s_sub_u32 s94, s94, s100"); a("s_lshl_b32 s94, s94, 2")
        a("s_lshr_b32 s95, s2, 3"); a(f"s_lshl3_add_u32 s95, s95, {sr(sW)}"); a(f"s_cmp_eq_u32 s95, {96 + OPT['encw']}")
        a("s_cselect_b32 s94, s94, 0"); a("s_add_u32 s94, s94, 4000")
        a.label(L)
        a("s_memrealtime s[98:99]"); a("s_waitcnt lgkmcnt(0)")
        a("s_sub_u32 s98, s98, s100"); a("s_cmp_lt_u32 s98, s94"); a(f"s_cbranch_scc1 {L}")
    if OPT["spin"] and name.replace(" ", "_") == OPT["spinat"]:
        L = newlab("spin")
        if OPT["first"]:
            a("v_mov_b32 v6, 0"); a("global_load_dword v6, v6, s[96:97] sc1"); a("s_waitcnt vmcnt(0)")
            a("v_readfirstlane_b32 s100, v6"); a("s_nop 3"); a("s_not_b32 s100, s100")
        a.label(L)
        a("s_memrealtime s[98:99]"); a("s_waitcnt lgkmcnt(0)")
        a("s_sub_u32 s98, s98, s100"); a(f"s_cmp_lt_u32 s98, {OPT['spin'] * 100}"); a(f"s_cbranch_scc1 {L}")
    if DIAG == 2:
        if name in ("B1", "B5", "B6", "loop start", "loop end", "end"):
            i = nstamp[0]; nstamp[0] += 2
            a(f"s_memrealtime {sr(sST + 2 * i, 2)}")
            a(f"s_memtime {sr(sST + 2 * i + 2, 2)}")
    elif DIAG:
        i = nstamp[0]; nstamp[0] += 1
        assert sST + 2 * i + 1 <= 101, "too many stamps"
        a(f"{'s_memtime' if OPT['clk'] else 's_memrealtime'} {sr(sST + 2 * i, 2)} ; stamp {i} {name}")
def set_stamp(i): nstamp[0] = i
def xstamp(i, name):
    if DIAG == 1 and not OPT["pt"]:
        k = nstamp[0]; nstamp[0] = i; stamp(name); nstamp[0] = k
    elif OPT["enc"]: stamp(name)
lab = [0]
def newlab(p):
    lab[0] += 1; return f"L_{p}{lab[0]}"

def bload(dst, n, vaddr, srd, soff, off=0, flags=""):
    op = {1: "dword", 2: "dwordx2", 4: "dwordx4"}[n]
    a(f"buffer_load_{op} {vr(dst, n)}, {vr(vaddr)}, {sr(srd, 4)}, {soff} offen" + (f" offset:{off}" if off else "") + (" " + flags if flags else ""))
def bstore(src, n, vaddr, srd, soff, off=0, flags=""):
    op = {1: "dword", 2: "dwordx2", 4: "dwordx4"}[n]
    a(f"buffer_store_{op} {vr(src, n)}, {vr(vaddr)}, {sr(srd, 4)}, {soff} offen" + (f" offset:{off}" if off else "") + (" " + flags if flags else ""))
def dma(vaddr, srd, soff, flags=""):
    a(f"buffer_load_dwordx4 {vr(vaddr)}, {sr(srd, 4)}, {soff} offen" + (" " + flags if flags else "") + " lds")
def dsr(op, dst, n, vaddr, off=0):
    assert 0 <= off < 65536
    a(f"{op} {vr(dst, n)}, {vr(vaddr)}" + (f" offset:{off}" if off else ""))
def dsw(op, vaddr, src, n, off=0):
    assert 0 <= off < 65536
    a(f"{op} {vr(vaddr)}, {vr(src, n)}" + (f" offset:{off}" if off else ""))
def mfma32(d, A, B, c): a(f"v_mfma_f32_32x32x16_bf16 {vr(d,16)}, {vr(A,4)}, {vr(B,4)}, " + ("0" if c is None else vr(c, 16)))
def mfma16(d, A, B, c): a(f"v_mfma_f32_16x16x32_bf16 {vr(d,4)}, {vr(A,4)}, {vr(B,4)}, " + ("0" if c is None else vr(c, 4)))
def cvt(d, x, y): a(f"v_cvt_pk_bf16_f32 {vr(d)}, {vr(x)}, {vr(y)}")
def lo(d, s): a(f"v_lshlrev_b32 {vr(d)}, 16, {vr(s)}")
def hi(d, s): a(f"v_and_b32 {vr(d)}, {sr(sMASK)}, {vr(s)}")

bload_, mfma32_ = bload, mfma32
def poll(vaddr, vtmp, soff, first_issued=False, slp=None):
    L, Lo = newlab("poll"), newlab("pollok")
    a(f"s_mov_b32 {sr(sSPIN)}, 0")
    if first_issued:
        a(f"v_cmp_ne_u32 vcc, {sr(sTAG)}, {vr(vtmp)}")
        a(f"s_cbranch_vccz {Lo}")
    a.label(L)
    bload(vtmp, 1, vaddr, WS, soff, flags="sc1")
    a(f"s_add_u32 {sr(sSPIN)}, {sr(sSPIN)}, 1")
    a(f"s_cmp_ge_u32 {sr(sSPIN)}, {SPINMAX}")
    a("s_waitcnt vmcnt(0)")
    a(f"s_cbranch_scc1 {Lo}")
    a(f"v_cmp_ne_u32 vcc, {sr(sTAG)}, {vr(vtmp)}")
    a(f"s_cbranch_vccz {Lo}")
    a(f"s_sleep {OPT['slp'] if slp is None else slp}")
    a(f"s_branch {L}")
    a.label(Lo)

def push(nl, vt0, vt1, soff):
    a(f"s_mov_b64 exec, {hex((1 << nl) - 1)}")
    bstore(vt1, 1, vt0, WS, soff, flags="sc1")
    a("s_mov_b64 exec, -1")

def arrive(cntoff, pushfn):
    L = newlab("arr")
    a("s_mov_b64 exec, 1")
    a(f"ds_add_rtn_u32 v7, {vr(vCNT)}, {vr(vONE)} offset:{cntoff}")
    a("s_waitcnt lgkmcnt(0)")
    a("v_cmp_ne_u32 vcc, 3, v7")
    a(f"s_cbranch_vccnz {L}")
    pushfn()
    a.label(L)
    a("s_mov_b64 exec, -1")

def hbar(extra=0, slp=None):
    L = newlab("hb")
    a(f"s_add_u32 {sr(sHB)}, {sr(sHB)}, {4 + extra}")
    a("s_mov_b64 exec, 1")
    a(f"ds_add_u32 {vr(vCNT)}, {vr(vONE)}")
    a.label(L)
    dsr("ds_read_b32", 6, 1, vCNT)
    a("s_waitcnt lgkmcnt(0)")
    a(f"v_cmp_gt_u32 vcc, {sr(sHB)}, v6")
    a(f"s_cbranch_vccz {L}x")
    if slp != 0: a(f"s_sleep {OPT['hs'] if slp is None else slp}")
    a(f"s_branch {L}")
    a.label(L + "x")
    a("s_mov_b64 exec, -1")
def only_wave(w, fn):
    L = newlab("ow")
    a(f"s_cmp_lg_u32 {sr(sW)}, {w}"); a(f"s_cbranch_scc1 {L}")
    fn()
    a.label(L)
def hprio(p):
    a(f"s_setprio {p}")
vCNT, vONE = 2, 3


a.label(f"{NAME}_kernel")
a("s_cmp_ge_u32 s2, 0x100")
a("s_cbranch_scc1 L_end")
a(f"s_load_dwordx2 {sr(X,2)}, s[0:1], 0")
a(f"s_load_dwordx2 {sr(W,2)}, s[0:1], 8")
a(f"s_load_dwordx2 {sr(WS,2)}, s[0:1], 88")
if DIAG or OPT["spin"] or OPT["enc"]: a("s_memtime s[100:101]" if OPT["clk"] else "s_memrealtime s[100:101]")
a("s_getpc_b64 s[88:89]")
a.label("L_pc")
a(f"s_lshr_b32 {sr(sTBB)}, s2, 3")
a(f"s_and_b32 {sr(sDB)}, s2, 7")
a("v_lshrrev_b32 v6, 6, v0")
a(f"v_lshl_add_u32 v7, {sr(sTBB)}, 3, v6")
a("v_lshlrev_b32 v7, 7, v7")
a("v_min_u32 v7, L_end-L_pc, v7")
a("global_load_dword v4, v7, s[88:89]")
a(f"v_readfirstlane_b32 {sr(sW)}, v6")
if OPT["map"] == 1:
    sHQ, sTB = sDB, sTBB
    a(f"s_add_u32 {sr(sROT)}, {sr(sDB)}, {sr(sTBB)}")
elif OPT["map"] == 2:
    a(f"s_and_b32 {sr(sT0)}, {sr(sTBB)}, 1")
    a(f"s_lshr_b32 {sr(sT1)}, {sr(sTBB)}, 1")
    a(f"s_lshl1_add_u32 {sr(sROT)}, {sr(sT0)}, {sr(sT1)}")
    a(f"s_and_b32 {sr(sHQ)}, {sr(sDB)}, 3")
    a(f"s_lshl1_add_u32 {sr(sHQ)}, {sr(sHQ)}, {sr(sT0)}")
    a(f"s_lshr_b32 {sr(sTB)}, {sr(sDB)}, 2")
    a(f"s_lshl4_add_u32 {sr(sTB)}, {sr(sTB)}, {sr(sT1)}")
else:
    a(f"s_and_b32 {sr(sT0)}, {sr(sTBB)}, 3")
    a(f"s_lshr_b32 {sr(sT1)}, {sr(sTBB)}, 2")
    a(f"s_add_u32 {sr(sROT)}, {sr(sT0)}, {sr(sT1)}")
    a(f"s_and_b32 {sr(sHQ)}, {sr(sDB)}, 1")
    a(f"s_lshl2_add_u32 {sr(sHQ)}, {sr(sHQ)}, {sr(sT0)}")
    a(f"s_lshr_b32 {sr(sTB)}, {sr(sDB)}, 1")
    a(f"s_lshl3_add_u32 {sr(sTB)}, {sr(sTB)}, {sr(sT1)}")
a(f"s_mov_b32 {sr(X+3)}, 0x20000")
a(f"s_and_b32 {sr(sHH)}, {sr(sW)}, 3")
a(f"s_cmp_lt_u32 {sr(sW)}, 4")
a("s_cbranch_scc1 L_main")

def mbox(base, grp, idx, sh):
    a(f"s_lshr_b32 {sr(sT0)}, {sr(idx)}, 3")
    a(f"s_mul_i32 {sr(sT0)}, {sr(sT0)}, 96")
    a(f"s_lshl2_add_u32 {sr(sT0)}, {sr(idx)}, {sr(sT0)}")
    a(f"s_lshl_b32 {sr(sT3)}, {sr(grp)}, {sh}")
    a(f"s_add_u32 {sr(sT3)}, {sr(sT3)}, {base}")
    a(f"s_add_u32 {sr(sT0)}, {sr(sT0)}, {sr(sT3)}")
def common_setup():
    a("v_and_b32 v1, 63, v0")
    if OPT["wsoff"]:
        a(f"s_add_u32 {sr(WS)}, {sr(WS)}, {hex(OPT['wsoff'])}"); a(f"s_addc_u32 {sr(WS+1)}, {sr(WS+1)}, 0")
    a(f"s_add_u32 s88, {sr(WS)}, {EP}")
    a(f"s_addc_u32 s89, {sr(WS+1)}, 0")
    a(f"s_load_dword {sr(sTAG)}, s[88:89], 0")
    a(f"s_mov_b32 {sr(WS+2)}, {hex(WS_SIZE)}"); a(f"s_mov_b32 {sr(WS+3)}, {sr(X+3)}")
    a(f"s_and_b32 {sr(sCT)}, {sr(sW)}, 1")
    a(f"s_bfe_u32 {sr(sTT)}, {sr(sW)}, 0x10001")
    if DIAG: a(f"s_mov_b64 {sr(sST,2)}, s[100:101]"); nstamp[0] = 1
def make_tag():
    a(f"s_mul_i32 {sr(sTAG)}, {sr(sTAG)}, 0x2c9277b5")
    a(f"s_add_u32 {sr(sTAG)}, {sr(sTAG)}, 0xac564b05")
def finish(n):
    a("s_mov_b64 exec, -1")
    set_stamp(n); stamp("end")
    if DIAG:
        a("s_waitcnt lgkmcnt(0)")
        for i in range(nstamp[0]): a(f"v_mov_b32 {vr(32+i)}, {sr(sST+2*i)}")
        a(f"s_lshl3_add_u32 {sr(sT0)}, s2, {sr(sW)}")
        a(f"s_lshl_b32 {sr(sT0)}, {sr(sT0)}, 6")
        a(f"s_add_u32 {sr(sT0)}, {sr(sT0)}, {STAMP}")
        a("v_mov_b32 v6, 0")
        a("s_mov_b64 exec, 1")
        for i in range(4): bstore(32 + 4*i, 4, 6, WS, sr(sT0), 16*i)
    a("s_endpgm")

vXS, vWS = 48, 49
a("v_and_b32 v0, 0xff, v0")
a(f"s_mov_b32 {sr(X+2)}, 0x200000")
a(f"s_mov_b32 {sr(W+2)}, 0x180000"); a(f"s_mov_b32 {sr(W+3)}, {sr(X+3)}")
a("v_lshrrev_b32 v6, 4, v0")
a("v_xor_b32 v32, v6, v0")
a("v_and_b32 v32, 15, v32")
a(f"v_lshl_add_u32 v6, {sr(sTB)}, 6, v6")
a("v_lshlrev_b32 v6, 10, v6")
a(f"v_lshl_add_u32 {vr(vXS)}, v32, 4, v6")
a("v_lshrrev_b32 v6, 2, v0")
a("v_and_b32 v6, 4, v6")
a("v_xor_b32 v6, v6, v0")
a("v_and_b32 v6, 7, v6")
a(f"v_lshl_add_u32 v6, {sr(sHQ)}, 3, v6")
a("v_lshrrev_b32 v32, 3, v0")
a("v_mul_u32_u24 v32, 0xc00, v32")
a(f"v_lshl_add_u32 {vr(vWS)}, v6, 4, v32")
a(f"s_lshl_b32 {sr(sM0)}, {sr(sHH)}, 10")
def chunk_offsets(c):
    if c: a(f"s_add_u32 {sr(sT0)}, {sr(sROT)}, {c}")
    a(f"s_and_b32 {sr(sT0)}, {sr(sT0) if c else sr(sROT)}, 3")
    a(f"s_mul_i32 {sr(sSW)}, {sr(sT0)}, {128*3072}")
def dma_run(vaddr, srd, sbase, off, step, ldsbase, n=4, wait=False):
    a(f"s_add_u32 m0, {sr(sM0)}, {ldsbase}")
    a(f"s_add_u32 {sr(sT2)}, {sr(sbase)}, {off}")
    if wait: a("s_waitcnt lgkmcnt(0)")
    for i in range(n):
        dma(vaddr, srd, sr(sT2))
        if i < n - 1:
            a("s_addk_i32 m0, 0x1000")
            a(f"s_add_u32 {sr(sT2)}, {sr(sT2)}, {step}")
def dma_half(j):
    if j >= 8: return dma_wq(j - 8)
    c, hf = j >> 1, j & 1
    s = SLOT[c % 3]
    wf = OPT["wfirst"] and j == 0
    if not hf:
        chunk_offsets(c)
        a(f"s_lshl_b32 {sr(sSX)}, {sr(sT0)}, 8")
        if not wf: dma_run(vXS, X, sSX, 0, 16384, s, 4, c == 0)
    dma_run(vWS, W, sSW, 1024 + hf*64*3072, 32*3072, s + 16 * K1 + hf*8192, 2, wf)
    dma_run(vWS, W, sSW, 2048 + hf*64*3072, 32*3072, s + 32 * K1 + hf*8192, 2)
    if wf: dma_run(vXS, X, sSX, 0, 16384, s, 4)
HSZ = [8, 4] * 4 + [4, 4]
WQ = [EX, SLOT[1], SLOT[1] + 16 * K1, SLOT[1] + 32 * K1]
def dma_wq(c):
    chunk_offsets(c); dma_run(vWS, W, sSW, 0, 32*3072, WQ[c])
dma_half(0); dma_half(1)
a("s_load_dwordx8 s[80:87], s[0:1], 16")
a("s_load_dwordx8 s[92:99], s[0:1], 48")
common_setup()
UD = 16
vA, vH, vSH, vPW, vPR, vPG, vHS, vHP = 8, 9, 10, 11, 12, 13, 14, 15
vHW, vHA, vUA, vL16, vWO, vYS, vWR0, vWR1, vYR, vGO, vPO, vOO, vRW, vRR, vY8, vZ0 = range(32, 48)
vZ1, vFL, vTG, vMB = 50, 51, 52, 54
sUB, sCH = 64, 66
a("v_and_b32 v5, 31, v0")
a("v_lshlrev_b32 v5, 2, v5")
a(f"v_mov_b32 {vr(vCNT)}, {CNT}")
a(f"v_mov_b32 {vr(vONE)}, 1")
a(f"s_mov_b32 {sr(sHB)}, 0")
a(f"s_mov_b32 {sr(sMASK)}, 0xffff0000")
a("v_lshrrev_b32 v53, 5, v0")
a(f"v_lshl_add_u32 {vr(vA)}, v53, 13, v5")
a(f"v_lshl_add_u32 {vr(vGO)}, v53, 14, v5")
a(f"s_lshl_b32 {sr(sA)}, {sr(sTBB)}, 16")
a(f"s_lshl_b32 {sr(sT0)}, {sr(sDB)}, 7")
a(f"s_add_u32 {sr(sA)}, {sr(sA)}, {sr(sT0)}")
a(f"s_sub_u32 {sr(sT2)}, {sr(sA)}, 0xc00")
a(f"v_add_u32 {vr(vH)}, {sr(sT2)}, {vr(vA)}")
a(f"v_lshlrev_b32 {vr(vSH)}, 2, v5")
a("v_xor_b32 v6, 7, v53")
a("v_xor_b32 v6, v6, v0")
a("v_and_b32 v6, 7, v6")
a("v_lshlrev_b32 v6, 4, v6")
a(f"v_lshl_add_u32 {vr(vPW)}, v5, 5, v6")
a("v_lshrrev_b32 v7, 1, v0")
a("v_xor_b32 v7, v53, v7")
a("v_and_b32 v7, 7, v7")
a("v_lshlrev_b32 v7, 4, v7")
a("v_lshl_add_u32 v7, v5, 5, v7")
a(f"v_add_u32 {vr(vYR)}, {YB}, v7")
a("v_lshrrev_b32 v6, 3, v0")
a("v_xor_b32 v7, v6, v0")
a("v_and_b32 v7, 7, v7")
a("v_lshlrev_b32 v7, 4, v7")
a(f"v_lshl_add_u32 {vr(vPR)}, v6, 7, v7")
a("v_and_b32 v7, 7, v0")
a("v_lshlrev_b32 v7, 4, v7")
a(f"v_lshl_add_u32 {vr(vPG)}, v6, 13, v7")
a("v_lshrrev_b32 v7, 1, v6")
a("v_xor_b32 v7, v7, v0")
a("v_and_b32 v7, 7, v7")
a("v_lshlrev_b32 v7, 4, v7")
a(f"v_lshl_add_u32 {vr(vYS)}, v6, 13, v7")
a(f"v_lshlrev_b32 {vr(vHS)}, 4, v0")
a("v_cmp_eq_u32 vcc, 0, v0")
a(f"v_subrev_u32 v6, 8, {vr(vHS)}")
a("v_bfrev_b32 v7, 2")
a(f"v_cndmask_b32 {vr(vHP)}, v6, v7, vcc")
a(f"v_add_u32 {vr(vHW)}, {HB + 384}, {vr(vHS)}")
a("v_and_b32 v6, 3, v1")
a(f"v_mul_u32_u24 v6, {HSTR}, v6")
a("v_bfe_u32 v53, v1, 2, 2")
a("v_lshl_add_u32 v6, v53, 7, v6")
a("v_and_b32 v7, 0x30, v1")
a("v_add_u32 v6, v6, v7")
a(f"s_mul_i32 {sr(sT0)}, {sr(sCT)}, {4*HSTR}")
a(f"s_lshl_b32 {sr(sT1)}, {sr(sTT)}, 8")
a(f"s_add_u32 {sr(sT0)}, {sr(sT0)}, {sr(sT1)}")
a(f"s_add_u32 {sr(sT0)}, {sr(sT0)}, {HB}")
a(f"v_add_u32 {vr(vHA)}, {sr(sT0)}, v6")
a("v_and_b32 v6, 15, v1")
a("v_lshlrev_b32 v6, 3, v6")
a("v_sub_u32 v6, v7, v6")
a(f"s_mul_i32 {sr(sUB)}, {sr(sCT)}, {USTR}")
a(f"s_add_u32 {sr(sUB)}, {sr(sUB)}, {UB}")
a(f"s_add_u32 {sr(sT0)}, {sr(sUB)}, {sr(sT1)}")
a(f"s_add_u32 {sr(sT0)}, {sr(sT0)}, 120")
a(f"v_add_u32 {vr(vUA)}, {sr(sT0)}, v6")
a(f"v_lshlrev_b32 {vr(vL16)}, 4, v1")
a(f"v_lshlrev_b32 {vr(vY8)}, 3, v1")
a(f"v_lshlrev_b32 {vr(vFL)}, 9, v1")
a("v_and_b32 v6, 0x60, v5")
a("v_and_b32 v7, 28, v5")
a(f"v_lshl_add_u32 {vr(vMB)}, v6, 2, v7")
a(f"v_lshl_add_u32 {vr(vRW)}, {sr(sHH)}, 12, {vr(vL16)}")
a(f"v_xor_b32 {vr(vRR)}, 0x2000, {vr(vRW)}")
a(f"v_add_u32 {vr(vRW)}, {RED}, {vr(vRW)}")
a(f"v_add_u32 {vr(vRR)}, {RED}, {vr(vRR)}")
a("v_min_u32 v6, 23, v1")
a(f"s_mul_i32 {sr(sT0)}, {sr(sHH)}, {HSTR}")
a(f"s_add_u32 {sr(sT0)}, {sr(sT0)}, {HB}")
a(f"v_lshl_add_u32 {vr(vZ0)}, v6, 4, {sr(sT0)}")
a("v_and_b32 v6, 7, v1")
a(f"v_lshl_add_u32 {vr(vZ1)}, v6, 4, {sr(sUB)}")
a(f"s_lshl_b32 {sr(sT0)}, {sr(sDB)}, 5")
a(f"s_add_u32 {sr(sT0)}, {sr(sT0)}, {sr(sTBB)}")
a(f"s_lshl_b32 {sr(sCH)}, {sr(sT0)}, 13")
a("v_lshrrev_b32 v6, 4, v0")
a("v_lshlrev_b32 v7, 2, v6")
a("v_xor_b32 v7, v7, v0")
a("v_and_b32 v7, 15, v7")
a("v_lshlrev_b32 v7, 4, v7")
a("v_lshl_add_u32 v6, v6, 10, v7")
a(f"s_and_b32 {sr(sT0)}, {sr(sTBB)}, 3")
a(f"v_lshl_add_u32 {vr(vWO)}, {sr(sT0)}, 8, v6")
a("v_lshrrev_b32 v7, 5, v1")
a("v_lshl_add_u32 v7, v7, 2, v53")
a(f"v_xor_b32 v6, {sr(sHH)}, v53")
a("v_lshlrev_b32 v6, 6, v6")
a("v_lshl_add_u32 v6, v7, 8, v6")
a("v_and_b32 v7, 1, v1")
a("v_lshl_add_u32 v6, v7, 5, v6")
a("v_and_b32 v7, 16, v1")
a("v_add_u32 v6, v6, v7")
a("v_and_b32 v7, 2, v1")
a(f"v_lshl_add_u32 {vr(vWR0)}, v7, 2, v6")
a(f"v_add_u32 {vr(vWR1)}, 0x10000, {vr(vWR0)}")
a(f"v_and_b32 {vr(vPO)}, 28, v5")
a("v_and_b32 v6, 32, v1")
a(f"v_lshl_add_u32 {vr(vOO)}, v5, 9, v6")
CY, CB, CA = 64, 96, 128
for j in range(16): a(f"v_mov_b64 {vr(CY+2*j,2)}, 0")
a("s_waitcnt lgkmcnt(0)")
for r, p in ((WO, 80), (BQ, 82), (BK, 84), (BV, 86), (SH, 92), (HK, 94), (DD, 96), (OUT, 98)):
    a(f"s_mov_b64 {sr(r,2)}, {sr(p,2)}")
for r in (BK, BV, HK, BQ): a(f"s_mov_b64 {sr(r+2,2)}, {sr(X+2,2)}")
for r, n in ((SH, 4096), (DD, 1024), (WO, 0x80000), (OUT, 0x400000)):
    a(f"s_mov_b32 {sr(r+2)}, {hex(n)}"); a(f"s_mov_b32 {sr(r+3)}, {sr(X+3)}")
make_tag()
a(f"v_mov_b32 {vr(vTG)}, {sr(sTAG)}")
for j in range(8):
    dma_half(j + 2)
    a(f"s_waitcnt vmcnt({HSZ[j+1] + HSZ[j+2]})"); a("s_barrier")
    if j == 0: stamp("B1")
stamp("B4")
KR, VR, SR, DR = 128, 140, 148, 139
KP, WJ, VP, DP, UU, HR = 160, 184, 192, 208, 212, 232
def p0_loads():
    a(f"s_add_u32 {sr(sT2)}, {sr(sA)}, 0x1000")
    a(f"s_lshl_b32 {sr(sT0)}, {sr(sDB)}, 7")
    a(f"s_lshl_b32 {sr(sT1)}, {sr(sDB)}, 9")
    ls = [lambda: bload(SR, 4, vSH, SH, sr(sT1))]
    ls += [lambda i=i: bload(KR + i, 1, vH, BK, 0, 1024 * i) for i in range(3)]
    ls += [lambda i=i: bload(KR + 3 + i, 1, vA, BK, sr(sA if i < 4 else sT2), 1024 * (i & 3)) for i in range(8)]
    ls += [lambda i=i: bload(VR + i, 1, vA, BV, sr(sA if i < 4 else sT2), 1024 * (i & 3)) for i in range(8)]
    ls += [lambda: bload(DR, 1, 5, DD, sr(sT0))]
    for i, f in enumerate(ls):
        if OPT["p0w"] and i >= OPT["p0w"]: a(f"s_waitcnt vmcnt({OPT['p0w'] - 1})")
        f()
def h_loads():
    a(f"s_add_u32 {sr(sT2)}, {sr(sCH)}, 0x1000")
    for c in range(2):
        bload(HR + 6*c, 2, vHP, HK, sr(sT2 if c else sCH)); bload(HR + 6*c + 2, 4, vHS, HK, sr(sT2 if c else sCH))
a("s_waitcnt vmcnt(4)"); dma_wq(2)
a("s_waitcnt vmcnt(4)"); dma_wq(3)
mbox(MB_KV, sHQ, sTB, 11)
a("s_waitcnt vmcnt(0)"); a("s_barrier")
only_wave(4, lambda: push(4, vFL, vTG, sr(sT0)))
stamp("B5")
a("s_barrier")
hprio(OPT["sp"])
hbar(4, 1)
p0_loads()
NH = 4 if OPT["hat"] == 0 else 0
if NH: h_loads()
hprio(OPT["ep"])
a(f"s_waitcnt vmcnt({9 + NH})")
if OPT["hst"]: xstamp(9, "k landed")
lo(WJ+0, SR); lo(WJ+1, SR+2); hi(WJ+2, SR); hi(WJ+3, SR+2)
lo(WJ+4, SR+1); lo(WJ+5, SR+3); hi(WJ+6, SR+1); hi(WJ+7, SR+3)
for i in range(11): lo(KP + 2*i, KR + i); hi(KP + 2*i + 1, KR + i)
for j in range(8): a(f"v_pk_mul_f32 {vr(UU+2*j,2)}, {vr(KP+2*j,2)}, {vr(WJ+6,2)}")
for t in (2, 1, 0):
    for j in range(8):
        a(f"v_pk_fma_f32 {vr(UU+2*j,2)}, {vr(KP+2*(j+3-t),2)}, {vr(WJ+2*t,2)}, {vr(UU+2*j,2)}")
if OPT["hst"]: xstamp(10, "conv4")
a(f"s_waitcnt vmcnt({NH})")
if OPT["hst"]: xstamp(11, "v landed")
for i in range(8): lo(VP + 2*i, VR + i); hi(VP + 2*i + 1, VR + i)
for j in range(8): a(f"v_pk_mul_f32 {vr(UU+2*j,2)}, {vr(UU+2*j,2)}, {vr(VP+2*j,2)}")
for c in range(2):
    for i in range(4): cvt(KP + 4*c + i, UU + 2*(7 - 2*i) + c, UU + 2*(6 - 2*i) + c)
dsw("ds_write_b128", vPW, KP, 4, P0S); dsw("ds_write_b128", vPW, KP + 4, 4, P0S + 4096)
lo(DP, DR); hi(DP + 1, DR)
for j in range(8): a(f"v_pk_mul_f32 {vr(UD+2*j,2)}, {vr(UU+2*j,2)}, {vr(DP,2)}")
HT = [VP, 168]
def h_shift():
    for c in range(2):
        D = [HR + 6*c + j for j in range(6)]
        for j in range(4): a(f"v_alignbit_b32 {vr(HT[c]+j)}, {vr(D[2+j])}, {vr(D[1+j])}, 16")
        for j in range(4): a(f"v_mov_b32 {vr(HT[c]+4+j)}, {vr(D[1+j])}")
        for j in range(4): a(f"v_alignbit_b32 {vr(HT[c]+8+j)}, {vr(D[1+j])}, {vr(D[j])}, 16")
if OPT["hat"] == 1: h_loads()
stamp("p0 done")
hprio(OPT["sp"])
a(f"s_lshl_b32 {sr(sT0)}, {sr(sDB)}, 18")
a(f"s_sub_u32 {sr(sT1)}, 31, {sr(sTBB)}")
a(f"s_lshl_b32 {sr(sT1)}, {sr(sT1)}, 7")
a(f"s_add_u32 {sr(sT3)}, {sr(sT0)}, {sr(sT1)}")
a(f"s_add_u32 {sr(sT3)}, {sr(sT3)}, {UT}")
a(f"s_add_u32 {sr(sT2)}, {sr(sT3)}, 0x1000")
a("s_waitcnt lgkmcnt(0)")
hbar()
stamp("hb1")
dsr("ds_read_b128", KP, 4, vPR, P0S); dsr("ds_read_b128", KP + 4, 4, vPR, P0S + 4096)
a("s_waitcnt lgkmcnt(1)")
bstore(KP, 4, vPG, WS, sr(sT3), 0, "sc1")
a("s_waitcnt lgkmcnt(0)")
bstore(KP + 4, 4, vPG, WS, sr(sT2), 0, "sc1")
dsw("ds_write_b128", vZ0, CY, 4); dsw("ds_write_b128", vZ0, CY, 4, 4*HSTR); dsw("ds_write_b128", vZ1, CY, 4, 4096)
hprio(OPT["ep"]); a("s_waitcnt vmcnt(2)"); h_shift(); hprio(OPT["sp"])
for c in range(2):
    dsw("ds_write_b128", vHW, HR + 6*c + 2, 4, (4*c + 3)*HSTR)
    dsw("ds_write_b128", vHW, HT[c], 4, (4*c + 2)*HSTR)
    dsw("ds_write_b128", vHW, HT[c]+4, 4, (4*c + 1)*HSTR)
    dsw("ds_write_b128", vHW, HT[c]+8, 4, (4*c)*HSTR)
mbox(MB_U, sDB, sTBB, 9)
a("s_waitcnt vmcnt(0)")
arrive(8, lambda: bstore(vTG, 1, vFL, WS, sr(sT0), flags="sc1"))
stamp("u pushed")
QG = 56
a(f"s_add_u32 {sr(sT2)}, {sr(sA)}, 0x1000")
for i in range(8): bload(QG + i, 1, vA, BQ, sr(sA if i < 4 else sT2), 1024 * (i & 3))
def wo_init(first, n):
    a(f"s_lshr_b32 {sr(sT0)}, {sr(sTBB)}, 2")
    a(f"s_mul_i32 {sr(sT0)}, {sr(sT0)}, {n // 8 * 4096}")
    if first: a(f"s_add_u32 {sr(sT0)}, {sr(sT0)}, {first * 4096}")
def wo_piece(first, n):
    a(f"s_add_u32 m0, {sr(sM0)}, {sr(sT0)}")
    a(f"s_lshl_b32 {sr(sSX)}, {sr(sT0)}, 2")
    dma(vWO, WO, sr(sSX))
    a(f"s_add_u32 {sr(sT0)}, {sr(sT0)}, 0x1000")
    a(f"s_cmp_eq_u32 {sr(sT0)}, {(first + n) * 4096}")
    a(f"s_cselect_b32 {sr(sT0)}, {first * 4096}, {sr(sT0)}")
a(f"s_lshr_b32 {sr(sT1)}, {sr(sM0)}, 3")
a(f"s_add_u32 {sr(sT3)}, {sr(sT3)}, {sr(sT1)}")
a(f"s_xor_b32 {sr(sT1)}, {sr(sM0)}, 0xc00")
a(f"s_add_u32 {sr(sT2)}, {sr(sCH)}, {sr(sT1)}")
a(f"s_add_u32 {sr(sT2)}, {sr(sT2)}, {UT}")
a(f"s_add_u32 m0, {sr(sT1)}, {UB}")
a("s_waitcnt vmcnt(0)")
if OPT["usl"]: a(f"s_sleep {OPT['usl']}")
poll(vPO, 6, sr(sT3))
dma(vL16, WS, sr(sT2), "sc1")
a(f"s_addk_i32 m0, {USTR}")
a(f"s_add_u32 {sr(sT2)}, {sr(sT2)}, 0x1000")
dma(vL16, WS, sr(sT2), "sc1")
a(f"s_lshl_b32 {sr(sT0)}, {sr(sCT)}, 12")
a(f"s_add_u32 {sr(sCH)}, {sr(sCH)}, {sr(sT0)}")
a(f"s_mov_b32 {sr(sPASS)}, 0")
wo_init(0, 24)
a("s_waitcnt vmcnt(0)")
hbar()
hprio(OPT["cp"])
stamp("u landed")
a.label("L_conv")
for i in range(8):
    dsr("ds_read_b64", CB + 4*i, 2, vUA, 3584 - 512*i); dsr("ds_read_b64", CB + 4*i + 2, 2, vUA, 3584 - 512*i + 8)
for ai in range(8):
    dsr("ds_read_b128", CA, 4, vHA, 512*ai)
    if ai < 6: wo_piece(0, 24)
    a("s_waitcnt lgkmcnt(0)")
    for bi in range(8 - ai): mfma16(CY + 4*(ai + bi), CA, CB + 4*bi, CY + 4*(ai + bi))
if OPT["cp"] != OPT["ep"]: hprio(OPT["ep"])
a(f"v_add_u32 {vr(vUA)}, 64, {vr(vUA)}")
a(f"v_add_u32 {vr(vHA)}, 64, {vr(vHA)}")
if OPT["cp"] != OPT["ep"]: hprio(OPT["cp"])
a(f"s_add_u32 {sr(sPASS)}, {sr(sPASS)}, 1")
a(f"s_cmp_lg_u32 {sr(sPASS)}, 4")
a("s_cbranch_scc1 L_conv")
stamp("conv done")
hprio(OPT["sp"])
a(f"s_lshl_b32 {sr(sT0)}, {sr(sTT)}, 11")
a(f"s_add_u32 {sr(sCH)}, {sr(sCH)}, {sr(sT0)}")
a(f"s_add_u32 {sr(sCH)}, {sr(sCH)}, {YT}")
a(f"s_cmp_lg_u32 {sr(sTT)}, 0")
a("s_cbranch_scc1 L_red1")
def reduce_store(keep, send):
    for j in range(4): dsw("ds_write_b128", vRW, send + 4*j, 4, 1024*j)
    a("s_waitcnt lgkmcnt(0)")
    hbar()
    for j in range(4): dsr("ds_read_b128", CB + 4*j, 4, vRR, 1024*j)
    hprio(OPT["ep"])
    a("s_waitcnt lgkmcnt(0)")
    for j in range(8): a(f"v_pk_add_f32 {vr(CB + 2*j, 2)}, {vr(CB + 2*j, 2)}, {vr(keep + 2*j, 2)}")
reduce_store(CY, CY + 16)
a("s_branch L_red2")
a.label("L_red1")
reduce_store(CY + 16, CY)
a.label("L_red2")
for j in range(8): cvt(CY + j, CB + 2*j, CB + 2*j + 1)
hprio(OPT["sp"])
for j in range(4): bstore(CY + 2*j, 2, vY8, WS, sr(sCH), 512*j, "sc1")
mbox(MB_Y, sDB, sTBB, 9)
a("s_waitcnt vmcnt(0)")
arrive(12, lambda: bstore(vTG, 1, vFL, WS, sr(sT0), flags="sc1"))
wo_init(24, 8)
a(f"s_mov_b32 {sr(sT1)}, 0")
a.label("L_wo")
wo_piece(24, 8)
a(f"s_add_u32 {sr(sT1)}, {sr(sT1)}, 1")
a(f"s_cmp_lg_u32 {sr(sT1)}, 8")
a(f"s_waitcnt vmcnt({OPT['wpace']})")
a("s_cbranch_scc1 L_wo")
a(f"s_lshr_b32 {sr(sT1)}, {sr(sM0)}, 3")
a(f"s_add_u32 {sr(sT3)}, {sr(sT3)}, {sr(sT1)}")
if OPT["ysl"]: a(f"s_sleep {OPT['ysl']}")
poll(vPO, 6, sr(sT3))
a(f"s_lshl_b32 {sr(sT0)}, {sr(sDB)}, 18")
a(f"s_lshl_b32 {sr(sT1)}, {sr(sTBB)}, 7")
a(f"s_add_u32 {sr(sT0)}, {sr(sT0)}, {sr(sT1)}")
a(f"s_add_u32 m0, {sr(sM0)}, {YB}")
a(f"s_add_u32 {sr(sT0)}, {sr(sT0)}, {YT}")
dma(vYS, WS, sr(sT0), "sc1")
a(f"s_add_u32 m0, {sr(sM0)}, {YB + 4096}")
a(f"s_add_u32 {sr(sT0)}, {sr(sT0)}, 0x1000")
dma(vYS, WS, sr(sT0), "sc1")
if OPT["map"]:
    a(f"s_lshr_b32 {sr(sT0)}, {sr(sTBB)}, 2")
    a(f"s_lshl3_add_u32 {sr(sSX)}, {sr(sDB)}, {sr(sT0)}")
else:
    a(f"s_lshr_b32 {sr(sT0)}, {sr(sHQ)}, 2")
    a(f"s_lshl1_add_u32 {sr(sSX)}, {sr(sTB)}, {sr(sT0)}")
a(f"s_lshl2_add_u32 {sr(sT0)}, {sr(sSX)}, {sr(sHH)}")
a(f"s_lshl_b32 {sr(sT0)}, {sr(sT0)}, 7")
a(f"s_add_u32 {sr(sT3)}, {sr(sT0)}, {MB_O}")
a(f"s_lshl_b32 {sr(sT0)}, {sr(sSX)}, 15")
a(f"s_lshl3_add_u32 {sr(sT0)}, {sr(sM0)}, {sr(sT0)}")
a(f"s_add_u32 {sr(sSW)}, {sr(sT0)}, {OF}")
a(f"s_lshl_b32 {sr(sSX)}, {sr(sSX)}, 16")
a(f"s_and_b32 {sr(sT1)}, {sr(sTBB)}, 3")
a(f"s_lshl2_add_u32 {sr(sT1)}, {sr(sT1)}, {sr(sHH)}")
a(f"s_lshl_b32 {sr(sT1)}, {sr(sT1)}, 6")
a(f"s_add_u32 {sr(sSX)}, {sr(sSX)}, {sr(sT1)}")
a(f"s_lshl_b32 {sr(sA)}, {sr(sTBB)}, 17")
a(f"s_lshl_b32 {sr(sT2)}, {sr(sDB)}, 7")
a(f"s_add_u32 {sr(sA)}, {sr(sA)}, {sr(sT2)}")
a(f"s_lshl_b32 m0, {sr(sM0)}, 3")
a(f"s_add_u32 {sr(sT2)}, {sr(sSW)}, 0x1000")
a("s_waitcnt vmcnt(0)")
if not OPT["hst"]: stamp("staged")
a("s_barrier")
GQ, GY, YY = 64, 80, 96
dsr("ds_read_b128", YY, 4, vYR); dsr("ds_read_b128", YY + 4, 4, vYR, 4096)
WOF = 128
gate = []
for j in range(8): gate += [lambda j=j: lo(GQ + 2*j, QG + j), lambda j=j: hi(GQ + 2*j + 1, QG + j)]
gate.append(lambda: a("s_waitcnt lgkmcnt(15)"))
for c in range(2):
    for i in range(4): gate += [lambda c=c, i=i: lo(GY + 4*i + c, YY + 4*c + i), lambda c=c, i=i: hi(GY + 4*i + 2 + c, YY + 4*c + i)]
for j in range(8): gate.append(lambda j=j: a(f"v_pk_add_f32 {vr(GY+2*j,2)}, {vr(GY+2*j,2)}, {vr(UD+2*j,2)}"))
for j in range(8): gate.append(lambda j=j: a(f"v_pk_mul_f32 {vr(GY+2*j,2)}, {vr(GY+2*j,2)}, {vr(GQ+2*j,2)}"))
for j in range(8): gate.append(lambda j=j: cvt(QG + j, GY + 2*j, GY + 2*j + 1))
for p in range(32):
    for part in range(2):
        dsr("ds_read_b64_tr_b16", WOF + 4*p + 2*part, 2, vWR0 + (p >> 4), ((p & 15) * 16 + 8*part) * 256)
        if gate: gate.pop(0)()
assert not gate
a("s_waitcnt lgkmcnt(0)")
if not OPT["hst"]: stamp("gate done")
a("s_barrier")
poll(vPO, 6, sr(sT3), False, 1)
if not OPT["hst"]: stamp("o flags")
for i in range(4):
    a(f"buffer_load_dwordx4 {vr(vL16)}, {sr(WS,4)}, {sr(sSW)} offen offset:{1024*i} sc1 lds")
a("s_addk_i32 m0, 0x1000")
a("s_nop 0")
for i in range(4):
    a(f"buffer_load_dwordx4 {vr(vL16)}, {sr(WS,4)}, {sr(sT2)} offen offset:{1024*i} sc1 lds")
gfl = OPT["gfl"].replace("_", " ")
a("s_waitcnt vmcnt(0)"); a("s_barrier")
if not OPT["hst"]: stamp("o landed")
OFR, PA = 64, 16
for p in range(12): dsr("ds_read_b128", OFR + 4*p, 4, vL16, 1024*p)
for p in range(32):
    a(f"s_waitcnt lgkmcnt({min(32, p + 12) - p - 1})")
    mfma32(PA, WOF + 4*p, OFR + 4*(p & 15), None if p == 0 else PA)
    if p + 12 < 32: dsr("ds_read_b128", OFR + 4*((p + 12) & 15), 4, vL16, 1024*(p + 12))
    if p & 1 and p < 16:
        j = p >> 1
        bstore(QG + j, 1, vGO, OUT, sr(sA), 3072 if j & 1 else 1024, gfl)
        if j & 1 and j < 7: a(f"s_add_u32 {sr(sA)}, {sr(sA)}, 0x1000")
a(f"s_or_b32 {sr(sT0)}, s2, {sr(sHH)}")
a("s_cbranch_scc1 L_noep")
a(f"v_mov_b32 v6, {EP}")
a("s_mov_b64 exec, 1")
bstore(vTG, 1, 6, WS, 0, flags="sc1")
a("s_mov_b64 exec, -1")
a.label("L_noep")
a("s_nop 9")
pfl = OPT["pfl"].replace("_", " ")
for j in range(4): cvt(8 + j, PA + 2*j, PA + 2*j + 1)
bstore(8, 4, vOO, OUT, sr(sSX), 0, pfl)
for j in range(4, 8): cvt(8 + j, PA + 2*j, PA + 2*j + 1)
bstore(12, 4, vOO, OUT, sr(sSX), 16, pfl)
if DIAG or OPT["enc"] or OPT["spin"]: finish(13 if DIAG == 1 else 11)
else: a("s_endpgm")

a.label("L_main")
if OPT["wpf"]:
    n = {1: 12, 2: 4}[OPT["wpf"]]
    a(f"s_lshl2_add_u32 {sr(sT0)}, {sr(sTB)}, {sr(sW)}")
    a(f"s_mul_i32 {sr(sT0)}, {sr(sT0)}, 12*1024")
    a(f"s_lshl_b32 {sr(sT1)}, {sr(sHQ)}, 7")
    a(f"s_add_u32 {sr(sT0)}, {sr(sT0)}, {sr(sT1)}")
    a("v_and_b32 v6, 63, v0")
    a(f"v_min_u32 v6, {n - 1}, v6")
    a(f"v_mul_u32_u24 v6, {12 // n * 1024}, v6")
    a(f"v_add_u32 v6, {sr(sT0)}, v6")
a("s_waitcnt lgkmcnt(0)")
if OPT["wpf"]: a(f"global_load_dword v57, v6, {sr(W,2)}")
common_setup()
XF, WF, ACK, ACV, ACQ = 128, 96, 64, 80, 64
vXR, vWR, vXB, vWB, vXT = 50, 51, 52, 53, 54
O0, O1, S0, S1, C0, C1 = 16, 32, 48, 64, 80, 96
Q0, Q1 = 112, 116
vIDX, vKA, vVA = 8, 9, 10
vCON = 12
vKS, vVS, vKL, vVL, vQW, vQR = 2, 3, 5, 11, 14, 15
RING = 128
def rK(i): return RING + 12 * (i & 7)
def rVa(i): return RING + 12 * (i & 7) + 4
def rVb(i): return RING + 12 * (i & 7) + 8
a("v_bfe_u32 v6, v1, 2, 2")
a("v_lshrrev_b32 v32, 5, v1")
a("v_lshl_add_u32 v33, v32, 3, v6")
a("v_lshrrev_b32 v6, 1, v6")
a(f"v_xor_b32 v6, {sr(sCT)}, v6")
a("v_lshlrev_b32 v6, 6, v6")
a("v_lshl_add_u32 v33, v33, 7, v6")
a("v_and_b32 v6, 16, v1")
a("v_lshl_add_u32 v33, v6, 1, v33")
a("v_and_b32 v6, 3, v1")
a(f"v_lshl_add_u32 {vr(vWR)}, v6, 3, v33")
a("v_and_b32 v6, 31, v1")
a("v_xor_b32 v33, v32, v6")
a("v_and_b32 v33, 15, v33")
a("v_lshlrev_b32 v33, 4, v33")
a(f"v_lshl_add_u32 v6, {sr(sTT)}, 5, v6")
a(f"v_lshl_add_u32 {vr(vXR)}, v6, 8, v33")
a("v_and_b32 v33, 0x33, v1")
a("v_and_b32 v7, 4, v1")
a("v_lshl_or_b32 v33, v7, 1, v33")
a("v_and_b32 v7, 8, v1")
a("v_lshrrev_b32 v7, 1, v7")
a("v_or_b32 v6, v7, v33")
a(f"v_lshlrev_b32 {vr(vKS)}, 4, v6")
a("v_and_b32 v7, 15, v1")
a("v_lshlrev_b32 v7, 4, v7")
a("v_lshl_add_u32 v33, v32, 8, v7")
a("v_bfe_u32 v6, v1, 4, 1")
a(f"v_lshl_add_u32 {vr(vVS)}, v6, 17, v33")
a(f"s_lshl2_add_u32 {sr(sT0)}, {sr(sCT)}, {sr(sTT)}")
a(f"s_lshl_b32 {sr(sT1)}, {sr(sT0)}, 11")
a(f"s_add_u32 {sr(sT1)}, {sr(sT1)}, {KVL}")
a(f"v_add_u32 {vr(vKL)}, {sr(sT1)}, {vr(vKS)}")
a("v_lshl_add_u32 v6, v6, 12, v33")
a(f"v_add_u32 {vr(vVL)}, {sr(sT1)}, v6")
a(f"s_lshl_b32 {sr(sT0)}, {sr(sT0)}, 10")
a(f"v_lshl_add_u32 {vr(vQW)}, v1, 4, {sr(sT0)}")
a(f"s_lshl_b32 {sr(sT0)}, {sr(sHH)}, 11")
a(f"v_lshl_add_u32 {vr(vQR)}, v1, 4, {sr(sT0)}")
a(f"s_lshl2_add_u32 {sr(sT0)}, {sr(sHQ)}, {sr(sHH)}")
a(f"s_lshl_b32 {sr(sT0)}, {sr(sT0)}, 17")
a(f"v_lshl_add_u32 {vr(vKA)}, v1, 4, {sr(sT0)}")
a(f"v_add_u32 {vr(vVA)}, {sr(sT0)}, v33")
a(f"s_lshl_b32 {sr(sT0)}, {sr(sHH)}, 12")
a(f"s_add_u32 {sr(sT0)}, {sr(sT0)}, {KVL}")
a(f"v_lshl_add_u32 v48, v1, 4, {sr(sT0)}")
a(f"v_add_u32 v49, {sr(sT0)}, v33")
a(f"v_mov_b32 {vr(vIDX)}, 0xdddddddd")
a(f"s_mov_b32 {sr(sHALF)}, 0xffff"); a(f"s_mov_b32 {sr(sHALF+1)}, {sr(sHALF)}")
a(f"s_mov_b32 {sr(sAND)}, 0x1ffff")
a(f"s_mov_b32 {sr(sREDO)}, 0")
a("v_and_b32 v7, 0x1b, v1"); a("v_cmp_eq_u32 vcc, 16, v7")
a("v_mov_b32 v6, 0x3f803f80")
a(f"s_add_u32 {sr(sOFF)}, {sr(sTB)}, 1")
a(f"v_cndmask_b32 {vr(vCON)}, 0, v6, vcc")
a(f"v_cndmask_b32 {vr(vCON+1)}, 0, v6, vcc")
a(f"s_and_b32 {sr(sOFF)}, {sr(sOFF)}, 31")
a(f"s_lshl_b32 {sr(sOFF)}, {sr(sOFF)}, 12")
for j in range(8): a(f"v_mov_b64 {vr(O0+2*j,2)}, 0")
a(f"s_lshl1_add_u32 {sr(sT0)}, {sr(sHQ)}, {sr(sCT)}")
a(f"s_lshl_b32 {sr(sT0)}, {sr(sT0)}, 18")
a(f"s_lshl1_add_u32 {sr(sT1)}, {sr(sTB)}, {sr(sTT)}")
a(f"s_lshl_b32 {sr(sT1)}, {sr(sT1)}, 11")
a(f"s_add_u32 {sr(sT3)}, {sr(sT0)}, {sr(sT1)}")
a(f"s_add_u32 {sr(sT2)}, {sr(sT3)}, 0x20000")
if OPT["tlb"]:
    for r, o in ((14, sT3), (15, sT2)): a(f"s_load_dword s{r}, {sr(WS,2)}, {sr(o)}")
if OPT["prew"] >= 3:
    a("s_mov_b64 exec, 1")
    if OPT["prew"] == 3: bstore(O0, 4, vKS, WS, sr(sT3), 0, "sc1")
    if OPT["prew"] == 4: bload(56, 1, vKS, WS, sr(sT3), 0, "sc1")
    if OPT["prew"] == 5: bstore(O0, 4, vKS, WS, sr(sT3), 0, "")
    a("s_mov_b64 exec, -1")
    a("s_waitcnt vmcnt(1) lgkmcnt(0)")
elif OPT["prew"]:
    fl = {1: "sc1", 2: ""}[OPT["prew"]]
    bstore(O0, 4, vKS, WS, sr(sT3), 0, fl); bstore(O0, 4, vKS, WS, sr(sT2), 0, fl)
    bstore(O0, 4, vVS, WS, sr(sT3), 1024, fl); bstore(O0, 4, vVS, WS, sr(sT3), 1536, fl)
    a("s_waitcnt vmcnt(4) lgkmcnt(0)")
else: a("s_waitcnt lgkmcnt(0)")
make_tag()

def kv_gemm():
    def rd(i):
        c, s = i >> 3, i & 7
        if s == 0:
            a(f"v_add_u32 {vr(vXB)}, {SLOT[c % 3]}, {vr(vXR)}")
            a(f"v_add_u32 {vr(vWB)}, {SLOT[c % 3] + 16*K1}, {vr(vWR)}")
        f = WF + 8*(i & 3); t = vXT + (s & 1)
        if s: a(f"v_xor_b32 {vr(t)}, {32*s}, {vr(vXB)}")
        if s & 3 == 0:
            a("s_barrier")
            if i == 0: stamp("B1")
            if i == 28: stamp("B4")
        dsr("ds_read_b128", XF + 4*i, 4, t if s else vXB)
        dsr("ds_read_b64_tr_b16", f, 2, vWB, 2048*s); dsr("ds_read_b64_tr_b16", f + 2, 2, vWB, 2048*s + 512)
    def rdv(i):
        s = i & 7; f = WF + 8*(i & 3) + 4
        dsr("ds_read_b64_tr_b16", f, 2, vWB, 16*K1 + 2048*s); dsr("ds_read_b64_tr_b16", f + 2, 2, vWB, 16*K1 + 2048*s + 512)
    for lo_, hi_, D in ((0, 28, OPT["gd"]), (28, 32, 3)):
        for i in range(lo_, lo_ + D): rd(i); rdv(i)
        for i in range(lo_, hi_):
            x, f = XF + 4*i, WF + 8*(i & 3)
            n = 5 * (min(hi_, i + D) - i - 1)
            a(f"s_waitcnt lgkmcnt({n + 2})")
            mfma32(ACK, f, x, None if i == 0 else ACK)
            if i + D < hi_: rd(i + D); n += 3
            a(f"s_waitcnt lgkmcnt({n})")
            mfma32(ACV, x, f + 4, None if i == 0 else ACV)
            if i + D < hi_: rdv(i + D)
def q_gemm(side):
    def rd(i):
        c, s = i >> 3, i & 7
        if s == 0: a(f"v_add_u32 {vr(vXT + (c & 1))}, {WQ[c]}, {vr(vWR)}")
        if OPT["late"] and i == 32 - 8 * OPT["late"]: a("s_barrier")
        if i == 16 and OPT["two"]:
            a("s_waitcnt vmcnt(0)"); xstamp(10, "acked"); a("s_barrier"); stamp("B5")
        dsr("ds_read_b64_tr_b16", WF + 4*(i & 7), 2, vXT + (c & 1), 2048*s)
        dsr("ds_read_b64_tr_b16", WF + 4*(i & 7) + 2, 2, vXT + (c & 1), 2048*s + 512)
    D = 4
    for i in range(D): rd(i)
    for i in range(32):
        extra = sum(side[j][1] for j in range(max(0, i - D), i) if j in side)
        a(f"s_waitcnt lgkmcnt({2 * (min(32, i + D) - i - 1) + extra})")
        mfma32(ACQ, WF + 4*(i & 7), XF + 4*i, None if i == 0 else ACQ)
        if i + D < 32: rd(i + D)
        if i in side: side[i][0]()
def vconst(i): return [f"v_mov_b64 {vr(rVa(i) + 2*j, 2)}, {vr(vCON,2)}" for j in range(4)]
sGB = 12
def gload(dst, vaddr, off): a(f"global_load_dwordx4 {vr(dst,4)}, {vr(vaddr)}, {sr(sGB,2)} offset:{off} " + OPT["ldfl"].replace("_", " "))
def adv1():
    a(f"s_add_u32 {sr(sOFF)}, {sr(sOFF)}, 0x1000")
    a(f"s_and_b32 {sr(sOFF)}, {sr(sOFF)}, {sr(sAND)}")
def adv2():
    a(f"s_add_u32 {sr(sGB)}, {sr(WS)}, {sr(sOFF)}")
    a(f"s_addc_u32 {sr(sGB+1)}, {sr(WS+1)}, 0")
def ring_fill(tiles):
    for i in tiles:
        o = 2048 * (i & 1)
        if not o: adv2()
        gload(rK(i), vKA, o)
        a(f"s_mov_b64 exec, {sr(sHALF,2)}")
        gload(rVa(i), vVA, o + 1024); gload(rVb(i), vVA, o + 1536)
        a("s_mov_b64 exec, -1")
        if o: adv1()
def rowmax(S, m, acc):
    k = 0
    if not acc:
        a(f"v_max3_f32 {vr(m)}, {vr(S)}, {vr(S+1)}, {vr(S+2)}"); k = 3
    while k < 16:
        a(f"v_max3_f32 {vr(m)}, {vr(m)}, {vr(S+k)}, {vr(S+min(k+1,15))}"); k += 2

kv_gemm()
a(f"v_mov_b32 v56, {CNT}")
dsw("ds_write_b128", 56, O0, 4)
a("s_nop 7")
for j in range(8): cvt(32 + j, ACK + 2*j, ACK + 2*j + 1)
kvfl = OPT["kvfl"].replace("_", " ")
bstore(32, 4, vKS, WS, sr(sT3), 0, kvfl); bstore(36, 4, vKS, WS, sr(sT2), 0, kvfl)
for j in range(8): cvt(40 + j, ACV + 2*j, ACV + 2*j + 1)
bstore(40, 4, vVS, WS, sr(sT3), 1024, kvfl); bstore(44, 4, vVS, WS, sr(sT3), 1536, kvfl)
dsw("ds_write_b128", vKL, 32, 4); dsw("ds_write_b128", vKL, 36, 4, 4096)
dsw("ds_write_b128", vVL, 40, 4, 1024); dsw("ds_write_b128", vVL, 44, 4, 1536)
xstamp(9, "kv stored")
mbox(MB_KV, sHQ, sTB, 11)
a(f"s_lshr_b32 {sr(sT1)}, {sr(sTB)}, 3")
a(f"s_lshl_b32 {sr(sT1)}, {sr(sT1)}, 9")
a(f"s_add_u32 {sr(sT3)}, {sr(sT3)}, {sr(sT1)}")
if OPT["two"]: a("s_waitcnt lgkmcnt(0)"); a("s_barrier"); xstamp(11, "B5a")
else: a("s_waitcnt vmcnt(0) lgkmcnt(0)"); xstamp(10, "acked"); a("s_barrier"); stamp("B5")
NK = 80
def lines(ls): return (lambda: [a(l) for l in ls], 0)
def own_k():
    for i in range(2): dsr("ds_read_b128", rK(i), 4, 48, 2048*i)
def own_v(i):
    a(f"s_mov_b64 exec, {sr(sHALF,2)}")
    dsr("ds_read_b128", rVa(i), 4, 49, 2048*i + 1024); dsr("ds_read_b128", rVb(i), 4, 49, 2048*i + 1536)
    a("s_mov_b64 exec, -1")
def ack():
    a("s_waitcnt vmcnt(0)")
    xstamp(10, "acked")
    a("s_mov_b64 exec, 1"); a("ds_add_rtn_u32 v7, v56, v7 offset:8"); a("s_mov_b64 exec, -1")
def signal():
    L = newlab("sig")
    a("v_readfirstlane_b32 s14, v7"); a("s_cmp_lg_u32 s14, 3"); a(f"s_cbranch_scc1 {L}")
    push(4, 2, 3, sr(sT0))
    a.label(L)
A_ = OPT["ackat"]
side = {0: (lambda: (a("v_and_b32 v6, 0xfffffe00, v48"), dsr("ds_read_b128", NK, 4, 6)), 1),
        2: lines(["v_bfe_u32 v6, v1, 3, 2", "v_and_b32 v5, 7, v1", "v_lshlrev_b32 v5, 2, v5", "v_lshl_add_u32 v5, v6, 7, v5"]),
        6: lines([f"v_xor_b32 {vr(NK+j)}, 0x80008000, {vr(NK+j)}" for j in range(4)]),
        8: lines(vconst(0)), 9: lines(vconst(1)), 10: (own_k, 2), 11: (lambda: own_v(0), 2), 12: (lambda: own_v(1), 2),
        21: lines(vconst(2)), 22: lines(vconst(3)), 23: lines(vconst(4)), 24: lines(vconst(5)), 25: lines(vconst(6)), 26: lines(vconst(7)),
        min(OPT["pollat"], 31): (lambda: only_wave(0, lambda: bload(4, 1, 5, WS, sr(sT3), flags="sc1")), 0),
        28: lines([f"v_mov_b64 {vr(O1+2*j,2)}, 0" for j in range(4)]), 29: lines([f"v_mov_b64 {vr(O1+2*j,2)}, 0" for j in range(4, 8)])}
q_gemm(side)
if OPT["prio"]: a("s_setprio 1")
a(f"s_mov_b32 {sr(sT2)}, {f2h(0.25 * math.log2(math.e))}")
a(f"s_mov_b32 {sr(sT1)}, {sr(sT2)}")
a(f"v_mov_b32 {vr(vCNT)}, v56"); a(f"v_mov_b32 {vr(vONE)}, 1"); a("s_nop 0")
a(f"s_mov_b32 {sr(sPASS)}, 0")
a("s_nop 4")
for j in range(8): a(f"v_pk_mul_f32 {vr(ACQ+2*j,2)}, {vr(ACQ+2*j,2)}, {sr(sT1,2)}")
for j in range(8): cvt(120 + j, ACQ + 2*j, ACQ + 2*j + 1)
dsw("ds_write_b128", vQW, 120, 4, QF); dsw("ds_write_b128", vQW, 124, 4, QF + 2048)
for j in range(4): a(f"v_mov_b64 {vr(S1+8+2*j,2)}, 0")
for j in range(2): a(f"v_mov_b64 {vr(S1+2*j,2)}, {vr(NK+2*j,2)}")
stamp("q done")
def kvpoll():
    a("s_waitcnt vmcnt(0)"); poll(5, 4, sr(sT3), True, 1)
only_wave(0, kvpoll)
a("s_waitcnt lgkmcnt(0)")
a("s_barrier")
stamp("B6")
PD = OPT["pd"]
dsr("ds_read_b128", Q0, 4, vQR, QF); dsr("ds_read_b128", Q1, 4, vQR, QF + 1024)
ring_fill([2])
a("s_waitcnt lgkmcnt(0)")
mfma32(C0, S1, Q0, None)
mfma32(S0, rK(0), Q0, C0)
mfma32(C1, S1, Q1, None)
ring_fill(range(3, PD))
a("s_mov_b64 exec, 1"); a(f"ds_add_u32 v2, {vr(vONE)}"); a("s_mov_b64 exec, -1")
a.label("L_fill")
stamp("loop start")
def E(S, x, y):
    for k in range(x, y + 1): a(f"v_exp_f32 {vr(S+k)}, {vr(S+k)}")
def PV(O, V, S): a(f"v_smfmac_f32_32x32x32_bf16 {vr(O,16)}, {vr(V,4)}, {vr(S,8)}, {vr(vIDX)}")
def iteration(i, last):
    ld = not last or i + PD < 8
    o = 2048 * ((i + PD) & 1)
    t = i + PD
    E(S0, 0, 1)
    PV(O1, rVb(i-1), S1 + 8)
    if ld:
        a(f"s_mov_b64 exec, {sr(sHALF,2)}")
        gload(rVa(t), vVA, o + 1024); gload(rVb(t), vVA, o + 1536)
        a("s_mov_b64 exec, -1")
    E(S0, 2, 5)
    mfma32(S1, rK(i), Q1, C1)
    if ld: gload(rK(t), vKA, o)
    else: a("s_nop 0")
    E(S0, 6, 9)
    PV(O0, rVa(i), S0)
    if o and ld: adv1()
    E(S0, 10, 15)
    E(S1, 0, 1)
    PV(O0, rVb(i), S0 + 8)
    if not (last and i == 7): a(f"s_waitcnt vmcnt({3 * (PD - 1) if ld else 18 - 3 * i})")
    if i == 7 and not last: a(f"s_add_u32 {sr(sPASS)}, {sr(sPASS)}, 1")
    E(S1, 2, 5)
    if not (last and i == 7):
        mfma32(S0, rK(i+1), Q0, C0)
        if i == 7: a(f"s_cmp_lg_u32 {sr(sPASS)}, 7")
        else: a("s_nop 0")
    E(S1, 6, 9)
    PV(O1, rVa(i), S1)
    if o and ld: adv2()
    if OPT["pt"] and i == 1: a("s_memrealtime s[92:93]")
    if OPT["pt"] and i == 3: a("s_waitcnt lgkmcnt(0)"); a(f"s_mov_b32 m0, {sr(sPASS)}"); a("v_writelane_b32 v15, s92, m0")
    E(S1, 10, 15)
a(".p2align 6")
a.label("L_loop")
for i in range(8): iteration(i, False)
a("s_cbranch_scc1 L_loop")
for i in range(8): iteration(i, True)
a("v_lshlrev_b32 v4, 4, v1")
a(f"v_rcp_f32 v6, {vr(O0+8)}")
PV(O1, rVb(7), S1 + 8)
stamp("loop end")
a(f"s_mov_b32 {sr(sT0)}, {f2h(2.0**40)}")
a(f"s_lshl2_add_u32 {sr(sT3)}, {sr(sHQ)}, {sr(sHH)}")
a(f"s_lshl_b32 {sr(sSX)}, {sr(sTB)}, 6")
a(f"s_add_u32 {sr(sSX)}, {sr(sSX)}, {sr(sT3)}")
a(f"s_lshl_b32 {sr(sSX)}, {sr(sSX)}, 10")
a(f"s_add_u32 {sr(sSX)}, {sr(sSX)}, {OF}")
a(f"s_add_u32 {sr(sSW)}, {sr(sSX)}, 0x8000")
for j in range(8): a(f"v_mul_f32 {vr(S1+j)}, v6, {vr(O0+j)}")
a(f"v_rcp_f32 v7, {vr(O1+8)}")
a(f"v_cmp_nle_f32 vcc, {vr(O0+8)}, {sr(sT0)}")
a(f"v_cmp_nle_f32 {sr(sT1,2)}, {vr(O1+8)}, {sr(sT0)}")
for j in range(4): cvt(S0 + j, S1 + 2*j, S1 + 2*j + 1)
a(f"s_or_b64 vcc, vcc, {sr(sT1,2)}")
a("s_cbranch_vccnz L_fallback")
a.label("L_attn_done")
bstore(S0, 4, 4, WS, sr(sSX), 0, "sc1")
for j in range(8): a(f"v_mul_f32 {vr(S1+j)}, v7, {vr(O1+j)}")
for j in range(4): cvt(S0 + 4 + j, S1 + 2*j, S1 + 2*j + 1)
bstore(S0 + 4, 4, 4, WS, sr(sSW), 0, "sc1")
a("v_lshlrev_b32 v6, 9, v1")
a(f"v_mov_b32 v7, {sr(sTAG)}")
a("s_barrier")
a(f"s_mov_b32 {sr(sT2)}, {sr(sT3)}")
mbox(MB_O, sTB, sT2, 10)
a("s_mov_b64 exec, 3")
a("s_waitcnt vmcnt(0)")
bstore(7, 1, 6, WS, sr(sT0), flags="sc1")
stamp("o pushed")
if OPT["pt"]:
    a("s_waitcnt lgkmcnt(0)"); a("s_mov_b32 s94, s88")
    for i in range(8): a(f"v_readlane_b32 s{76 + 2*i}, v15, {i}")
    a("s_mov_b32 s92, s94")
if OPT["enc"] or OPT["spin"]: a("s_barrier"); a("s_barrier")
if DIAG or OPT["enc"] or OPT["spin"]: finish(13 if DIAG == 1 else 11)
else: a("s_endpgm")
a.label("L_fallback")
a(f"s_cmp_lg_u32 {sr(sREDO)}, 0")
a("s_cbranch_scc1 L_attn_done")
a(f"s_mov_b32 {sr(sREDO)}, 1")
a(f"s_mov_b32 {sr(sOFF)}, 0")
a("v_mov_b32 v6, 0xff800000"); a("v_mov_b32 v7, v6")
for j in range(16): a(f"v_mov_b64 {vr(O0+2*j,2)}, 0")
a("s_waitcnt vmcnt(0)")
a.label("L_fb")
bload(rK(0), 4, vKA, WS, sr(sOFF), 0, "sc1")
a(f"s_add_u32 {sr(sOFF)}, {sr(sOFF)}, 0x800")
a("s_waitcnt vmcnt(0)")
mfma32(S0, rK(0), Q0, None); mfma32(S1, rK(0), Q1, None)
a("s_nop 10")
rowmax(S0, 6, True); rowmax(S1, 7, True)
a(f"s_cmp_lg_u32 {sr(sOFF)}, 0x20000")
a("s_cbranch_scc1 L_fb")
a(f"s_lshl_b32 {sr(sOFF)}, {sr(sTB)}, 12")
ring_fill(range(PD))
a("v_mov_b32 v4, v6"); a("v_mov_b32 v11, v7"); a("s_nop 0")
a("v_permlane32_swap_b32 v6, v4"); a("v_permlane32_swap_b32 v7, v11")
a(f"v_max_f32 v6, v6, v4"); a("v_max_f32 v7, v7, v11")
for j in range(16): a(f"v_sub_f32 {vr(C0+j)}, 0, v6"); a(f"v_sub_f32 {vr(C1+j)}, 0, v7")
for j in range(4): a(f"v_mov_b64 {vr(S1+8+2*j,2)}, 0")
a(f"s_mov_b32 {sr(sPASS)}, 0")
a("s_waitcnt vmcnt(0)")
mfma32(S0, rK(0), Q0, C0)
a("s_nop 11")
a("s_branch L_fill")
a.label("L_end")
a("s_endpgm")

nbad = check(a.lines)
ref = open(f"cdna_kernels/{NAME}.s.ref").read().split("\n")
head = [l for l in ref if l.startswith(";") and "@launch" not in l and "Override launch" not in l and "grid=ceil" not in l]
out = "\n".join(head) + f"""
; Fused single launch: 256 workgroups (one per CU) x 8 waves; generated by gen/gen.py.
; @launch grid=(256,1,1) block=(512,1,1) lds={LDS_BYTES}
.amdgcn_target "amdgcn-amd-amdhsa--gfx950"
.text
.globl {NAME}_kernel
.p2align 8
.type {NAME}_kernel,@function
""" + a.text() + f""".section .rodata,"a"
.p2align 6
.amdhsa_kernel {NAME}_kernel
  .amdhsa_next_free_vgpr 256
  .amdhsa_next_free_sgpr 102
  .amdhsa_accum_offset 256
  .amdhsa_group_segment_fixed_size 0
  .amdhsa_kernarg_size 96
  .amdhsa_user_sgpr_count 2
  .amdhsa_user_sgpr_kernarg_segment_ptr 1
  .amdhsa_system_sgpr_workgroup_id_x 1
.end_amdhsa_kernel
"""
open(sys.argv[1], "w").write(out)
print("hazards:", nbad, "lines:", len(a.lines), "stamps:", nstamp[0])
```

```python
import sys, math, struct
from asmlib import Asm, vr, sr, check

NAME = "concat_heads__mha_block__ssm_conv_h3__prompt"
OPT = dict(enc0="", encm=2, wpf=1, wfirst=0, hat=0, p0w=8, wo1=24, map=2, ldfl="sc1", kvfl="sc1", wsoff=0, tlb=0, prew=0, late=0, hlate=0, kvat=2, pace=1, two=0, pd=5, ackat=14, pollat=27, p0p=0, hst=0, wqe=1, ysl=20, usl=16, wpace=3, gd=2, p0late=1, hs=4, pt=0, slp=24, onepoll=1, skip="", cp=0, sp=3, ep=3, hp=0, enc="", encw=0, first=0, gfl="sc1", pfl="sc1", vz=1, noload=0, nopv=0, noqk=0, noexp=0, c0=0, prio=1, diag=0, spin=0, spinat="end", clk=0)
for arg in sys.argv[2:]:
    k, v = arg.split("=")
    try: OPT[k] = int(v, 0)
    except ValueError: OPT[k] = v
DIAG = OPT["diag"]

KV, UT, YT, OF, MB = 0, 0x400000, 0x600000, 0x800000, 0xA00000
MB_U, MB_KV, MB_Y, MB_O = MB, MB + 0x8000, MB + 0x10000, MB + 0x18000
EP = MB + 0x20000
STAMP = 0xA30000
WS_SIZE = 0xA50000
K1 = 1024
SLOT = [0, 48 * K1, 96 * K1]
EX = 144 * K1
P0S = 8 * K1
HB = SLOT[2]; HSTR = 4512
UB = HB + 8 * HSTR; USTR = 4224
CNT = UB + 2 * USTR
QF = 0; RED = 140 * K1; KVL = SLOT[2]
YB = 128 * K1; MG = 140 * K1
LDS_BYTES = 160 * K1
assert CNT + 16 <= MG
X, W, WO, BQ, BK, BV, SH, HK, DD, OUT, WS = 4, 8, 12, 16, 20, 24, 28, 32, 36, 40, 44
sW, sHQ, sTB, sDB, sTBB, sROT, sTAG, sMASK = 48, 49, 50, 51, 52, 53, 54, 55
sA, sT0, sT1, sT2, sT3, sSX, sSW, sM0 = 56, 57, 58, 59, 60, 61, 62, 63
sOFF, sPASS, sREDO, sSPIN, sAND = 64, 65, 66, 67, 68
sHALF = 70
sCT, sTT, sHH, sHB = 3, 69, 72, 73
sST = 74
SPINMAX = 0x20000
f2h = lambda x: hex(struct.unpack("<I", struct.pack("<f", x))[0])

a = Asm()
nstamp = [0]
def stamp(name):
    if OPT["enc"] and name.replace(" ", "_") == OPT["enc"]: a("s_memrealtime s[94:95]")
    if OPT["enc0"] and name.replace(" ", "_") == OPT["enc0"]: a("s_memrealtime s[96:97]")
    if OPT["enc"] == "drained" and name == "end": a("s_waitcnt vmcnt(0)"); a("s_memrealtime s[94:95]")
    if OPT["enc"] and name == "end":
        L, L2 = newlab("spin"), newlab("spin")
        a("s_waitcnt lgkmcnt(0)")
        a(f"s_sub_u32 s94, s94, {'s96' if OPT['enc0'] else 's100'}"); a(f"s_lshl_b32 s94, s94, {OPT['encm']}")
        a("s_lshr_b32 s95, s2, 3"); a(f"s_lshl3_add_u32 s95, s95, {sr(sW)}"); a(f"s_cmp_eq_u32 s95, {96 + OPT['encw']}")
        a("s_cselect_b32 s94, s94, 0"); a("s_add_u32 s94, s94, 4000")
        a.label(L)
        a("s_memrealtime s[98:99]"); a("s_waitcnt lgkmcnt(0)")
        a("s_sub_u32 s98, s98, s100"); a("s_cmp_lt_u32 s98, s94"); a(f"s_cbranch_scc1 {L}")
    if OPT["spin"] and name.replace(" ", "_") == OPT["spinat"]:
        L = newlab("spin")
        if OPT["first"]:
            a("v_mov_b32 v6, 0"); a("global_load_dword v6, v6, s[96:97] sc1"); a("s_waitcnt vmcnt(0)")
            a("v_readfirstlane_b32 s100, v6"); a("s_nop 3"); a("s_not_b32 s100, s100")
        a.label(L)
        a("s_memrealtime s[98:99]"); a("s_waitcnt lgkmcnt(0)")
        a("s_sub_u32 s98, s98, s100"); a(f"s_cmp_lt_u32 s98, {OPT['spin'] * 100}"); a(f"s_cbranch_scc1 {L}")
    if DIAG == 2:
        if name in ("B1", "B5", "B6", "loop start", "loop end", "end"):
            i = nstamp[0]; nstamp[0] += 2
            a(f"s_memrealtime {sr(sST + 2 * i, 2)}")
            a(f"s_memtime {sr(sST + 2 * i + 2, 2)}")
    elif DIAG:
        i = nstamp[0]; nstamp[0] += 1
        assert sST + 2 * i + 1 <= 101, "too many stamps"
        a(f"{'s_memtime' if OPT['clk'] else 's_memrealtime'} {sr(sST + 2 * i, 2)} ; stamp {i} {name}")
def set_stamp(i): nstamp[0] = i
def xstamp(i, name):
    if DIAG == 1 and not OPT["pt"]:
        k = nstamp[0]; nstamp[0] = i; stamp(name); nstamp[0] = k
    elif OPT["enc"]: stamp(name)
lab = [0]
def newlab(p):
    lab[0] += 1; return f"L_{p}{lab[0]}"

def bload(dst, n, vaddr, srd, soff, off=0, flags=""):
    op = {1: "dword", 2: "dwordx2", 4: "dwordx4"}[n]
    a(f"buffer_load_{op} {vr(dst, n)}, {vr(vaddr)}, {sr(srd, 4)}, {soff} offen" + (f" offset:{off}" if off else "") + (" " + flags if flags else ""))
def bstore(src, n, vaddr, srd, soff, off=0, flags=""):
    op = {1: "dword", 2: "dwordx2", 4: "dwordx4"}[n]
    a(f"buffer_store_{op} {vr(src, n)}, {vr(vaddr)}, {sr(srd, 4)}, {soff} offen" + (f" offset:{off}" if off else "") + (" " + flags if flags else ""))
def dma(vaddr, srd, soff, flags=""):
    a(f"buffer_load_dwordx4 {vr(vaddr)}, {sr(srd, 4)}, {soff} offen" + (" " + flags if flags else "") + " lds")
def dsr(op, dst, n, vaddr, off=0):
    assert 0 <= off < 65536
    a(f"{op} {vr(dst, n)}, {vr(vaddr)}" + (f" offset:{off}" if off else ""))
def dsw(op, vaddr, src, n, off=0):
    assert 0 <= off < 65536
    a(f"{op} {vr(vaddr)}, {vr(src, n)}" + (f" offset:{off}" if off else ""))
def mfma32(d, A, B, c): a(f"v_mfma_f32_32x32x16_bf16 {vr(d,16)}, {vr(A,4)}, {vr(B,4)}, " + ("0" if c is None else vr(c, 16)))
def mfma16(d, A, B, c): a(f"v_mfma_f32_16x16x32_bf16 {vr(d,4)}, {vr(A,4)}, {vr(B,4)}, " + ("0" if c is None else vr(c, 4)))
def cvt(d, x, y): a(f"v_cvt_pk_bf16_f32 {vr(d)}, {vr(x)}, {vr(y)}")
def lo(d, s): a(f"v_lshlrev_b32 {vr(d)}, 16, {vr(s)}")
def hi(d, s): a(f"v_and_b32 {vr(d)}, {sr(sMASK)}, {vr(s)}")

bload_, mfma32_ = bload, mfma32
def poll(vaddr, vtmp, soff, first_issued=False, slp=None):
    L, Lo = newlab("poll"), newlab("pollok")
    a(f"s_mov_b32 {sr(sSPIN)}, 0")
    if first_issued:
        a(f"v_cmp_ne_u32 vcc, {sr(sTAG)}, {vr(vtmp)}")
        a(f"s_cbranch_vccz {Lo}")
    a.label(L)
    bload(vtmp, 1, vaddr, WS, soff, flags="sc1")
    a(f"s_add_u32 {sr(sSPIN)}, {sr(sSPIN)}, 1")
    a(f"s_cmp_ge_u32 {sr(sSPIN)}, {SPINMAX}")
    a("s_waitcnt vmcnt(0)")
    a(f"s_cbranch_scc1 {Lo}")
    a(f"v_cmp_ne_u32 vcc, {sr(sTAG)}, {vr(vtmp)}")
    a(f"s_cbranch_vccz {Lo}")
    a(f"s_sleep {OPT['slp'] if slp is None else slp}")
    a(f"s_branch {L}")
    a.label(Lo)

def push(nl, vt0, vt1, soff):
    a(f"s_mov_b64 exec, {hex((1 << nl) - 1)}")
    bstore(vt1, 1, vt0, WS, soff, flags="sc1")
    a("s_mov_b64 exec, -1")

def arrive(cntoff, pushfn):
    L = newlab("arr")
    a("s_mov_b64 exec, 1")
    a(f"ds_add_rtn_u32 v7, {vr(vCNT)}, {vr(vONE)} offset:{cntoff}")
    a("s_waitcnt lgkmcnt(0)")
    a("v_cmp_ne_u32 vcc, 3, v7")
    a(f"s_cbranch_vccnz {L}")
    pushfn()
    a.label(L)
    a("s_mov_b64 exec, -1")

def hbar(extra=0, slp=None):
    L = newlab("hb")
    a(f"s_add_u32 {sr(sHB)}, {sr(sHB)}, {4 + extra}")
    a("s_mov_b64 exec, 1")
    a(f"ds_add_u32 {vr(vCNT)}, {vr(vONE)}")
    a.label(L)
    dsr("ds_read_b32", 6, 1, vCNT)
    a("s_waitcnt lgkmcnt(0)")
    a(f"v_cmp_gt_u32 vcc, {sr(sHB)}, v6")
    a(f"s_cbranch_vccz {L}x")
    if slp != 0: a(f"s_sleep {OPT['hs'] if slp is None else slp}")
    a(f"s_branch {L}")
    a.label(L + "x")
    a("s_mov_b64 exec, -1")
def only_wave(w, fn):
    L = newlab("ow")
    a(f"s_cmp_lg_u32 {sr(sW)}, {w}"); a(f"s_cbranch_scc1 {L}")
    fn()
    a.label(L)
def hprio(p):
    a(f"s_setprio {p}")
vCNT, vONE = 2, 3


a.label(f"{NAME}_kernel")
a("s_cmp_ge_u32 s2, 0x100")
a("s_cbranch_scc1 L_end")
a(f"s_load_dwordx2 {sr(X,2)}, s[0:1], 0")
a(f"s_load_dwordx2 {sr(W,2)}, s[0:1], 8")
a(f"s_load_dwordx2 {sr(WS,2)}, s[0:1], 88")
if DIAG or OPT["spin"] or OPT["enc"]: a("s_memtime s[100:101]" if OPT["clk"] else "s_memrealtime s[100:101]")
a("s_getpc_b64 s[88:89]")
a.label("L_pc")
a(f"s_lshr_b32 {sr(sTBB)}, s2, 3")
a(f"s_and_b32 {sr(sDB)}, s2, 7")
a("v_lshrrev_b32 v6, 6, v0")
a(f"v_lshl_add_u32 v7, {sr(sTBB)}, 3, v6")
a("v_lshlrev_b32 v7, 7, v7")
a("v_min_u32 v7, L_end-L_pc, v7")
a("global_load_dword v4, v7, s[88:89]")
a(f"v_readfirstlane_b32 {sr(sW)}, v6")
if OPT["map"] == 1:
    sHQ, sTB = sDB, sTBB
    a(f"s_add_u32 {sr(sROT)}, {sr(sDB)}, {sr(sTBB)}")
elif OPT["map"] == 2:
    a(f"s_and_b32 {sr(sT0)}, {sr(sTBB)}, 1")
    a(f"s_lshr_b32 {sr(sT1)}, {sr(sTBB)}, 1")
    a(f"s_lshl1_add_u32 {sr(sROT)}, {sr(sT0)}, {sr(sT1)}")
    a(f"s_and_b32 {sr(sHQ)}, {sr(sDB)}, 3")
    a(f"s_lshl1_add_u32 {sr(sHQ)}, {sr(sHQ)}, {sr(sT0)}")
    a(f"s_lshr_b32 {sr(sTB)}, {sr(sDB)}, 2")
    a(f"s_lshl4_add_u32 {sr(sTB)}, {sr(sTB)}, {sr(sT1)}")
else:
    a(f"s_and_b32 {sr(sT0)}, {sr(sTBB)}, 3")
    a(f"s_lshr_b32 {sr(sT1)}, {sr(sTBB)}, 2")
    a(f"s_add_u32 {sr(sROT)}, {sr(sT0)}, {sr(sT1)}")
    a(f"s_and_b32 {sr(sHQ)}, {sr(sDB)}, 1")
    a(f"s_lshl2_add_u32 {sr(sHQ)}, {sr(sHQ)}, {sr(sT0)}")
    a(f"s_lshr_b32 {sr(sTB)}, {sr(sDB)}, 1")
    a(f"s_lshl3_add_u32 {sr(sTB)}, {sr(sTB)}, {sr(sT1)}")
a(f"s_mov_b32 {sr(X+3)}, 0x20000")
a(f"s_and_b32 {sr(sHH)}, {sr(sW)}, 3")
a(f"s_cmp_lt_u32 {sr(sW)}, 4")
a("s_cbranch_scc1 L_main")

def mbox(base, grp, idx, sh):
    a(f"s_lshr_b32 {sr(sT0)}, {sr(idx)}, 3")
    a(f"s_mul_i32 {sr(sT0)}, {sr(sT0)}, 96")
    a(f"s_lshl2_add_u32 {sr(sT0)}, {sr(idx)}, {sr(sT0)}")
    a(f"s_lshl_b32 {sr(sT3)}, {sr(grp)}, {sh}")
    a(f"s_add_u32 {sr(sT3)}, {sr(sT3)}, {base}")
    a(f"s_add_u32 {sr(sT0)}, {sr(sT0)}, {sr(sT3)}")
def common_setup():
    a("v_and_b32 v1, 63, v0")
    if OPT["wsoff"]:
        a(f"s_add_u32 {sr(WS)}, {sr(WS)}, {hex(OPT['wsoff'])}"); a(f"s_addc_u32 {sr(WS+1)}, {sr(WS+1)}, 0")
    a(f"s_add_u32 s88, {sr(WS)}, {EP}")
    a(f"s_addc_u32 s89, {sr(WS+1)}, 0")
    a(f"s_load_dword {sr(sTAG)}, s[88:89], 0")
    a(f"s_mov_b32 {sr(WS+2)}, {hex(WS_SIZE)}"); a(f"s_mov_b32 {sr(WS+3)}, {sr(X+3)}")
    a(f"s_and_b32 {sr(sCT)}, {sr(sW)}, 1")
    a(f"s_bfe_u32 {sr(sTT)}, {sr(sW)}, 0x10001")
    if DIAG: a(f"s_mov_b64 {sr(sST,2)}, s[100:101]"); nstamp[0] = 1
def make_tag():
    a(f"s_mul_i32 {sr(sTAG)}, {sr(sTAG)}, 0x2c9277b5")
    a(f"s_add_u32 {sr(sTAG)}, {sr(sTAG)}, 0xac564b05")
def finish(n):
    a("s_mov_b64 exec, -1")
    set_stamp(n); stamp("end")
    if DIAG:
        a("s_waitcnt lgkmcnt(0)")
        for i in range(nstamp[0]): a(f"v_mov_b32 {vr(32+i)}, {sr(sST+2*i)}")
        a(f"s_lshl3_add_u32 {sr(sT0)}, s2, {sr(sW)}")
        a(f"s_lshl_b32 {sr(sT0)}, {sr(sT0)}, 6")
        a(f"s_add_u32 {sr(sT0)}, {sr(sT0)}, {STAMP}")
        a("v_mov_b32 v6, 0")
        a("s_mov_b64 exec, 1")
        for i in range(4): bstore(32 + 4*i, 4, 6, WS, sr(sT0), 16*i)
    a("s_endpgm")

vXS, vWS = 48, 49
a("v_and_b32 v0, 0xff, v0")
a(f"s_mov_b32 {sr(X+2)}, 0x200000")
a(f"s_mov_b32 {sr(W+2)}, 0x180000"); a(f"s_mov_b32 {sr(W+3)}, {sr(X+3)}")
a("v_lshrrev_b32 v6, 4, v0")
a("v_xor_b32 v32, v6, v0")
a("v_and_b32 v32, 15, v32")
a(f"v_lshl_add_u32 v6, {sr(sTB)}, 6, v6")
a("v_lshlrev_b32 v6, 10, v6")
a(f"v_lshl_add_u32 {vr(vXS)}, v32, 4, v6")
a("v_lshrrev_b32 v6, 2, v0")
a("v_and_b32 v6, 4, v6")
a("v_xor_b32 v6, v6, v0")
a("v_and_b32 v6, 7, v6")
a(f"v_lshl_add_u32 v6, {sr(sHQ)}, 3, v6")
a("v_lshrrev_b32 v32, 3, v0")
a("v_mul_u32_u24 v32, 0xc00, v32")
a(f"v_lshl_add_u32 {vr(vWS)}, v6, 4, v32")
a(f"s_lshl_b32 {sr(sM0)}, {sr(sHH)}, 10")
def chunk_offsets(c):
    if c: a(f"s_add_u32 {sr(sT0)}, {sr(sROT)}, {c}")
    a(f"s_and_b32 {sr(sT0)}, {sr(sT0) if c else sr(sROT)}, 3")
    a(f"s_mul_i32 {sr(sSW)}, {sr(sT0)}, {128*3072}")
def dma_run(vaddr, srd, sbase, off, step, ldsbase, n=4, wait=False):
    a(f"s_add_u32 m0, {sr(sM0)}, {ldsbase}")
    a(f"s_add_u32 {sr(sT2)}, {sr(sbase)}, {off}")
    if wait: a("s_waitcnt lgkmcnt(0)")
    for i in range(n):
        dma(vaddr, srd, sr(sT2))
        if i < n - 1:
            a("s_addk_i32 m0, 0x1000")
            a(f"s_add_u32 {sr(sT2)}, {sr(sT2)}, {step}")
def dma_half(j):
    if j >= 8: return dma_wq(j - 8)
    c, hf = j >> 1, j & 1
    s = SLOT[c % 3]
    wf = OPT["wfirst"] and j == 0
    if not hf:
        chunk_offsets(c)
        a(f"s_lshl_b32 {sr(sSX)}, {sr(sT0)}, 8")
        if not wf: dma_run(vXS, X, sSX, 0, 16384, s, 4, c == 0)
    dma_run(vWS, W, sSW, 1024 + hf*64*3072, 32*3072, s + 16 * K1 + hf*8192, 2, wf)
    dma_run(vWS, W, sSW, 2048 + hf*64*3072, 32*3072, s + 32 * K1 + hf*8192, 2)
    if wf: dma_run(vXS, X, sSX, 0, 16384, s, 4)
HSZ = [8, 4] * 4 + [4, 4]
WQ = [EX, SLOT[1], SLOT[1] + 16 * K1, SLOT[1] + 32 * K1]
def dma_wq(c):
    chunk_offsets(c); dma_run(vWS, W, sSW, 0, 32*3072, WQ[c])
dma_half(0); dma_half(1)
a("s_load_dwordx8 s[80:87], s[0:1], 16")
a("s_load_dwordx8 s[92:99], s[0:1], 48")
common_setup()
UD = 16
vA, vH, vSH, vPW, vPR, vPG, vHS, vHP = 8, 9, 10, 11, 12, 13, 14, 15
vHW, vHA, vUA, vL16, vWO, vYS, vWR0, vWR1, vYR, vGO, vPO, vOO, vRW, vRR, vY8, vZ0 = range(32, 48)
vZ1, vFL, vTG, vMB = 50, 51, 52, 54
sUB, sCH = 64, 66
a("v_and_b32 v5, 31, v0")
a("v_lshlrev_b32 v5, 2, v5")
a(f"v_mov_b32 {vr(vCNT)}, {CNT}")
a(f"v_mov_b32 {vr(vONE)}, 1")
a(f"s_mov_b32 {sr(sHB)}, 0")
a(f"s_mov_b32 {sr(sMASK)}, 0xffff0000")
a("v_lshrrev_b32 v53, 5, v0")
a(f"v_lshl_add_u32 {vr(vA)}, v53, 13, v5")
a(f"v_lshl_add_u32 {vr(vGO)}, v53, 14, v5")
a(f"s_lshl_b32 {sr(sA)}, {sr(sTBB)}, 16")
a(f"s_lshl_b32 {sr(sT0)}, {sr(sDB)}, 7")
a(f"s_add_u32 {sr(sA)}, {sr(sA)}, {sr(sT0)}")
a(f"s_sub_u32 {sr(sT2)}, {sr(sA)}, 0xc00")
a(f"v_add_u32 {vr(vH)}, {sr(sT2)}, {vr(vA)}")
a(f"v_lshlrev_b32 {vr(vSH)}, 2, v5")
a("v_xor_b32 v6, 7, v53")
a("v_xor_b32 v6, v6, v0")
a("v_and_b32 v6, 7, v6")
a("v_lshlrev_b32 v6, 4, v6")
a(f"v_lshl_add_u32 {vr(vPW)}, v5, 5, v6")
a("v_lshrrev_b32 v7, 1, v0")
a("v_xor_b32 v7, v53, v7")
a("v_and_b32 v7, 7, v7")
a("v_lshlrev_b32 v7, 4, v7")
a("v_lshl_add_u32 v7, v5, 5, v7")
a(f"v_add_u32 {vr(vYR)}, {YB}, v7")
a("v_lshrrev_b32 v6, 3, v0")
a("v_xor_b32 v7, v6, v0")
a("v_and_b32 v7, 7, v7")
a("v_lshlrev_b32 v7, 4, v7")
a(f"v_lshl_add_u32 {vr(vPR)}, v6, 7, v7")
a("v_and_b32 v7, 7, v0")
a("v_lshlrev_b32 v7, 4, v7")
a(f"v_lshl_add_u32 {vr(vPG)}, v6, 13, v7")
a("v_lshrrev_b32 v7, 1, v6")
a("v_xor_b32 v7, v7, v0")
a("v_and_b32 v7, 7, v7")
a("v_lshlrev_b32 v7, 4, v7")
a(f"v_lshl_add_u32 {vr(vYS)}, v6, 13, v7")
a(f"v_lshlrev_b32 {vr(vHS)}, 4, v0")
a("v_cmp_eq_u32 vcc, 0, v0")
a(f"v_subrev_u32 v6, 8, {vr(vHS)}")
a("v_bfrev_b32 v7, 2")
a(f"v_cndmask_b32 {vr(vHP)}, v6, v7, vcc")
a(f"v_add_u32 {vr(vHW)}, {HB + 384}, {vr(vHS)}")
a("v_and_b32 v6, 3, v1")
a(f"v_mul_u32_u24 v6, {HSTR}, v6")
a("v_bfe_u32 v53, v1, 2, 2")
a("v_lshl_add_u32 v6, v53, 7, v6")
a("v_and_b32 v7, 0x30, v1")
a("v_add_u32 v6, v6, v7")
a(f"s_mul_i32 {sr(sT0)}, {sr(sCT)}, {4*HSTR}")
a(f"s_lshl_b32 {sr(sT1)}, {sr(sTT)}, 8")
a(f"s_add_u32 {sr(sT0)}, {sr(sT0)}, {sr(sT1)}")
a(f"s_add_u32 {sr(sT0)}, {sr(sT0)}, {HB}")
a(f"v_add_u32 {vr(vHA)}, {sr(sT0)}, v6")
a("v_and_b32 v6, 15, v1")
a("v_lshlrev_b32 v6, 3, v6")
a("v_sub_u32 v6, v7, v6")
a(f"s_mul_i32 {sr(sUB)}, {sr(sCT)}, {USTR}")
a(f"s_add_u32 {sr(sUB)}, {sr(sUB)}, {UB}")
a(f"s_add_u32 {sr(sT0)}, {sr(sUB)}, {sr(sT1)}")
a(f"s_add_u32 {sr(sT0)}, {sr(sT0)}, 120")
a(f"v_add_u32 {vr(vUA)}, {sr(sT0)}, v6")
a(f"v_lshlrev_b32 {vr(vL16)}, 4, v1")
a(f"v_lshlrev_b32 {vr(vY8)}, 3, v1")
a(f"v_lshlrev_b32 {vr(vFL)}, 9, v1")
a("v_and_b32 v6, 0x60, v5")
a("v_and_b32 v7, 28, v5")
a(f"v_lshl_add_u32 {vr(vMB)}, v6, 2, v7")
a(f"v_lshl_add_u32 {vr(vRW)}, {sr(sHH)}, 12, {vr(vL16)}")
a(f"v_xor_b32 {vr(vRR)}, 0x2000, {vr(vRW)}")
a(f"v_add_u32 {vr(vRW)}, {RED}, {vr(vRW)}")
a(f"v_add_u32 {vr(vRR)}, {RED}, {vr(vRR)}")
a("v_min_u32 v6, 23, v1")
a(f"s_mul_i32 {sr(sT0)}, {sr(sHH)}, {HSTR}")
a(f"s_add_u32 {sr(sT0)}, {sr(sT0)}, {HB}")
a(f"v_lshl_add_u32 {vr(vZ0)}, v6, 4, {sr(sT0)}")
a("v_and_b32 v6, 7, v1")
a(f"v_lshl_add_u32 {vr(vZ1)}, v6, 4, {sr(sUB)}")
a(f"s_lshl_b32 {sr(sT0)}, {sr(sDB)}, 5")
a(f"s_add_u32 {sr(sT0)}, {sr(sT0)}, {sr(sTBB)}")
a(f"s_lshl_b32 {sr(sCH)}, {sr(sT0)}, 13")
a("v_lshrrev_b32 v6, 4, v0")
a("v_lshlrev_b32 v7, 2, v6")
a("v_xor_b32 v7, v7, v0")
a("v_and_b32 v7, 15, v7")
a("v_lshlrev_b32 v7, 4, v7")
a("v_lshl_add_u32 v6, v6, 10, v7")
a(f"s_and_b32 {sr(sT0)}, {sr(sTBB)}, 3")
a(f"v_lshl_add_u32 {vr(vWO)}, {sr(sT0)}, 8, v6")
a("v_lshrrev_b32 v7, 5, v1")
a("v_lshl_add_u32 v7, v7, 2, v53")
a(f"v_xor_b32 v6, {sr(sHH)}, v53")
a("v_lshlrev_b32 v6, 6, v6")
a("v_lshl_add_u32 v6, v7, 8, v6")
a("v_and_b32 v7, 1, v1")
a("v_lshl_add_u32 v6, v7, 5, v6")
a("v_and_b32 v7, 16, v1")
a("v_add_u32 v6, v6, v7")
a("v_and_b32 v7, 2, v1")
a(f"v_lshl_add_u32 {vr(vWR0)}, v7, 2, v6")
a(f"v_add_u32 {vr(vWR1)}, 0x10000, {vr(vWR0)}")
a(f"v_and_b32 {vr(vPO)}, 28, v5")
a("v_and_b32 v6, 32, v1")
a(f"v_lshl_add_u32 {vr(vOO)}, v5, 9, v6")
CY, CB, CA = 64, 96, 128
for j in range(16): a(f"v_mov_b64 {vr(CY+2*j,2)}, 0")
a("s_waitcnt lgkmcnt(0)")
for r, p in ((WO, 80), (BQ, 82), (BK, 84), (BV, 86), (SH, 92), (HK, 94), (DD, 96), (OUT, 98)):
    a(f"s_mov_b64 {sr(r,2)}, {sr(p,2)}")
for r in (BK, BV, HK, BQ): a(f"s_mov_b64 {sr(r+2,2)}, {sr(X+2,2)}")
for r, n in ((SH, 4096), (DD, 1024), (WO, 0x80000), (OUT, 0x400000)):
    a(f"s_mov_b32 {sr(r+2)}, {hex(n)}"); a(f"s_mov_b32 {sr(r+3)}, {sr(X+3)}")
make_tag()
a(f"v_mov_b32 {vr(vTG)}, {sr(sTAG)}")
for j in range(8):
    dma_half(j + 2)
    a(f"s_waitcnt vmcnt({HSZ[j+1] + HSZ[j+2]})"); a("s_barrier")
    if j == 0: stamp("B1")
stamp("B4")
KR, VR, SR, DR = 128, 140, 148, 139
KP, WJ, VP, DP, UU, HR = 160, 184, 192, 208, 212, 232
def p0_loads():
    a(f"s_add_u32 {sr(sT2)}, {sr(sA)}, 0x1000")
    a(f"s_lshl_b32 {sr(sT0)}, {sr(sDB)}, 7")
    a(f"s_lshl_b32 {sr(sT1)}, {sr(sDB)}, 9")
    ls = [lambda: bload(SR, 4, vSH, SH, sr(sT1))]
    ls += [lambda i=i: bload(KR + i, 1, vH, BK, 0, 1024 * i) for i in range(3)]
    ls += [lambda i=i: bload(KR + 3 + i, 1, vA, BK, sr(sA if i < 4 else sT2), 1024 * (i & 3)) for i in range(8)]
    ls += [lambda i=i: bload(VR + i, 1, vA, BV, sr(sA if i < 4 else sT2), 1024 * (i & 3)) for i in range(8)]
    ls += [lambda: bload(DR, 1, 5, DD, sr(sT0))]
    for i, f in enumerate(ls):
        if OPT["p0w"] and i >= OPT["p0w"]: a(f"s_waitcnt vmcnt({OPT['p0w'] - 1})")
        f()
def h_loads():
    a(f"s_add_u32 {sr(sT2)}, {sr(sCH)}, 0x1000")
    for c in range(2):
        bload(HR + 6*c, 2, vHP, HK, sr(sT2 if c else sCH)); bload(HR + 6*c + 2, 4, vHS, HK, sr(sT2 if c else sCH))
a("s_waitcnt vmcnt(4)"); dma_wq(2)
a("s_waitcnt vmcnt(4)"); dma_wq(3)
mbox(MB_KV, sHQ, sTB, 11)
a("s_waitcnt vmcnt(0)"); a("s_barrier")
only_wave(4, lambda: push(4, vFL, vTG, sr(sT0)))
stamp("B5")
a("s_barrier")
hprio(OPT["sp"])
hbar(4, 1)
p0_loads()
NH = 4 if OPT["hat"] == 0 else 0
if NH: h_loads()
hprio(OPT["ep"])
a(f"s_waitcnt vmcnt({9 + NH})")
if OPT["hst"]: xstamp(9, "k landed")
lo(WJ+0, SR); lo(WJ+1, SR+2); hi(WJ+2, SR); hi(WJ+3, SR+2)
lo(WJ+4, SR+1); lo(WJ+5, SR+3); hi(WJ+6, SR+1); hi(WJ+7, SR+3)
for i in range(11): lo(KP + 2*i, KR + i); hi(KP + 2*i + 1, KR + i)
for j in range(8): a(f"v_pk_mul_f32 {vr(UU+2*j,2)}, {vr(KP+2*j,2)}, {vr(WJ+6,2)}")
for t in (2, 1, 0):
    for j in range(8):
        a(f"v_pk_fma_f32 {vr(UU+2*j,2)}, {vr(KP+2*(j+3-t),2)}, {vr(WJ+2*t,2)}, {vr(UU+2*j,2)}")
if OPT["hst"]: xstamp(10, "conv4")
a(f"s_waitcnt vmcnt({NH})")
if OPT["hst"]: xstamp(11, "v landed")
for i in range(8): lo(VP + 2*i, VR + i); hi(VP + 2*i + 1, VR + i)
for j in range(8): a(f"v_pk_mul_f32 {vr(UU+2*j,2)}, {vr(UU+2*j,2)}, {vr(VP+2*j,2)}")
for c in range(2):
    for i in range(4): cvt(KP + 4*c + i, UU + 2*(7 - 2*i) + c, UU + 2*(6 - 2*i) + c)
dsw("ds_write_b128", vPW, KP, 4, P0S); dsw("ds_write_b128", vPW, KP + 4, 4, P0S + 4096)
lo(DP, DR); hi(DP + 1, DR)
for j in range(8): a(f"v_pk_mul_f32 {vr(UD+2*j,2)}, {vr(UU+2*j,2)}, {vr(DP,2)}")
HT = [VP, 168]
def h_shift():
    for c in range(2):
        D = [HR + 6*c + j for j in range(6)]
        for j in range(4): a(f"v_alignbit_b32 {vr(HT[c]+j)}, {vr(D[2+j])}, {vr(D[1+j])}, 16")
        for j in range(4): a(f"v_mov_b32 {vr(HT[c]+4+j)}, {vr(D[1+j])}")
        for j in range(4): a(f"v_alignbit_b32 {vr(HT[c]+8+j)}, {vr(D[1+j])}, {vr(D[j])}, 16")
if OPT["hat"] == 1: h_loads()
stamp("p0 done")
hprio(OPT["sp"])
a(f"s_lshl_b32 {sr(sT0)}, {sr(sDB)}, 18")
a(f"s_sub_u32 {sr(sT1)}, 31, {sr(sTBB)}")
a(f"s_lshl_b32 {sr(sT1)}, {sr(sT1)}, 7")
a(f"s_add_u32 {sr(sT3)}, {sr(sT0)}, {sr(sT1)}")
a(f"s_add_u32 {sr(sT3)}, {sr(sT3)}, {UT}")
a(f"s_add_u32 {sr(sT2)}, {sr(sT3)}, 0x1000")
a("s_waitcnt lgkmcnt(0)")
hbar()
stamp("hb1")
dsr("ds_read_b128", KP, 4, vPR, P0S); dsr("ds_read_b128", KP + 4, 4, vPR, P0S + 4096)
a("s_waitcnt lgkmcnt(1)")
bstore(KP, 4, vPG, WS, sr(sT3), 0, "sc1")
a("s_waitcnt lgkmcnt(0)")
bstore(KP + 4, 4, vPG, WS, sr(sT2), 0, "sc1")
dsw("ds_write_b128", vZ0, CY, 4); dsw("ds_write_b128", vZ0, CY, 4, 4*HSTR); dsw("ds_write_b128", vZ1, CY, 4, 4096)
hprio(OPT["ep"]); a("s_waitcnt vmcnt(2)"); h_shift(); hprio(OPT["sp"])
for c in range(2):
    dsw("ds_write_b128", vHW, HR + 6*c + 2, 4, (4*c + 3)*HSTR)
    dsw("ds_write_b128", vHW, HT[c], 4, (4*c + 2)*HSTR)
    dsw("ds_write_b128", vHW, HT[c]+4, 4, (4*c + 1)*HSTR)
    dsw("ds_write_b128", vHW, HT[c]+8, 4, (4*c)*HSTR)
mbox(MB_U, sDB, sTBB, 9)
a("s_waitcnt vmcnt(0)")
arrive(8, lambda: bstore(vTG, 1, vFL, WS, sr(sT0), flags="sc1"))
stamp("u pushed")
QG = 56
a(f"s_add_u32 {sr(sT2)}, {sr(sA)}, 0x1000")
for i in range(8): bload(QG + i, 1, vA, BQ, sr(sA if i < 4 else sT2), 1024 * (i & 3))
def wo_init(first, n):
    a(f"s_lshr_b32 {sr(sT0)}, {sr(sTBB)}, 2")
    a(f"s_mul_i32 {sr(sT0)}, {sr(sT0)}, {n // 8 * 4096}")
    if first: a(f"s_add_u32 {sr(sT0)}, {sr(sT0)}, {first * 4096}")
def wo_piece(first, n):
    a(f"s_add_u32 m0, {sr(sM0)}, {sr(sT0)}")
    a(f"s_lshl_b32 {sr(sSX)}, {sr(sT0)}, 2")
    dma(vWO, WO, sr(sSX))
    a(f"s_add_u32 {sr(sT0)}, {sr(sT0)}, 0x1000")
    a(f"s_cmp_eq_u32 {sr(sT0)}, {(first + n) * 4096}")
    a(f"s_cselect_b32 {sr(sT0)}, {first * 4096}, {sr(sT0)}")
a(f"s_lshr_b32 {sr(sT1)}, {sr(sM0)}, 3")
a(f"s_add_u32 {sr(sT3)}, {sr(sT3)}, {sr(sT1)}")
a(f"s_xor_b32 {sr(sT1)}, {sr(sM0)}, 0xc00")
a(f"s_add_u32 {sr(sT2)}, {sr(sCH)}, {sr(sT1)}")
a(f"s_add_u32 {sr(sT2)}, {sr(sT2)}, {UT}")
a(f"s_add_u32 m0, {sr(sT1)}, {UB}")
a("s_waitcnt vmcnt(0)")
if OPT["usl"]: a(f"s_sleep {OPT['usl']}")
poll(vPO, 6, sr(sT3))
dma(vL16, WS, sr(sT2), "sc1")
a(f"s_addk_i32 m0, {USTR}")
a(f"s_add_u32 {sr(sT2)}, {sr(sT2)}, 0x1000")
dma(vL16, WS, sr(sT2), "sc1")
a(f"s_lshl_b32 {sr(sT0)}, {sr(sCT)}, 12")
a(f"s_add_u32 {sr(sCH)}, {sr(sCH)}, {sr(sT0)}")
a(f"s_mov_b32 {sr(sPASS)}, 0")
wo_init(0, 24)
a("s_waitcnt vmcnt(0)")
hbar()
hprio(OPT["cp"])
stamp("u landed")
a.label("L_conv")
for i in range(8):
    dsr("ds_read_b64", CB + 4*i, 2, vUA, 3584 - 512*i); dsr("ds_read_b64", CB + 4*i + 2, 2, vUA, 3584 - 512*i + 8)
for ai in range(8):
    dsr("ds_read_b128", CA, 4, vHA, 512*ai)
    if ai < 6: wo_piece(0, 24)
    a("s_waitcnt lgkmcnt(0)")
    for bi in range(8 - ai): mfma16(CY + 4*(ai + bi), CA, CB + 4*bi, CY + 4*(ai + bi))
if OPT["cp"] != OPT["ep"]: hprio(OPT["ep"])
a(f"v_add_u32 {vr(vUA)}, 64, {vr(vUA)}")
a(f"v_add_u32 {vr(vHA)}, 64, {vr(vHA)}")
if OPT["cp"] != OPT["ep"]: hprio(OPT["cp"])
a(f"s_add_u32 {sr(sPASS)}, {sr(sPASS)}, 1")
a(f"s_cmp_lg_u32 {sr(sPASS)}, 4")
a("s_cbranch_scc1 L_conv")
stamp("conv done")
hprio(OPT["sp"])
a(f"s_lshl_b32 {sr(sT0)}, {sr(sTT)}, 11")
a(f"s_add_u32 {sr(sCH)}, {sr(sCH)}, {sr(sT0)}")
a(f"s_add_u32 {sr(sCH)}, {sr(sCH)}, {YT}")
a(f"s_cmp_lg_u32 {sr(sTT)}, 0")
a("s_cbranch_scc1 L_red1")
def reduce_store(keep, send):
    for j in range(4): dsw("ds_write_b128", vRW, send + 4*j, 4, 1024*j)
    a("s_waitcnt lgkmcnt(0)")
    hbar()
    for j in range(4): dsr("ds_read_b128", CB + 4*j, 4, vRR, 1024*j)
    hprio(OPT["ep"])
    a("s_waitcnt lgkmcnt(0)")
    for j in range(8): a(f"v_pk_add_f32 {vr(CB + 2*j, 2)}, {vr(CB + 2*j, 2)}, {vr(keep + 2*j, 2)}")
reduce_store(CY, CY + 16)
a("s_branch L_red2")
a.label("L_red1")
reduce_store(CY + 16, CY)
a.label("L_red2")
for j in range(8): cvt(CY + j, CB + 2*j, CB + 2*j + 1)
hprio(OPT["sp"])
for j in range(4): bstore(CY + 2*j, 2, vY8, WS, sr(sCH), 512*j, "sc1")
mbox(MB_Y, sDB, sTBB, 9)
a("s_waitcnt vmcnt(0)")
arrive(12, lambda: bstore(vTG, 1, vFL, WS, sr(sT0), flags="sc1"))
wo_init(24, 8)
a(f"s_mov_b32 {sr(sT1)}, 0")
a.label("L_wo")
wo_piece(24, 8)
a(f"s_add_u32 {sr(sT1)}, {sr(sT1)}, 1")
a(f"s_cmp_lg_u32 {sr(sT1)}, 8")
a(f"s_waitcnt vmcnt({OPT['wpace']})")
a("s_cbranch_scc1 L_wo")
a(f"s_lshr_b32 {sr(sT1)}, {sr(sM0)}, 3")
a(f"s_add_u32 {sr(sT3)}, {sr(sT3)}, {sr(sT1)}")
if OPT["ysl"]: a(f"s_sleep {OPT['ysl']}")
poll(vPO, 6, sr(sT3))
a(f"s_lshl_b32 {sr(sT0)}, {sr(sDB)}, 18")
a(f"s_lshl_b32 {sr(sT1)}, {sr(sTBB)}, 7")
a(f"s_add_u32 {sr(sT0)}, {sr(sT0)}, {sr(sT1)}")
a(f"s_add_u32 m0, {sr(sM0)}, {YB}")
a(f"s_add_u32 {sr(sT0)}, {sr(sT0)}, {YT}")
dma(vYS, WS, sr(sT0), "sc1")
a(f"s_add_u32 m0, {sr(sM0)}, {YB + 4096}")
a(f"s_add_u32 {sr(sT0)}, {sr(sT0)}, 0x1000")
dma(vYS, WS, sr(sT0), "sc1")
if OPT["map"]:
    a(f"s_lshr_b32 {sr(sT0)}, {sr(sTBB)}, 2")
    a(f"s_lshl3_add_u32 {sr(sSX)}, {sr(sDB)}, {sr(sT0)}")
else:
    a(f"s_lshr_b32 {sr(sT0)}, {sr(sHQ)}, 2")
    a(f"s_lshl1_add_u32 {sr(sSX)}, {sr(sTB)}, {sr(sT0)}")
a(f"s_lshl2_add_u32 {sr(sT0)}, {sr(sSX)}, {sr(sHH)}")
a(f"s_lshl_b32 {sr(sT0)}, {sr(sT0)}, 7")
a(f"s_add_u32 {sr(sT3)}, {sr(sT0)}, {MB_O}")
a(f"s_lshl_b32 {sr(sT0)}, {sr(sSX)}, 15")
a(f"s_lshl3_add_u32 {sr(sT0)}, {sr(sM0)}, {sr(sT0)}")
a(f"s_add_u32 {sr(sSW)}, {sr(sT0)}, {OF}")
a(f"s_lshl_b32 {sr(sSX)}, {sr(sSX)}, 16")
a(f"s_and_b32 {sr(sT1)}, {sr(sTBB)}, 3")
a(f"s_lshl2_add_u32 {sr(sT1)}, {sr(sT1)}, {sr(sHH)}")
a(f"s_lshl_b32 {sr(sT1)}, {sr(sT1)}, 6")
a(f"s_add_u32 {sr(sSX)}, {sr(sSX)}, {sr(sT1)}")
a(f"s_lshl_b32 {sr(sA)}, {sr(sTBB)}, 17")
a(f"s_lshl_b32 {sr(sT2)}, {sr(sDB)}, 7")
a(f"s_add_u32 {sr(sA)}, {sr(sA)}, {sr(sT2)}")
a(f"s_lshl_b32 m0, {sr(sM0)}, 3")
a(f"s_add_u32 {sr(sT2)}, {sr(sSW)}, 0x1000")
a("s_waitcnt vmcnt(0)")
if not OPT["hst"]: stamp("staged")
a("s_barrier")
if OPT["enc"]: stamp("B7")
GQ, GY, YY = 64, 80, 96
dsr("ds_read_b128", YY, 4, vYR); dsr("ds_read_b128", YY + 4, 4, vYR, 4096)
WOF = 128
gate = []
for j in range(8): gate += [lambda j=j: lo(GQ + 2*j, QG + j), lambda j=j: hi(GQ + 2*j + 1, QG + j)]
gate.append(lambda: a("s_waitcnt lgkmcnt(15)"))
for c in range(2):
    for i in range(4): gate += [lambda c=c, i=i: lo(GY + 4*i + c, YY + 4*c + i), lambda c=c, i=i: hi(GY + 4*i + 2 + c, YY + 4*c + i)]
for j in range(8): gate.append(lambda j=j: a(f"v_pk_add_f32 {vr(GY+2*j,2)}, {vr(GY+2*j,2)}, {vr(UD+2*j,2)}"))
for j in range(8): gate.append(lambda j=j: a(f"v_pk_mul_f32 {vr(GY+2*j,2)}, {vr(GY+2*j,2)}, {vr(GQ+2*j,2)}"))
for j in range(8): gate.append(lambda j=j: cvt(QG + j, GY + 2*j, GY + 2*j + 1))
for p in range(32):
    for part in range(2):
        dsr("ds_read_b64_tr_b16", WOF + 4*p + 2*part, 2, vWR0 + (p >> 4), ((p & 15) * 16 + 8*part) * 256)
        if gate: gate.pop(0)()
assert not gate
a("s_waitcnt lgkmcnt(0)")
if not OPT["hst"]: stamp("gate done")
a("s_barrier")
poll(vPO, 6, sr(sT3), False, 1)
if not OPT["hst"]: stamp("o flags")
for i in range(4):
    a(f"buffer_load_dwordx4 {vr(vL16)}, {sr(WS,4)}, {sr(sSW)} offen offset:{1024*i} sc1 lds")
a("s_addk_i32 m0, 0x1000")
a("s_nop 0")
for i in range(4):
    a(f"buffer_load_dwordx4 {vr(vL16)}, {sr(WS,4)}, {sr(sT2)} offen offset:{1024*i} sc1 lds")
gfl = OPT["gfl"].replace("_", " ")
a("s_waitcnt vmcnt(0)"); a("s_barrier")
if not OPT["hst"]: stamp("o landed")
OFR, PA = 64, 16
for p in range(12): dsr("ds_read_b128", OFR + 4*p, 4, vL16, 1024*p)
for p in range(32):
    a(f"s_waitcnt lgkmcnt({min(32, p + 12) - p - 1})")
    mfma32(PA, WOF + 4*p, OFR + 4*(p & 15), None if p == 0 else PA)
    if p + 12 < 32: dsr("ds_read_b128", OFR + 4*((p + 12) & 15), 4, vL16, 1024*(p + 12))
    if p & 1 and p < 16:
        j = p >> 1
        bstore(QG + j, 1, vGO, OUT, sr(sA), 3072 if j & 1 else 1024, gfl)
        if j & 1 and j < 7: a(f"s_add_u32 {sr(sA)}, {sr(sA)}, 0x1000")
a(f"s_or_b32 {sr(sT0)}, s2, {sr(sHH)}")
a("s_cbranch_scc1 L_noep")
a(f"v_mov_b32 v6, {EP}")
a("s_mov_b64 exec, 1")
bstore(vTG, 1, 6, WS, 0, flags="sc1")
a("s_mov_b64 exec, -1")
a.label("L_noep")
a("s_nop 9")
pfl = OPT["pfl"].replace("_", " ")
for j in range(4): cvt(8 + j, PA + 2*j, PA + 2*j + 1)
bstore(8, 4, vOO, OUT, sr(sSX), 0, pfl)
for j in range(4, 8): cvt(8 + j, PA + 2*j, PA + 2*j + 1)
bstore(12, 4, vOO, OUT, sr(sSX), 16, pfl)
if DIAG or OPT["enc"] or OPT["spin"]: finish(13 if DIAG == 1 else 11)
else: a("s_endpgm")

a.label("L_main")
if OPT["wpf"]:
    n = {1: 12, 2: 4}[OPT["wpf"]]
    a(f"s_lshl2_add_u32 {sr(sT0)}, {sr(sTB)}, {sr(sW)}")
    a(f"s_mul_i32 {sr(sT0)}, {sr(sT0)}, 12*1024")
    a(f"s_lshl_b32 {sr(sT1)}, {sr(sHQ)}, 7")
    a(f"s_add_u32 {sr(sT0)}, {sr(sT0)}, {sr(sT1)}")
    a("v_and_b32 v6, 63, v0")
    a(f"v_min_u32 v6, {n - 1}, v6")
    a(f"v_mul_u32_u24 v6, {12 // n * 1024}, v6")
    a(f"v_add_u32 v6, {sr(sT0)}, v6")
a("s_waitcnt lgkmcnt(0)")
if OPT["wpf"]: a(f"global_load_dword v57, v6, {sr(W,2)}")
common_setup()
XF, WF, ACK, ACV, ACQ = 128, 96, 64, 80, 64
vXR, vWR, vXB, vWB, vXT = 50, 51, 52, 53, 54
O0, O1, S0, S1, C0, C1 = 16, 32, 48, 64, 80, 96
Q0, Q1 = 112, 116
vIDX, vKA, vVA = 8, 9, 10
vCON = 12
vKS, vVS, vKL, vVL, vQW, vQR = 2, 3, 5, 11, 14, 15
RING = 128
def rK(i): return RING + 12 * (i & 7)
def rVa(i): return RING + 12 * (i & 7) + 4
def rVb(i): return RING + 12 * (i & 7) + 8
a("v_bfe_u32 v6, v1, 2, 2")
a("v_lshrrev_b32 v32, 5, v1")
a("v_lshl_add_u32 v33, v32, 3, v6")
a("v_lshrrev_b32 v6, 1, v6")
a(f"v_xor_b32 v6, {sr(sCT)}, v6")
a("v_lshlrev_b32 v6, 6, v6")
a("v_lshl_add_u32 v33, v33, 7, v6")
a("v_and_b32 v6, 16, v1")
a("v_lshl_add_u32 v33, v6, 1, v33")
a("v_and_b32 v6, 3, v1")
a(f"v_lshl_add_u32 {vr(vWR)}, v6, 3, v33")
a("v_and_b32 v6, 31, v1")
a("v_xor_b32 v33, v32, v6")
a("v_and_b32 v33, 15, v33")
a("v_lshlrev_b32 v33, 4, v33")
a(f"v_lshl_add_u32 v6, {sr(sTT)}, 5, v6")
a(f"v_lshl_add_u32 {vr(vXR)}, v6, 8, v33")
a("v_and_b32 v33, 0x33, v1")
a("v_and_b32 v7, 4, v1")
a("v_lshl_or_b32 v33, v7, 1, v33")
a("v_and_b32 v7, 8, v1")
a("v_lshrrev_b32 v7, 1, v7")
a("v_or_b32 v6, v7, v33")
a(f"v_lshlrev_b32 {vr(vKS)}, 4, v6")
a("v_and_b32 v7, 15, v1")
a("v_lshlrev_b32 v7, 4, v7")
a("v_lshl_add_u32 v33, v32, 8, v7")
a("v_bfe_u32 v6, v1, 4, 1")
a(f"v_lshl_add_u32 {vr(vVS)}, v6, 17, v33")
a(f"s_lshl2_add_u32 {sr(sT0)}, {sr(sCT)}, {sr(sTT)}")
a(f"s_lshl_b32 {sr(sT1)}, {sr(sT0)}, 11")
a(f"s_add_u32 {sr(sT1)}, {sr(sT1)}, {KVL}")
a(f"v_add_u32 {vr(vKL)}, {sr(sT1)}, {vr(vKS)}")
a("v_lshl_add_u32 v6, v6, 12, v33")
a(f"v_add_u32 {vr(vVL)}, {sr(sT1)}, v6")
a(f"s_lshl_b32 {sr(sT0)}, {sr(sT0)}, 10")
a(f"v_lshl_add_u32 {vr(vQW)}, v1, 4, {sr(sT0)}")
a(f"s_lshl_b32 {sr(sT0)}, {sr(sHH)}, 11")
a(f"v_lshl_add_u32 {vr(vQR)}, v1, 4, {sr(sT0)}")
a(f"s_lshl2_add_u32 {sr(sT0)}, {sr(sHQ)}, {sr(sHH)}")
a(f"s_lshl_b32 {sr(sT0)}, {sr(sT0)}, 17")
a(f"v_lshl_add_u32 {vr(vKA)}, v1, 4, {sr(sT0)}")
a(f"v_add_u32 {vr(vVA)}, {sr(sT0)}, v33")
a(f"s_lshl_b32 {sr(sT0)}, {sr(sHH)}, 12")
a(f"s_add_u32 {sr(sT0)}, {sr(sT0)}, {KVL}")
a(f"v_lshl_add_u32 v48, v1, 4, {sr(sT0)}")
a(f"v_add_u32 v49, {sr(sT0)}, v33")
a(f"v_mov_b32 {vr(vIDX)}, 0xdddddddd")
a(f"s_mov_b32 {sr(sHALF)}, 0xffff"); a(f"s_mov_b32 {sr(sHALF+1)}, {sr(sHALF)}")
a(f"s_mov_b32 {sr(sAND)}, 0x1ffff")
a(f"s_mov_b32 {sr(sREDO)}, 0")
a("v_and_b32 v7, 0x1b, v1"); a("v_cmp_eq_u32 vcc, 16, v7")
a("v_mov_b32 v6, 0x3f803f80")
a(f"s_add_u32 {sr(sOFF)}, {sr(sTB)}, 1")
a(f"v_cndmask_b32 {vr(vCON)}, 0, v6, vcc")
a(f"v_cndmask_b32 {vr(vCON+1)}, 0, v6, vcc")
a(f"s_and_b32 {sr(sOFF)}, {sr(sOFF)}, 31")
a(f"s_lshl_b32 {sr(sOFF)}, {sr(sOFF)}, 12")
for j in range(8): a(f"v_mov_b64 {vr(O0+2*j,2)}, 0")
a(f"s_lshl1_add_u32 {sr(sT0)}, {sr(sHQ)}, {sr(sCT)}")
a(f"s_lshl_b32 {sr(sT0)}, {sr(sT0)}, 18")
a(f"s_lshl1_add_u32 {sr(sT1)}, {sr(sTB)}, {sr(sTT)}")
a(f"s_lshl_b32 {sr(sT1)}, {sr(sT1)}, 11")
a(f"s_add_u32 {sr(sT3)}, {sr(sT0)}, {sr(sT1)}")
a(f"s_add_u32 {sr(sT2)}, {sr(sT3)}, 0x20000")
if OPT["tlb"]:
    for r, o in ((14, sT3), (15, sT2)): a(f"s_load_dword s{r}, {sr(WS,2)}, {sr(o)}")
if OPT["prew"] >= 3:
    a("s_mov_b64 exec, 1")
    if OPT["prew"] == 3: bstore(O0, 4, vKS, WS, sr(sT3), 0, "sc1")
    if OPT["prew"] == 4: bload(56, 1, vKS, WS, sr(sT3), 0, "sc1")
    if OPT["prew"] == 5: bstore(O0, 4, vKS, WS, sr(sT3), 0, "")
    a("s_mov_b64 exec, -1")
    a("s_waitcnt vmcnt(1) lgkmcnt(0)")
elif OPT["prew"]:
    fl = {1: "sc1", 2: ""}[OPT["prew"]]
    bstore(O0, 4, vKS, WS, sr(sT3), 0, fl); bstore(O0, 4, vKS, WS, sr(sT2), 0, fl)
    bstore(O0, 4, vVS, WS, sr(sT3), 1024, fl); bstore(O0, 4, vVS, WS, sr(sT3), 1536, fl)
    a("s_waitcnt vmcnt(4) lgkmcnt(0)")
else: a("s_waitcnt lgkmcnt(0)")
make_tag()

def kv_gemm():
    def rd(i):
        c, s = i >> 3, i & 7
        if s == 0:
            a(f"v_add_u32 {vr(vXB)}, {SLOT[c % 3]}, {vr(vXR)}")
            a(f"v_add_u32 {vr(vWB)}, {SLOT[c % 3] + 16*K1}, {vr(vWR)}")
        f = WF + 8*(i & 3); t = vXT + (s & 1)
        if s: a(f"v_xor_b32 {vr(t)}, {32*s}, {vr(vXB)}")
        if s & 3 == 0:
            a("s_barrier")
            if i == 0: stamp("B1")
            if i == 28: stamp("B4")
        dsr("ds_read_b128", XF + 4*i, 4, t if s else vXB)
        dsr("ds_read_b64_tr_b16", f, 2, vWB, 2048*s); dsr("ds_read_b64_tr_b16", f + 2, 2, vWB, 2048*s + 512)
    def rdv(i):
        s = i & 7; f = WF + 8*(i & 3) + 4
        dsr("ds_read_b64_tr_b16", f, 2, vWB, 16*K1 + 2048*s); dsr("ds_read_b64_tr_b16", f + 2, 2, vWB, 16*K1 + 2048*s + 512)
    for lo_, hi_, D in ((0, 28, OPT["gd"]), (28, 32, 3)):
        for i in range(lo_, lo_ + D): rd(i); rdv(i)
        for i in range(lo_, hi_):
            x, f = XF + 4*i, WF + 8*(i & 3)
            n = 5 * (min(hi_, i + D) - i - 1)
            a(f"s_waitcnt lgkmcnt({n + 2})")
            mfma32(ACK, f, x, None if i == 0 else ACK)
            if i + D < hi_: rd(i + D); n += 3
            a(f"s_waitcnt lgkmcnt({n})")
            mfma32(ACV, x, f + 4, None if i == 0 else ACV)
            if i + D < hi_: rdv(i + D)
def q_gemm(side):
    def rd(i):
        c, s = i >> 3, i & 7
        if s == 0: a(f"v_add_u32 {vr(vXT + (c & 1))}, {WQ[c]}, {vr(vWR)}")
        if OPT["late"] and i == 32 - 8 * OPT["late"]: a("s_barrier")
        if i == 16 and OPT["two"]:
            a("s_waitcnt vmcnt(0)"); xstamp(10, "acked"); a("s_barrier"); stamp("B5")
        dsr("ds_read_b64_tr_b16", WF + 4*(i & 7), 2, vXT + (c & 1), 2048*s)
        dsr("ds_read_b64_tr_b16", WF + 4*(i & 7) + 2, 2, vXT + (c & 1), 2048*s + 512)
    D = 4
    for i in range(D): rd(i)
    for i in range(32):
        extra = sum(side[j][1] for j in range(max(0, i - D), i) if j in side)
        a(f"s_waitcnt lgkmcnt({2 * (min(32, i + D) - i - 1) + extra})")
        mfma32(ACQ, WF + 4*(i & 7), XF + 4*i, None if i == 0 else ACQ)
        if i + D < 32: rd(i + D)
        if i in side: side[i][0]()
def vconst(i): return [f"v_mov_b64 {vr(rVa(i) + 2*j, 2)}, {vr(vCON,2)}" for j in range(4)]
sGB = 12
def gload(dst, vaddr, off): a(f"global_load_dwordx4 {vr(dst,4)}, {vr(vaddr)}, {sr(sGB,2)} offset:{off} " + OPT["ldfl"].replace("_", " "))
def adv1():
    a(f"s_add_u32 {sr(sOFF)}, {sr(sOFF)}, 0x1000")
    a(f"s_and_b32 {sr(sOFF)}, {sr(sOFF)}, {sr(sAND)}")
def adv2():
    a(f"s_add_u32 {sr(sGB)}, {sr(WS)}, {sr(sOFF)}")
    a(f"s_addc_u32 {sr(sGB+1)}, {sr(WS+1)}, 0")
def ring_fill(tiles):
    for i in tiles:
        o = 2048 * (i & 1)
        if not o: adv2()
        gload(rK(i), vKA, o)
        a(f"s_mov_b64 exec, {sr(sHALF,2)}")
        gload(rVa(i), vVA, o + 1024); gload(rVb(i), vVA, o + 1536)
        a("s_mov_b64 exec, -1")
        if o: adv1()
def rowmax(S, m, acc):
    k = 0
    if not acc:
        a(f"v_max3_f32 {vr(m)}, {vr(S)}, {vr(S+1)}, {vr(S+2)}"); k = 3
    while k < 16:
        a(f"v_max3_f32 {vr(m)}, {vr(m)}, {vr(S+k)}, {vr(S+min(k+1,15))}"); k += 2

kv_gemm()
a(f"v_mov_b32 v56, {CNT}")
dsw("ds_write_b128", 56, O0, 4)
a("s_nop 7")
for j in range(8): cvt(32 + j, ACK + 2*j, ACK + 2*j + 1)
kvfl = OPT["kvfl"].replace("_", " ")
bstore(32, 4, vKS, WS, sr(sT3), 0, kvfl); bstore(36, 4, vKS, WS, sr(sT2), 0, kvfl)
for j in range(8): cvt(40 + j, ACV + 2*j, ACV + 2*j + 1)
bstore(40, 4, vVS, WS, sr(sT3), 1024, kvfl); bstore(44, 4, vVS, WS, sr(sT3), 1536, kvfl)
dsw("ds_write_b128", vKL, 32, 4); dsw("ds_write_b128", vKL, 36, 4, 4096)
dsw("ds_write_b128", vVL, 40, 4, 1024); dsw("ds_write_b128", vVL, 44, 4, 1536)
xstamp(9, "kv stored")
mbox(MB_KV, sHQ, sTB, 11)
a(f"s_lshr_b32 {sr(sT1)}, {sr(sTB)}, 3")
a(f"s_lshl_b32 {sr(sT1)}, {sr(sT1)}, 9")
a(f"s_add_u32 {sr(sT3)}, {sr(sT3)}, {sr(sT1)}")
if OPT["two"]: a("s_waitcnt lgkmcnt(0)"); a("s_barrier"); xstamp(11, "B5a")
else: a("s_waitcnt vmcnt(0) lgkmcnt(0)"); xstamp(10, "acked"); a("s_barrier"); stamp("B5")
NK = 80
def lines(ls): return (lambda: [a(l) for l in ls], 0)
def own_k():
    for i in range(2): dsr("ds_read_b128", rK(i), 4, 48, 2048*i)
def own_v(i):
    a(f"s_mov_b64 exec, {sr(sHALF,2)}")
    dsr("ds_read_b128", rVa(i), 4, 49, 2048*i + 1024); dsr("ds_read_b128", rVb(i), 4, 49, 2048*i + 1536)
    a("s_mov_b64 exec, -1")
def ack():
    a("s_waitcnt vmcnt(0)")
    xstamp(10, "acked")
    a("s_mov_b64 exec, 1"); a("ds_add_rtn_u32 v7, v56, v7 offset:8"); a("s_mov_b64 exec, -1")
def signal():
    L = newlab("sig")
    a("v_readfirstlane_b32 s14, v7"); a("s_cmp_lg_u32 s14, 3"); a(f"s_cbranch_scc1 {L}")
    push(4, 2, 3, sr(sT0))
    a.label(L)
A_ = OPT["ackat"]
side = {0: (lambda: (a("v_and_b32 v6, 0xfffffe00, v48"), dsr("ds_read_b128", NK, 4, 6)), 1),
        2: lines(["v_bfe_u32 v6, v1, 3, 2", "v_and_b32 v5, 7, v1", "v_lshlrev_b32 v5, 2, v5", "v_lshl_add_u32 v5, v6, 7, v5"]),
        6: lines([f"v_xor_b32 {vr(NK+j)}, 0x80008000, {vr(NK+j)}" for j in range(4)]),
        8: lines(vconst(0)), 9: lines(vconst(1)), 10: (own_k, 2), 11: (lambda: own_v(0), 2), 12: (lambda: own_v(1), 2),
        21: lines(vconst(2)), 22: lines(vconst(3)), 23: lines(vconst(4)), 24: lines(vconst(5)), 25: lines(vconst(6)), 26: lines(vconst(7)),
        min(OPT["pollat"], 31): (lambda: only_wave(0, lambda: bload(4, 1, 5, WS, sr(sT3), flags="sc1")), 0),
        28: lines([f"v_mov_b64 {vr(O1+2*j,2)}, 0" for j in range(4)]), 29: lines([f"v_mov_b64 {vr(O1+2*j,2)}, 0" for j in range(4, 8)])}
q_gemm(side)
if OPT["prio"]: a("s_setprio 1")
a(f"s_mov_b32 {sr(sT2)}, {f2h(0.25 * math.log2(math.e))}")
a(f"s_mov_b32 {sr(sT1)}, {sr(sT2)}")
a(f"v_mov_b32 {vr(vCNT)}, v56"); a(f"v_mov_b32 {vr(vONE)}, 1"); a("s_nop 0")
a(f"s_mov_b32 {sr(sPASS)}, 0")
a("s_nop 4")
for j in range(8): a(f"v_pk_mul_f32 {vr(ACQ+2*j,2)}, {vr(ACQ+2*j,2)}, {sr(sT1,2)}")
for j in range(8): cvt(120 + j, ACQ + 2*j, ACQ + 2*j + 1)
dsw("ds_write_b128", vQW, 120, 4, QF); dsw("ds_write_b128", vQW, 124, 4, QF + 2048)
for j in range(4): a(f"v_mov_b64 {vr(S1+8+2*j,2)}, 0")
for j in range(2): a(f"v_mov_b64 {vr(S1+2*j,2)}, {vr(NK+2*j,2)}")
stamp("q done")
def kvpoll():
    a("s_waitcnt vmcnt(0)"); poll(5, 4, sr(sT3), True, 1)
only_wave(0, kvpoll)
a("s_waitcnt lgkmcnt(0)")
a("s_barrier")
stamp("B6")
PD = OPT["pd"]
dsr("ds_read_b128", Q0, 4, vQR, QF); dsr("ds_read_b128", Q1, 4, vQR, QF + 1024)
ring_fill([2])
a("s_waitcnt lgkmcnt(0)")
mfma32(C0, S1, Q0, None)
mfma32(S0, rK(0), Q0, C0)
mfma32(C1, S1, Q1, None)
ring_fill(range(3, PD))
a("s_mov_b64 exec, 1"); a(f"ds_add_u32 v2, {vr(vONE)}"); a("s_mov_b64 exec, -1")
a.label("L_fill")
stamp("loop start")
def E(S, x, y):
    for k in range(x, y + 1): a(f"v_exp_f32 {vr(S+k)}, {vr(S+k)}")
def PV(O, V, S): a(f"v_smfmac_f32_32x32x32_bf16 {vr(O,16)}, {vr(V,4)}, {vr(S,8)}, {vr(vIDX)}")
def iteration(i, last):
    ld = not last or i + PD < 8
    o = 2048 * ((i + PD) & 1)
    t = i + PD
    E(S0, 0, 1)
    PV(O1, rVb(i-1), S1 + 8)
    if ld:
        a(f"s_mov_b64 exec, {sr(sHALF,2)}")
        gload(rVa(t), vVA, o + 1024); gload(rVb(t), vVA, o + 1536)
        a("s_mov_b64 exec, -1")
    E(S0, 2, 5)
    mfma32(S1, rK(i), Q1, C1)
    if ld: gload(rK(t), vKA, o)
    else: a("s_nop 0")
    E(S0, 6, 9)
    PV(O0, rVa(i), S0)
    if o and ld: adv1()
    E(S0, 10, 15)
    E(S1, 0, 1)
    PV(O0, rVb(i), S0 + 8)
    if not (last and i == 7): a(f"s_waitcnt vmcnt({3 * (PD - 1) if ld else 18 - 3 * i})")
    if i == 7 and not last: a(f"s_add_u32 {sr(sPASS)}, {sr(sPASS)}, 1")
    E(S1, 2, 5)
    if not (last and i == 7):
        mfma32(S0, rK(i+1), Q0, C0)
        if i == 7: a(f"s_cmp_lg_u32 {sr(sPASS)}, 7")
        else: a("s_nop 0")
    E(S1, 6, 9)
    PV(O1, rVa(i), S1)
    if o and ld: adv2()
    if OPT["pt"] and i == 1: a("s_memrealtime s[92:93]")
    if OPT["pt"] and i == 3: a("s_waitcnt lgkmcnt(0)"); a(f"s_mov_b32 m0, {sr(sPASS)}"); a("v_writelane_b32 v15, s92, m0")
    E(S1, 10, 15)
a(".p2align 6")
a.label("L_loop")
for i in range(8): iteration(i, False)
a("s_cbranch_scc1 L_loop")
for i in range(8): iteration(i, True)
a("v_lshlrev_b32 v4, 4, v1")
a(f"v_rcp_f32 v6, {vr(O0+8)}")
PV(O1, rVb(7), S1 + 8)
stamp("loop end")
a(f"s_mov_b32 {sr(sT0)}, {f2h(2.0**40)}")
a(f"s_lshl2_add_u32 {sr(sT3)}, {sr(sHQ)}, {sr(sHH)}")
a(f"s_lshl_b32 {sr(sSX)}, {sr(sTB)}, 6")
a(f"s_add_u32 {sr(sSX)}, {sr(sSX)}, {sr(sT3)}")
a(f"s_lshl_b32 {sr(sSX)}, {sr(sSX)}, 10")
a(f"s_add_u32 {sr(sSX)}, {sr(sSX)}, {OF}")
a(f"s_add_u32 {sr(sSW)}, {sr(sSX)}, 0x8000")
for j in range(8): a(f"v_mul_f32 {vr(S1+j)}, v6, {vr(O0+j)}")
a(f"v_rcp_f32 v7, {vr(O1+8)}")
a(f"v_cmp_nle_f32 vcc, {vr(O0+8)}, {sr(sT0)}")
a(f"v_cmp_nle_f32 {sr(sT1,2)}, {vr(O1+8)}, {sr(sT0)}")
for j in range(4): cvt(S0 + j, S1 + 2*j, S1 + 2*j + 1)
a(f"s_or_b64 vcc, vcc, {sr(sT1,2)}")
a("s_cbranch_vccnz L_fallback")
a.label("L_attn_done")
bstore(S0, 4, 4, WS, sr(sSX), 0, "sc1")
for j in range(8): a(f"v_mul_f32 {vr(S1+j)}, v7, {vr(O1+j)}")
for j in range(4): cvt(S0 + 4 + j, S1 + 2*j, S1 + 2*j + 1)
bstore(S0 + 4, 4, 4, WS, sr(sSW), 0, "sc1")
a("v_lshlrev_b32 v6, 9, v1")
a(f"v_mov_b32 v7, {sr(sTAG)}")
a("s_barrier")
a(f"s_mov_b32 {sr(sT2)}, {sr(sT3)}")
mbox(MB_O, sTB, sT2, 10)
a("s_mov_b64 exec, 3")
a("s_waitcnt vmcnt(0)")
bstore(7, 1, 6, WS, sr(sT0), flags="sc1")
stamp("o pushed")
if OPT["pt"]:
    a("s_waitcnt lgkmcnt(0)"); a("s_mov_b32 s94, s88")
    for i in range(8): a(f"v_readlane_b32 s{76 + 2*i}, v15, {i}")
    a("s_mov_b32 s92, s94")
if OPT["enc"] or OPT["spin"]: a("s_barrier"); a("s_barrier")
if DIAG or OPT["enc"] or OPT["spin"]: finish(13 if DIAG == 1 else 11)
else: a("s_endpgm")
a.label("L_fallback")
a(f"s_cmp_lg_u32 {sr(sREDO)}, 0")
a("s_cbranch_scc1 L_attn_done")
a(f"s_mov_b32 {sr(sREDO)}, 1")
a(f"s_mov_b32 {sr(sOFF)}, 0")
a("v_mov_b32 v6, 0xff800000"); a("v_mov_b32 v7, v6")
for j in range(16): a(f"v_mov_b64 {vr(O0+2*j,2)}, 0")
a("s_waitcnt vmcnt(0)")
a.label("L_fb")
bload(rK(0), 4, vKA, WS, sr(sOFF), 0, "sc1")
a(f"s_add_u32 {sr(sOFF)}, {sr(sOFF)}, 0x800")
a("s_waitcnt vmcnt(0)")
mfma32(S0, rK(0), Q0, None); mfma32(S1, rK(0), Q1, None)
a("s_nop 10")
rowmax(S0, 6, True); rowmax(S1, 7, True)
a(f"s_cmp_lg_u32 {sr(sOFF)}, 0x20000")
a("s_cbranch_scc1 L_fb")
a(f"s_lshl_b32 {sr(sOFF)}, {sr(sTB)}, 12")
ring_fill(range(PD))
a("v_mov_b32 v4, v6"); a("v_mov_b32 v11, v7"); a("s_nop 0")
a("v_permlane32_swap_b32 v6, v4"); a("v_permlane32_swap_b32 v7, v11")
a(f"v_max_f32 v6, v6, v4"); a("v_max_f32 v7, v7, v11")
for j in range(16): a(f"v_sub_f32 {vr(C0+j)}, 0, v6"); a(f"v_sub_f32 {vr(C1+j)}, 0, v7")
for j in range(4): a(f"v_mov_b64 {vr(S1+8+2*j,2)}, 0")
a(f"s_mov_b32 {sr(sPASS)}, 0")
a("s_waitcnt vmcnt(0)")
mfma32(S0, rK(0), Q0, C0)
a("s_nop 11")
a("s_branch L_fill")
a.label("L_end")
a("s_endpgm")

nbad = check(a.lines)
ref = open(f"cdna_kernels/{NAME}.s.ref").read().split("\n")
head = [l for l in ref if l.startswith(";") and "@launch" not in l and "Override launch" not in l and "grid=ceil" not in l]
out = "\n".join(head) + f"""
; Fused single launch: 256 workgroups (one per CU) x 8 waves; generated by gen/gen.py.
; @launch grid=(256,1,1) block=(512,1,1) lds={LDS_BYTES}
.amdgcn_target "amdgcn-amd-amdhsa--gfx950"
.text
.globl {NAME}_kernel
.p2align 8
.type {NAME}_kernel,@function
""" + a.text() + f""".section .rodata,"a"
.p2align 6
.amdhsa_kernel {NAME}_kernel
  .amdhsa_next_free_vgpr 256
  .amdhsa_next_free_sgpr 102
  .amdhsa_accum_offset 256
  .amdhsa_group_segment_fixed_size 0
  .amdhsa_kernarg_size 96
  .amdhsa_user_sgpr_count 2
  .amdhsa_user_sgpr_kernarg_segment_ptr 1
  .amdhsa_system_sgpr_workgroup_id_x 1
.end_amdhsa_kernel
"""
open(sys.argv[1], "w").write(out)
print("hazards:", nbad, "lines:", len(a.lines), "stamps:", nstamp[0])
```

```python
import sys, math, struct
from asmlib import Asm, vr, sr, check

NAME = "concat_heads__mha_block__ssm_conv_h3__prompt"
OPT = dict(coal=1, gat=1, enc0="", encm=2, wpf=1, wfirst=0, hat=0, p0w=8, wo1=24, map=2, ldfl="sc1", kvfl="sc1", wsoff=0, tlb=0, prew=0, late=0, hlate=0, kvat=2, pace=1, two=0, pd=5, ackat=14, pollat=27, p0p=0, hst=0, wqe=1, ysl=20, usl=16, wpace=3, gd=2, p0late=1, hs=4, pt=0, slp=24, onepoll=1, skip="", cp=0, sp=3, ep=3, hp=0, enc="", encw=0, first=0, gfl="sc1", pfl="sc1", vz=1, noload=0, nopv=0, noqk=0, noexp=0, c0=0, prio=1, diag=0, spin=0, spinat="end", clk=0)
for arg in sys.argv[2:]:
    k, v = arg.split("=")
    try: OPT[k] = int(v, 0)
    except ValueError: OPT[k] = v
DIAG = OPT["diag"]

KV, UT, YT, OF, MB = 0, 0x400000, 0x600000, 0x800000, 0xA00000
MB_U, MB_KV, MB_Y, MB_O = MB, MB + 0x8000, MB + 0x10000, MB + 0x18000
EP = MB + 0x20000
STAMP = 0xA30000
WS_SIZE = 0xA50000
K1 = 1024
SLOT = [0, 48 * K1, 96 * K1]
EX = 144 * K1
P0S = 8 * K1
HB = SLOT[2]; HSTR = 4512
UB = HB + 8 * HSTR; USTR = 4224
CNT = UB + 2 * USTR
QF = 0; RED = 140 * K1; KVL = SLOT[2]
YB = 128 * K1; MG = 140 * K1
LDS_BYTES = 160 * K1
assert CNT + 16 <= MG
X, W, WO, BQ, BK, BV, SH, HK, DD, OUT, WS = 4, 8, 12, 16, 20, 24, 28, 32, 36, 40, 44
sW, sHQ, sTB, sDB, sTBB, sROT, sTAG, sMASK = 48, 49, 50, 51, 52, 53, 54, 55
sA, sT0, sT1, sT2, sT3, sSX, sSW, sM0 = 56, 57, 58, 59, 60, 61, 62, 63
sOFF, sPASS, sREDO, sSPIN, sAND = 64, 65, 66, 67, 68
sHALF = 70
sCT, sTT, sHH, sHB = 3, 69, 72, 73
sST = 74
SPINMAX = 0x20000
f2h = lambda x: hex(struct.unpack("<I", struct.pack("<f", x))[0])

a = Asm()
nstamp = [0]
def stamp(name):
    if OPT["enc"] and name.replace(" ", "_") == OPT["enc"]: a("s_memrealtime s[94:95]")
    if OPT["enc0"] and name.replace(" ", "_") == OPT["enc0"]: a("s_memrealtime s[96:97]")
    if OPT["enc"] == "drained" and name == "end": a("s_waitcnt vmcnt(0)"); a("s_memrealtime s[94:95]")
    if OPT["enc"] and name == "end":
        L, L2 = newlab("spin"), newlab("spin")
        a("s_waitcnt lgkmcnt(0)")
        a(f"s_sub_u32 s94, s94, {'s96' if OPT['enc0'] else 's100'}"); a(f"s_lshl_b32 s94, s94, {OPT['encm']}")
        a("s_lshr_b32 s95, s2, 3"); a(f"s_lshl3_add_u32 s95, s95, {sr(sW)}"); a(f"s_cmp_eq_u32 s95, {96 + OPT['encw']}")
        a("s_cselect_b32 s94, s94, 0"); a("s_add_u32 s94, s94, 4000")
        a.label(L)
        a("s_memrealtime s[98:99]"); a("s_waitcnt lgkmcnt(0)")
        a("s_sub_u32 s98, s98, s100"); a("s_cmp_lt_u32 s98, s94"); a(f"s_cbranch_scc1 {L}")
    if OPT["spin"] and name.replace(" ", "_") == OPT["spinat"]:
        L = newlab("spin")
        if OPT["first"]:
            a("v_mov_b32 v6, 0"); a("global_load_dword v6, v6, s[96:97] sc1"); a("s_waitcnt vmcnt(0)")
            a("v_readfirstlane_b32 s100, v6"); a("s_nop 3"); a("s_not_b32 s100, s100")
        a.label(L)
        a("s_memrealtime s[98:99]"); a("s_waitcnt lgkmcnt(0)")
        a("s_sub_u32 s98, s98, s100"); a(f"s_cmp_lt_u32 s98, {OPT['spin'] * 100}"); a(f"s_cbranch_scc1 {L}")
    if DIAG == 2:
        if name in ("B1", "B5", "B6", "loop start", "loop end", "end"):
            i = nstamp[0]; nstamp[0] += 2
            a(f"s_memrealtime {sr(sST + 2 * i, 2)}")
            a(f"s_memtime {sr(sST + 2 * i + 2, 2)}")
    elif DIAG:
        i = nstamp[0]; nstamp[0] += 1
        assert sST + 2 * i + 1 <= 101, "too many stamps"
        a(f"{'s_memtime' if OPT['clk'] else 's_memrealtime'} {sr(sST + 2 * i, 2)} ; stamp {i} {name}")
def set_stamp(i): nstamp[0] = i
def xstamp(i, name):
    if DIAG == 1 and not OPT["pt"]:
        k = nstamp[0]; nstamp[0] = i; stamp(name); nstamp[0] = k
    elif OPT["enc"]: stamp(name)
lab = [0]
def newlab(p):
    lab[0] += 1; return f"L_{p}{lab[0]}"

def bload(dst, n, vaddr, srd, soff, off=0, flags=""):
    op = {1: "dword", 2: "dwordx2", 4: "dwordx4"}[n]
    a(f"buffer_load_{op} {vr(dst, n)}, {vr(vaddr)}, {sr(srd, 4)}, {soff} offen" + (f" offset:{off}" if off else "") + (" " + flags if flags else ""))
def bstore(src, n, vaddr, srd, soff, off=0, flags=""):
    op = {1: "dword", 2: "dwordx2", 4: "dwordx4"}[n]
    a(f"buffer_store_{op} {vr(src, n)}, {vr(vaddr)}, {sr(srd, 4)}, {soff} offen" + (f" offset:{off}" if off else "") + (" " + flags if flags else ""))
def dma(vaddr, srd, soff, flags=""):
    a(f"buffer_load_dwordx4 {vr(vaddr)}, {sr(srd, 4)}, {soff} offen" + (" " + flags if flags else "") + " lds")
def dsr(op, dst, n, vaddr, off=0):
    assert 0 <= off < 65536
    a(f"{op} {vr(dst, n)}, {vr(vaddr)}" + (f" offset:{off}" if off else ""))
def dsw(op, vaddr, src, n, off=0):
    assert 0 <= off < 65536
    a(f"{op} {vr(vaddr)}, {vr(src, n)}" + (f" offset:{off}" if off else ""))
def mfma32(d, A, B, c): a(f"v_mfma_f32_32x32x16_bf16 {vr(d,16)}, {vr(A,4)}, {vr(B,4)}, " + ("0" if c is None else vr(c, 16)))
def mfma16(d, A, B, c): a(f"v_mfma_f32_16x16x32_bf16 {vr(d,4)}, {vr(A,4)}, {vr(B,4)}, " + ("0" if c is None else vr(c, 4)))
def cvt(d, x, y): a(f"v_cvt_pk_bf16_f32 {vr(d)}, {vr(x)}, {vr(y)}")
def lo(d, s): a(f"v_lshlrev_b32 {vr(d)}, 16, {vr(s)}")
def hi(d, s): a(f"v_and_b32 {vr(d)}, {sr(sMASK)}, {vr(s)}")

bload_, mfma32_ = bload, mfma32
def poll(vaddr, vtmp, soff, first_issued=False, slp=None):
    L, Lo = newlab("poll"), newlab("pollok")
    a(f"s_mov_b32 {sr(sSPIN)}, 0")
    if first_issued:
        a(f"v_cmp_ne_u32 vcc, {sr(sTAG)}, {vr(vtmp)}")
        a(f"s_cbranch_vccz {Lo}")
    a.label(L)
    bload(vtmp, 1, vaddr, WS, soff, flags="sc1")
    a(f"s_add_u32 {sr(sSPIN)}, {sr(sSPIN)}, 1")
    a(f"s_cmp_ge_u32 {sr(sSPIN)}, {SPINMAX}")
    a("s_waitcnt vmcnt(0)")
    a(f"s_cbranch_scc1 {Lo}")
    a(f"v_cmp_ne_u32 vcc, {sr(sTAG)}, {vr(vtmp)}")
    a(f"s_cbranch_vccz {Lo}")
    a(f"s_sleep {OPT['slp'] if slp is None else slp}")
    a(f"s_branch {L}")
    a.label(Lo)

def push(nl, vt0, vt1, soff):
    a(f"s_mov_b64 exec, {hex((1 << nl) - 1)}")
    bstore(vt1, 1, vt0, WS, soff, flags="sc1")
    a("s_mov_b64 exec, -1")

def arrive(cntoff, pushfn):
    L = newlab("arr")
    a("s_mov_b64 exec, 1")
    a(f"ds_add_rtn_u32 v7, {vr(vCNT)}, {vr(vONE)} offset:{cntoff}")
    a("s_waitcnt lgkmcnt(0)")
    a("v_cmp_ne_u32 vcc, 3, v7")
    a(f"s_cbranch_vccnz {L}")
    pushfn()
    a.label(L)
    a("s_mov_b64 exec, -1")

def hbar(extra=0, slp=None):
    L = newlab("hb")
    a(f"s_add_u32 {sr(sHB)}, {sr(sHB)}, {4 + extra}")
    a("s_mov_b64 exec, 1")
    a(f"ds_add_u32 {vr(vCNT)}, {vr(vONE)}")
    a.label(L)
    dsr("ds_read_b32", 6, 1, vCNT)
    a("s_waitcnt lgkmcnt(0)")
    a(f"v_cmp_gt_u32 vcc, {sr(sHB)}, v6")
    a(f"s_cbranch_vccz {L}x")
    if slp != 0: a(f"s_sleep {OPT['hs'] if slp is None else slp}")
    a(f"s_branch {L}")
    a.label(L + "x")
    a("s_mov_b64 exec, -1")
def only_wave(w, fn):
    L = newlab("ow")
    a(f"s_cmp_lg_u32 {sr(sW)}, {w}"); a(f"s_cbranch_scc1 {L}")
    fn()
    a.label(L)
def hprio(p):
    a(f"s_setprio {p}")
vCNT, vONE = 2, 3


a.label(f"{NAME}_kernel")
a("s_cmp_ge_u32 s2, 0x100")
a("s_cbranch_scc1 L_end")
a(f"s_load_dwordx2 {sr(X,2)}, s[0:1], 0")
a(f"s_load_dwordx2 {sr(W,2)}, s[0:1], 8")
a(f"s_load_dwordx2 {sr(WS,2)}, s[0:1], 88")
if DIAG or OPT["spin"] or OPT["enc"]: a("s_memtime s[100:101]" if OPT["clk"] else "s_memrealtime s[100:101]")
a("s_getpc_b64 s[88:89]")
a.label("L_pc")
a(f"s_lshr_b32 {sr(sTBB)}, s2, 3")
a(f"s_and_b32 {sr(sDB)}, s2, 7")
a("v_lshrrev_b32 v6, 6, v0")
a(f"v_lshl_add_u32 v7, {sr(sTBB)}, 3, v6")
a("v_lshlrev_b32 v7, 7, v7")
a("v_min_u32 v7, L_end-L_pc, v7")
a("global_load_dword v4, v7, s[88:89]")
a(f"v_readfirstlane_b32 {sr(sW)}, v6")
if OPT["map"] == 1:
    sHQ, sTB = sDB, sTBB
    a(f"s_add_u32 {sr(sROT)}, {sr(sDB)}, {sr(sTBB)}")
elif OPT["map"] == 2:
    a(f"s_and_b32 {sr(sT0)}, {sr(sTBB)}, 1")
    a(f"s_lshr_b32 {sr(sT1)}, {sr(sTBB)}, 1")
    a(f"s_lshl1_add_u32 {sr(sROT)}, {sr(sT0)}, {sr(sT1)}")
    a(f"s_and_b32 {sr(sHQ)}, {sr(sDB)}, 3")
    a(f"s_lshl1_add_u32 {sr(sHQ)}, {sr(sHQ)}, {sr(sT0)}")
    a(f"s_lshr_b32 {sr(sTB)}, {sr(sDB)}, 2")
    a(f"s_lshl4_add_u32 {sr(sTB)}, {sr(sTB)}, {sr(sT1)}")
else:
    a(f"s_and_b32 {sr(sT0)}, {sr(sTBB)}, 3")
    a(f"s_lshr_b32 {sr(sT1)}, {sr(sTBB)}, 2")
    a(f"s_add_u32 {sr(sROT)}, {sr(sT0)}, {sr(sT1)}")
    a(f"s_and_b32 {sr(sHQ)}, {sr(sDB)}, 1")
    a(f"s_lshl2_add_u32 {sr(sHQ)}, {sr(sHQ)}, {sr(sT0)}")
    a(f"s_lshr_b32 {sr(sTB)}, {sr(sDB)}, 1")
    a(f"s_lshl3_add_u32 {sr(sTB)}, {sr(sTB)}, {sr(sT1)}")
a(f"s_mov_b32 {sr(X+3)}, 0x20000")
a(f"s_and_b32 {sr(sHH)}, {sr(sW)}, 3")
a(f"s_cmp_lt_u32 {sr(sW)}, 4")
a("s_cbranch_scc1 L_main")

def mbox(base, grp, idx, sh):
    a(f"s_lshr_b32 {sr(sT0)}, {sr(idx)}, 3")
    a(f"s_mul_i32 {sr(sT0)}, {sr(sT0)}, 96")
    a(f"s_lshl2_add_u32 {sr(sT0)}, {sr(idx)}, {sr(sT0)}")
    a(f"s_lshl_b32 {sr(sT3)}, {sr(grp)}, {sh}")
    a(f"s_add_u32 {sr(sT3)}, {sr(sT3)}, {base}")
    a(f"s_add_u32 {sr(sT0)}, {sr(sT0)}, {sr(sT3)}")
def common_setup():
    a("v_and_b32 v1, 63, v0")
    if OPT["wsoff"]:
        a(f"s_add_u32 {sr(WS)}, {sr(WS)}, {hex(OPT['wsoff'])}"); a(f"s_addc_u32 {sr(WS+1)}, {sr(WS+1)}, 0")
    a(f"s_add_u32 s88, {sr(WS)}, {EP}")
    a(f"s_addc_u32 s89, {sr(WS+1)}, 0")
    a(f"s_load_dword {sr(sTAG)}, s[88:89], 0")
    a(f"s_mov_b32 {sr(WS+2)}, {hex(WS_SIZE)}"); a(f"s_mov_b32 {sr(WS+3)}, {sr(X+3)}")
    a(f"s_and_b32 {sr(sCT)}, {sr(sW)}, 1")
    a(f"s_bfe_u32 {sr(sTT)}, {sr(sW)}, 0x10001")
    if DIAG: a(f"s_mov_b64 {sr(sST,2)}, s[100:101]"); nstamp[0] = 1
def make_tag():
    a(f"s_mul_i32 {sr(sTAG)}, {sr(sTAG)}, 0x2c9277b5")
    a(f"s_add_u32 {sr(sTAG)}, {sr(sTAG)}, 0xac564b05")
def finish(n, drain=False):
    a("s_mov_b64 exec, -1")
    if DIAG and drain: a("s_waitcnt vmcnt(0)")
    set_stamp(n); stamp("end")
    if DIAG:
        a("s_waitcnt lgkmcnt(0)")
        for i in range(nstamp[0]): a(f"v_mov_b32 {vr(32+i)}, {sr(sST+2*i)}")
        a(f"s_lshl3_add_u32 {sr(sT0)}, s2, {sr(sW)}")
        a(f"s_lshl_b32 {sr(sT0)}, {sr(sT0)}, 6")
        a(f"s_add_u32 {sr(sT0)}, {sr(sT0)}, {STAMP}")
        a("v_mov_b32 v6, 0")
        a("s_mov_b64 exec, 1")
        for i in range(4): bstore(32 + 4*i, 4, 6, WS, sr(sT0), 16*i)
    a("s_endpgm")

vXS, vWS = 48, 49
a("v_and_b32 v0, 0xff, v0")
a(f"s_mov_b32 {sr(X+2)}, 0x200000")
a(f"s_mov_b32 {sr(W+2)}, 0x180000"); a(f"s_mov_b32 {sr(W+3)}, {sr(X+3)}")
a("v_lshrrev_b32 v6, 4, v0")
a("v_xor_b32 v32, v6, v0")
a("v_and_b32 v32, 15, v32")
a(f"v_lshl_add_u32 v6, {sr(sTB)}, 6, v6")
a("v_lshlrev_b32 v6, 10, v6")
a(f"v_lshl_add_u32 {vr(vXS)}, v32, 4, v6")
a("v_lshrrev_b32 v6, 2, v0")
a("v_and_b32 v6, 4, v6")
a("v_xor_b32 v6, v6, v0")
a("v_and_b32 v6, 7, v6")
a(f"v_lshl_add_u32 v6, {sr(sHQ)}, 3, v6")
a("v_lshrrev_b32 v32, 3, v0")
a("v_mul_u32_u24 v32, 0xc00, v32")
a(f"v_lshl_add_u32 {vr(vWS)}, v6, 4, v32")
a(f"s_lshl_b32 {sr(sM0)}, {sr(sHH)}, 10")
def chunk_offsets(c):
    if c: a(f"s_add_u32 {sr(sT0)}, {sr(sROT)}, {c}")
    a(f"s_and_b32 {sr(sT0)}, {sr(sT0) if c else sr(sROT)}, 3")
    a(f"s_mul_i32 {sr(sSW)}, {sr(sT0)}, {128*3072}")
def dma_run(vaddr, srd, sbase, off, step, ldsbase, n=4, wait=False):
    a(f"s_add_u32 m0, {sr(sM0)}, {ldsbase}")
    a(f"s_add_u32 {sr(sT2)}, {sr(sbase)}, {off}")
    if wait: a("s_waitcnt lgkmcnt(0)")
    for i in range(n):
        dma(vaddr, srd, sr(sT2))
        if i < n - 1:
            a("s_addk_i32 m0, 0x1000")
            a(f"s_add_u32 {sr(sT2)}, {sr(sT2)}, {step}")
def dma_half(j):
    if j >= 8: return dma_wq(j - 8)
    c, hf = j >> 1, j & 1
    s = SLOT[c % 3]
    wf = OPT["wfirst"] and j == 0
    if not hf:
        chunk_offsets(c)
        a(f"s_lshl_b32 {sr(sSX)}, {sr(sT0)}, 8")
        if not wf: dma_run(vXS, X, sSX, 0, 16384, s, 4, c == 0)
    dma_run(vWS, W, sSW, 1024 + hf*64*3072, 32*3072, s + 16 * K1 + hf*8192, 2, wf)
    dma_run(vWS, W, sSW, 2048 + hf*64*3072, 32*3072, s + 32 * K1 + hf*8192, 2)
    if wf: dma_run(vXS, X, sSX, 0, 16384, s, 4)
HSZ = [8, 4] * 4 + [4, 4]
WQ = [EX, SLOT[1], SLOT[1] + 16 * K1, SLOT[1] + 32 * K1]
def dma_wq(c):
    chunk_offsets(c); dma_run(vWS, W, sSW, 0, 32*3072, WQ[c])
dma_half(0); dma_half(1)
a("s_load_dwordx8 s[80:87], s[0:1], 16")
a("s_load_dwordx8 s[92:99], s[0:1], 48")
common_setup()
UD = 16
vA, vH, vSH, vPW, vPR, vPG, vHS, vHP = 8, 9, 10, 11, 12, 13, 14, 15
vHW, vHA, vUA, vL16, vWO, vYS, vWR0, vWR1, vYR, vGO, vPO, vOO, vRW, vRR, vY8, vZ0 = range(32, 48)
vZ1, vFL, vTG, vMB = 50, 51, 52, 54
sUB, sCH = 64, 66
a("v_and_b32 v5, 31, v0")
a("v_lshlrev_b32 v5, 2, v5")
a(f"v_mov_b32 {vr(vCNT)}, {CNT}")
a(f"v_mov_b32 {vr(vONE)}, 1")
a(f"s_mov_b32 {sr(sHB)}, 0")
a(f"s_mov_b32 {sr(sMASK)}, 0xffff0000")
a("v_lshrrev_b32 v53, 5, v0")
a(f"v_lshl_add_u32 {vr(vA)}, v53, 13, v5")
a(f"v_lshl_add_u32 {vr(vGO)}, v53, 14, v5")
a(f"s_lshl_b32 {sr(sA)}, {sr(sTBB)}, 16")
a(f"s_lshl_b32 {sr(sT0)}, {sr(sDB)}, 7")
a(f"s_add_u32 {sr(sA)}, {sr(sA)}, {sr(sT0)}")
a(f"s_sub_u32 {sr(sT2)}, {sr(sA)}, 0xc00")
a(f"v_add_u32 {vr(vH)}, {sr(sT2)}, {vr(vA)}")
a(f"v_lshlrev_b32 {vr(vSH)}, 2, v5")
a("v_xor_b32 v6, 7, v53")
a("v_xor_b32 v6, v6, v0")
a("v_and_b32 v6, 7, v6")
a("v_lshlrev_b32 v6, 4, v6")
a(f"v_lshl_add_u32 {vr(vPW)}, v5, 5, v6")
a("v_lshrrev_b32 v7, 1, v0")
a("v_xor_b32 v7, v53, v7")
a("v_and_b32 v7, 7, v7")
a("v_lshlrev_b32 v7, 4, v7")
a("v_lshl_add_u32 v7, v5, 5, v7")
a(f"v_add_u32 {vr(vYR)}, {YB}, v7")
a("v_lshrrev_b32 v6, 3, v0")
a("v_xor_b32 v7, v6, v0")
a("v_and_b32 v7, 7, v7")
a("v_lshlrev_b32 v7, 4, v7")
a(f"v_lshl_add_u32 {vr(vPR)}, v6, 7, v7")
a("v_and_b32 v7, 7, v0")
a("v_lshlrev_b32 v7, 4, v7")
a(f"v_lshl_add_u32 {vr(vPG)}, v6, 13, v7")
a("v_lshrrev_b32 v7, 1, v6")
a("v_xor_b32 v7, v7, v0")
a("v_and_b32 v7, 7, v7")
a("v_lshlrev_b32 v7, 4, v7")
a(f"v_lshl_add_u32 {vr(vYS)}, v6, 13, v7")
a(f"v_lshlrev_b32 {vr(vHS)}, 4, v0")
a("v_cmp_eq_u32 vcc, 0, v0")
a(f"v_subrev_u32 v6, 8, {vr(vHS)}")
a("v_bfrev_b32 v7, 2")
a(f"v_cndmask_b32 {vr(vHP)}, v6, v7, vcc")
a(f"v_add_u32 {vr(vHW)}, {HB + 384}, {vr(vHS)}")
a("v_and_b32 v6, 3, v1")
a(f"v_mul_u32_u24 v6, {HSTR}, v6")
a("v_bfe_u32 v53, v1, 2, 2")
a("v_lshl_add_u32 v6, v53, 7, v6")
a("v_and_b32 v7, 0x30, v1")
a("v_add_u32 v6, v6, v7")
a(f"s_mul_i32 {sr(sT0)}, {sr(sCT)}, {4*HSTR}")
a(f"s_lshl_b32 {sr(sT1)}, {sr(sTT)}, 8")
a(f"s_add_u32 {sr(sT0)}, {sr(sT0)}, {sr(sT1)}")
a(f"s_add_u32 {sr(sT0)}, {sr(sT0)}, {HB}")
a(f"v_add_u32 {vr(vHA)}, {sr(sT0)}, v6")
a("v_and_b32 v6, 15, v1")
a("v_lshlrev_b32 v6, 3, v6")
a("v_sub_u32 v6, v7, v6")
a(f"s_mul_i32 {sr(sUB)}, {sr(sCT)}, {USTR}")
a(f"s_add_u32 {sr(sUB)}, {sr(sUB)}, {UB}")
a(f"s_add_u32 {sr(sT0)}, {sr(sUB)}, {sr(sT1)}")
a(f"s_add_u32 {sr(sT0)}, {sr(sT0)}, 120")
a(f"v_add_u32 {vr(vUA)}, {sr(sT0)}, v6")
a(f"v_lshlrev_b32 {vr(vL16)}, 4, v1")
a(f"v_lshlrev_b32 {vr(vY8)}, 3, v1")
a(f"v_lshlrev_b32 {vr(vFL)}, 9, v1")
a(f"v_lshl_add_u32 {vr(vRW)}, {sr(sHH)}, 12, {vr(vL16)}")
a(f"v_xor_b32 {vr(vRR)}, 0x2000, {vr(vRW)}")
a(f"v_add_u32 {vr(vRW)}, {RED}, {vr(vRW)}")
a(f"v_add_u32 {vr(vRR)}, {RED}, {vr(vRR)}")
a("v_min_u32 v6, 23, v1")
a(f"s_mul_i32 {sr(sT0)}, {sr(sHH)}, {HSTR}")
a(f"s_add_u32 {sr(sT0)}, {sr(sT0)}, {HB}")
a(f"v_lshl_add_u32 {vr(vZ0)}, v6, 4, {sr(sT0)}")
a("v_and_b32 v6, 7, v1")
a(f"v_lshl_add_u32 {vr(vZ1)}, v6, 4, {sr(sUB)}")
a(f"s_lshl_b32 {sr(sT0)}, {sr(sDB)}, 5")
a(f"s_add_u32 {sr(sT0)}, {sr(sT0)}, {sr(sTBB)}")
a(f"s_lshl_b32 {sr(sCH)}, {sr(sT0)}, 13")
a("v_lshrrev_b32 v6, 4, v0")
a("v_lshlrev_b32 v7, 2, v6")
a("v_xor_b32 v7, v7, v0")
a("v_and_b32 v7, 15, v7")
a("v_lshlrev_b32 v7, 4, v7")
a("v_lshl_add_u32 v6, v6, 10, v7")
a(f"s_and_b32 {sr(sT0)}, {sr(sTBB)}, 3")
a(f"v_lshl_add_u32 {vr(vWO)}, {sr(sT0)}, 8, v6")
a("v_lshrrev_b32 v7, 5, v1")
a("v_lshl_add_u32 v7, v7, 2, v53")
a(f"v_xor_b32 v6, {sr(sHH)}, v53")
a("v_lshlrev_b32 v6, 6, v6")
a("v_lshl_add_u32 v6, v7, 8, v6")
a("v_and_b32 v7, 1, v1")
a("v_lshl_add_u32 v6, v7, 5, v6")
a("v_and_b32 v7, 16, v1")
a("v_add_u32 v6, v6, v7")
a("v_and_b32 v7, 2, v1")
a(f"v_lshl_add_u32 {vr(vWR0)}, v7, 2, v6")
a(f"v_add_u32 {vr(vWR1)}, 0x10000, {vr(vWR0)}")
a(f"v_and_b32 {vr(vPO)}, 28, v5")
vTW, vTR = 54, 55
if OPT["coal"] == 1:
    a("v_lshrrev_b32 v6, 4, v1")
    a("v_and_b32 v6, 2, v6")
    a("v_lshrrev_b32 v7, 1, v1")
    a("v_xor_b32 v6, v6, v7")
    a("v_and_b32 v6, 3, v6")
    a("v_lshlrev_b32 v6, 4, v6")
    a("v_lshl_add_u32 v6, v5, 4, v6")
    a(f"s_lshl_b32 {sr(sT0)}, {sr(sHH)}, 11")
    a(f"s_add_u32 {sr(sT0)}, {sr(sT0)}, {RED}")
    a(f"v_add_u32 {vr(vTW)}, {sr(sT0)}, v6")
    a("v_lshrrev_b32 v6, 3, v1")
    a("v_xor_b32 v6, v6, v1")
    a("v_and_b32 v6, 3, v6")
    a("v_and_b32 v7, 0x3c, v1")
    a("v_or_b32 v6, v6, v7")
    a(f"v_lshl_add_u32 {vr(vTR)}, v6, 4, {sr(sT0)}")
    a("v_and_b32 v6, 3, v1")
    a("v_lshlrev_b32 v6, 4, v6")
    a(f"v_lshl_add_u32 {vr(vOO)}, v7, 9, v6")
else:
    a("v_and_b32 v6, 32, v1")
    a(f"v_lshl_add_u32 {vr(vOO)}, v5, 9, v6")
CY, CB, CA = 64, 96, 128
for j in range(16): a(f"v_mov_b64 {vr(CY+2*j,2)}, 0")
a("s_waitcnt lgkmcnt(0)")
for r, p in ((WO, 80), (BQ, 82), (BK, 84), (BV, 86), (SH, 92), (HK, 94), (DD, 96), (OUT, 98)):
    a(f"s_mov_b64 {sr(r,2)}, {sr(p,2)}")
for r in (BK, BV, HK, BQ): a(f"s_mov_b64 {sr(r+2,2)}, {sr(X+2,2)}")
for r, n in ((SH, 4096), (DD, 1024), (WO, 0x80000), (OUT, 0x400000)):
    a(f"s_mov_b32 {sr(r+2)}, {hex(n)}"); a(f"s_mov_b32 {sr(r+3)}, {sr(X+3)}")
make_tag()
a(f"v_mov_b32 {vr(vTG)}, {sr(sTAG)}")
for j in range(8):
    dma_half(j + 2)
    a(f"s_waitcnt vmcnt({HSZ[j+1] + HSZ[j+2]})"); a("s_barrier")
    if j == 0: stamp("B1")
stamp("B4")
KR, VR, SR, DR = 128, 140, 148, 139
KP, WJ, VP, DP, UU, HR = 160, 184, 192, 208, 212, 232
def p0_loads():
    a(f"s_add_u32 {sr(sT2)}, {sr(sA)}, 0x1000")
    a(f"s_lshl_b32 {sr(sT0)}, {sr(sDB)}, 7")
    a(f"s_lshl_b32 {sr(sT1)}, {sr(sDB)}, 9")
    ls = [lambda: bload(SR, 4, vSH, SH, sr(sT1))]
    ls += [lambda i=i: bload(KR + i, 1, vH, BK, 0, 1024 * i) for i in range(3)]
    ls += [lambda i=i: bload(KR + 3 + i, 1, vA, BK, sr(sA if i < 4 else sT2), 1024 * (i & 3)) for i in range(8)]
    ls += [lambda i=i: bload(VR + i, 1, vA, BV, sr(sA if i < 4 else sT2), 1024 * (i & 3)) for i in range(8)]
    ls += [lambda: bload(DR, 1, 5, DD, sr(sT0))]
    for i, f in enumerate(ls):
        if OPT["p0w"] and i >= OPT["p0w"]: a(f"s_waitcnt vmcnt({OPT['p0w'] - 1})")
        f()
def h_loads():
    a(f"s_add_u32 {sr(sT2)}, {sr(sCH)}, 0x1000")
    for c in range(2):
        bload(HR + 6*c, 2, vHP, HK, sr(sT2 if c else sCH)); bload(HR + 6*c + 2, 4, vHS, HK, sr(sT2 if c else sCH))
a("s_waitcnt vmcnt(4)"); dma_wq(2)
a("s_waitcnt vmcnt(4)"); dma_wq(3)
mbox(MB_KV, sHQ, sTB, 11)
a("s_waitcnt vmcnt(0)"); a("s_barrier")
only_wave(4, lambda: push(4, vFL, vTG, sr(sT0)))
stamp("B5")
a("s_barrier")
hprio(OPT["sp"])
hbar(4, 1)
p0_loads()
NH = 4 if OPT["hat"] == 0 else 0
if NH: h_loads()
hprio(OPT["ep"])
a(f"s_waitcnt vmcnt({9 + NH})")
if OPT["hst"]: xstamp(9, "k landed")
lo(WJ+0, SR); lo(WJ+1, SR+2); hi(WJ+2, SR); hi(WJ+3, SR+2)
lo(WJ+4, SR+1); lo(WJ+5, SR+3); hi(WJ+6, SR+1); hi(WJ+7, SR+3)
for i in range(11): lo(KP + 2*i, KR + i); hi(KP + 2*i + 1, KR + i)
for j in range(8): a(f"v_pk_mul_f32 {vr(UU+2*j,2)}, {vr(KP+2*j,2)}, {vr(WJ+6,2)}")
for t in (2, 1, 0):
    for j in range(8):
        a(f"v_pk_fma_f32 {vr(UU+2*j,2)}, {vr(KP+2*(j+3-t),2)}, {vr(WJ+2*t,2)}, {vr(UU+2*j,2)}")
if OPT["hst"]: xstamp(10, "conv4")
a(f"s_waitcnt vmcnt({NH})")
if OPT["hst"]: xstamp(11, "v landed")
for i in range(8): lo(VP + 2*i, VR + i); hi(VP + 2*i + 1, VR + i)
for j in range(8): a(f"v_pk_mul_f32 {vr(UU+2*j,2)}, {vr(UU+2*j,2)}, {vr(VP+2*j,2)}")
for c in range(2):
    for i in range(4): cvt(KP + 4*c + i, UU + 2*(7 - 2*i) + c, UU + 2*(6 - 2*i) + c)
dsw("ds_write_b128", vPW, KP, 4, P0S); dsw("ds_write_b128", vPW, KP + 4, 4, P0S + 4096)
lo(DP, DR); hi(DP + 1, DR)
for j in range(8): a(f"v_pk_mul_f32 {vr(UD+2*j,2)}, {vr(UU+2*j,2)}, {vr(DP,2)}")
HT = [VP, 168]
def h_shift():
    for c in range(2):
        D = [HR + 6*c + j for j in range(6)]
        for j in range(4): a(f"v_alignbit_b32 {vr(HT[c]+j)}, {vr(D[2+j])}, {vr(D[1+j])}, 16")
        for j in range(4): a(f"v_mov_b32 {vr(HT[c]+4+j)}, {vr(D[1+j])}")
        for j in range(4): a(f"v_alignbit_b32 {vr(HT[c]+8+j)}, {vr(D[1+j])}, {vr(D[j])}, 16")
if OPT["hat"] == 1: h_loads()
stamp("p0 done")
hprio(OPT["sp"])
a(f"s_lshl_b32 {sr(sT0)}, {sr(sDB)}, 18")
a(f"s_sub_u32 {sr(sT1)}, 31, {sr(sTBB)}")
a(f"s_lshl_b32 {sr(sT1)}, {sr(sT1)}, 7")
a(f"s_add_u32 {sr(sT3)}, {sr(sT0)}, {sr(sT1)}")
a(f"s_add_u32 {sr(sT3)}, {sr(sT3)}, {UT}")
a(f"s_add_u32 {sr(sT2)}, {sr(sT3)}, 0x1000")
a("s_waitcnt lgkmcnt(0)")
hbar()
stamp("hb1")
dsr("ds_read_b128", KP, 4, vPR, P0S); dsr("ds_read_b128", KP + 4, 4, vPR, P0S + 4096)
a("s_waitcnt lgkmcnt(1)")
bstore(KP, 4, vPG, WS, sr(sT3), 0, "sc1")
a("s_waitcnt lgkmcnt(0)")
bstore(KP + 4, 4, vPG, WS, sr(sT2), 0, "sc1")
dsw("ds_write_b128", vZ0, CY, 4); dsw("ds_write_b128", vZ0, CY, 4, 4*HSTR); dsw("ds_write_b128", vZ1, CY, 4, 4096)
hprio(OPT["ep"]); a("s_waitcnt vmcnt(2)"); h_shift(); hprio(OPT["sp"])
for c in range(2):
    dsw("ds_write_b128", vHW, HR + 6*c + 2, 4, (4*c + 3)*HSTR)
    dsw("ds_write_b128", vHW, HT[c], 4, (4*c + 2)*HSTR)
    dsw("ds_write_b128", vHW, HT[c]+4, 4, (4*c + 1)*HSTR)
    dsw("ds_write_b128", vHW, HT[c]+8, 4, (4*c)*HSTR)
mbox(MB_U, sDB, sTBB, 9)
a("s_waitcnt vmcnt(0)")
arrive(8, lambda: bstore(vTG, 1, vFL, WS, sr(sT0), flags="sc1"))
stamp("u pushed")
QG = 56
a(f"s_add_u32 {sr(sT2)}, {sr(sA)}, 0x1000")
for i in range(8): bload(QG + i, 1, vA, BQ, sr(sA if i < 4 else sT2), 1024 * (i & 3))
def wo_init(first, n):
    a(f"s_lshr_b32 {sr(sT0)}, {sr(sTBB)}, 2")
    a(f"s_mul_i32 {sr(sT0)}, {sr(sT0)}, {n // 8 * 4096}")
    if first: a(f"s_add_u32 {sr(sT0)}, {sr(sT0)}, {first * 4096}")
def wo_piece(first, n):
    a(f"s_add_u32 m0, {sr(sM0)}, {sr(sT0)}")
    a(f"s_lshl_b32 {sr(sSX)}, {sr(sT0)}, 2")
    dma(vWO, WO, sr(sSX))
    a(f"s_add_u32 {sr(sT0)}, {sr(sT0)}, 0x1000")
    a(f"s_cmp_eq_u32 {sr(sT0)}, {(first + n) * 4096}")
    a(f"s_cselect_b32 {sr(sT0)}, {first * 4096}, {sr(sT0)}")
a(f"s_lshr_b32 {sr(sT1)}, {sr(sM0)}, 3")
a(f"s_add_u32 {sr(sT3)}, {sr(sT3)}, {sr(sT1)}")
a(f"s_xor_b32 {sr(sT1)}, {sr(sM0)}, 0xc00")
a(f"s_add_u32 {sr(sT2)}, {sr(sCH)}, {sr(sT1)}")
a(f"s_add_u32 {sr(sT2)}, {sr(sT2)}, {UT}")
a(f"s_add_u32 m0, {sr(sT1)}, {UB}")
a("s_waitcnt vmcnt(0)")
if OPT["usl"]: a(f"s_sleep {OPT['usl']}")
poll(vPO, 6, sr(sT3))
dma(vL16, WS, sr(sT2), "sc1")
a(f"s_addk_i32 m0, {USTR}")
a(f"s_add_u32 {sr(sT2)}, {sr(sT2)}, 0x1000")
dma(vL16, WS, sr(sT2), "sc1")
a(f"s_lshl_b32 {sr(sT0)}, {sr(sCT)}, 12")
a(f"s_add_u32 {sr(sCH)}, {sr(sCH)}, {sr(sT0)}")
a(f"s_mov_b32 {sr(sPASS)}, 0")
wo_init(0, 24)
a("s_waitcnt vmcnt(0)")
hbar()
hprio(OPT["cp"])
stamp("u landed")
a.label("L_conv")
for i in range(8):
    dsr("ds_read_b64", CB + 4*i, 2, vUA, 3584 - 512*i); dsr("ds_read_b64", CB + 4*i + 2, 2, vUA, 3584 - 512*i + 8)
for ai in range(8):
    dsr("ds_read_b128", CA, 4, vHA, 512*ai)
    if ai < 6: wo_piece(0, 24)
    a("s_waitcnt lgkmcnt(0)")
    for bi in range(8 - ai): mfma16(CY + 4*(ai + bi), CA, CB + 4*bi, CY + 4*(ai + bi))
if OPT["cp"] != OPT["ep"]: hprio(OPT["ep"])
a(f"v_add_u32 {vr(vUA)}, 64, {vr(vUA)}")
a(f"v_add_u32 {vr(vHA)}, 64, {vr(vHA)}")
if OPT["cp"] != OPT["ep"]: hprio(OPT["cp"])
a(f"s_add_u32 {sr(sPASS)}, {sr(sPASS)}, 1")
a(f"s_cmp_lg_u32 {sr(sPASS)}, 4")
a("s_cbranch_scc1 L_conv")
stamp("conv done")
hprio(OPT["sp"])
a(f"s_lshl_b32 {sr(sT0)}, {sr(sTT)}, 11")
a(f"s_add_u32 {sr(sCH)}, {sr(sCH)}, {sr(sT0)}")
a(f"s_add_u32 {sr(sCH)}, {sr(sCH)}, {YT}")
a(f"s_cmp_lg_u32 {sr(sTT)}, 0")
a("s_cbranch_scc1 L_red1")
def reduce_store(keep, send):
    for j in range(4): dsw("ds_write_b128", vRW, send + 4*j, 4, 1024*j)
    a("s_waitcnt lgkmcnt(0)")
    hbar()
    for j in range(4): dsr("ds_read_b128", CB + 4*j, 4, vRR, 1024*j)
    hprio(OPT["ep"])
    a("s_waitcnt lgkmcnt(0)")
    for j in range(8): a(f"v_pk_add_f32 {vr(CB + 2*j, 2)}, {vr(CB + 2*j, 2)}, {vr(keep + 2*j, 2)}")
reduce_store(CY, CY + 16)
a("s_branch L_red2")
a.label("L_red1")
reduce_store(CY + 16, CY)
a.label("L_red2")
for j in range(8): cvt(CY + j, CB + 2*j, CB + 2*j + 1)
hprio(OPT["sp"])
for j in range(4): bstore(CY + 2*j, 2, vY8, WS, sr(sCH), 512*j, "sc1")
mbox(MB_Y, sDB, sTBB, 9)
a("s_waitcnt vmcnt(0)")
arrive(12, lambda: bstore(vTG, 1, vFL, WS, sr(sT0), flags="sc1"))
wo_init(24, 8)
a(f"s_mov_b32 {sr(sT1)}, 0")
a.label("L_wo")
wo_piece(24, 8)
a(f"s_add_u32 {sr(sT1)}, {sr(sT1)}, 1")
a(f"s_cmp_lg_u32 {sr(sT1)}, 8")
a(f"s_waitcnt vmcnt({OPT['wpace']})")
a("s_cbranch_scc1 L_wo")
a(f"s_lshr_b32 {sr(sT1)}, {sr(sM0)}, 3")
a(f"s_add_u32 {sr(sT3)}, {sr(sT3)}, {sr(sT1)}")
if OPT["ysl"]: a(f"s_sleep {OPT['ysl']}")
poll(vPO, 6, sr(sT3))
a(f"s_lshl_b32 {sr(sT0)}, {sr(sDB)}, 18")
a(f"s_lshl_b32 {sr(sT1)}, {sr(sTBB)}, 7")
a(f"s_add_u32 {sr(sT0)}, {sr(sT0)}, {sr(sT1)}")
a(f"s_add_u32 m0, {sr(sM0)}, {YB}")
a(f"s_add_u32 {sr(sT0)}, {sr(sT0)}, {YT}")
dma(vYS, WS, sr(sT0), "sc1")
a(f"s_add_u32 m0, {sr(sM0)}, {YB + 4096}")
a(f"s_add_u32 {sr(sT0)}, {sr(sT0)}, 0x1000")
dma(vYS, WS, sr(sT0), "sc1")
if OPT["map"]:
    a(f"s_lshr_b32 {sr(sT0)}, {sr(sTBB)}, 2")
    a(f"s_lshl3_add_u32 {sr(sSX)}, {sr(sDB)}, {sr(sT0)}")
else:
    a(f"s_lshr_b32 {sr(sT0)}, {sr(sHQ)}, 2")
    a(f"s_lshl1_add_u32 {sr(sSX)}, {sr(sTB)}, {sr(sT0)}")
a(f"s_lshl2_add_u32 {sr(sT0)}, {sr(sSX)}, {sr(sHH)}")
a(f"s_lshl_b32 {sr(sT0)}, {sr(sT0)}, 7")
a(f"s_add_u32 {sr(sT3)}, {sr(sT0)}, {MB_O}")
a(f"s_lshl_b32 {sr(sT0)}, {sr(sSX)}, 15")
a(f"s_lshl3_add_u32 {sr(sT0)}, {sr(sM0)}, {sr(sT0)}")
a(f"s_add_u32 {sr(sSW)}, {sr(sT0)}, {OF}")
a(f"s_lshl_b32 {sr(sSX)}, {sr(sSX)}, 16")
a(f"s_and_b32 {sr(sT1)}, {sr(sTBB)}, 3")
a(f"s_lshl2_add_u32 {sr(sT1)}, {sr(sT1)}, {sr(sHH)}")
a(f"s_lshl_b32 {sr(sT1)}, {sr(sT1)}, 6")
a(f"s_add_u32 {sr(sSX)}, {sr(sSX)}, {sr(sT1)}")
a(f"s_lshl_b32 {sr(sA)}, {sr(sTBB)}, 17")
a(f"s_lshl_b32 {sr(sT2)}, {sr(sDB)}, 7")
a(f"s_add_u32 {sr(sA)}, {sr(sA)}, {sr(sT2)}")
a(f"s_lshl_b32 m0, {sr(sM0)}, 3")
a(f"s_add_u32 {sr(sT2)}, {sr(sSW)}, 0x1000")
a("s_waitcnt vmcnt(0)")
if not OPT["hst"]: stamp("staged")
a("s_barrier")
if OPT["enc"]: stamp("B7")
GQ, GY, YY = 64, 80, 96
dsr("ds_read_b128", YY, 4, vYR); dsr("ds_read_b128", YY + 4, 4, vYR, 4096)
WOF = 128
gate = []
for j in range(8): gate += [lambda j=j: lo(GQ + 2*j, QG + j), lambda j=j: hi(GQ + 2*j + 1, QG + j)]
gate.append(lambda: a("s_waitcnt lgkmcnt(15)"))
for c in range(2):
    for i in range(4): gate += [lambda c=c, i=i: lo(GY + 4*i + c, YY + 4*c + i), lambda c=c, i=i: hi(GY + 4*i + 2 + c, YY + 4*c + i)]
for j in range(8): gate.append(lambda j=j: a(f"v_pk_add_f32 {vr(GY+2*j,2)}, {vr(GY+2*j,2)}, {vr(UD+2*j,2)}"))
for j in range(8): gate.append(lambda j=j: a(f"v_pk_mul_f32 {vr(GY+2*j,2)}, {vr(GY+2*j,2)}, {vr(GQ+2*j,2)}"))
for j in range(8): gate.append(lambda j=j: cvt(QG + j, GY + 2*j, GY + 2*j + 1))
for p in range(32):
    for part in range(2):
        dsr("ds_read_b64_tr_b16", WOF + 4*p + 2*part, 2, vWR0 + (p >> 4), ((p & 15) * 16 + 8*part) * 256)
        if gate: gate.pop(0)()
assert not gate
gfl = OPT["gfl"].replace("_", " ")
if OPT["gat"] == 0:
    for j in range(8):
        bstore(QG + j, 1, vGO, OUT, sr(sA), 3072 if j & 1 else 1024, gfl)
        if j & 1 and j < 7: a(f"s_add_u32 {sr(sA)}, {sr(sA)}, 0x1000")
a("s_waitcnt lgkmcnt(0)")
if not OPT["hst"]: stamp("gate done")
a("s_barrier")
poll(vPO, 6, sr(sT3), False, 1)
if not OPT["hst"]: stamp("o flags")
for i in range(4):
    a(f"buffer_load_dwordx4 {vr(vL16)}, {sr(WS,4)}, {sr(sSW)} offen offset:{1024*i} sc1 lds")
a("s_addk_i32 m0, 0x1000")
a("s_nop 0")
for i in range(4):
    a(f"buffer_load_dwordx4 {vr(vL16)}, {sr(WS,4)}, {sr(sT2)} offen offset:{1024*i} sc1 lds")
gfl = OPT["gfl"].replace("_", " ")
a("s_waitcnt vmcnt(0)"); a("s_barrier")
if not OPT["hst"]: stamp("o landed")
OFR, PA = 64, 16
for p in range(12): dsr("ds_read_b128", OFR + 4*p, 4, vL16, 1024*p)
for p in range(32):
    a(f"s_waitcnt lgkmcnt({min(32, p + 12) - p - 1})")
    mfma32(PA, WOF + 4*p, OFR + 4*(p & 15), None if p == 0 else PA)
    if p + 12 < 32: dsr("ds_read_b128", OFR + 4*((p + 12) & 15), 4, vL16, 1024*(p + 12))
    if p & 1 and p < 16 and OPT["gat"] == 1:
        j = p >> 1
        bstore(QG + j, 1, vGO, OUT, sr(sA), 3072 if j & 1 else 1024, gfl)
        if j & 1 and j < 7: a(f"s_add_u32 {sr(sA)}, {sr(sA)}, 0x1000")
a(f"s_or_b32 {sr(sT0)}, s2, {sr(sHH)}")
a("s_cbranch_scc1 L_noep")
a(f"v_mov_b32 v6, {EP}")
a("s_mov_b64 exec, 1")
bstore(vTG, 1, 6, WS, 0, flags="sc1")
a("s_mov_b64 exec, -1")
a.label("L_noep")
a(f"v_xor_b32 v4, 16, {vr(vTW)}")
a("s_nop 8")
pfl = OPT["pfl"].replace("_", " ")
if OPT["coal"] == 1:
    for j in range(4): cvt(8 + j, PA + 2*j, PA + 2*j + 1)
    dsw("ds_write_b128", vTW, 8, 4)
    for j in range(4, 8): cvt(8 + j, PA + 2*j, PA + 2*j + 1)
    dsw("ds_write_b128", 4, 12, 4)
    dsr("ds_read_b128", 64, 4, vTR); dsr("ds_read_b128", 68, 4, vTR, 1024)
    a(f"s_add_u32 {sr(sT0)}, {sr(sSX)}, 0x8000")
    a("s_waitcnt lgkmcnt(1)")
    bstore(64, 4, vOO, OUT, sr(sSX), 0, pfl)
    a("s_waitcnt lgkmcnt(0)")
    bstore(68, 4, vOO, OUT, sr(sT0), 0, pfl)
else:
    for j in range(4): cvt(8 + j, PA + 2*j, PA + 2*j + 1)
    bstore(8, 4, vOO, OUT, sr(sSX), 0, pfl)
    for j in range(4, 8): cvt(8 + j, PA + 2*j, PA + 2*j + 1)
    bstore(12, 4, vOO, OUT, sr(sSX), 16, pfl)
if DIAG or OPT["enc"] or OPT["spin"]: finish(13 if DIAG == 1 else 11, True)
else: a("s_endpgm")

a.label("L_main")
if OPT["wpf"]:
    n = {1: 12, 2: 4}[OPT["wpf"]]
    a(f"s_lshl2_add_u32 {sr(sT0)}, {sr(sTB)}, {sr(sW)}")
    a(f"s_mul_i32 {sr(sT0)}, {sr(sT0)}, 12*1024")
    a(f"s_lshl_b32 {sr(sT1)}, {sr(sHQ)}, 7")
    a(f"s_add_u32 {sr(sT0)}, {sr(sT0)}, {sr(sT1)}")
    a("v_and_b32 v6, 63, v0")
    a(f"v_min_u32 v6, {n - 1}, v6")
    a(f"v_mul_u32_u24 v6, {12 // n * 1024}, v6")
    a(f"v_add_u32 v6, {sr(sT0)}, v6")
a("s_waitcnt lgkmcnt(0)")
if OPT["wpf"]: a(f"global_load_dword v57, v6, {sr(W,2)}")
common_setup()
XF, WF, ACK, ACV, ACQ = 128, 96, 64, 80, 64
vXR, vWR, vXB, vWB, vXT = 50, 51, 52, 53, 54
O0, O1, S0, S1, C0, C1 = 16, 32, 48, 64, 80, 96
Q0, Q1 = 112, 116
vIDX, vKA, vVA = 8, 9, 10
vCON = 12
vKS, vVS, vKL, vVL, vQW, vQR = 2, 3, 5, 11, 14, 15
RING = 128
def rK(i): return RING + 12 * (i & 7)
def rVa(i): return RING + 12 * (i & 7) + 4
def rVb(i): return RING + 12 * (i & 7) + 8
a("v_bfe_u32 v6, v1, 2, 2")
a("v_lshrrev_b32 v32, 5, v1")
a("v_lshl_add_u32 v33, v32, 3, v6")
a("v_lshrrev_b32 v6, 1, v6")
a(f"v_xor_b32 v6, {sr(sCT)}, v6")
a("v_lshlrev_b32 v6, 6, v6")
a("v_lshl_add_u32 v33, v33, 7, v6")
a("v_and_b32 v6, 16, v1")
a("v_lshl_add_u32 v33, v6, 1, v33")
a("v_and_b32 v6, 3, v1")
a(f"v_lshl_add_u32 {vr(vWR)}, v6, 3, v33")
a("v_and_b32 v6, 31, v1")
a("v_xor_b32 v33, v32, v6")
a("v_and_b32 v33, 15, v33")
a("v_lshlrev_b32 v33, 4, v33")
a(f"v_lshl_add_u32 v6, {sr(sTT)}, 5, v6")
a(f"v_lshl_add_u32 {vr(vXR)}, v6, 8, v33")
a("v_and_b32 v33, 0x33, v1")
a("v_and_b32 v7, 4, v1")
a("v_lshl_or_b32 v33, v7, 1, v33")
a("v_and_b32 v7, 8, v1")
a("v_lshrrev_b32 v7, 1, v7")
a("v_or_b32 v6, v7, v33")
a(f"v_lshlrev_b32 {vr(vKS)}, 4, v6")
a("v_and_b32 v7, 15, v1")
a("v_lshlrev_b32 v7, 4, v7")
a("v_lshl_add_u32 v33, v32, 8, v7")
a("v_bfe_u32 v6, v1, 4, 1")
a(f"v_lshl_add_u32 {vr(vVS)}, v6, 17, v33")
a(f"s_lshl2_add_u32 {sr(sT0)}, {sr(sCT)}, {sr(sTT)}")
a(f"s_lshl_b32 {sr(sT1)}, {sr(sT0)}, 11")
a(f"s_add_u32 {sr(sT1)}, {sr(sT1)}, {KVL}")
a(f"v_add_u32 {vr(vKL)}, {sr(sT1)}, {vr(vKS)}")
a("v_lshl_add_u32 v6, v6, 12, v33")
a(f"v_add_u32 {vr(vVL)}, {sr(sT1)}, v6")
a(f"s_lshl_b32 {sr(sT0)}, {sr(sT0)}, 10")
a(f"v_lshl_add_u32 {vr(vQW)}, v1, 4, {sr(sT0)}")
a(f"s_lshl_b32 {sr(sT0)}, {sr(sHH)}, 11")
a(f"v_lshl_add_u32 {vr(vQR)}, v1, 4, {sr(sT0)}")
a(f"s_lshl2_add_u32 {sr(sT0)}, {sr(sHQ)}, {sr(sHH)}")
a(f"s_lshl_b32 {sr(sT0)}, {sr(sT0)}, 17")
a(f"v_lshl_add_u32 {vr(vKA)}, v1, 4, {sr(sT0)}")
a(f"v_add_u32 {vr(vVA)}, {sr(sT0)}, v33")
a(f"s_lshl_b32 {sr(sT0)}, {sr(sHH)}, 12")
a(f"s_add_u32 {sr(sT0)}, {sr(sT0)}, {KVL}")
a(f"v_lshl_add_u32 v48, v1, 4, {sr(sT0)}")
a(f"v_add_u32 v49, {sr(sT0)}, v33")
a(f"v_mov_b32 {vr(vIDX)}, 0xdddddddd")
a(f"s_mov_b32 {sr(sHALF)}, 0xffff"); a(f"s_mov_b32 {sr(sHALF+1)}, {sr(sHALF)}")
a(f"s_mov_b32 {sr(sAND)}, 0x1ffff")
a(f"s_mov_b32 {sr(sREDO)}, 0")
a("v_and_b32 v7, 0x1b, v1"); a("v_cmp_eq_u32 vcc, 16, v7")
a("v_mov_b32 v6, 0x3f803f80")
a(f"s_add_u32 {sr(sOFF)}, {sr(sTB)}, 1")
a(f"v_cndmask_b32 {vr(vCON)}, 0, v6, vcc")
a(f"v_cndmask_b32 {vr(vCON+1)}, 0, v6, vcc")
a(f"s_and_b32 {sr(sOFF)}, {sr(sOFF)}, 31")
a(f"s_lshl_b32 {sr(sOFF)}, {sr(sOFF)}, 12")
for j in range(8): a(f"v_mov_b64 {vr(O0+2*j,2)}, 0")
a(f"s_lshl1_add_u32 {sr(sT0)}, {sr(sHQ)}, {sr(sCT)}")
a(f"s_lshl_b32 {sr(sT0)}, {sr(sT0)}, 18")
a(f"s_lshl1_add_u32 {sr(sT1)}, {sr(sTB)}, {sr(sTT)}")
a(f"s_lshl_b32 {sr(sT1)}, {sr(sT1)}, 11")
a(f"s_add_u32 {sr(sT3)}, {sr(sT0)}, {sr(sT1)}")
a(f"s_add_u32 {sr(sT2)}, {sr(sT3)}, 0x20000")
if OPT["tlb"]:
    for r, o in ((14, sT3), (15, sT2)): a(f"s_load_dword s{r}, {sr(WS,2)}, {sr(o)}")
if OPT["prew"] >= 3:
    a("s_mov_b64 exec, 1")
    if OPT["prew"] == 3: bstore(O0, 4, vKS, WS, sr(sT3), 0, "sc1")
    if OPT["prew"] == 4: bload(56, 1, vKS, WS, sr(sT3), 0, "sc1")
    if OPT["prew"] == 5: bstore(O0, 4, vKS, WS, sr(sT3), 0, "")
    a("s_mov_b64 exec, -1")
    a("s_waitcnt vmcnt(1) lgkmcnt(0)")
elif OPT["prew"]:
    fl = {1: "sc1", 2: ""}[OPT["prew"]]
    bstore(O0, 4, vKS, WS, sr(sT3), 0, fl); bstore(O0, 4, vKS, WS, sr(sT2), 0, fl)
    bstore(O0, 4, vVS, WS, sr(sT3), 1024, fl); bstore(O0, 4, vVS, WS, sr(sT3), 1536, fl)
    a("s_waitcnt vmcnt(4) lgkmcnt(0)")
else: a("s_waitcnt lgkmcnt(0)")
make_tag()

def kv_gemm():
    def rd(i):
        c, s = i >> 3, i & 7
        if s == 0:
            a(f"v_add_u32 {vr(vXB)}, {SLOT[c % 3]}, {vr(vXR)}")
            a(f"v_add_u32 {vr(vWB)}, {SLOT[c % 3] + 16*K1}, {vr(vWR)}")
        f = WF + 8*(i & 3); t = vXT + (s & 1)
        if s: a(f"v_xor_b32 {vr(t)}, {32*s}, {vr(vXB)}")
        if s & 3 == 0:
            a("s_barrier")
            if i == 0: stamp("B1")
            if i == 28: stamp("B4")
        dsr("ds_read_b128", XF + 4*i, 4, t if s else vXB)
        dsr("ds_read_b64_tr_b16", f, 2, vWB, 2048*s); dsr("ds_read_b64_tr_b16", f + 2, 2, vWB, 2048*s + 512)
    def rdv(i):
        s = i & 7; f = WF + 8*(i & 3) + 4
        dsr("ds_read_b64_tr_b16", f, 2, vWB, 16*K1 + 2048*s); dsr("ds_read_b64_tr_b16", f + 2, 2, vWB, 16*K1 + 2048*s + 512)
    for lo_, hi_, D in ((0, 28, OPT["gd"]), (28, 32, 3)):
        for i in range(lo_, lo_ + D): rd(i); rdv(i)
        for i in range(lo_, hi_):
            x, f = XF + 4*i, WF + 8*(i & 3)
            n = 5 * (min(hi_, i + D) - i - 1)
            a(f"s_waitcnt lgkmcnt({n + 2})")
            mfma32(ACK, f, x, None if i == 0 else ACK)
            if i + D < hi_: rd(i + D); n += 3
            a(f"s_waitcnt lgkmcnt({n})")
            mfma32(ACV, x, f + 4, None if i == 0 else ACV)
            if i + D < hi_: rdv(i + D)
def q_gemm(side):
    def rd(i):
        c, s = i >> 3, i & 7
        if s == 0: a(f"v_add_u32 {vr(vXT + (c & 1))}, {WQ[c]}, {vr(vWR)}")
        if OPT["late"] and i == 32 - 8 * OPT["late"]: a("s_barrier")
        if i == 16 and OPT["two"]:
            a("s_waitcnt vmcnt(0)"); xstamp(10, "acked"); a("s_barrier"); stamp("B5")
        dsr("ds_read_b64_tr_b16", WF + 4*(i & 7), 2, vXT + (c & 1), 2048*s)
        dsr("ds_read_b64_tr_b16", WF + 4*(i & 7) + 2, 2, vXT + (c & 1), 2048*s + 512)
    D = 4
    for i in range(D): rd(i)
    for i in range(32):
        extra = sum(side[j][1] for j in range(max(0, i - D), i) if j in side)
        a(f"s_waitcnt lgkmcnt({2 * (min(32, i + D) - i - 1) + extra})")
        mfma32(ACQ, WF + 4*(i & 7), XF + 4*i, None if i == 0 else ACQ)
        if i + D < 32: rd(i + D)
        if i in side: side[i][0]()
def vconst(i): return [f"v_mov_b64 {vr(rVa(i) + 2*j, 2)}, {vr(vCON,2)}" for j in range(4)]
sGB = 12
def gload(dst, vaddr, off): a(f"global_load_dwordx4 {vr(dst,4)}, {vr(vaddr)}, {sr(sGB,2)} offset:{off} " + OPT["ldfl"].replace("_", " "))
def adv1():
    a(f"s_add_u32 {sr(sOFF)}, {sr(sOFF)}, 0x1000")
    a(f"s_and_b32 {sr(sOFF)}, {sr(sOFF)}, {sr(sAND)}")
def adv2():
    a(f"s_add_u32 {sr(sGB)}, {sr(WS)}, {sr(sOFF)}")
    a(f"s_addc_u32 {sr(sGB+1)}, {sr(WS+1)}, 0")
def ring_fill(tiles):
    for i in tiles:
        o = 2048 * (i & 1)
        if not o: adv2()
        gload(rK(i), vKA, o)
        a(f"s_mov_b64 exec, {sr(sHALF,2)}")
        gload(rVa(i), vVA, o + 1024); gload(rVb(i), vVA, o + 1536)
        a("s_mov_b64 exec, -1")
        if o: adv1()
def rowmax(S, m, acc):
    k = 0
    if not acc:
        a(f"v_max3_f32 {vr(m)}, {vr(S)}, {vr(S+1)}, {vr(S+2)}"); k = 3
    while k < 16:
        a(f"v_max3_f32 {vr(m)}, {vr(m)}, {vr(S+k)}, {vr(S+min(k+1,15))}"); k += 2

kv_gemm()
a(f"v_mov_b32 v56, {CNT}")
dsw("ds_write_b128", 56, O0, 4)
a("s_nop 7")
for j in range(8): cvt(32 + j, ACK + 2*j, ACK + 2*j + 1)
kvfl = OPT["kvfl"].replace("_", " ")
bstore(32, 4, vKS, WS, sr(sT3), 0, kvfl); bstore(36, 4, vKS, WS, sr(sT2), 0, kvfl)
for j in range(8): cvt(40 + j, ACV + 2*j, ACV + 2*j + 1)
bstore(40, 4, vVS, WS, sr(sT3), 1024, kvfl); bstore(44, 4, vVS, WS, sr(sT3), 1536, kvfl)
dsw("ds_write_b128", vKL, 32, 4); dsw("ds_write_b128", vKL, 36, 4, 4096)
dsw("ds_write_b128", vVL, 40, 4, 1024); dsw("ds_write_b128", vVL, 44, 4, 1536)
xstamp(9, "kv stored")
mbox(MB_KV, sHQ, sTB, 11)
a(f"s_lshr_b32 {sr(sT1)}, {sr(sTB)}, 3")
a(f"s_lshl_b32 {sr(sT1)}, {sr(sT1)}, 9")
a(f"s_add_u32 {sr(sT3)}, {sr(sT3)}, {sr(sT1)}")
if OPT["two"]: a("s_waitcnt lgkmcnt(0)"); a("s_barrier"); xstamp(11, "B5a")
else: a("s_waitcnt vmcnt(0) lgkmcnt(0)"); xstamp(10, "acked"); a("s_barrier"); stamp("B5")
NK = 80
def lines(ls): return (lambda: [a(l) for l in ls], 0)
def own_k():
    for i in range(2): dsr("ds_read_b128", rK(i), 4, 48, 2048*i)
def own_v(i):
    a(f"s_mov_b64 exec, {sr(sHALF,2)}")
    dsr("ds_read_b128", rVa(i), 4, 49, 2048*i + 1024); dsr("ds_read_b128", rVb(i), 4, 49, 2048*i + 1536)
    a("s_mov_b64 exec, -1")
def ack():
    a("s_waitcnt vmcnt(0)")
    xstamp(10, "acked")
    a("s_mov_b64 exec, 1"); a("ds_add_rtn_u32 v7, v56, v7 offset:8"); a("s_mov_b64 exec, -1")
def signal():
    L = newlab("sig")
    a("v_readfirstlane_b32 s14, v7"); a("s_cmp_lg_u32 s14, 3"); a(f"s_cbranch_scc1 {L}")
    push(4, 2, 3, sr(sT0))
    a.label(L)
A_ = OPT["ackat"]
side = {0: (lambda: (a("v_and_b32 v6, 0xfffffe00, v48"), dsr("ds_read_b128", NK, 4, 6)), 1),
        2: lines(["v_bfe_u32 v6, v1, 3, 2", "v_and_b32 v5, 7, v1", "v_lshlrev_b32 v5, 2, v5", "v_lshl_add_u32 v5, v6, 7, v5"]),
        6: lines([f"v_xor_b32 {vr(NK+j)}, 0x80008000, {vr(NK+j)}" for j in range(4)]),
        8: lines(vconst(0)), 9: lines(vconst(1)), 10: (own_k, 2), 11: (lambda: own_v(0), 2), 12: (lambda: own_v(1), 2),
        21: lines(vconst(2)), 22: lines(vconst(3)), 23: lines(vconst(4)), 24: lines(vconst(5)), 25: lines(vconst(6)), 26: lines(vconst(7)),
        min(OPT["pollat"], 31): (lambda: only_wave(0, lambda: bload(4, 1, 5, WS, sr(sT3), flags="sc1")), 0),
        28: lines([f"v_mov_b64 {vr(O1+2*j,2)}, 0" for j in range(4)]), 29: lines([f"v_mov_b64 {vr(O1+2*j,2)}, 0" for j in range(4, 8)])}
q_gemm(side)
if OPT["prio"]: a("s_setprio 1")
a(f"s_mov_b32 {sr(sT2)}, {f2h(0.25 * math.log2(math.e))}")
a(f"s_mov_b32 {sr(sT1)}, {sr(sT2)}")
a(f"v_mov_b32 {vr(vCNT)}, v56"); a(f"v_mov_b32 {vr(vONE)}, 1"); a("s_nop 0")
a(f"s_mov_b32 {sr(sPASS)}, 0")
a("s_nop 4")
for j in range(8): a(f"v_pk_mul_f32 {vr(ACQ+2*j,2)}, {vr(ACQ+2*j,2)}, {sr(sT1,2)}")
for j in range(8): cvt(120 + j, ACQ + 2*j, ACQ + 2*j + 1)
dsw("ds_write_b128", vQW, 120, 4, QF); dsw("ds_write_b128", vQW, 124, 4, QF + 2048)
for j in range(4): a(f"v_mov_b64 {vr(S1+8+2*j,2)}, 0")
for j in range(2): a(f"v_mov_b64 {vr(S1+2*j,2)}, {vr(NK+2*j,2)}")
stamp("q done")
def kvpoll():
    a("s_waitcnt vmcnt(0)"); poll(5, 4, sr(sT3), True, 1)
only_wave(0, kvpoll)
a("s_waitcnt lgkmcnt(0)")
a("s_barrier")
stamp("B6")
PD = OPT["pd"]
dsr("ds_read_b128", Q0, 4, vQR, QF); dsr("ds_read_b128", Q1, 4, vQR, QF + 1024)
ring_fill([2])
a("s_waitcnt lgkmcnt(0)")
mfma32(C0, S1, Q0, None)
mfma32(S0, rK(0), Q0, C0)
mfma32(C1, S1, Q1, None)
ring_fill(range(3, PD))
a("s_mov_b64 exec, 1"); a(f"ds_add_u32 v2, {vr(vONE)}"); a("s_mov_b64 exec, -1")
a.label("L_fill")
stamp("loop start")
def E(S, x, y):
    for k in range(x, y + 1): a(f"v_exp_f32 {vr(S+k)}, {vr(S+k)}")
def PV(O, V, S): a(f"v_smfmac_f32_32x32x32_bf16 {vr(O,16)}, {vr(V,4)}, {vr(S,8)}, {vr(vIDX)}")
def iteration(i, last):
    ld = not last or i + PD < 8
    o = 2048 * ((i + PD) & 1)
    t = i + PD
    E(S0, 0, 1)
    PV(O1, rVb(i-1), S1 + 8)
    if ld:
        a(f"s_mov_b64 exec, {sr(sHALF,2)}")
        gload(rVa(t), vVA, o + 1024); gload(rVb(t), vVA, o + 1536)
        a("s_mov_b64 exec, -1")
    E(S0, 2, 5)
    mfma32(S1, rK(i), Q1, C1)
    if ld: gload(rK(t), vKA, o)
    else: a("s_nop 0")
    E(S0, 6, 9)
    PV(O0, rVa(i), S0)
    if o and ld: adv1()
    E(S0, 10, 15)
    E(S1, 0, 1)
    PV(O0, rVb(i), S0 + 8)
    if not (last and i == 7): a(f"s_waitcnt vmcnt({3 * (PD - 1) if ld else 18 - 3 * i})")
    if i == 7 and not last: a(f"s_add_u32 {sr(sPASS)}, {sr(sPASS)}, 1")
    E(S1, 2, 5)
    if not (last and i == 7):
        mfma32(S0, rK(i+1), Q0, C0)
        if i == 7: a(f"s_cmp_lg_u32 {sr(sPASS)}, 7")
        else: a("s_nop 0")
    E(S1, 6, 9)
    PV(O1, rVa(i), S1)
    if o and ld: adv2()
    if OPT["pt"] and i == 1: a("s_memrealtime s[92:93]")
    if OPT["pt"] and i == 3: a("s_waitcnt lgkmcnt(0)"); a(f"s_mov_b32 m0, {sr(sPASS)}"); a("v_writelane_b32 v15, s92, m0")
    E(S1, 10, 15)
a(".p2align 6")
a.label("L_loop")
for i in range(8): iteration(i, False)
a("s_cbranch_scc1 L_loop")
for i in range(8): iteration(i, True)
a("v_lshlrev_b32 v4, 4, v1")
a(f"v_rcp_f32 v6, {vr(O0+8)}")
PV(O1, rVb(7), S1 + 8)
stamp("loop end")
a(f"s_mov_b32 {sr(sT0)}, {f2h(2.0**40)}")
a(f"s_lshl2_add_u32 {sr(sT3)}, {sr(sHQ)}, {sr(sHH)}")
a(f"s_lshl_b32 {sr(sSX)}, {sr(sTB)}, 6")
a(f"s_add_u32 {sr(sSX)}, {sr(sSX)}, {sr(sT3)}")
a(f"s_lshl_b32 {sr(sSX)}, {sr(sSX)}, 10")
a(f"s_add_u32 {sr(sSX)}, {sr(sSX)}, {OF}")
a(f"s_add_u32 {sr(sSW)}, {sr(sSX)}, 0x8000")
for j in range(8): a(f"v_mul_f32 {vr(S1+j)}, v6, {vr(O0+j)}")
a(f"v_rcp_f32 v7, {vr(O1+8)}")
a(f"v_cmp_nle_f32 vcc, {vr(O0+8)}, {sr(sT0)}")
a(f"v_cmp_nle_f32 {sr(sT1,2)}, {vr(O1+8)}, {sr(sT0)}")
for j in range(4): cvt(S0 + j, S1 + 2*j, S1 + 2*j + 1)
a(f"s_or_b64 vcc, vcc, {sr(sT1,2)}")
a("s_cbranch_vccnz L_fallback")
a.label("L_attn_done")
bstore(S0, 4, 4, WS, sr(sSX), 0, "sc1")
for j in range(8): a(f"v_mul_f32 {vr(S1+j)}, v7, {vr(O1+j)}")
for j in range(4): cvt(S0 + 4 + j, S1 + 2*j, S1 + 2*j + 1)
bstore(S0 + 4, 4, 4, WS, sr(sSW), 0, "sc1")
a("v_lshlrev_b32 v6, 9, v1")
a(f"v_mov_b32 v7, {sr(sTAG)}")
a("s_barrier")
a(f"s_mov_b32 {sr(sT2)}, {sr(sT3)}")
mbox(MB_O, sTB, sT2, 10)
a("s_mov_b64 exec, 3")
a("s_waitcnt vmcnt(0)")
bstore(7, 1, 6, WS, sr(sT0), flags="sc1")
stamp("o pushed")
if OPT["pt"]:
    a("s_waitcnt lgkmcnt(0)"); a("s_mov_b32 s94, s88")
    for i in range(8): a(f"v_readlane_b32 s{76 + 2*i}, v15, {i}")
    a("s_mov_b32 s92, s94")
if OPT["enc"] or OPT["spin"]: a("s_barrier"); a("s_barrier")
if DIAG or OPT["enc"] or OPT["spin"]: finish(13 if DIAG == 1 else 11)
else: a("s_endpgm")
a.label("L_fallback")
a(f"s_cmp_lg_u32 {sr(sREDO)}, 0")
a("s_cbranch_scc1 L_attn_done")
a(f"s_mov_b32 {sr(sREDO)}, 1")
a(f"s_mov_b32 {sr(sOFF)}, 0")
a("v_mov_b32 v6, 0xff800000"); a("v_mov_b32 v7, v6")
for j in range(16): a(f"v_mov_b64 {vr(O0+2*j,2)}, 0")
a("s_waitcnt vmcnt(0)")
a.label("L_fb")
bload(rK(0), 4, vKA, WS, sr(sOFF), 0, "sc1")
a(f"s_add_u32 {sr(sOFF)}, {sr(sOFF)}, 0x800")
a("s_waitcnt vmcnt(0)")
mfma32(S0, rK(0), Q0, None); mfma32(S1, rK(0), Q1, None)
a("s_nop 10")
rowmax(S0, 6, True); rowmax(S1, 7, True)
a(f"s_cmp_lg_u32 {sr(sOFF)}, 0x20000")
a("s_cbranch_scc1 L_fb")
a(f"s_lshl_b32 {sr(sOFF)}, {sr(sTB)}, 12")
ring_fill(range(PD))
a("v_mov_b32 v4, v6"); a("v_mov_b32 v11, v7"); a("s_nop 0")
a("v_permlane32_swap_b32 v6, v4"); a("v_permlane32_swap_b32 v7, v11")
a(f"v_max_f32 v6, v6, v4"); a("v_max_f32 v7, v7, v11")
for j in range(16): a(f"v_sub_f32 {vr(C0+j)}, 0, v6"); a(f"v_sub_f32 {vr(C1+j)}, 0, v7")
for j in range(4): a(f"v_mov_b64 {vr(S1+8+2*j,2)}, 0")
a(f"s_mov_b32 {sr(sPASS)}, 0")
a("s_waitcnt vmcnt(0)")
mfma32(S0, rK(0), Q0, C0)
a("s_nop 11")
a("s_branch L_fill")
a.label("L_end")
a("s_endpgm")

nbad = check(a.lines)
ref = open(f"cdna_kernels/{NAME}.s.ref").read().split("\n")
head = [l for l in ref if l.startswith(";") and "@launch" not in l and "Override launch" not in l and "grid=ceil" not in l]
out = "\n".join(head) + f"""
; Fused single launch: 256 workgroups (one per CU) x 8 waves; generated by gen/gen.py.
; @launch grid=(256,1,1) block=(512,1,1) lds={LDS_BYTES}
.amdgcn_target "amdgcn-amd-amdhsa--gfx950"
.text
.globl {NAME}_kernel
.p2align 8
.type {NAME}_kernel,@function
""" + a.text() + f""".section .rodata,"a"
.p2align 6
.amdhsa_kernel {NAME}_kernel
  .amdhsa_next_free_vgpr 256
  .amdhsa_next_free_sgpr 102
  .amdhsa_accum_offset 256
  .amdhsa_group_segment_fixed_size 0
  .amdhsa_kernarg_size 96
  .amdhsa_user_sgpr_count 2
  .amdhsa_user_sgpr_kernarg_segment_ptr 1
  .amdhsa_system_sgpr_workgroup_id_x 1
.end_amdhsa_kernel
"""
open(sys.argv[1], "w").write(out)
print("hazards:", nbad, "lines:", len(a.lines), "stamps:", nstamp[0])
```

```python
import sys, math, struct
from asmlib import Asm, vr, sr, check

NAME = "concat_heads__mha_block__ssm_conv_h3__prompt"
OPT = dict(encc=0, encall=0, dbm=0, cu=0, mbw=7, ke=0, ksl=0, xf=0, la=3, coal=1, gat=1, enc0="", encm=2, wpf=1, wfirst=0, hat=0, p0w=8, wo1=24, map=1, ldfl="sc1", kvfl="sc1", wsoff=0, tlb=0, prew=0, late=0, hlate=0, kvat=2, pace=1, two=0, pd=5, ackat=14, pollat=27, p0p=0, hst=0, wqe=1, ysl=20, usl=16, wpace=3, gd=2, p0late=1, hs=4, pt=0, slp=24, onepoll=1, skip="", cp=0, sp=3, ep=3, hp=0, enc="", encw=0, first=0, gfl="sc1", pfl="sc1", vz=1, noload=0, nopv=0, noqk=0, noexp=0, c0=0, prio=1, diag=0, spin=0, spinat="end", clk=0)
for arg in sys.argv[2:]:
    k, v = arg.split("=")
    try: OPT[k] = int(v, 0)
    except ValueError: OPT[k] = v
DIAG = OPT["diag"]

KV, UT, YT, OF, MB = 0, 0x400000, 0x600000, 0x800000, 0xA00000
MB_U, MB_KV, MB_Y, MB_O = MB, MB + 0x8000, MB + 0x10000, MB + 0x18000
EP = MB + 0x20000
STAMP = 0xA30000
WS_SIZE = 0xA50000
K1 = 1024
SLOT = [0, 48 * K1, 96 * K1]
EX = 144 * K1
P0S = 8 * K1
HB = SLOT[2]; HSTR = 4512
UB = HB + 8 * HSTR; USTR = 4224
CNT = UB + 2 * USTR
QF = 16 * K1; RED = 140 * K1; KVL = SLOT[2]
YB = 128 * K1; MG = 140 * K1
LDS_BYTES = 160 * K1
assert CNT + 16 <= MG
X, W, WO, BQ, BK, BV, SH, HK, DD, OUT, WS = 4, 8, 12, 16, 20, 24, 28, 32, 36, 40, 44
sW, sHQ, sTB, sDB, sTBB, sROT, sTAG, sMASK = 48, 49, 50, 51, 52, 53, 54, 55
sA, sT0, sT1, sT2, sT3, sSX, sSW, sM0 = 56, 57, 58, 59, 60, 61, 62, 63
sOFF, sPASS, sREDO, sSPIN, sAND = 64, 65, 66, 67, 68
sHALF = 70
sCT, sTT, sHH, sHB = 3, 69, 72, 73
sST = 74
SPINMAX = 0x20000
f2h = lambda x: hex(struct.unpack("<I", struct.pack("<f", x))[0])

a = Asm()
nstamp = [0]
def stamp(name):
    if OPT["enc"] and name.replace(" ", "_") == OPT["enc"]: a("s_memtime s[94:95]" if OPT["encc"] else "s_memrealtime s[94:95]")
    if OPT["enc0"] and name.replace(" ", "_") == OPT["enc0"]: a("s_memtime s[96:97]" if OPT["encc"] else "s_memrealtime s[96:97]")
    if OPT["enc"] == "drained" and name == "end": a("s_waitcnt vmcnt(0)"); a("s_memrealtime s[94:95]")
    if OPT["enc"] and name == "end":
        L, L2 = newlab("spin"), newlab("spin")
        a("s_waitcnt lgkmcnt(0)")
        a(f"s_sub_u32 s94, s94, {'s96' if OPT['enc0'] else 's100'}"); a(f"s_lshl_b32 s94, s94, {OPT['encm']}" if not OPT["encc"] else f"s_sub_u32 s94, s94, {OPT['encc']}"); a("s_min_u32 s94, s94, 100000")
        a("s_lshr_b32 s95, s2, 3" if not OPT["encall"] else "s_mov_b32 s95, 12"); a(f"s_lshl3_add_u32 s95, s95, {sr(sW)}"); a(f"s_cmp_eq_u32 s95, {96 + OPT['encw']}")
        a("s_cselect_b32 s94, s94, 0"); a("s_add_u32 s94, s94, 4000")
        a.label(L)
        a("s_memrealtime s[98:99]"); a("s_waitcnt lgkmcnt(0)")
        a("s_sub_u32 s98, s98, s100"); a("s_cmp_lt_u32 s98, s94"); a(f"s_cbranch_scc1 {L}")
    if OPT["spin"] and name.replace(" ", "_") == OPT["spinat"]:
        L = newlab("spin")
        if OPT["first"]:
            a("v_mov_b32 v6, 0"); a("global_load_dword v6, v6, s[96:97] sc1"); a("s_waitcnt vmcnt(0)")
            a("v_readfirstlane_b32 s100, v6"); a("s_nop 3"); a("s_not_b32 s100, s100")
        a.label(L)
        a("s_memrealtime s[98:99]"); a("s_waitcnt lgkmcnt(0)")
        a("s_sub_u32 s98, s98, s100"); a(f"s_cmp_lt_u32 s98, {OPT['spin'] * 100}"); a(f"s_cbranch_scc1 {L}")
    if DIAG == 2:
        if name in ("B1", "B5", "B6", "loop start", "loop end", "end"):
            i = nstamp[0]; nstamp[0] += 2
            a(f"s_memrealtime {sr(sST + 2 * i, 2)}")
            a(f"s_memtime {sr(sST + 2 * i + 2, 2)}")
    elif DIAG:
        i = nstamp[0]; nstamp[0] += 1
        assert sST + 2 * i + 1 <= 101, "too many stamps"
        a(f"{'s_memtime' if OPT['clk'] else 's_memrealtime'} {sr(sST + 2 * i, 2)} ; stamp {i} {name}")
def set_stamp(i): nstamp[0] = i
def xstamp(i, name):
    if DIAG == 1 and not OPT["pt"]:
        k = nstamp[0]; nstamp[0] = i; stamp(name); nstamp[0] = k
    elif OPT["enc"]: stamp(name)
lab = [0]
def newlab(p):
    lab[0] += 1; return f"L_{p}{lab[0]}"

def bload(dst, n, vaddr, srd, soff, off=0, flags=""):
    op = {1: "dword", 2: "dwordx2", 4: "dwordx4"}[n]
    a(f"buffer_load_{op} {vr(dst, n)}, {vr(vaddr)}, {sr(srd, 4)}, {soff} offen" + (f" offset:{off}" if off else "") + (" " + flags if flags else ""))
def bstore(src, n, vaddr, srd, soff, off=0, flags=""):
    op = {1: "dword", 2: "dwordx2", 4: "dwordx4"}[n]
    a(f"buffer_store_{op} {vr(src, n)}, {vr(vaddr)}, {sr(srd, 4)}, {soff} offen" + (f" offset:{off}" if off else "") + (" " + flags if flags else ""))
def dma(vaddr, srd, soff, flags=""):
    a(f"buffer_load_dwordx4 {vr(vaddr)}, {sr(srd, 4)}, {soff} offen" + (" " + flags if flags else "") + " lds")
def dsr(op, dst, n, vaddr, off=0):
    assert 0 <= off < 65536
    a(f"{op} {vr(dst, n)}, {vr(vaddr)}" + (f" offset:{off}" if off else ""))
def dsw(op, vaddr, src, n, off=0):
    assert 0 <= off < 65536
    a(f"{op} {vr(vaddr)}, {vr(src, n)}" + (f" offset:{off}" if off else ""))
def mfma32(d, A, B, c): a(f"v_mfma_f32_32x32x16_bf16 {vr(d,16)}, {vr(A,4)}, {vr(B,4)}, " + ("0" if c is None else vr(c, 16)))
def mfma16(d, A, B, c): a(f"v_mfma_f32_16x16x32_bf16 {vr(d,4)}, {vr(A,4)}, {vr(B,4)}, " + ("0" if c is None else vr(c, 4)))
def cvt(d, x, y): a(f"v_cvt_pk_bf16_f32 {vr(d)}, {vr(x)}, {vr(y)}")
def lo(d, s): a(f"v_lshlrev_b32 {vr(d)}, 16, {vr(s)}")
def hi(d, s): a(f"v_and_b32 {vr(d)}, {sr(sMASK)}, {vr(s)}")

bload_, mfma32_ = bload, mfma32
def poll(vaddr, vtmp, soff, first_issued=False, slp=None):
    L, Lo = newlab("poll"), newlab("pollok")
    a(f"s_mov_b32 {sr(sSPIN)}, 0")
    if first_issued:
        a(f"v_cmp_ne_u32 vcc, {sr(sTAG)}, {vr(vtmp)}")
        a(f"s_cbranch_vccz {Lo}")
    a.label(L)
    bload(vtmp, 1, vaddr, WS, soff, flags="sc1")
    a(f"s_add_u32 {sr(sSPIN)}, {sr(sSPIN)}, 1")
    a(f"s_cmp_ge_u32 {sr(sSPIN)}, {SPINMAX}")
    a("s_waitcnt vmcnt(0)")
    a(f"s_cbranch_scc1 {Lo}")
    a(f"v_cmp_ne_u32 vcc, {sr(sTAG)}, {vr(vtmp)}")
    a(f"s_cbranch_vccz {Lo}")
    a(f"s_sleep {OPT['slp'] if slp is None else slp}")
    a(f"s_branch {L}")
    a.label(Lo)

def push(nl, vt0, vt1, soff):
    a(f"s_mov_b64 exec, {hex((1 << nl) - 1)}")
    bstore(vt1, 1, vt0, WS, soff, flags="sc1")
    a("s_mov_b64 exec, -1")

def arrive(cntoff, pushfn):
    L = newlab("arr")
    a("s_mov_b64 exec, 1")
    a(f"ds_add_rtn_u32 v7, {vr(vCNT)}, {vr(vONE)} offset:{cntoff}")
    a("s_waitcnt lgkmcnt(0)")
    a("v_cmp_ne_u32 vcc, 3, v7")
    a(f"s_cbranch_vccnz {L}")
    pushfn()
    a.label(L)
    a("s_mov_b64 exec, -1")

def hbar(extra=0, slp=None):
    L = newlab("hb")
    a(f"s_add_u32 {sr(sHB)}, {sr(sHB)}, {4 + extra}")
    a("s_mov_b64 exec, 1")
    a(f"ds_add_u32 {vr(vCNT)}, {vr(vONE)}")
    a.label(L)
    dsr("ds_read_b32", 6, 1, vCNT)
    a("s_waitcnt lgkmcnt(0)")
    a(f"v_cmp_gt_u32 vcc, {sr(sHB)}, v6")
    a(f"s_cbranch_vccz {L}x")
    if slp != 0: a(f"s_sleep {OPT['hs'] if slp is None else slp}")
    a(f"s_branch {L}")
    a.label(L + "x")
    a("s_mov_b64 exec, -1")
def only_wave(w, fn):
    L = newlab("ow")
    a(f"s_cmp_lg_u32 {sr(sW)}, {w}"); a(f"s_cbranch_scc1 {L}")
    fn()
    a.label(L)
def hprio(p):
    a(f"s_setprio {p}")
vCNT, vONE = 2, 3


a.label(f"{NAME}_kernel")
a("s_cmp_ge_u32 s2, 0x100")
a("s_cbranch_scc1 L_end")
a(f"s_load_dwordx2 {sr(X,2)}, s[0:1], 0")
a(f"s_load_dwordx2 {sr(W,2)}, s[0:1], 8")
a(f"s_load_dwordx2 {sr(WS,2)}, s[0:1], 88")
if DIAG or OPT["spin"] or OPT["enc"]: a("s_memtime s[100:101]" if OPT["clk"] else "s_memrealtime s[100:101]")
a("s_getpc_b64 s[88:89]")
a.label("L_pc")
a(f"s_lshr_b32 {sr(sTBB)}, s2, 3")
a(f"s_and_b32 {sr(sHQ)}, s2, 7")
a("v_lshrrev_b32 v6, 6, v0")
a(f"v_lshl_add_u32 v7, {sr(sTBB)}, 3, v6")
a("v_lshlrev_b32 v7, 7, v7")
a("v_min_u32 v7, L_end-L_pc, v7")
a("global_load_dword v4, v7, s[88:89]")
a(f"v_readfirstlane_b32 {sr(sW)}, v6")
sTB = sTBB
a(f"s_add_u32 {sr(sROT)}, {sr(sHQ)}, {sr(sTB)}")
if OPT["dbm"]: a(f"s_and_b32 {sr(sDB)}, {sr(sROT)}, 7")
else: sDB = sHQ
a(f"s_mov_b32 {sr(X+3)}, 0x20000")
a(f"s_and_b32 {sr(sHH)}, {sr(sW)}, 3")
a(f"s_cmp_lt_u32 {sr(sW)}, 4")
a("s_cbranch_scc1 L_main")

def mbox(base, grp, idx, sh):
    a(f"s_lshr_b32 {sr(sT0)}, {sr(idx)}, 3")
    a(f"s_mul_i32 {sr(sT0)}, {sr(sT0)}, 96")
    a(f"s_lshl2_add_u32 {sr(sT0)}, {sr(idx)}, {sr(sT0)}")
    a(f"s_lshl_b32 {sr(sT3)}, {sr(grp)}, {sh}")
    a(f"s_add_u32 {sr(sT3)}, {sr(sT3)}, {base}")
    a(f"s_add_u32 {sr(sT0)}, {sr(sT0)}, {sr(sT3)}")
def common_setup():
    a("v_and_b32 v1, 63, v0")
    if OPT["wsoff"]:
        a(f"s_add_u32 {sr(WS)}, {sr(WS)}, {hex(OPT['wsoff'])}"); a(f"s_addc_u32 {sr(WS+1)}, {sr(WS+1)}, 0")
    a(f"s_add_u32 s88, {sr(WS)}, {EP}")
    a(f"s_addc_u32 s89, {sr(WS+1)}, 0")
    a(f"s_load_dword {sr(sTAG)}, s[88:89], 0")
    a(f"s_mov_b32 {sr(WS+2)}, {hex(WS_SIZE)}"); a(f"s_mov_b32 {sr(WS+3)}, {sr(X+3)}")
    a(f"s_and_b32 {sr(sCT)}, {sr(sW)}, 1")
    a(f"s_bfe_u32 {sr(sTT)}, {sr(sW)}, 0x10001")
    if DIAG: a(f"s_mov_b64 {sr(sST,2)}, s[100:101]"); nstamp[0] = 1
def make_tag():
    a(f"s_mul_i32 {sr(sTAG)}, {sr(sTAG)}, 0x2c9277b5")
    a(f"s_add_u32 {sr(sTAG)}, {sr(sTAG)}, 0xac564b05")
def finish(n, drain=False):
    a("s_mov_b64 exec, -1")
    if DIAG and drain: a("s_waitcnt vmcnt(0)")
    set_stamp(n); stamp("end")
    if DIAG:
        a("s_waitcnt lgkmcnt(0)")
        for i in range(nstamp[0]): a(f"v_mov_b32 {vr(32+i)}, {sr(sST+2*i)}")
        a(f"s_lshl3_add_u32 {sr(sT0)}, s2, {sr(sW)}")
        a(f"s_lshl_b32 {sr(sT0)}, {sr(sT0)}, 6")
        a(f"s_add_u32 {sr(sT0)}, {sr(sT0)}, {STAMP}")
        a("v_mov_b32 v6, 0")
        a("s_mov_b64 exec, 1")
        for i in range(4): bstore(32 + 4*i, 4, 6, WS, sr(sT0), 16*i)
    a("s_endpgm")

vXS, vWS = 48, 49
a("v_and_b32 v0, 0xff, v0")
a(f"s_mov_b32 {sr(X+2)}, 0x200000")
a(f"s_mov_b32 {sr(W+2)}, 0x180000"); a(f"s_mov_b32 {sr(W+3)}, {sr(X+3)}")
a("v_lshrrev_b32 v6, 4, v0")
a("v_xor_b32 v32, v6, v0")
a("v_and_b32 v32, 15, v32")
a(f"v_lshl_add_u32 v6, {sr(sTB)}, 6, v6")
a("v_lshlrev_b32 v6, 10, v6")
a(f"v_lshl_add_u32 {vr(vXS)}, v32, 4, v6")
a("v_lshrrev_b32 v6, 2, v0")
a("v_and_b32 v6, 4, v6")
a("v_xor_b32 v6, v6, v0")
a("v_and_b32 v6, 7, v6")
a(f"v_lshl_add_u32 v6, {sr(sHQ)}, 3, v6")
a("v_lshrrev_b32 v32, 3, v0")
a("v_mul_u32_u24 v32, 0xc00, v32")
a(f"v_lshl_add_u32 {vr(vWS)}, v6, 4, v32")
a(f"s_lshl_b32 {sr(sM0)}, {sr(sHH)}, 10")
def chunk_offsets(c):
    if c: a(f"s_add_u32 {sr(sT0)}, {sr(sROT)}, {c}")
    a(f"s_and_b32 {sr(sT0)}, {sr(sT0) if c else sr(sROT)}, 3")
    a(f"s_mul_i32 {sr(sSW)}, {sr(sT0)}, {128*3072}")
def dma_run(vaddr, srd, sbase, off, step, ldsbase, n=4, wait=False):
    a(f"s_add_u32 m0, {sr(sM0)}, {ldsbase}")
    a(f"s_add_u32 {sr(sT2)}, {sr(sbase)}, {off}")
    if wait: a("s_waitcnt lgkmcnt(0)")
    for i in range(n):
        dma(vaddr, srd, sr(sT2))
        if i < n - 1:
            a("s_addk_i32 m0, 0x1000")
            a(f"s_add_u32 {sr(sT2)}, {sr(sT2)}, {step}")
XB = SLOT + [EX]
WQ = [SLOT[0], SLOT[1], SLOT[1] + 16 * K1, SLOT[1] + 32 * K1]
def unit(u, wait=False):
    kind, j = u
    if kind == "x":
        if j: a(f"s_add_u32 {sr(sT0)}, {sr(sROT)}, {j}")
        a(f"s_and_b32 {sr(sT0)}, {sr(sT0) if j else sr(sROT)}, 3")
        a(f"s_lshl_b32 {sr(sSX)}, {sr(sT0)}, 8")
        dma_run(vXS, X, sSX, 0, 16384, XB[j], 4, wait)
    elif kind == "w":
        c, hf = j >> 1, j & 1
        if not hf: chunk_offsets(c)
        dma_run(vWS, W, sSW, 1024 + hf*64*3072, 32*3072, SLOT[c % 3] + 16 * K1 + hf*8192, 2, wait)
        dma_run(vWS, W, sSW, 2048 + hf*64*3072, 32*3072, SLOT[c % 3] + 32 * K1 + hf*8192, 2)
    else: dma_wq(j)
def dma_wq(c):
    chunk_offsets(c); dma_run(vWS, W, sSW, 0, 32*3072, WQ[c])
ORD = {0: "x0 w0 w1 x1 w2 w3 x2 w4 w5 x3 w6 w7", 1: "x0 w0 x1 w1 x2 w2 x3 w3 w4 w5 w6 w7", 2: "x0 x1 w0 x2 w1 x3 w2 w3 w4 w5 w6 w7",
       3: "x0 w0 x1 w1 w2 x2 w3 x3 w4 w5 w6 w7"}[OPT["xf"]]
STREAM = [(t[0], int(t[1])) for t in (ORD + " q0 q1").split()]
issued = 3
for i in range(issued): unit(STREAM[i], i == 0)
a("s_load_dwordx8 s[80:87], s[0:1], 16")
a("s_load_dwordx8 s[92:99], s[0:1], 48")
common_setup()
UD = 16
vA, vH, vSH, vPW, vPR, vPG, vHS, vHP = 8, 9, 10, 11, 12, 13, 14, 15
vHW, vHA, vUA, vL16, vWO, vYS, vWR0, vWR1, vYR, vGO, vPO, vOO, vRW, vRR, vY8, vZ0 = range(32, 48)
vZ1, vFL, vTG, vMB = 50, 51, 52, 54
sUB, sCH = 64, 66
a("v_and_b32 v5, 31, v0")
a("v_lshlrev_b32 v5, 2, v5")
a(f"v_mov_b32 {vr(vCNT)}, {CNT}")
a(f"v_mov_b32 {vr(vONE)}, 1")
a(f"s_mov_b32 {sr(sHB)}, 0")
a(f"s_mov_b32 {sr(sMASK)}, 0xffff0000")
a("v_lshrrev_b32 v53, 5, v0")
a(f"v_lshl_add_u32 {vr(vA)}, v53, 13, v5")
a(f"v_lshl_add_u32 {vr(vGO)}, v53, 14, v5")
a(f"s_lshl_b32 {sr(sA)}, {sr(sTBB)}, 16")
a(f"s_lshl_b32 {sr(sT0)}, {sr(sDB)}, 7")
a(f"s_add_u32 {sr(sA)}, {sr(sA)}, {sr(sT0)}")
a(f"s_sub_u32 {sr(sT2)}, {sr(sA)}, 0xc00")
a(f"v_add_u32 {vr(vH)}, {sr(sT2)}, {vr(vA)}")
a(f"v_lshlrev_b32 {vr(vSH)}, 2, v5")
a("v_xor_b32 v6, 7, v53")
a("v_xor_b32 v6, v6, v0")
a("v_and_b32 v6, 7, v6")
a("v_lshlrev_b32 v6, 4, v6")
a(f"v_lshl_add_u32 {vr(vPW)}, v5, 5, v6")
a("v_lshrrev_b32 v7, 1, v0")
a("v_xor_b32 v7, v53, v7")
a("v_and_b32 v7, 7, v7")
a("v_lshlrev_b32 v7, 4, v7")
a("v_lshl_add_u32 v7, v5, 5, v7")
a(f"v_add_u32 {vr(vYR)}, {YB}, v7")
a("v_lshrrev_b32 v6, 3, v0")
a("v_xor_b32 v7, v6, v0")
a("v_and_b32 v7, 7, v7")
a("v_lshlrev_b32 v7, 4, v7")
a(f"v_lshl_add_u32 {vr(vPR)}, v6, 7, v7")
a("v_and_b32 v7, 7, v0")
a("v_lshlrev_b32 v7, 4, v7")
a(f"v_lshl_add_u32 {vr(vPG)}, v6, 13, v7")
a("v_lshrrev_b32 v7, 1, v6")
a("v_xor_b32 v7, v7, v0")
a("v_and_b32 v7, 7, v7")
a("v_lshlrev_b32 v7, 4, v7")
a(f"v_lshl_add_u32 {vr(vYS)}, v6, 13, v7")
a(f"v_lshlrev_b32 {vr(vHS)}, 4, v0")
a("v_cmp_eq_u32 vcc, 0, v0")
a(f"v_subrev_u32 v6, 8, {vr(vHS)}")
a("v_bfrev_b32 v7, 2")
a(f"v_cndmask_b32 {vr(vHP)}, v6, v7, vcc")
a(f"v_add_u32 {vr(vHW)}, {HB + 384}, {vr(vHS)}")
a("v_and_b32 v6, 3, v1")
a(f"v_mul_u32_u24 v6, {HSTR}, v6")
a("v_bfe_u32 v53, v1, 2, 2")
a("v_lshl_add_u32 v6, v53, 7, v6")
a("v_and_b32 v7, 0x30, v1")
a("v_add_u32 v6, v6, v7")
a(f"s_mul_i32 {sr(sT0)}, {sr(sCT)}, {4*HSTR}")
a(f"s_lshl_b32 {sr(sT1)}, {sr(sTT)}, 8")
a(f"s_add_u32 {sr(sT0)}, {sr(sT0)}, {sr(sT1)}")
a(f"s_add_u32 {sr(sT0)}, {sr(sT0)}, {HB}")
a(f"v_add_u32 {vr(vHA)}, {sr(sT0)}, v6")
a("v_and_b32 v6, 15, v1")
a("v_lshlrev_b32 v6, 3, v6")
a("v_sub_u32 v6, v7, v6")
a(f"s_mul_i32 {sr(sUB)}, {sr(sCT)}, {USTR}")
a(f"s_add_u32 {sr(sUB)}, {sr(sUB)}, {UB}")
a(f"s_add_u32 {sr(sT0)}, {sr(sUB)}, {sr(sT1)}")
a(f"s_add_u32 {sr(sT0)}, {sr(sT0)}, 120")
a(f"v_add_u32 {vr(vUA)}, {sr(sT0)}, v6")
a(f"v_lshlrev_b32 {vr(vL16)}, 4, v1")
a(f"v_lshlrev_b32 {vr(vY8)}, 3, v1")
a(f"v_lshlrev_b32 {vr(vFL)}, 9, v1")
a(f"v_lshl_add_u32 {vr(vRW)}, {sr(sHH)}, 12, {vr(vL16)}")
a(f"v_xor_b32 {vr(vRR)}, 0x2000, {vr(vRW)}")
a(f"v_add_u32 {vr(vRW)}, {RED}, {vr(vRW)}")
a(f"v_add_u32 {vr(vRR)}, {RED}, {vr(vRR)}")
a("v_min_u32 v6, 23, v1")
a(f"s_mul_i32 {sr(sT0)}, {sr(sHH)}, {HSTR}")
a(f"s_add_u32 {sr(sT0)}, {sr(sT0)}, {HB}")
a(f"v_lshl_add_u32 {vr(vZ0)}, v6, 4, {sr(sT0)}")
a("v_and_b32 v6, 7, v1")
a(f"v_lshl_add_u32 {vr(vZ1)}, v6, 4, {sr(sUB)}")
a(f"s_lshl_b32 {sr(sT0)}, {sr(sDB)}, 5")
a(f"s_add_u32 {sr(sT0)}, {sr(sT0)}, {sr(sTBB)}")
a(f"s_lshl_b32 {sr(sCH)}, {sr(sT0)}, 13")
a("v_lshrrev_b32 v6, 4, v0")
a("v_lshlrev_b32 v7, 2, v6")
a("v_xor_b32 v7, v7, v0")
a("v_and_b32 v7, 15, v7")
a("v_lshlrev_b32 v7, 4, v7")
a("v_lshl_add_u32 v6, v6, 10, v7")
a(f"s_and_b32 {sr(sT0)}, {sr(sTBB)}, 3")
a(f"v_lshl_add_u32 {vr(vWO)}, {sr(sT0)}, 8, v6")
a("v_lshrrev_b32 v7, 5, v1")
a("v_lshl_add_u32 v7, v7, 2, v53")
a(f"v_xor_b32 v6, {sr(sHH)}, v53")
a("v_lshlrev_b32 v6, 6, v6")
a("v_lshl_add_u32 v6, v7, 8, v6")
a("v_and_b32 v7, 1, v1")
a("v_lshl_add_u32 v6, v7, 5, v6")
a("v_and_b32 v7, 16, v1")
a("v_add_u32 v6, v6, v7")
a("v_and_b32 v7, 2, v1")
a(f"v_lshl_add_u32 {vr(vWR0)}, v7, 2, v6")
a(f"v_add_u32 {vr(vWR1)}, 0x10000, {vr(vWR0)}")
a(f"v_and_b32 {vr(vPO)}, 28, v5")
vTW, vTR = 54, 55
if OPT["coal"] == 1:
    a("v_lshrrev_b32 v6, 4, v1")
    a("v_and_b32 v6, 2, v6")
    a("v_lshrrev_b32 v7, 1, v1")
    a("v_xor_b32 v6, v6, v7")
    a("v_and_b32 v6, 3, v6")
    a("v_lshlrev_b32 v6, 4, v6")
    a("v_lshl_add_u32 v6, v5, 4, v6")
    a(f"s_lshl_b32 {sr(sT0)}, {sr(sHH)}, 11")
    a(f"s_add_u32 {sr(sT0)}, {sr(sT0)}, {RED}")
    a(f"v_add_u32 {vr(vTW)}, {sr(sT0)}, v6")
    a("v_lshrrev_b32 v6, 3, v1")
    a("v_xor_b32 v6, v6, v1")
    a("v_and_b32 v6, 3, v6")
    a("v_and_b32 v7, 0x3c, v1")
    a("v_or_b32 v6, v6, v7")
    a(f"v_lshl_add_u32 {vr(vTR)}, v6, 4, {sr(sT0)}")
    a("v_and_b32 v6, 3, v1")
    a("v_lshlrev_b32 v6, 4, v6")
    a(f"v_lshl_add_u32 {vr(vOO)}, v7, 9, v6")
else:
    a("v_and_b32 v6, 32, v1")
    a(f"v_lshl_add_u32 {vr(vOO)}, v5, 9, v6")
CY, CB, CA = 64, 96, 128
for j in range(16): a(f"v_mov_b64 {vr(CY+2*j,2)}, 0")
a("s_waitcnt lgkmcnt(0)")
for r, p in ((WO, 80), (BQ, 82), (BK, 84), (BV, 86), (SH, 92), (HK, 94), (DD, 96), (OUT, 98)):
    a(f"s_mov_b64 {sr(r,2)}, {sr(p,2)}")
for r in (BK, BV, HK, BQ): a(f"s_mov_b64 {sr(r+2,2)}, {sr(X+2,2)}")
for r, n in ((SH, 4096), (DD, 1024), (WO, 0x80000), (OUT, 0x400000)):
    a(f"s_mov_b32 {sr(r+2)}, {hex(n)}"); a(f"s_mov_b32 {sr(r+3)}, {sr(X+3)}")
make_tag()
a(f"v_mov_b32 {vr(vTG)}, {sr(sTAG)}")
for j in range(8):
    pos = STREAM.index(("w", j))
    while issued < min(len(STREAM), pos + 1 + OPT["la"]):
        k_, j_ = STREAM[issued]
        assert not (k_ == "w" and j_ >= 6 and j < j_ - 3) and not (k_ == "q" and j < 4 + 2 * j_)
        unit(STREAM[issued]); issued += 1
    a(f"s_waitcnt vmcnt({4 * (issued - pos - 1)})"); a("s_barrier")
    if j == 0: stamp("B1")
stamp("B4")
KR, VR, SR, DR = 128, 140, 148, 139
KP, WJ, VP, DP, UU, HR = 160, 184, 192, 208, 212, 232
def p0_loads(lo_=0, hi_=21, pace=True):
    a(f"s_add_u32 {sr(sT2)}, {sr(sA)}, 0x1000")
    a(f"s_lshl_b32 {sr(sT0)}, {sr(sDB)}, 7")
    a(f"s_lshl_b32 {sr(sT1)}, {sr(sDB)}, 9")
    ls = [lambda: bload(SR, 4, vSH, SH, sr(sT1))]
    ls += [lambda i=i: bload(KR + i, 1, vH, BK, 0, 1024 * i) for i in range(3)]
    ls += [lambda i=i: bload(KR + 3 + i, 1, vA, BK, sr(sA if i < 4 else sT2), 1024 * (i & 3)) for i in range(8)]
    ls += [lambda i=i: bload(VR + i, 1, vA, BV, sr(sA if i < 4 else sT2), 1024 * (i & 3)) for i in range(8)]
    ls += [lambda: bload(DR, 1, 5, DD, sr(sT0))]
    for i, f in enumerate(ls[lo_:hi_]):
        if pace and OPT["p0w"] and i >= OPT["p0w"]: a(f"s_waitcnt vmcnt({OPT['p0w'] - 1})")
        f()
def h_loads():
    a(f"s_add_u32 {sr(sT2)}, {sr(sCH)}, 0x1000")
    for c in range(2):
        bload(HR + 6*c, 2, vHP, HK, sr(sT2 if c else sCH)); bload(HR + 6*c + 2, 4, vHS, HK, sr(sT2 if c else sCH))
a("s_waitcnt vmcnt(4)"); dma_wq(2)
a("s_waitcnt vmcnt(4)"); dma_wq(3)
if OPT["two"]: a("s_waitcnt vmcnt(8)"); a("s_barrier")
if OPT["ke"] == 2: p0_loads(0, 12, False)
mbox(MB_KV, sHQ, sTB, 11)
a(f"s_waitcnt vmcnt({12 if OPT['ke'] == 2 else 0})"); a("s_barrier")
only_wave(4, lambda: push(4, vFL, vTG, sr(sT0)))
stamp("B5")
def shiftconv():
    lo(WJ+0, SR); lo(WJ+1, SR+2); hi(WJ+2, SR); hi(WJ+3, SR+2)
    lo(WJ+4, SR+1); lo(WJ+5, SR+3); hi(WJ+6, SR+1); hi(WJ+7, SR+3)
    for i in range(11): lo(KP + 2*i, KR + i); hi(KP + 2*i + 1, KR + i)
    for j in range(8): a(f"v_pk_mul_f32 {vr(UU+2*j,2)}, {vr(KP+2*j,2)}, {vr(WJ+6,2)}")
    for t in (2, 1, 0):
        for j in range(8):
            a(f"v_pk_fma_f32 {vr(UU+2*j,2)}, {vr(KP+2*(j+3-t),2)}, {vr(WJ+2*t,2)}, {vr(UU+2*j,2)}")
if OPT["ke"]:
    if OPT["ke"] == 1: p0_loads(0, 12, False)
    a("s_waitcnt vmcnt(0)")
    if OPT["hst"]: xstamp(9, "k landed")
    shiftconv()
a("s_barrier")
hprio(OPT["sp"])
hbar(4, 1)
p0_loads(12 if OPT["ke"] else 0)
NH = 4 if OPT["hat"] == 0 else 0
if NH: h_loads()
hprio(OPT["ep"])
if not OPT["ke"]:
    a(f"s_waitcnt vmcnt({9 + NH})")
    if OPT["hst"]: xstamp(9, "k landed")
    shiftconv()
if OPT["hst"]: xstamp(10, "conv4")
a(f"s_waitcnt vmcnt({NH})")
if OPT["hst"]: xstamp(11, "v landed")
for i in range(8): lo(VP + 2*i, VR + i); hi(VP + 2*i + 1, VR + i)
for j in range(8): a(f"v_pk_mul_f32 {vr(UU+2*j,2)}, {vr(UU+2*j,2)}, {vr(VP+2*j,2)}")
for c in range(2):
    for i in range(4): cvt(KP + 4*c + i, UU + 2*(7 - 2*i) + c, UU + 2*(6 - 2*i) + c)
dsw("ds_write_b128", vPW, KP, 4, P0S); dsw("ds_write_b128", vPW, KP + 4, 4, P0S + 4096)
lo(DP, DR); hi(DP + 1, DR)
for j in range(8): a(f"v_pk_mul_f32 {vr(UD+2*j,2)}, {vr(UU+2*j,2)}, {vr(DP,2)}")
HT = [VP, 168]
def h_shift():
    for c in range(2):
        D = [HR + 6*c + j for j in range(6)]
        for j in range(4): a(f"v_alignbit_b32 {vr(HT[c]+j)}, {vr(D[2+j])}, {vr(D[1+j])}, 16")
        for j in range(4): a(f"v_mov_b32 {vr(HT[c]+4+j)}, {vr(D[1+j])}")
        for j in range(4): a(f"v_alignbit_b32 {vr(HT[c]+8+j)}, {vr(D[1+j])}, {vr(D[j])}, 16")
if OPT["hat"] == 1: h_loads()
stamp("p0 done")
hprio(OPT["sp"])
a(f"s_lshl_b32 {sr(sT0)}, {sr(sDB)}, 18")
a(f"s_sub_u32 {sr(sT1)}, 31, {sr(sTBB)}")
a(f"s_lshl_b32 {sr(sT1)}, {sr(sT1)}, 7")
a(f"s_add_u32 {sr(sT3)}, {sr(sT0)}, {sr(sT1)}")
a(f"s_add_u32 {sr(sT3)}, {sr(sT3)}, {UT}")
a(f"s_add_u32 {sr(sT2)}, {sr(sT3)}, 0x1000")
a("s_waitcnt lgkmcnt(0)")
hbar()
stamp("hb1")
dsr("ds_read_b128", KP, 4, vPR, P0S); dsr("ds_read_b128", KP + 4, 4, vPR, P0S + 4096)
a("s_waitcnt lgkmcnt(1)")
bstore(KP, 4, vPG, WS, sr(sT3), 0, "sc1")
a("s_waitcnt lgkmcnt(0)")
bstore(KP + 4, 4, vPG, WS, sr(sT2), 0, "sc1")
dsw("ds_write_b128", vZ0, CY, 4); dsw("ds_write_b128", vZ0, CY, 4, 4*HSTR); dsw("ds_write_b128", vZ1, CY, 4, 4096)
hprio(OPT["ep"]); a("s_waitcnt vmcnt(2)"); h_shift(); hprio(OPT["sp"])
for c in range(2):
    dsw("ds_write_b128", vHW, HR + 6*c + 2, 4, (4*c + 3)*HSTR)
    dsw("ds_write_b128", vHW, HT[c], 4, (4*c + 2)*HSTR)
    dsw("ds_write_b128", vHW, HT[c]+4, 4, (4*c + 1)*HSTR)
    dsw("ds_write_b128", vHW, HT[c]+8, 4, (4*c)*HSTR)
mbox(MB_U, sDB, sTBB, 9)
a("s_waitcnt vmcnt(0)")
arrive(8, lambda: bstore(vTG, 1, vFL, WS, sr(sT0), flags="sc1"))
stamp("u pushed")
QG = 56
a(f"s_add_u32 {sr(sT2)}, {sr(sA)}, 0x1000")
for i in range(8): bload(QG + i, 1, vA, BQ, sr(sA if i < 4 else sT2), 1024 * (i & 3))
def wo_init(first, n):
    a(f"s_lshr_b32 {sr(sT0)}, {sr(sTBB)}, 2")
    a(f"s_mul_i32 {sr(sT0)}, {sr(sT0)}, {n // 8 * 4096}")
    if first: a(f"s_add_u32 {sr(sT0)}, {sr(sT0)}, {first * 4096}")
def wo_piece(first, n):
    a(f"s_add_u32 m0, {sr(sM0)}, {sr(sT0)}")
    a(f"s_lshl_b32 {sr(sSX)}, {sr(sT0)}, 2")
    dma(vWO, WO, sr(sSX))
    a(f"s_add_u32 {sr(sT0)}, {sr(sT0)}, 0x1000")
    a(f"s_cmp_eq_u32 {sr(sT0)}, {(first + n) * 4096}")
    a(f"s_cselect_b32 {sr(sT0)}, {first * 4096}, {sr(sT0)}")
a(f"s_lshr_b32 {sr(sT1)}, {sr(sM0)}, 3")
a(f"s_add_u32 {sr(sT3)}, {sr(sT3)}, {sr(sT1)}")
a(f"s_xor_b32 {sr(sT1)}, {sr(sM0)}, 0xc00")
a(f"s_add_u32 {sr(sT2)}, {sr(sCH)}, {sr(sT1)}")
a(f"s_add_u32 {sr(sT2)}, {sr(sT2)}, {UT}")
a(f"s_add_u32 m0, {sr(sT1)}, {UB}")
a("s_waitcnt vmcnt(0)")
if OPT["usl"]: a(f"s_sleep {OPT['usl']}")
poll(vPO, 6, sr(sT3))
dma(vL16, WS, sr(sT2), "sc1")
a(f"s_addk_i32 m0, {USTR}")
a(f"s_add_u32 {sr(sT2)}, {sr(sT2)}, 0x1000")
dma(vL16, WS, sr(sT2), "sc1")
a(f"s_lshl_b32 {sr(sT0)}, {sr(sCT)}, 12")
a(f"s_add_u32 {sr(sCH)}, {sr(sCH)}, {sr(sT0)}")
a(f"s_mov_b32 {sr(sPASS)}, 0")
wo_init(0, 24)
a("s_waitcnt vmcnt(0)")
hbar()
hprio(OPT["cp"])
stamp("u landed")
a.label("L_conv")
for i in range(8):
    dsr("ds_read_b64", CB + 4*i, 2, vUA, 3584 - 512*i); dsr("ds_read_b64", CB + 4*i + 2, 2, vUA, 3584 - 512*i + 8)
for ai in range(8):
    dsr("ds_read_b128", CA, 4, vHA, 512*ai)
    if ai < 6: wo_piece(0, 24)
    a("s_waitcnt lgkmcnt(0)")
    for bi in range(8 - ai): mfma16(CY + 4*(ai + bi), CA, CB + 4*bi, CY + 4*(ai + bi))
if OPT["cp"] != OPT["ep"]: hprio(OPT["ep"])
a(f"v_add_u32 {vr(vUA)}, 64, {vr(vUA)}")
a(f"v_add_u32 {vr(vHA)}, 64, {vr(vHA)}")
if OPT["cp"] != OPT["ep"]: hprio(OPT["cp"])
a(f"s_add_u32 {sr(sPASS)}, {sr(sPASS)}, 1")
a(f"s_cmp_lg_u32 {sr(sPASS)}, 4")
a("s_cbranch_scc1 L_conv")
stamp("conv done")
hprio(OPT["sp"])
a(f"s_lshl_b32 {sr(sT0)}, {sr(sTT)}, 11")
a(f"s_add_u32 {sr(sCH)}, {sr(sCH)}, {sr(sT0)}")
a(f"s_add_u32 {sr(sCH)}, {sr(sCH)}, {YT}")
a(f"s_cmp_lg_u32 {sr(sTT)}, 0")
a("s_cbranch_scc1 L_red1")
def reduce_store(keep, send):
    for j in range(4): dsw("ds_write_b128", vRW, send + 4*j, 4, 1024*j)
    a("s_waitcnt lgkmcnt(0)")
    hbar()
    for j in range(4): dsr("ds_read_b128", CB + 4*j, 4, vRR, 1024*j)
    hprio(OPT["ep"])
    a("s_waitcnt lgkmcnt(0)")
    for j in range(8): a(f"v_pk_add_f32 {vr(CB + 2*j, 2)}, {vr(CB + 2*j, 2)}, {vr(keep + 2*j, 2)}")
reduce_store(CY, CY + 16)
a("s_branch L_red2")
a.label("L_red1")
reduce_store(CY + 16, CY)
a.label("L_red2")
for j in range(8): cvt(CY + j, CB + 2*j, CB + 2*j + 1)
hprio(OPT["sp"])
for j in range(4): bstore(CY + 2*j, 2, vY8, WS, sr(sCH), 512*j, "sc1")
mbox(MB_Y, sDB, sTBB, 9)
a("s_waitcnt vmcnt(0)")
arrive(12, lambda: bstore(vTG, 1, vFL, WS, sr(sT0), flags="sc1"))
wo_init(24, 8)
a(f"s_mov_b32 {sr(sT1)}, 0")
a.label("L_wo")
wo_piece(24, 8)
a(f"s_add_u32 {sr(sT1)}, {sr(sT1)}, 1")
a(f"s_cmp_lg_u32 {sr(sT1)}, 8")
a(f"s_waitcnt vmcnt({OPT['wpace']})")
a("s_cbranch_scc1 L_wo")
a(f"s_lshr_b32 {sr(sT1)}, {sr(sM0)}, 3")
a(f"s_add_u32 {sr(sT3)}, {sr(sT3)}, {sr(sT1)}")
if OPT["ysl"]: a(f"s_sleep {OPT['ysl']}")
poll(vPO, 6, sr(sT3))
a(f"s_lshl_b32 {sr(sT0)}, {sr(sDB)}, 18")
a(f"s_lshl_b32 {sr(sT1)}, {sr(sTBB)}, 7")
a(f"s_add_u32 {sr(sT0)}, {sr(sT0)}, {sr(sT1)}")
a(f"s_add_u32 m0, {sr(sM0)}, {YB}")
a(f"s_add_u32 {sr(sT0)}, {sr(sT0)}, {YT}")
dma(vYS, WS, sr(sT0), "sc1")
a(f"s_add_u32 m0, {sr(sM0)}, {YB + 4096}")
a(f"s_add_u32 {sr(sT0)}, {sr(sT0)}, 0x1000")
dma(vYS, WS, sr(sT0), "sc1")
a(f"s_lshr_b32 {sr(sT0)}, {sr(sTBB)}, 2")
a(f"s_lshl3_add_u32 {sr(sSX)}, {sr(sHQ)}, {sr(sT0)}")
a(f"s_lshl2_add_u32 {sr(sT0)}, {sr(sSX)}, {sr(sHH)}")
a(f"s_lshl_b32 {sr(sT0)}, {sr(sT0)}, 7")
a(f"s_add_u32 {sr(sT3)}, {sr(sT0)}, {MB_O}")
a(f"s_lshl_b32 {sr(sT0)}, {sr(sSX)}, 15")
a(f"s_lshl3_add_u32 {sr(sT0)}, {sr(sM0)}, {sr(sT0)}")
a(f"s_add_u32 {sr(sSW)}, {sr(sT0)}, {OF}")
a(f"s_lshl_b32 {sr(sSX)}, {sr(sSX)}, 16")
a(f"s_and_b32 {sr(sT1)}, {sr(sTBB)}, 3")
a(f"s_lshl2_add_u32 {sr(sT1)}, {sr(sT1)}, {sr(sHH)}")
a(f"s_lshl_b32 {sr(sT1)}, {sr(sT1)}, 6")
a(f"s_add_u32 {sr(sSX)}, {sr(sSX)}, {sr(sT1)}")
a(f"s_lshl_b32 {sr(sA)}, {sr(sTBB)}, 17")
a(f"s_lshl_b32 {sr(sT2)}, {sr(sDB)}, 7")
a(f"s_add_u32 {sr(sA)}, {sr(sA)}, {sr(sT2)}")
a(f"s_lshl_b32 m0, {sr(sM0)}, 3")
a(f"s_add_u32 {sr(sT2)}, {sr(sSW)}, 0x1000")
a("s_waitcnt vmcnt(0)")
if not OPT["hst"]: stamp("staged")
a("s_barrier")
if OPT["enc"]: stamp("B7")
GQ, GY, YY = 64, 80, 96
dsr("ds_read_b128", YY, 4, vYR); dsr("ds_read_b128", YY + 4, 4, vYR, 4096)
WOF = 128
gate = []
for j in range(8): gate += [lambda j=j: lo(GQ + 2*j, QG + j), lambda j=j: hi(GQ + 2*j + 1, QG + j)]
gate.append(lambda: a("s_waitcnt lgkmcnt(15)"))
for c in range(2):
    for i in range(4): gate += [lambda c=c, i=i: lo(GY + 4*i + c, YY + 4*c + i), lambda c=c, i=i: hi(GY + 4*i + 2 + c, YY + 4*c + i)]
for j in range(8): gate.append(lambda j=j: a(f"v_pk_add_f32 {vr(GY+2*j,2)}, {vr(GY+2*j,2)}, {vr(UD+2*j,2)}"))
for j in range(8): gate.append(lambda j=j: a(f"v_pk_mul_f32 {vr(GY+2*j,2)}, {vr(GY+2*j,2)}, {vr(GQ+2*j,2)}"))
for j in range(8): gate.append(lambda j=j: cvt(QG + j, GY + 2*j, GY + 2*j + 1))
for p in range(32):
    for part in range(2):
        dsr("ds_read_b64_tr_b16", WOF + 4*p + 2*part, 2, vWR0 + (p >> 4), ((p & 15) * 16 + 8*part) * 256)
        if gate: gate.pop(0)()
assert not gate
gfl = OPT["gfl"].replace("_", " ")
if OPT["gat"] == 0:
    for j in range(8):
        bstore(QG + j, 1, vGO, OUT, sr(sA), 3072 if j & 1 else 1024, gfl)
        if j & 1 and j < 7: a(f"s_add_u32 {sr(sA)}, {sr(sA)}, 0x1000")
a("s_waitcnt lgkmcnt(0)")
if not OPT["hst"]: stamp("gate done")
a("s_barrier")
poll(vPO, 6, sr(sT3), False, 1)
if not OPT["hst"]: stamp("o flags")
for i in range(4):
    a(f"buffer_load_dwordx4 {vr(vL16)}, {sr(WS,4)}, {sr(sSW)} offen offset:{1024*i} sc1 lds")
a("s_addk_i32 m0, 0x1000")
a("s_nop 0")
for i in range(4):
    a(f"buffer_load_dwordx4 {vr(vL16)}, {sr(WS,4)}, {sr(sT2)} offen offset:{1024*i} sc1 lds")
gfl = OPT["gfl"].replace("_", " ")
a("s_waitcnt vmcnt(0)"); a("s_barrier")
if not OPT["hst"]: stamp("o landed")
OFR, PA = 64, 16
for p in range(12): dsr("ds_read_b128", OFR + 4*p, 4, vL16, 1024*p)
for p in range(32):
    a(f"s_waitcnt lgkmcnt({min(32, p + 12) - p - 1})")
    mfma32(PA, WOF + 4*p, OFR + 4*(p & 15), None if p == 0 else PA)
    if p + 12 < 32: dsr("ds_read_b128", OFR + 4*((p + 12) & 15), 4, vL16, 1024*(p + 12))
    if p & 1 and p < 16 and OPT["gat"] == 1:
        j = p >> 1
        bstore(QG + j, 1, vGO, OUT, sr(sA), 3072 if j & 1 else 1024, gfl)
        if j & 1 and j < 7: a(f"s_add_u32 {sr(sA)}, {sr(sA)}, 0x1000")
a(f"s_or_b32 {sr(sT0)}, s2, {sr(sHH)}")
a("s_cbranch_scc1 L_noep")
a(f"v_mov_b32 v6, {EP}")
a("s_mov_b64 exec, 1")
bstore(vTG, 1, 6, WS, 0, flags="sc1")
a("s_mov_b64 exec, -1")
a.label("L_noep")
a(f"v_xor_b32 v4, 16, {vr(vTW)}")
a("s_nop 8")
pfl = OPT["pfl"].replace("_", " ")
if OPT["coal"] == 1:
    for j in range(4): cvt(8 + j, PA + 2*j, PA + 2*j + 1)
    dsw("ds_write_b128", vTW, 8, 4)
    for j in range(4, 8): cvt(8 + j, PA + 2*j, PA + 2*j + 1)
    dsw("ds_write_b128", 4, 12, 4)
    dsr("ds_read_b128", 64, 4, vTR); dsr("ds_read_b128", 68, 4, vTR, 1024)
    a(f"s_add_u32 {sr(sT0)}, {sr(sSX)}, 0x8000")
    a("s_waitcnt lgkmcnt(1)")
    bstore(64, 4, vOO, OUT, sr(sSX), 0, pfl)
    a("s_waitcnt lgkmcnt(0)")
    bstore(68, 4, vOO, OUT, sr(sT0), 0, pfl)
else:
    for j in range(4): cvt(8 + j, PA + 2*j, PA + 2*j + 1)
    bstore(8, 4, vOO, OUT, sr(sSX), 0, pfl)
    for j in range(4, 8): cvt(8 + j, PA + 2*j, PA + 2*j + 1)
    bstore(12, 4, vOO, OUT, sr(sSX), 16, pfl)
if DIAG or OPT["enc"] or OPT["spin"]: finish(13 if DIAG == 1 else 11, True)
else: a("s_endpgm")

a.label("L_main")
if OPT["wpf"]:
    n = {1: 12, 2: 4}[OPT["wpf"]]
    a(f"s_lshl2_add_u32 {sr(sT0)}, {sr(sTB)}, {sr(sW)}")
    a(f"s_mul_i32 {sr(sT0)}, {sr(sT0)}, 12*1024")
    a(f"s_lshl_b32 {sr(sT1)}, {sr(sHQ)}, 7")
    a(f"s_add_u32 {sr(sT0)}, {sr(sT0)}, {sr(sT1)}")
    a("v_and_b32 v6, 63, v0")
    a(f"v_min_u32 v6, {n - 1}, v6")
    a(f"v_mul_u32_u24 v6, {12 // n * 1024}, v6")
    a(f"v_add_u32 v6, {sr(sT0)}, v6")
a("s_waitcnt lgkmcnt(0)")
if OPT["wpf"]: a(f"global_load_dword v57, v6, {sr(W,2)}")
common_setup()
XF, WF, ACK, ACV, ACQ = 128, 96, 64, 80, 64
vXR, vWR, vXB, vWB, vXT = 50, 51, 52, 53, 54
O0, O1, S0, S1, C0, C1 = 16, 32, 48, 64, 80, 96
Q0, Q1 = 112, 116
vIDX, vKA, vVA = 8, 9, 10
vCON = 12
vKS, vVS, vKL, vVL, vQW, vQR = 2, 3, 5, 11, 14, 15
RING = 128
def rK(i): return RING + 12 * (i & 7)
def rVa(i): return RING + 12 * (i & 7) + 4
def rVb(i): return RING + 12 * (i & 7) + 8
a("v_bfe_u32 v6, v1, 2, 2")
a("v_lshrrev_b32 v32, 5, v1")
a("v_lshl_add_u32 v33, v32, 3, v6")
a("v_lshrrev_b32 v6, 1, v6")
a(f"v_xor_b32 v6, {sr(sCT)}, v6")
a("v_lshlrev_b32 v6, 6, v6")
a("v_lshl_add_u32 v33, v33, 7, v6")
a("v_and_b32 v6, 16, v1")
a("v_lshl_add_u32 v33, v6, 1, v33")
a("v_and_b32 v6, 3, v1")
a(f"v_lshl_add_u32 {vr(vWR)}, v6, 3, v33")
a("v_and_b32 v6, 31, v1")
a("v_xor_b32 v33, v32, v6")
a("v_and_b32 v33, 15, v33")
a("v_lshlrev_b32 v33, 4, v33")
a(f"v_lshl_add_u32 v6, {sr(sTT)}, 5, v6")
a(f"v_lshl_add_u32 {vr(vXR)}, v6, 8, v33")
a("v_and_b32 v33, 0x33, v1")
a("v_and_b32 v7, 4, v1")
a("v_lshl_or_b32 v33, v7, 1, v33")
a("v_and_b32 v7, 8, v1")
a("v_lshrrev_b32 v7, 1, v7")
a("v_or_b32 v6, v7, v33")
a(f"v_lshlrev_b32 {vr(vKS)}, 4, v6")
a("v_and_b32 v7, 15, v1")
a("v_lshlrev_b32 v7, 4, v7")
a("v_lshl_add_u32 v33, v32, 8, v7")
a("v_bfe_u32 v6, v1, 4, 1")
a(f"v_lshl_add_u32 {vr(vVS)}, v6, 17, v33")
a(f"s_lshl2_add_u32 {sr(sT0)}, {sr(sCT)}, {sr(sTT)}")
a(f"s_lshl_b32 {sr(sT1)}, {sr(sT0)}, 11")
a(f"s_add_u32 {sr(sT1)}, {sr(sT1)}, {KVL}")
a(f"v_add_u32 {vr(vKL)}, {sr(sT1)}, {vr(vKS)}")
a("v_lshl_add_u32 v6, v6, 12, v33")
a(f"v_add_u32 {vr(vVL)}, {sr(sT1)}, v6")
a(f"s_lshl_b32 {sr(sT0)}, {sr(sT0)}, 10")
a(f"v_lshl_add_u32 {vr(vQW)}, v1, 4, {sr(sT0)}")
a(f"s_lshl_b32 {sr(sT0)}, {sr(sHH)}, 11")
a(f"v_lshl_add_u32 {vr(vQR)}, v1, 4, {sr(sT0)}")
a(f"s_lshl2_add_u32 {sr(sT0)}, {sr(sHQ)}, {sr(sHH)}")
a(f"s_lshl_b32 {sr(sT0)}, {sr(sT0)}, 17")
a(f"v_lshl_add_u32 {vr(vKA)}, v1, 4, {sr(sT0)}")
a(f"v_add_u32 {vr(vVA)}, {sr(sT0)}, v33")
a(f"s_lshl_b32 {sr(sT0)}, {sr(sHH)}, 12")
a(f"s_add_u32 {sr(sT0)}, {sr(sT0)}, {KVL}")
a(f"v_lshl_add_u32 v48, v1, 4, {sr(sT0)}")
a(f"v_add_u32 v49, {sr(sT0)}, v33")
a(f"v_mov_b32 {vr(vIDX)}, 0xdddddddd")
a(f"s_mov_b32 {sr(sHALF)}, 0xffff"); a(f"s_mov_b32 {sr(sHALF+1)}, {sr(sHALF)}")
a(f"s_mov_b32 {sr(sAND)}, 0x1ffff")
a(f"s_mov_b32 {sr(sREDO)}, 0")
a("v_and_b32 v7, 0x1b, v1"); a("v_cmp_eq_u32 vcc, 16, v7")
a("v_mov_b32 v6, 0x3f803f80")
a(f"s_add_u32 {sr(sOFF)}, {sr(sTB)}, 1")
a(f"v_cndmask_b32 {vr(vCON)}, 0, v6, vcc")
a(f"v_cndmask_b32 {vr(vCON+1)}, 0, v6, vcc")
a(f"s_and_b32 {sr(sOFF)}, {sr(sOFF)}, 31")
a(f"s_lshl_b32 {sr(sOFF)}, {sr(sOFF)}, 12")
for j in range(8): a(f"v_mov_b64 {vr(O0+2*j,2)}, 0")
a(f"s_lshl1_add_u32 {sr(sT0)}, {sr(sHQ)}, {sr(sCT)}")
a(f"s_lshl_b32 {sr(sT0)}, {sr(sT0)}, 18")
a(f"s_lshl1_add_u32 {sr(sT1)}, {sr(sTB)}, {sr(sTT)}")
a(f"s_lshl_b32 {sr(sT1)}, {sr(sT1)}, 11")
a(f"s_add_u32 {sr(sT3)}, {sr(sT0)}, {sr(sT1)}")
a(f"s_add_u32 {sr(sT2)}, {sr(sT3)}, 0x20000")
if OPT["mbw"]:
    a(f"s_lshr_b32 s14, {sr(sTB)}, 3"); a(f"s_lshl2_add_u32 s14, {sr(sHQ)}, s14"); a(f"s_lshl2_add_u32 s14, s14, {sr(sW)}")
    a("s_lshl_b32 s14, s14, 7"); a(f"s_add_u32 s14, s14, {MB_KV}")
    a(f"s_load_dword s15, {sr(WS,2)}, s14")
    if OPT["mbw"] & 2:
        a(f"s_lshr_b32 s16, {sr(sTBB)}, 2"); a(f"s_lshl3_add_u32 s16, {sr(sHQ)}, s16"); a(f"s_lshl2_add_u32 s16, s16, {sr(sW)}")
        a("s_lshl_b32 s16, s16, 7"); a(f"s_add_u32 s16, s16, {MB_O}")
        a(f"s_load_dword s17, {sr(WS,2)}, s16")
    if OPT["mbw"] & 4:
        a(f"s_lshl2_add_u32 s18, {sr(sDB)}, {sr(sW)}"); a("s_lshl_b32 s18, s18, 7"); a(f"s_add_u32 s19, s18, {MB_Y}"); a(f"s_add_u32 s18, s18, {MB_U}")
        a(f"s_load_dword s20, {sr(WS,2)}, s18"); a(f"s_load_dword s21, {sr(WS,2)}, s19")
if OPT["tlb"]:
    for r, o in ((14, sT3), (15, sT2)): a(f"s_load_dword s{r}, {sr(WS,2)}, {sr(o)}")
if OPT["prew"] >= 3:
    a("s_mov_b64 exec, 1")
    if OPT["prew"] == 3: bstore(O0, 4, vKS, WS, sr(sT3), 0, "sc1")
    if OPT["prew"] == 4: bload(56, 1, vKS, WS, sr(sT3), 0, "sc1")
    if OPT["prew"] == 5: bstore(O0, 4, vKS, WS, sr(sT3), 0, "")
    a("s_mov_b64 exec, -1")
    a("s_waitcnt vmcnt(1) lgkmcnt(0)")
elif OPT["prew"]:
    fl = {1: "sc1", 2: ""}[OPT["prew"]]
    bstore(O0, 4, vKS, WS, sr(sT3), 0, fl); bstore(O0, 4, vKS, WS, sr(sT2), 0, fl)
    bstore(O0, 4, vVS, WS, sr(sT3), 1024, fl); bstore(O0, 4, vVS, WS, sr(sT3), 1536, fl)
    a("s_waitcnt vmcnt(4) lgkmcnt(0)")
else: a("s_waitcnt lgkmcnt(0)")
make_tag()

def kv_gemm():
    def rd(i):
        c, s = i >> 3, i & 7
        if s == 0:
            a(f"v_add_u32 {vr(vXB)}, {XB[c]}, {vr(vXR)}")
            a(f"v_add_u32 {vr(vWB)}, {SLOT[c % 3] + 16*K1}, {vr(vWR)}")
        f = WF + 8*(i & 3); t = vXT + (s & 1)
        if s: a(f"v_xor_b32 {vr(t)}, {32*s}, {vr(vXB)}")
        if s & 3 == 0:
            a("s_barrier")
            if i == 0: stamp("B1")
            if i == 28: stamp("B4")
        dsr("ds_read_b128", XF + 4*i, 4, t if s else vXB)
        dsr("ds_read_b64_tr_b16", f, 2, vWB, 2048*s); dsr("ds_read_b64_tr_b16", f + 2, 2, vWB, 2048*s + 512)
    def rdv(i):
        s = i & 7; f = WF + 8*(i & 3) + 4
        dsr("ds_read_b64_tr_b16", f, 2, vWB, 16*K1 + 2048*s); dsr("ds_read_b64_tr_b16", f + 2, 2, vWB, 16*K1 + 2048*s + 512)
    for lo_, hi_, D in ((0, 28, OPT["gd"]), (28, 32, 3)):
        for i in range(lo_, lo_ + D): rd(i); rdv(i)
        for i in range(lo_, hi_):
            x, f = XF + 4*i, WF + 8*(i & 3)
            n = 5 * (min(hi_, i + D) - i - 1)
            a(f"s_waitcnt lgkmcnt({n + 2})")
            mfma32(ACK, f, x, None if i == 0 else ACK)
            if i + D < hi_: rd(i + D); n += 3
            a(f"s_waitcnt lgkmcnt({n})")
            mfma32(ACV, x, f + 4, None if i == 0 else ACV)
            if i + D < hi_: rdv(i + D)
def q_gemm(side):
    def rd(i):
        c, s = i >> 3, i & 7
        if s == 0: a(f"v_add_u32 {vr(vXT + (c & 1))}, {WQ[c]}, {vr(vWR)}")
        if OPT["late"] and i == 32 - 8 * OPT["late"]: a("s_barrier")
        if i == 16 and OPT["two"]:
            a("s_waitcnt vmcnt(0)"); xstamp(10, "acked"); a("s_barrier"); stamp("B5")
        dsr("ds_read_b64_tr_b16", WF + 4*(i & 7), 2, vXT + (c & 1), 2048*s)
        dsr("ds_read_b64_tr_b16", WF + 4*(i & 7) + 2, 2, vXT + (c & 1), 2048*s + 512)
    D = 4
    for i in range(D): rd(i)
    for i in range(32):
        extra = sum(side[j][1] for j in range(max(0, i - D), i) if j in side)
        a(f"s_waitcnt lgkmcnt({2 * (min(32, i + D) - i - 1) + extra})")
        mfma32(ACQ, WF + 4*(i & 7), XF + 4*i, None if i == 0 else ACQ)
        if i + D < 32: rd(i + D)
        if i in side: side[i][0]()
def vconst(i): return [f"v_mov_b64 {vr(rVa(i) + 2*j, 2)}, {vr(vCON,2)}" for j in range(4)]
sGB = 12
def gload(dst, vaddr, off): a(f"global_load_dwordx4 {vr(dst,4)}, {vr(vaddr)}, {sr(sGB,2)} offset:{off} " + OPT["ldfl"].replace("_", " "))
def adv1():
    a(f"s_add_u32 {sr(sOFF)}, {sr(sOFF)}, 0x1000")
    a(f"s_and_b32 {sr(sOFF)}, {sr(sOFF)}, {sr(sAND)}")
def adv2():
    a(f"s_add_u32 {sr(sGB)}, {sr(WS)}, {sr(sOFF)}")
    a(f"s_addc_u32 {sr(sGB+1)}, {sr(WS+1)}, 0")
def ring_fill(tiles):
    for i in tiles:
        o = 2048 * (i & 1)
        if not o: adv2()
        gload(rK(i), vKA, o)
        a(f"s_mov_b64 exec, {sr(sHALF,2)}")
        gload(rVa(i), vVA, o + 1024); gload(rVb(i), vVA, o + 1536)
        a("s_mov_b64 exec, -1")
        if o: adv1()
def rowmax(S, m, acc):
    k = 0
    if not acc:
        a(f"v_max3_f32 {vr(m)}, {vr(S)}, {vr(S+1)}, {vr(S+2)}"); k = 3
    while k < 16:
        a(f"v_max3_f32 {vr(m)}, {vr(m)}, {vr(S+k)}, {vr(S+min(k+1,15))}"); k += 2

kv_gemm()
a(f"v_mov_b32 v56, {CNT}")
dsw("ds_write_b128", 56, O0, 4)
a("s_nop 7")
for j in range(8): cvt(32 + j, ACK + 2*j, ACK + 2*j + 1)
kvfl = OPT["kvfl"].replace("_", " ")
bstore(32, 4, vKS, WS, sr(sT3), 0, kvfl); bstore(36, 4, vKS, WS, sr(sT2), 0, kvfl)
for j in range(8): cvt(40 + j, ACV + 2*j, ACV + 2*j + 1)
bstore(40, 4, vVS, WS, sr(sT3), 1024, kvfl); bstore(44, 4, vVS, WS, sr(sT3), 1536, kvfl)
dsw("ds_write_b128", vKL, 32, 4); dsw("ds_write_b128", vKL, 36, 4, 4096)
dsw("ds_write_b128", vVL, 40, 4, 1024); dsw("ds_write_b128", vVL, 44, 4, 1536)
xstamp(9, "kv stored")
mbox(MB_KV, sHQ, sTB, 11)
a(f"s_lshr_b32 {sr(sT1)}, {sr(sTB)}, 3")
a(f"s_lshl_b32 {sr(sT1)}, {sr(sT1)}, 9")
a(f"s_add_u32 {sr(sT3)}, {sr(sT3)}, {sr(sT1)}")
if OPT["two"]: a("s_waitcnt lgkmcnt(0)"); a("s_barrier"); xstamp(11, "B5a")
else: a("s_waitcnt vmcnt(0) lgkmcnt(0)"); xstamp(10, "acked"); a("s_barrier"); stamp("B5")
NK = 80
def lines(ls): return (lambda: [a(l) for l in ls], 0)
def own_k():
    for i in range(2): dsr("ds_read_b128", rK(i), 4, 48, 2048*i)
def own_v(i):
    a(f"s_mov_b64 exec, {sr(sHALF,2)}")
    dsr("ds_read_b128", rVa(i), 4, 49, 2048*i + 1024); dsr("ds_read_b128", rVb(i), 4, 49, 2048*i + 1536)
    a("s_mov_b64 exec, -1")
def ack():
    a("s_waitcnt vmcnt(0)")
    xstamp(10, "acked")
    a("s_mov_b64 exec, 1"); a("ds_add_rtn_u32 v7, v56, v7 offset:8"); a("s_mov_b64 exec, -1")
def signal():
    L = newlab("sig")
    a("v_readfirstlane_b32 s14, v7"); a("s_cmp_lg_u32 s14, 3"); a(f"s_cbranch_scc1 {L}")
    push(4, 2, 3, sr(sT0))
    a.label(L)
A_ = OPT["ackat"]
side = {0: (lambda: (a("v_and_b32 v6, 0xfffffe00, v48"), dsr("ds_read_b128", NK, 4, 6)), 1),
        2: lines(["v_bfe_u32 v6, v1, 3, 2", "v_and_b32 v5, 7, v1", "v_lshlrev_b32 v5, 2, v5", "v_lshl_add_u32 v5, v6, 7, v5"]),
        6: lines([f"v_xor_b32 {vr(NK+j)}, 0x80008000, {vr(NK+j)}" for j in range(4)]),
        8: lines(vconst(0)), 9: lines(vconst(1)), 10: (own_k, 2), 11: (lambda: own_v(0), 2), 12: (lambda: own_v(1), 2),
        21: lines(vconst(2)), 22: lines(vconst(3)), 23: lines(vconst(4)), 24: lines(vconst(5)), 25: lines(vconst(6)), 26: lines(vconst(7)),
        OPT["pollat"]: (lambda: only_wave(0, lambda: bload(4, 1, 5, WS, sr(sT3), flags="sc1")), 0),
        28: lines([f"v_mov_b64 {vr(O1+2*j,2)}, 0" for j in range(4)]), 29: lines([f"v_mov_b64 {vr(O1+2*j,2)}, 0" for j in range(4, 8)])}
q_gemm(side)
if OPT["prio"]: a("s_setprio 1")
a(f"s_mov_b32 {sr(sT2)}, {f2h(0.25 * math.log2(math.e))}")
a(f"s_mov_b32 {sr(sT1)}, {sr(sT2)}")
a(f"v_mov_b32 {vr(vCNT)}, v56"); a(f"v_mov_b32 {vr(vONE)}, 1"); a("s_nop 0")
a(f"s_mov_b32 {sr(sPASS)}, 0")
a("s_nop 4")
for j in range(8): a(f"v_pk_mul_f32 {vr(ACQ+2*j,2)}, {vr(ACQ+2*j,2)}, {sr(sT1,2)}")
for j in range(8): cvt(120 + j, ACQ + 2*j, ACQ + 2*j + 1)
dsw("ds_write_b128", vQW, 120, 4, QF); dsw("ds_write_b128", vQW, 124, 4, QF + 2048)
for j in range(4): a(f"v_mov_b64 {vr(S1+8+2*j,2)}, 0")
for j in range(2): a(f"v_mov_b64 {vr(S1+2*j,2)}, {vr(NK+2*j,2)}")
stamp("q done")
def kvpoll():
    if OPT["pollat"] < 32: a("s_waitcnt vmcnt(0)"); poll(5, 4, sr(sT3), True, 1)
    else:
        if OPT["ksl"]: a(f"s_sleep {OPT['ksl']}")
        poll(5, 4, sr(sT3), False, 1)
only_wave(0, kvpoll)
a("s_waitcnt lgkmcnt(0)")
a("s_barrier")
stamp("B6")
PD = OPT["pd"]
dsr("ds_read_b128", Q0, 4, vQR, QF); dsr("ds_read_b128", Q1, 4, vQR, QF + 1024)
ring_fill([2])
a("s_waitcnt lgkmcnt(0)")
mfma32(C0, S1, Q0, None)
mfma32(S0, rK(0), Q0, C0)
mfma32(C1, S1, Q1, None)
ring_fill(range(3, PD - 2 * OPT["cu"]))
a("s_mov_b64 exec, 1"); a(f"ds_add_u32 v2, {vr(vONE)}"); a("s_mov_b64 exec, -1")
a.label("L_fill")
stamp("loop start")
def E(S, x, y):
    for k in range(x, y + 1): a(f"v_exp_f32 {vr(S+k)}, {vr(S+k)}")
def PV(O, V, S): a(f"v_smfmac_f32_32x32x32_bf16 {vr(O,16)}, {vr(V,4)}, {vr(S,8)}, {vr(vIDX)}")
def iteration(i, last, catch=False):
    ld = not last or i + PD < 8
    t = i + PD if not catch else PD - 2 + 2 * i
    o = 2048 * (t & 1)
    E(S0, 0, 1)
    PV(O1, rVb(i-1), S1 + 8)
    if ld:
        a(f"s_mov_b64 exec, {sr(sHALF,2)}")
        gload(rVa(t), vVA, o + 1024); gload(rVb(t), vVA, o + 1536)
        a("s_mov_b64 exec, -1")
    E(S0, 2, 5)
    mfma32(S1, rK(i), Q1, C1)
    if ld: gload(rK(t), vKA, o)
    else: a("s_nop 0")
    E(S0, 6, 9)
    PV(O0, rVa(i), S0)
    if o and ld: adv1()
    E(S0, 10, 15)
    E(S1, 0, 1)
    PV(O0, rVb(i), S0 + 8)
    if catch:
        adv2()
        if i: a(f"s_waitcnt vmcnt({3 * (PD - 2)})")
    elif not (last and i == 7): a(f"s_waitcnt vmcnt({3 * (PD - 1) if ld else 18 - 3 * i})")
    if i == 7 and not last: a(f"s_add_u32 {sr(sPASS)}, {sr(sPASS)}, 1")
    E(S1, 2, 5)
    if not (last and i == 7):
        mfma32(S0, rK(i+1), Q0, C0)
        if catch: gload(rK(t + 1), vKA, 0)
        elif i == 7: a(f"s_cmp_lg_u32 {sr(sPASS)}, 7")
        else: a("s_nop 0")
    E(S1, 6, 9)
    PV(O1, rVa(i), S1)
    if catch:
        a(f"s_mov_b64 exec, {sr(sHALF,2)}")
        gload(rVa(t + 1), vVA, 1024); gload(rVb(t + 1), vVA, 1536)
        a("s_mov_b64 exec, -1")
    elif o and ld: adv2()
    if OPT["pt"] and i == 1: a("s_memrealtime s[92:93]")
    if OPT["pt"] and i == 3: a("s_waitcnt lgkmcnt(0)"); a(f"s_mov_b32 m0, {sr(sPASS)}"); a("v_writelane_b32 v15, s92, m0")
    E(S1, 10, 15)
if OPT["cu"]:
    iteration(0, False, True); iteration(1, False, True)
    a("s_branch L_loop2")
a(".p2align 6")
a.label("L_loop")
for i in range(8):
    if i == 2: a.label("L_loop2")
    iteration(i, False)
a("s_cbranch_scc1 L_loop")
for i in range(8): iteration(i, True)
a("v_lshlrev_b32 v4, 4, v1")
a(f"v_rcp_f32 v6, {vr(O0+8)}")
PV(O1, rVb(7), S1 + 8)
stamp("loop end")
a(f"s_mov_b32 {sr(sT0)}, {f2h(2.0**40)}")
a(f"s_lshl2_add_u32 {sr(sT3)}, {sr(sHQ)}, {sr(sHH)}")
a(f"s_lshl_b32 {sr(sSX)}, {sr(sTB)}, 6")
a(f"s_add_u32 {sr(sSX)}, {sr(sSX)}, {sr(sT3)}")
a(f"s_lshl_b32 {sr(sSX)}, {sr(sSX)}, 10")
a(f"s_add_u32 {sr(sSX)}, {sr(sSX)}, {OF}")
a(f"s_add_u32 {sr(sSW)}, {sr(sSX)}, 0x8000")
for j in range(8): a(f"v_mul_f32 {vr(S1+j)}, v6, {vr(O0+j)}")
a(f"v_rcp_f32 v7, {vr(O1+8)}")
a(f"v_cmp_nle_f32 vcc, {vr(O0+8)}, {sr(sT0)}")
a(f"v_cmp_nle_f32 {sr(sT1,2)}, {vr(O1+8)}, {sr(sT0)}")
for j in range(4): cvt(S0 + j, S1 + 2*j, S1 + 2*j + 1)
a(f"s_or_b64 vcc, vcc, {sr(sT1,2)}")
a("s_cbranch_vccnz L_fallback")
a.label("L_attn_done")
bstore(S0, 4, 4, WS, sr(sSX), 0, "sc1")
for j in range(8): a(f"v_mul_f32 {vr(S1+j)}, v7, {vr(O1+j)}")
for j in range(4): cvt(S0 + 4 + j, S1 + 2*j, S1 + 2*j + 1)
bstore(S0 + 4, 4, 4, WS, sr(sSW), 0, "sc1")
a("v_lshlrev_b32 v6, 9, v1")
a(f"v_mov_b32 v7, {sr(sTAG)}")
a("s_barrier")
a(f"s_mov_b32 {sr(sT2)}, {sr(sT3)}")
mbox(MB_O, sTB, sT2, 10)
a("s_mov_b64 exec, 3")
a("s_waitcnt vmcnt(0)")
bstore(7, 1, 6, WS, sr(sT0), flags="sc1")
stamp("o pushed")
if OPT["pt"]:
    a("s_waitcnt lgkmcnt(0)"); a("s_mov_b32 s94, s88")
    for i in range(8): a(f"v_readlane_b32 s{76 + 2*i}, v15, {i}")
    a("s_mov_b32 s92, s94")
if OPT["enc"] or OPT["spin"]: a("s_barrier"); a("s_barrier")
if DIAG or OPT["enc"] or OPT["spin"]: finish(13 if DIAG == 1 else 11)
else: a("s_endpgm")
a.label("L_fallback")
a(f"s_cmp_lg_u32 {sr(sREDO)}, 0")
a("s_cbranch_scc1 L_attn_done")
a(f"s_mov_b32 {sr(sREDO)}, 1")
a(f"s_mov_b32 {sr(sOFF)}, 0")
a("v_mov_b32 v6, 0xff800000"); a("v_mov_b32 v7, v6")
for j in range(16): a(f"v_mov_b64 {vr(O0+2*j,2)}, 0")
a("s_waitcnt vmcnt(0)")
a.label("L_fb")
bload(rK(0), 4, vKA, WS, sr(sOFF), 0, "sc1")
a(f"s_add_u32 {sr(sOFF)}, {sr(sOFF)}, 0x800")
a("s_waitcnt vmcnt(0)")
mfma32(S0, rK(0), Q0, None); mfma32(S1, rK(0), Q1, None)
a("s_nop 10")
rowmax(S0, 6, True); rowmax(S1, 7, True)
a(f"s_cmp_lg_u32 {sr(sOFF)}, 0x20000")
a("s_cbranch_scc1 L_fb")
a(f"s_lshl_b32 {sr(sOFF)}, {sr(sTB)}, 12")
ring_fill(range(PD - 2 * OPT["cu"]))
a("v_mov_b32 v4, v6"); a("v_mov_b32 v11, v7"); a("s_nop 0")
a("v_permlane32_swap_b32 v6, v4"); a("v_permlane32_swap_b32 v7, v11")
a(f"v_max_f32 v6, v6, v4"); a("v_max_f32 v7, v7, v11")
for j in range(16): a(f"v_sub_f32 {vr(C0+j)}, 0, v6"); a(f"v_sub_f32 {vr(C1+j)}, 0, v7")
for j in range(4): a(f"v_mov_b64 {vr(S1+8+2*j,2)}, 0")
a(f"s_mov_b32 {sr(sPASS)}, 0")
a("s_waitcnt vmcnt(0)")
mfma32(S0, rK(0), Q0, C0)
a("s_nop 11")
a("s_branch L_fill")
a.label("L_end")
a("s_endpgm")

nbad = check(a.lines)
ref = open(f"cdna_kernels/{NAME}.s.ref").read().split("\n")
head = [l for l in ref if l.startswith(";") and "@launch" not in l and "Override launch" not in l and "grid=ceil" not in l]
out = "\n".join(head) + f"""
; Fused single launch: 256 workgroups (one per CU) x 8 waves; generated by gen/gen.py.
; @launch grid=(256,1,1) block=(512,1,1) lds={LDS_BYTES}
.amdgcn_target "amdgcn-amd-amdhsa--gfx950"
.text
.globl {NAME}_kernel
.p2align 8
.type {NAME}_kernel,@function
""" + a.text() + f""".section .rodata,"a"
.p2align 6
.amdhsa_kernel {NAME}_kernel
  .amdhsa_next_free_vgpr 256
  .amdhsa_next_free_sgpr 102
  .amdhsa_accum_offset 256
  .amdhsa_group_segment_fixed_size 0
  .amdhsa_kernarg_size 96
  .amdhsa_user_sgpr_count 2
  .amdhsa_user_sgpr_kernarg_segment_ptr 1
  .amdhsa_system_sgpr_workgroup_id_x 1
.end_amdhsa_kernel
"""
open(sys.argv[1], "w").write(out)
print("hazards:", nbad, "lines:", len(a.lines), "stamps:", nstamp[0])
```

```python
import sys, math, struct
from asmlib import Asm, vr, sr, check

NAME = "concat_heads__mha_block__ssm_conv_h3__prompt"
OPT = dict(wre=8, kslp=3, b6a=1, spoll=7, encc=0, encall=0, dbm=0, cu=0, mbw=7, ke=0, ksl=0, xf=0, la=3, coal=1, gat=1, enc0="", encm=2, wpf=1, wfirst=0, hat=0, p0w=2, wo1=24, map=1, ldfl="sc1", kvfl="sc1", wsoff=0, tlb=0, prew=0, late=0, hlate=0, kvat=2, pace=1, two=1, pd=5, ackat=14, pollat=27, p0p=0, hst=0, wqe=1, ysl=0, usl=0, wpace=3, gd=2, p0late=1, hs=4, pt=0, slp=8, onepoll=1, skip="", cp=0, sp=3, ep=3, hp=0, enc="", encw=0, first=0, gfl="sc1", pfl="sc1", vz=1, noload=0, nopv=0, noqk=0, noexp=0, c0=0, prio=1, diag=0, spin=0, spinat="end", clk=0)
for arg in sys.argv[2:]:
    k, v = arg.split("=")
    try: OPT[k] = int(v, 0)
    except ValueError: OPT[k] = v
DIAG = OPT["diag"]

KV, UT, YT, OF, MB = 0, 0x400000, 0x600000, 0x800000, 0xA00000
MB_U, MB_KV, MB_Y, MB_O = MB, MB + 0x8000, MB + 0x10000, MB + 0x18000
EP = MB + 0x20000
STAMP = 0xA30000
WS_SIZE = 0xA50000
K1 = 1024
SLOT = [0, 48 * K1, 96 * K1]
EX = 144 * K1
P0S = 8 * K1
HB = SLOT[2]; HSTR = 4512
UB = HB + 8 * HSTR; USTR = 4224
CNT = UB + 2 * USTR
QF = 16 * K1; RED = 140 * K1; KVL = SLOT[2]
YB = 128 * K1; MG = 140 * K1
LDS_BYTES = 160 * K1
assert CNT + 16 <= MG
X, W, WO, BQ, BK, BV, SH, HK, DD, OUT, WS = 4, 8, 12, 16, 20, 24, 28, 32, 36, 40, 44
sW, sHQ, sTB, sDB, sTBB, sROT, sTAG, sMASK = 48, 49, 50, 51, 52, 53, 54, 55
sA, sT0, sT1, sT2, sT3, sSX, sSW, sM0 = 56, 57, 58, 59, 60, 61, 62, 63
sOFF, sPASS, sREDO, sSPIN, sAND = 64, 65, 66, 67, 68
sHALF = 70
sCT, sTT, sHH, sHB = 3, 69, 72, 73
sST = 74
SPINMAX = 0x4000
f2h = lambda x: hex(struct.unpack("<I", struct.pack("<f", x))[0])

a = Asm()
nstamp = [0]
def stamp(name):
    if OPT["enc"] and name.replace(" ", "_") == OPT["enc"]: a("s_memtime s[94:95]" if OPT["encc"] else "s_memrealtime s[94:95]")
    if OPT["enc0"] and name.replace(" ", "_") == OPT["enc0"]: a("s_memtime s[96:97]" if OPT["encc"] else "s_memrealtime s[96:97]")
    if OPT["enc"] == "drained" and name == "end": a("s_waitcnt vmcnt(0)"); a("s_memrealtime s[94:95]")
    if OPT["enc"] and name == "end":
        L, L2 = newlab("spin"), newlab("spin")
        a("s_waitcnt lgkmcnt(0)")
        a(f"s_sub_u32 s94, s94, {'s96' if OPT['enc0'] else 's100'}"); a(f"s_lshl_b32 s94, s94, {OPT['encm']}" if not OPT["encc"] else f"s_sub_u32 s94, s94, {OPT['encc']}"); a("s_min_u32 s94, s94, 100000")
        a("s_lshr_b32 s95, s2, 3" if not OPT["encall"] else "s_mov_b32 s95, 12"); a(f"s_lshl3_add_u32 s95, s95, {sr(sW)}"); a(f"s_cmp_eq_u32 s95, {96 + OPT['encw']}")
        a("s_cselect_b32 s94, s94, 0"); a("s_add_u32 s94, s94, 4000")
        a.label(L)
        a("s_memrealtime s[98:99]"); a("s_waitcnt lgkmcnt(0)")
        a("s_sub_u32 s98, s98, s100"); a("s_cmp_lt_u32 s98, s94"); a(f"s_cbranch_scc1 {L}")
    if OPT["spin"] and name.replace(" ", "_") == OPT["spinat"]:
        L = newlab("spin")
        if OPT["first"]:
            a("v_mov_b32 v6, 0"); a("global_load_dword v6, v6, s[96:97] sc1"); a("s_waitcnt vmcnt(0)")
            a("v_readfirstlane_b32 s100, v6"); a("s_nop 3"); a("s_not_b32 s100, s100")
        a.label(L)
        a("s_memrealtime s[98:99]"); a("s_waitcnt lgkmcnt(0)")
        a("s_sub_u32 s98, s98, s100"); a(f"s_cmp_lt_u32 s98, {OPT['spin'] * 100}"); a(f"s_cbranch_scc1 {L}")
    if DIAG == 2:
        if name in ("B1", "B5", "B6", "loop start", "loop end", "end"):
            i = nstamp[0]; nstamp[0] += 2
            a(f"s_memrealtime {sr(sST + 2 * i, 2)}")
            a(f"s_memtime {sr(sST + 2 * i + 2, 2)}")
    elif DIAG:
        i = nstamp[0]; nstamp[0] += 1
        assert sST + 2 * i + 1 <= 101, "too many stamps"
        a(f"{'s_memtime' if OPT['clk'] else 's_memrealtime'} {sr(sST + 2 * i, 2)} ; stamp {i} {name}")
def set_stamp(i): nstamp[0] = i
def xstamp(i, name):
    if DIAG == 1 and not OPT["pt"]:
        k = nstamp[0]; nstamp[0] = i; stamp(name); nstamp[0] = k
    elif OPT["enc"]: stamp(name)
lab = [0]
def newlab(p):
    lab[0] += 1; return f"L_{p}{lab[0]}"

def bload(dst, n, vaddr, srd, soff, off=0, flags=""):
    op = {1: "dword", 2: "dwordx2", 4: "dwordx4"}[n]
    a(f"buffer_load_{op} {vr(dst, n)}, {vr(vaddr)}, {sr(srd, 4)}, {soff} offen" + (f" offset:{off}" if off else "") + (" " + flags if flags else ""))
def bstore(src, n, vaddr, srd, soff, off=0, flags=""):
    op = {1: "dword", 2: "dwordx2", 4: "dwordx4"}[n]
    a(f"buffer_store_{op} {vr(src, n)}, {vr(vaddr)}, {sr(srd, 4)}, {soff} offen" + (f" offset:{off}" if off else "") + (" " + flags if flags else ""))
def dma(vaddr, srd, soff, flags=""):
    a(f"buffer_load_dwordx4 {vr(vaddr)}, {sr(srd, 4)}, {soff} offen" + (" " + flags if flags else "") + " lds")
def dsr(op, dst, n, vaddr, off=0):
    assert 0 <= off < 65536
    a(f"{op} {vr(dst, n)}, {vr(vaddr)}" + (f" offset:{off}" if off else ""))
def dsw(op, vaddr, src, n, off=0):
    assert 0 <= off < 65536
    a(f"{op} {vr(vaddr)}, {vr(src, n)}" + (f" offset:{off}" if off else ""))
def mfma32(d, A, B, c): a(f"v_mfma_f32_32x32x16_bf16 {vr(d,16)}, {vr(A,4)}, {vr(B,4)}, " + ("0" if c is None else vr(c, 16)))
def mfma16(d, A, B, c): a(f"v_mfma_f32_16x16x32_bf16 {vr(d,4)}, {vr(A,4)}, {vr(B,4)}, " + ("0" if c is None else vr(c, 4)))
def cvt(d, x, y): a(f"v_cvt_pk_bf16_f32 {vr(d)}, {vr(x)}, {vr(y)}")
def lo(d, s): a(f"v_lshlrev_b32 {vr(d)}, 16, {vr(s)}")
def hi(d, s): a(f"v_and_b32 {vr(d)}, {sr(sMASK)}, {vr(s)}")

bload_, mfma32_ = bload, mfma32
def poll(vaddr, vtmp, soff, first_issued=False, slp=None):
    L, Lo = newlab("poll"), newlab("pollok")
    a(f"s_mov_b32 {sr(sSPIN)}, 0")
    if first_issued:
        a(f"v_cmp_ne_u32 vcc, {sr(sTAG)}, {vr(vtmp)}")
        a(f"s_cbranch_vccz {Lo}")
    a.label(L)
    bload(vtmp, 1, vaddr, WS, soff, flags="sc1")
    a(f"s_add_u32 {sr(sSPIN)}, {sr(sSPIN)}, 1")
    a(f"s_cmp_ge_u32 {sr(sSPIN)}, {SPINMAX}")
    a("s_waitcnt vmcnt(0)")
    a(f"s_cbranch_scc1 {Lo}")
    a(f"v_cmp_ne_u32 vcc, {sr(sTAG)}, {vr(vtmp)}")
    a(f"s_cbranch_vccz {Lo}")
    a(f"s_sleep {OPT['slp'] if slp is None else slp}")
    a(f"s_branch {L}")
    a.label(Lo)

def spoll(soff, slp, first=None):
    L, Lo = newlab("spoll"), newlab("spollok")
    a(f"s_mov_b32 {sr(sSPIN)}, 0")
    if first:
        a(f"s_load_dwordx8 s[4:11], {sr(WS,2)}, {soff} glc")
        first()
        a(f"s_branch {L}b")
    a.label(L)
    a(f"s_load_dwordx8 s[4:11], {sr(WS,2)}, {soff} glc")
    if first: a.label(L + "b")
    a(f"s_add_u32 {sr(sSPIN)}, {sr(sSPIN)}, 1")
    a(f"s_cmp_ge_u32 {sr(sSPIN)}, {SPINMAX}")
    a("s_waitcnt lgkmcnt(0)")
    a(f"s_cbranch_scc1 {Lo}")
    for j in range(4): a(f"s_xor_b64 s[{4+2*j}:{5+2*j}], s[{4+2*j}:{5+2*j}], {sr(sHALF,2)}")
    a("s_or_b64 s[4:5], s[4:5], s[6:7]"); a("s_or_b64 s[8:9], s[8:9], s[10:11]"); a("s_or_b64 s[4:5], s[4:5], s[8:9]")
    a(f"s_cbranch_scc0 {Lo}")
    a(f"s_sleep {slp}")
    a(f"s_branch {L}")
    a.label(Lo)

def push(nl, vt0, vt1, soff):
    a(f"s_mov_b64 exec, {hex((1 << nl) - 1)}")
    bstore(vt1, 1, vt0, WS, soff, flags="sc1")
    a("s_mov_b64 exec, -1")

def arrive(cntoff, pushfn):
    L = newlab("arr")
    a("s_mov_b64 exec, 1")
    a(f"ds_add_rtn_u32 v7, {vr(vCNT)}, {vr(vONE)} offset:{cntoff}")
    a("s_waitcnt lgkmcnt(0)")
    a("v_cmp_ne_u32 vcc, 3, v7")
    a(f"s_cbranch_vccnz {L}")
    pushfn()
    a.label(L)
    a("s_mov_b64 exec, -1")

def hbar(extra=0, slp=None):
    L = newlab("hb")
    a(f"s_add_u32 {sr(sHB)}, {sr(sHB)}, {4 + extra}")
    a("s_mov_b64 exec, 1")
    a(f"ds_add_u32 {vr(vCNT)}, {vr(vONE)}")
    a.label(L)
    dsr("ds_read_b32", 6, 1, vCNT)
    a("s_waitcnt lgkmcnt(0)")
    a(f"v_cmp_gt_u32 vcc, {sr(sHB)}, v6")
    a(f"s_cbranch_vccz {L}x")
    if slp != 0: a(f"s_sleep {OPT['hs'] if slp is None else slp}")
    a(f"s_branch {L}")
    a.label(L + "x")
    a("s_mov_b64 exec, -1")
def only_wave(w, fn):
    L = newlab("ow")
    a(f"s_cmp_lg_u32 {sr(sW)}, {w}"); a(f"s_cbranch_scc1 {L}")
    fn()
    a.label(L)
def hprio(p):
    a(f"s_setprio {p}")
vCNT, vONE = 2, 3


a.label(f"{NAME}_kernel")
a("s_cmp_ge_u32 s2, 0x100")
a("s_cbranch_scc1 L_end")
a(f"s_load_dwordx2 {sr(X,2)}, s[0:1], 0")
a(f"s_load_dwordx2 {sr(W,2)}, s[0:1], 8")
a(f"s_load_dwordx2 {sr(WS,2)}, s[0:1], 88")
if DIAG or OPT["spin"] or OPT["enc"]: a("s_memtime s[100:101]" if OPT["clk"] else "s_memrealtime s[100:101]")
a("s_getpc_b64 s[88:89]")
a.label("L_pc")
a(f"s_lshr_b32 {sr(sTBB)}, s2, 3")
a(f"s_and_b32 {sr(sHQ)}, s2, 7")
a("v_lshrrev_b32 v6, 6, v0")
a(f"v_lshl_add_u32 v7, {sr(sTBB)}, 3, v6")
a("v_lshlrev_b32 v7, 7, v7")
a("v_min_u32 v7, L_end-L_pc, v7")
a("global_load_dword v4, v7, s[88:89]")
a(f"v_readfirstlane_b32 {sr(sW)}, v6")
sTB = sTBB
a(f"s_add_u32 {sr(sROT)}, {sr(sHQ)}, {sr(sTB)}")
if OPT["dbm"]: a(f"s_and_b32 {sr(sDB)}, {sr(sROT)}, 7")
else: sDB = sHQ
a(f"s_mov_b32 {sr(X+3)}, 0x20000")
a(f"s_and_b32 {sr(sHH)}, {sr(sW)}, 3")
a(f"s_cmp_lt_u32 {sr(sW)}, 4")
a("s_cbranch_scc1 L_main")

def mbox(base, grp, idx, sh):
    a(f"s_lshr_b32 {sr(sT0)}, {sr(idx)}, 3")
    a(f"s_mul_i32 {sr(sT0)}, {sr(sT0)}, 96")
    a(f"s_lshl2_add_u32 {sr(sT0)}, {sr(idx)}, {sr(sT0)}")
    a(f"s_lshl_b32 {sr(sT3)}, {sr(grp)}, {sh}")
    a(f"s_add_u32 {sr(sT3)}, {sr(sT3)}, {base}")
    a(f"s_add_u32 {sr(sT0)}, {sr(sT0)}, {sr(sT3)}")
def common_setup():
    a("v_and_b32 v1, 63, v0")
    if OPT["wsoff"]:
        a(f"s_add_u32 {sr(WS)}, {sr(WS)}, {hex(OPT['wsoff'])}"); a(f"s_addc_u32 {sr(WS+1)}, {sr(WS+1)}, 0")
    a(f"s_add_u32 s88, {sr(WS)}, {EP}")
    a(f"s_addc_u32 s89, {sr(WS+1)}, 0")
    a(f"s_load_dword {sr(sTAG)}, s[88:89], 0")
    a(f"s_mov_b32 {sr(WS+2)}, {hex(WS_SIZE)}"); a(f"s_mov_b32 {sr(WS+3)}, {sr(X+3)}")
    a(f"s_and_b32 {sr(sCT)}, {sr(sW)}, 1")
    a(f"s_bfe_u32 {sr(sTT)}, {sr(sW)}, 0x10001")
    if DIAG: a(f"s_mov_b64 {sr(sST,2)}, s[100:101]"); nstamp[0] = 1
def make_tag():
    a(f"s_mul_i32 {sr(sTAG)}, {sr(sTAG)}, 0x2c9277b5")
    a(f"s_add_u32 {sr(sTAG)}, {sr(sTAG)}, 0xac564b05")
def finish(n, drain=False):
    a("s_mov_b64 exec, -1")
    if DIAG and drain: a("s_waitcnt vmcnt(0)")
    set_stamp(n); stamp("end")
    if DIAG:
        a("s_waitcnt lgkmcnt(0)")
        for i in range(nstamp[0]): a(f"v_mov_b32 {vr(32+i)}, {sr(sST+2*i)}")
        a(f"s_lshl3_add_u32 {sr(sT0)}, s2, {sr(sW)}")
        a(f"s_lshl_b32 {sr(sT0)}, {sr(sT0)}, 6")
        a(f"s_add_u32 {sr(sT0)}, {sr(sT0)}, {STAMP}")
        a("v_mov_b32 v6, 0")
        a("s_mov_b64 exec, 1")
        for i in range(4): bstore(32 + 4*i, 4, 6, WS, sr(sT0), 16*i)
    a("s_endpgm")

vXS, vWS = 48, 49
a("v_and_b32 v0, 0xff, v0")
a(f"s_mov_b32 {sr(X+2)}, 0x200000")
a(f"s_mov_b32 {sr(W+2)}, 0x180000"); a(f"s_mov_b32 {sr(W+3)}, {sr(X+3)}")
a("v_lshrrev_b32 v6, 4, v0")
a("v_xor_b32 v32, v6, v0")
a("v_and_b32 v32, 15, v32")
a(f"v_lshl_add_u32 v6, {sr(sTB)}, 6, v6")
a("v_lshlrev_b32 v6, 10, v6")
a(f"v_lshl_add_u32 {vr(vXS)}, v32, 4, v6")
a("v_lshrrev_b32 v6, 2, v0")
a("v_and_b32 v6, 4, v6")
a("v_xor_b32 v6, v6, v0")
a("v_and_b32 v6, 7, v6")
a(f"v_lshl_add_u32 v6, {sr(sHQ)}, 3, v6")
a("v_lshrrev_b32 v32, 3, v0")
a("v_mul_u32_u24 v32, 0xc00, v32")
a(f"v_lshl_add_u32 {vr(vWS)}, v6, 4, v32")
a(f"s_lshl_b32 {sr(sM0)}, {sr(sHH)}, 10")
def chunk_offsets(c):
    if c: a(f"s_add_u32 {sr(sT0)}, {sr(sROT)}, {c}")
    a(f"s_and_b32 {sr(sT0)}, {sr(sT0) if c else sr(sROT)}, 3")
    a(f"s_mul_i32 {sr(sSW)}, {sr(sT0)}, {128*3072}")
def dma_run(vaddr, srd, sbase, off, step, ldsbase, n=4, wait=False):
    a(f"s_add_u32 m0, {sr(sM0)}, {ldsbase}")
    a(f"s_add_u32 {sr(sT2)}, {sr(sbase)}, {off}")
    if wait: a("s_waitcnt lgkmcnt(0)")
    for i in range(n):
        dma(vaddr, srd, sr(sT2))
        if i < n - 1:
            a("s_addk_i32 m0, 0x1000")
            a(f"s_add_u32 {sr(sT2)}, {sr(sT2)}, {step}")
XB = SLOT + [EX]
WQ = [SLOT[0], SLOT[1], SLOT[1] + 16 * K1, SLOT[1] + 32 * K1]
def unit(u, wait=False):
    kind, j = u
    if kind == "x":
        if j: a(f"s_add_u32 {sr(sT0)}, {sr(sROT)}, {j}")
        a(f"s_and_b32 {sr(sT0)}, {sr(sT0) if j else sr(sROT)}, 3")
        a(f"s_lshl_b32 {sr(sSX)}, {sr(sT0)}, 8")
        dma_run(vXS, X, sSX, 0, 16384, XB[j], 4, wait)
    elif kind == "w":
        c, hf = j >> 1, j & 1
        if not hf: chunk_offsets(c)
        dma_run(vWS, W, sSW, 1024 + hf*64*3072, 32*3072, SLOT[c % 3] + 16 * K1 + hf*8192, 2, wait)
        dma_run(vWS, W, sSW, 2048 + hf*64*3072, 32*3072, SLOT[c % 3] + 32 * K1 + hf*8192, 2)
    else: dma_wq(j)
def dma_wq(c):
    chunk_offsets(c); dma_run(vWS, W, sSW, 0, 32*3072, WQ[c])
ORD = {0: "x0 w0 w1 x1 w2 w3 x2 w4 w5 x3 w6 w7", 1: "x0 w0 x1 w1 x2 w2 x3 w3 w4 w5 w6 w7", 2: "x0 x1 w0 x2 w1 x3 w2 w3 w4 w5 w6 w7",
       3: "x0 w0 x1 w1 w2 x2 w3 x3 w4 w5 w6 w7"}[OPT["xf"]]
STREAM = [(t[0], int(t[1])) for t in (ORD + " q0 q1").split()]
issued = 3
for i in range(issued): unit(STREAM[i], i == 0)
a("s_load_dwordx8 s[80:87], s[0:1], 16")
a("s_load_dwordx8 s[92:99], s[0:1], 48")
common_setup()
UU = 16
vA, vH, vSH, vPW, vPR, vPG, vHS, vSR = 8, 9, 10, 11, 12, 13, 14, 15
SR, DR, KP, WJ, VP, DP, HT = 148, 139, 160, 184, 192, 48, 208
STG = SLOT[1]; sSTG = 68
vHW, vHA, vUA, vL16, vWO, vYS, vWR0, vWR1, vYR, vGO, vPO, vOO, vRW, vRR, vY8, vZ0 = range(32, 48)
vZ1, vFL, vTG, vMB = 50, 51, 52, 54
sUB, sCH = 64, 66
a("v_and_b32 v5, 31, v0")
a("v_lshlrev_b32 v5, 2, v5")
a(f"v_mov_b32 {vr(vCNT)}, {CNT}")
a(f"v_mov_b32 {vr(vONE)}, 1")
a(f"s_mov_b32 {sr(sHB)}, 0")
a(f"s_mov_b32 {sr(sMASK)}, 0xffff0000")
a("v_lshrrev_b32 v53, 5, v0")
a("v_lshrrev_b32 v6, 3, v1")
a("v_and_b32 v7, 7, v1")
a("v_lshlrev_b32 v7, 4, v7")
a(f"v_lshl_add_u32 {vr(vA)}, v6, 10, v7")
a("v_cmp_gt_u32 vcc, 5, v6")
a(f"s_lshl_b32 {sr(sSTG)}, {sr(sHH)}, 13")
a(f"s_add_u32 {sr(sSTG)}, {sr(sSTG)}, {STG}")
a("v_lshrrev_b32 v6, 5, v1")
a("v_lshl_add_u32 v6, v6, 10, v5")
a(f"v_add_u32 {vr(vSR)}, {sr(sSTG)}, v6")
a(f"v_lshl_add_u32 {vr(vGO)}, v53, 14, v5")
a(f"s_lshl_b32 {sr(sA)}, {sr(sTBB)}, 16")
a(f"s_lshl_b32 {sr(sT0)}, {sr(sDB)}, 7")
a(f"s_add_u32 {sr(sA)}, {sr(sA)}, {sr(sT0)}")
a(f"s_lshl4_add_u32 {sr(sA)}, {sr(sM0)}, {sr(sA)}")
a(f"s_sub_u32 {sr(sT2)}, {sr(sA)}, 0x2000")
a(f"v_add_u32 v6, {sr(sT2)}, {vr(vA)}")
a("v_bfrev_b32 v7, 2")
a(f"v_cndmask_b32 {vr(vH)}, v6, v7, vcc")
a(f"v_lshlrev_b32 {vr(vSH)}, 2, v5")
a("v_xor_b32 v6, 7, v53")
a("v_xor_b32 v6, v6, v0")
a("v_and_b32 v6, 7, v6")
a("v_lshlrev_b32 v6, 4, v6")
a(f"v_lshl_add_u32 {vr(vPW)}, v5, 5, v6")
a("v_lshrrev_b32 v7, 1, v0")
a("v_xor_b32 v7, v53, v7")
a("v_and_b32 v7, 7, v7")
a("v_lshlrev_b32 v7, 4, v7")
a("v_lshl_add_u32 v7, v5, 5, v7")
a(f"v_add_u32 {vr(vYR)}, {YB}, v7")
a("v_lshrrev_b32 v6, 3, v0")
a("v_xor_b32 v7, v6, v0")
a("v_and_b32 v7, 7, v7")
a("v_lshlrev_b32 v7, 4, v7")
a(f"v_lshl_add_u32 {vr(vPR)}, v6, 7, v7")
a("v_and_b32 v7, 7, v0")
a("v_lshlrev_b32 v7, 4, v7")
a(f"v_lshl_add_u32 {vr(vPG)}, v6, 13, v7")
a("v_lshrrev_b32 v7, 1, v6")
a("v_xor_b32 v7, v7, v0")
a("v_and_b32 v7, 7, v7")
a("v_lshlrev_b32 v7, 4, v7")
a(f"v_lshl_add_u32 {vr(vYS)}, v6, 13, v7")
a(f"v_lshlrev_b32 {vr(vHS)}, 4, v0")
a(f"v_add_u32 {vr(vHW)}, {HB + 384}, {vr(vHS)}")
a("v_and_b32 v6, 3, v1")
a(f"v_mul_u32_u24 v6, {HSTR}, v6")
a("v_bfe_u32 v53, v1, 2, 2")
a("v_lshl_add_u32 v6, v53, 7, v6")
a("v_and_b32 v7, 0x30, v1")
a("v_add_u32 v6, v6, v7")
a(f"s_mul_i32 {sr(sT0)}, {sr(sCT)}, {4*HSTR}")
a(f"s_lshl_b32 {sr(sT1)}, {sr(sTT)}, 8")
a(f"s_add_u32 {sr(sT0)}, {sr(sT0)}, {sr(sT1)}")
a(f"s_add_u32 {sr(sT0)}, {sr(sT0)}, {HB}")
a(f"v_add_u32 {vr(vHA)}, {sr(sT0)}, v6")
a("v_and_b32 v6, 15, v1")
a("v_lshlrev_b32 v6, 3, v6")
a("v_sub_u32 v6, v7, v6")
a(f"s_mul_i32 {sr(sUB)}, {sr(sCT)}, {USTR}")
a(f"s_add_u32 {sr(sUB)}, {sr(sUB)}, {UB}")
a(f"s_add_u32 {sr(sT0)}, {sr(sUB)}, {sr(sT1)}")
a(f"s_add_u32 {sr(sT0)}, {sr(sT0)}, 120")
a(f"v_add_u32 {vr(vUA)}, {sr(sT0)}, v6")
a(f"v_lshlrev_b32 {vr(vL16)}, 4, v1")
a(f"v_lshlrev_b32 {vr(vY8)}, 3, v1")
a(f"v_lshlrev_b32 {vr(vFL)}, 9, v1")
a(f"v_lshl_add_u32 {vr(vRW)}, {sr(sHH)}, 12, {vr(vL16)}")
a(f"v_xor_b32 {vr(vRR)}, 0x2000, {vr(vRW)}")
a(f"v_add_u32 {vr(vRW)}, {RED}, {vr(vRW)}")
a(f"v_add_u32 {vr(vRR)}, {RED}, {vr(vRR)}")
a("v_min_u32 v6, 23, v1")
a(f"s_mul_i32 {sr(sT0)}, {sr(sHH)}, {HSTR}")
a(f"s_add_u32 {sr(sT0)}, {sr(sT0)}, {HB}")
a(f"v_lshl_add_u32 {vr(vZ0)}, v6, 4, {sr(sT0)}")
a("v_and_b32 v6, 7, v1")
a(f"v_lshl_add_u32 {vr(vZ1)}, v6, 4, {sr(sUB)}")
a(f"s_lshl_b32 {sr(sT0)}, {sr(sDB)}, 5")
a(f"s_add_u32 {sr(sT0)}, {sr(sT0)}, {sr(sTBB)}")
a(f"s_lshl_b32 {sr(sCH)}, {sr(sT0)}, 13")
a("v_lshrrev_b32 v6, 4, v0")
a("v_lshlrev_b32 v7, 2, v6")
a("v_xor_b32 v7, v7, v0")
a("v_and_b32 v7, 15, v7")
a("v_lshlrev_b32 v7, 4, v7")
a("v_lshl_add_u32 v6, v6, 10, v7")
a(f"s_and_b32 {sr(sT0)}, {sr(sTBB)}, 3")
a(f"v_lshl_add_u32 {vr(vWO)}, {sr(sT0)}, 8, v6")
a("v_lshrrev_b32 v7, 5, v1")
a("v_lshl_add_u32 v7, v7, 2, v53")
a(f"v_xor_b32 v6, {sr(sHH)}, v53")
a("v_lshlrev_b32 v6, 6, v6")
a("v_lshl_add_u32 v6, v7, 8, v6")
a("v_and_b32 v7, 1, v1")
a("v_lshl_add_u32 v6, v7, 5, v6")
a("v_and_b32 v7, 16, v1")
a("v_add_u32 v6, v6, v7")
a("v_and_b32 v7, 2, v1")
a(f"v_lshl_add_u32 {vr(vWR0)}, v7, 2, v6")
a(f"v_add_u32 {vr(vWR1)}, 0x10000, {vr(vWR0)}")
a(f"v_and_b32 {vr(vPO)}, 28, v5")
vTW, vTR = 54, 55
if OPT["coal"] == 1:
    a("v_lshrrev_b32 v6, 4, v1")
    a("v_and_b32 v6, 2, v6")
    a("v_lshrrev_b32 v7, 1, v1")
    a("v_xor_b32 v6, v6, v7")
    a("v_and_b32 v6, 3, v6")
    a("v_lshlrev_b32 v6, 4, v6")
    a("v_lshl_add_u32 v6, v5, 4, v6")
    a(f"s_lshl_b32 {sr(sT0)}, {sr(sHH)}, 11")
    a(f"s_add_u32 {sr(sT0)}, {sr(sT0)}, {RED}")
    a(f"v_add_u32 {vr(vTW)}, {sr(sT0)}, v6")
    a("v_lshrrev_b32 v6, 3, v1")
    a("v_xor_b32 v6, v6, v1")
    a("v_and_b32 v6, 3, v6")
    a("v_and_b32 v7, 0x3c, v1")
    a("v_or_b32 v6, v6, v7")
    a(f"v_lshl_add_u32 {vr(vTR)}, v6, 4, {sr(sT0)}")
    a("v_and_b32 v6, 3, v1")
    a("v_lshlrev_b32 v6, 4, v6")
    a(f"v_lshl_add_u32 {vr(vOO)}, v7, 9, v6")
else:
    a("v_and_b32 v6, 32, v1")
    a(f"v_lshl_add_u32 {vr(vOO)}, v5, 9, v6")
CY, CB, CA = 64, 96, 128
for j in range(16): a(f"v_mov_b64 {vr(CY+2*j,2)}, 0")
for j in range(11): a(f"v_mov_b64 {vr(KP+2*j,2)}, 0")
for j in range(8): a(f"v_mov_b64 {vr(VP+2*j,2)}, 0")
a("s_waitcnt lgkmcnt(0)")
for r, p in ((WO, 80), (BQ, 82), (BK, 84), (BV, 86), (SH, 92), (HK, 94), (DD, 96), (OUT, 98)):
    a(f"s_mov_b64 {sr(r,2)}, {sr(p,2)}")
for r in (BK, BV, HK, BQ): a(f"s_mov_b64 {sr(r+2,2)}, {sr(X+2,2)}")
for r, n in ((SH, 4096), (DD, 1024), (WO, 0x80000), (OUT, 0x400000)):
    a(f"s_mov_b32 {sr(r+2)}, {hex(n)}"); a(f"s_mov_b32 {sr(r+3)}, {sr(X+3)}")
make_tag()
a(f"v_mov_b32 {vr(vTG)}, {sr(sTAG)}")
a(f"s_mov_b32 {sr(sHALF)}, {sr(sTAG)}"); a(f"s_mov_b32 {sr(sHALF+1)}, {sr(sTAG)}")
a(f"s_lshl_b32 {sr(sT0)}, {sr(sDB)}, 7")
a(f"s_lshl_b32 {sr(sT1)}, {sr(sDB)}, 9")
bload(SR, 4, vSH, SH, sr(sT1)); bload(DR, 1, 5, DD, sr(sT0))
for j in range(8):
    pos = STREAM.index(("w", j))
    while issued < min(len(STREAM), pos + 1 + OPT["la"]):
        k_, j_ = STREAM[issued]
        assert not (k_ == "w" and j_ >= 6 and j < j_ - 3) and not (k_ == "q" and j < 4 + 2 * j_)
        unit(STREAM[issued]); issued += 1
    a(f"s_waitcnt vmcnt({4 * (issued - pos - 1)})"); a("s_barrier")
    if j == 0: stamp("B1")
stamp("B4")
a("s_waitcnt vmcnt(4)"); dma_wq(2)
a("s_waitcnt vmcnt(4)"); dma_wq(3)
if OPT["two"]: a("s_waitcnt vmcnt(8)"); a("s_barrier")
mbox(MB_KV, sHQ, sTB, 11)
a("s_waitcnt vmcnt(0)"); a("s_barrier")
only_wave(4, lambda: push(4, vFL, vTG, sr(sT0)))
stamp("B5")
lo(WJ+0, SR); lo(WJ+1, SR+2); hi(WJ+2, SR); hi(WJ+3, SR+2)
lo(WJ+4, SR+1); lo(WJ+5, SR+3); hi(WJ+6, SR+1); hi(WJ+7, SR+3)
lo(DP, DR); hi(DP + 1, DR)
if OPT["spoll"] & 4:
    a(f"s_lshr_b32 {sr(sT1)}, {sr(sTB)}, 3")
    a(f"s_lshl2_add_u32 {sr(sT1)}, {sr(sT1)}, {sr(sHH)}")
    a(f"s_lshl_b32 {sr(sT1)}, {sr(sT1)}, 7")
    a(f"s_add_u32 {sr(sT3)}, {sr(sT3)}, {sr(sT1)}")
    if OPT["ksl"]: a(f"s_sleep {OPT['ksl']}")
    if OPT["b6a"]: a("s_barrier")
    spoll(sr(sT3), OPT["kslp"])
a("s_barrier")
hprio(OPT["sp"])
hbar(4, 1)
def stage(vaddr, srd, soff, sbase, ldsoff, i):
    if OPT["p0w"] and i >= OPT["p0w"]: a(f"s_waitcnt vmcnt({OPT['p0w'] - 1})")
    a(f"s_add_u32 m0, {sr(sbase)}, {ldsoff}")
    a("s_nop 0")
    dma(vaddr, srd, soff)
a(f"s_add_u32 {sr(sT2)}, {sr(sA)}, 0x2000")
a(f"s_add_u32 {sr(sT1)}, {sr(sCH)}, 0x1000")
stage(vA, BK, sr(sA), sSTG, 1024, 0); stage(vA, BK, sr(sT2), sSTG, 2048, 1); stage(vH, BK, 0, sSTG, 0, 2)
dsw("ds_write_b128", vZ0, CY, 4); dsw("ds_write_b128", vZ0, CY, 4, 4*HSTR); dsw("ds_write_b128", vZ1, CY, 4, 4096)
stage(vA, BV, sr(sA), sSTG, 3072, 3); stage(vA, BV, sr(sT2), sSTG, 4096, 4)
a("s_waitcnt vmcnt(2)")
for i in range(11):
    for c in range(2): dsr("ds_read_u16_d16_hi", KP + 2*i + c, 1, vSR, (5 + i) * 128 + 2*c)
stage(vHS, HK, sr(sCH), sM0, HB + 3*HSTR + 384, 5); stage(vHS, HK, sr(sT1), sM0, HB + 7*HSTR + 384, 6)
a("s_waitcnt vmcnt(2)")
for i in range(8):
    for c in range(2): dsr("ds_read_u16_d16_hi", VP + 2*i + c, 1, vSR, 3072 + i * 128 + 2*c)
hprio(OPT["ep"])
a("s_waitcnt lgkmcnt(0)")
for j in range(8): a(f"v_pk_mul_f32 {vr(UU+2*j,2)}, {vr(KP+2*j,2)}, {vr(WJ+6,2)}")
for t in (2, 1, 0):
    for j in range(8):
        a(f"v_pk_fma_f32 {vr(UU+2*j,2)}, {vr(KP+2*(j+3-t),2)}, {vr(WJ+2*t,2)}, {vr(UU+2*j,2)}")
for j in range(8): a(f"v_pk_mul_f32 {vr(UU+2*j,2)}, {vr(UU+2*j,2)}, {vr(VP+2*j,2)}")
for c in range(2):
    for i in range(4): cvt(KP + 4*c + i, UU + 2*(7 - 2*i) + c, UU + 2*(6 - 2*i) + c)
hprio(OPT["sp"])
dsw("ds_write_b128", vPW, KP, 4, P0S); dsw("ds_write_b128", vPW, KP + 4, 4, P0S + 4096)
stamp("p0 done")
a(f"s_lshl_b32 {sr(sT0)}, {sr(sDB)}, 18")
a(f"s_sub_u32 {sr(sT1)}, 31, {sr(sTBB)}")
a(f"s_lshl_b32 {sr(sT1)}, {sr(sT1)}, 7")
a(f"s_add_u32 {sr(sT3)}, {sr(sT0)}, {sr(sT1)}")
a(f"s_add_u32 {sr(sT3)}, {sr(sT3)}, {UT}")
a(f"s_add_u32 {sr(sT1)}, {sr(sT3)}, 0x1000")
a("s_waitcnt lgkmcnt(0)")
hbar()
stamp("hb1")
dsr("ds_read_b128", KP, 4, vPR, P0S); dsr("ds_read_b128", KP + 4, 4, vPR, P0S + 4096)
a("s_waitcnt lgkmcnt(1)")
bstore(KP, 4, vPG, WS, sr(sT3), 0, "sc1")
a("s_waitcnt lgkmcnt(0)")
bstore(KP + 4, 4, vPG, WS, sr(sT1), 0, "sc1")
mbox(MB_U, sDB, sTBB, 9)
a("s_waitcnt vmcnt(0)")
hbar()
only_wave(4, lambda: push(1, vFL, vTG, sr(sT0)))
stamp("u pushed")
QG = 56
stage(vA, BQ, sr(sA), sSTG, 5120, 0); stage(vA, BQ, sr(sT2), sSTG, 6144, 0)
for c in range(2):
    for d in (1, 2, 3): dsr("ds_read_b128", HT + 12*c + 4*(d-1), 4, vHW, (4*c + 3)*HSTR - 2*d)
for c in range(2):
    for d in (1, 2, 3):
        a(f"s_waitcnt lgkmcnt(5)")
        dsw("ds_write_b128", vHW, HT + 12*c + 4*(d-1), 4, (4*c + 3 - d)*HSTR)
def wo_init(first, n):
    a(f"s_lshr_b32 {sr(sT0)}, {sr(sTBB)}, 2")
    a(f"s_mul_i32 {sr(sT0)}, {sr(sT0)}, {n // 8 * 4096}")
    if first: a(f"s_add_u32 {sr(sT0)}, {sr(sT0)}, {first * 4096}")
def wo_piece(first, n):
    a(f"s_add_u32 m0, {sr(sM0)}, {sr(sT0)}")
    a(f"s_lshl_b32 {sr(sSX)}, {sr(sT0)}, 2")
    dma(vWO, WO, sr(sSX))
    a(f"s_add_u32 {sr(sT0)}, {sr(sT0)}, 0x1000")
    a(f"s_cmp_eq_u32 {sr(sT0)}, {(first + n) * 4096}")
    a(f"s_cselect_b32 {sr(sT0)}, {first * 4096}, {sr(sT0)}")
a(f"s_lshr_b32 {sr(sT1)}, {sr(sM0)}, 3")
a(f"s_add_u32 {sr(sT3)}, {sr(sT3)}, {sr(sT1)}")
a(f"s_xor_b32 {sr(sT1)}, {sr(sM0)}, 0xc00")
a(f"s_add_u32 {sr(sT2)}, {sr(sCH)}, {sr(sT1)}")
a(f"s_add_u32 {sr(sT2)}, {sr(sT2)}, {UT}")
a(f"s_add_u32 m0, {sr(sT1)}, {UB}")
a("s_waitcnt vmcnt(0)")
for i in range(8): dsr("ds_read_b32", QG + i, 1, vSR, 5120 + i * 128)
if OPT["usl"]: a(f"s_sleep {OPT['usl']}")
if OPT["spoll"] & 1: spoll(sr(sT3), OPT["slp"])
else: poll(vPO, 6, sr(sT3))
dma(vL16, WS, sr(sT2), "sc1")
a(f"s_addk_i32 m0, {USTR}")
a(f"s_add_u32 {sr(sT2)}, {sr(sT2)}, 0x1000")
dma(vL16, WS, sr(sT2), "sc1")
a(f"s_lshl_b32 {sr(sT0)}, {sr(sCT)}, 12")
a(f"s_add_u32 {sr(sCH)}, {sr(sCH)}, {sr(sT0)}")
a(f"s_mov_b32 {sr(sPASS)}, 0")
wo_init(0, 24)
a("s_waitcnt vmcnt(0) lgkmcnt(0)")
hbar()
hprio(OPT["cp"])
stamp("u landed")
a.label("L_conv")
for i in range(8):
    dsr("ds_read_b64", CB + 4*i, 2, vUA, 3584 - 512*i); dsr("ds_read_b64", CB + 4*i + 2, 2, vUA, 3584 - 512*i + 8)
for ai in range(8):
    dsr("ds_read_b128", CA, 4, vHA, 512*ai)
    if ai < 6: wo_piece(0, 24)
    a("s_waitcnt lgkmcnt(0)")
    for bi in range(8 - ai): mfma16(CY + 4*(ai + bi), CA, CB + 4*bi, CY + 4*(ai + bi))
if OPT["cp"] != OPT["ep"]: hprio(OPT["ep"])
a(f"v_add_u32 {vr(vUA)}, 64, {vr(vUA)}")
a(f"v_add_u32 {vr(vHA)}, 64, {vr(vHA)}")
if OPT["cp"] != OPT["ep"]: hprio(OPT["cp"])
a(f"s_add_u32 {sr(sPASS)}, {sr(sPASS)}, 1")
a(f"s_cmp_lg_u32 {sr(sPASS)}, 4")
a("s_cbranch_scc1 L_conv")
stamp("conv done")
hprio(OPT["sp"])
a(f"s_lshl_b32 {sr(sT0)}, {sr(sTT)}, 11")
a(f"s_add_u32 {sr(sCH)}, {sr(sCH)}, {sr(sT0)}")
a(f"s_add_u32 {sr(sCH)}, {sr(sCH)}, {YT}")
a(f"s_cmp_lg_u32 {sr(sTT)}, 0")
a("s_cbranch_scc1 L_red1")
def reduce_store(keep, send):
    for j in range(4): dsw("ds_write_b128", vRW, send + 4*j, 4, 1024*j)
    a("s_waitcnt vmcnt(0) lgkmcnt(0)")
    hbar()
    for j in range(4): dsr("ds_read_b128", CB + 4*j, 4, vRR, 1024*j)
    hprio(OPT["ep"])
    a("s_waitcnt lgkmcnt(0)")
    for j in range(8): a(f"v_pk_add_f32 {vr(CB + 2*j, 2)}, {vr(CB + 2*j, 2)}, {vr(keep + 2*j, 2)}")
reduce_store(CY, CY + 16)
a("s_branch L_red2")
a.label("L_red1")
reduce_store(CY + 16, CY)
a.label("L_red2")
for j in range(8): cvt(CY + j, CB + 2*j, CB + 2*j + 1)
hprio(OPT["sp"])
for j in range(4): bstore(CY + 2*j, 2, vY8, WS, sr(sCH), 512*j, "sc1")
WOF = 128
def wo_read(p, part): dsr("ds_read_b64_tr_b16", WOF + 4*p + 2*part, 2, vWR0 + (p >> 4), ((p & 15) * 16 + 8*part) * 256)
for p in range(OPT["wre"]): wo_read(p, 0); wo_read(p, 1)
mbox(MB_Y, sDB, sTBB, 9)
a("s_waitcnt vmcnt(0)")
arrive(12, lambda: bstore(vTG, 1, vFL, WS, sr(sT0), flags="sc1"))
wo_init(24, 8)
a(f"s_mov_b32 {sr(sT1)}, 0")
a.label("L_wo")
wo_piece(24, 8)
a(f"s_add_u32 {sr(sT1)}, {sr(sT1)}, 1")
a(f"s_cmp_lg_u32 {sr(sT1)}, 8")
a(f"s_waitcnt vmcnt({OPT['wpace']})")
a("s_cbranch_scc1 L_wo")
a(f"s_lshr_b32 {sr(sT1)}, {sr(sM0)}, 3")
a(f"s_add_u32 {sr(sT3)}, {sr(sT3)}, {sr(sT1)}")
if OPT["ysl"]: a(f"s_sleep {OPT['ysl']}")
if OPT["spoll"] & 1: spoll(sr(sT3), OPT["slp"])
else: poll(vPO, 6, sr(sT3))
a(f"s_lshl_b32 {sr(sT0)}, {sr(sDB)}, 18")
a(f"s_lshl_b32 {sr(sT1)}, {sr(sTBB)}, 7")
a(f"s_add_u32 {sr(sT0)}, {sr(sT0)}, {sr(sT1)}")
a(f"s_add_u32 m0, {sr(sM0)}, {YB}")
a(f"s_add_u32 {sr(sT0)}, {sr(sT0)}, {YT}")
dma(vYS, WS, sr(sT0), "sc1")
a(f"s_add_u32 m0, {sr(sM0)}, {YB + 4096}")
a(f"s_add_u32 {sr(sT0)}, {sr(sT0)}, 0x1000")
dma(vYS, WS, sr(sT0), "sc1")
a(f"s_lshr_b32 {sr(sT0)}, {sr(sTBB)}, 2")
a(f"s_lshl3_add_u32 {sr(sSX)}, {sr(sHQ)}, {sr(sT0)}")
a(f"s_lshl_b32 {sr(sSX)}, {sr(sSX)}, 16")
a(f"s_and_b32 {sr(sT1)}, {sr(sTBB)}, 3")
a(f"s_lshl2_add_u32 {sr(sT1)}, {sr(sT1)}, {sr(sHH)}")
a(f"s_lshl_b32 {sr(sT1)}, {sr(sT1)}, 6")
a(f"s_add_u32 {sr(sSX)}, {sr(sSX)}, {sr(sT1)}")
a(f"s_lshl_b32 {sr(sA)}, {sr(sTBB)}, 17")
a(f"s_lshl_b32 {sr(sT2)}, {sr(sDB)}, 7")
a(f"s_add_u32 {sr(sA)}, {sr(sA)}, {sr(sT2)}")
a(f"s_mov_b32 {sr(sPASS)}, 0")
a("s_waitcnt vmcnt(0)")
if not OPT["hst"]: stamp("staged")
a("s_barrier")
if OPT["enc"]: stamp("B7")
GQ, GY, YY = 64, 80, 96
dsr("ds_read_b128", YY, 4, vYR); dsr("ds_read_b128", YY + 4, 4, vYR, 4096)
gate = []
for j in range(8): gate += [lambda j=j: lo(GQ + 2*j, QG + j), lambda j=j: hi(GQ + 2*j + 1, QG + j)]
gate.append(lambda: a("s_waitcnt lgkmcnt(15)"))
for c in range(2):
    for i in range(4): gate += [lambda c=c, i=i: lo(GY + 4*i + c, YY + 4*c + i), lambda c=c, i=i: hi(GY + 4*i + 2 + c, YY + 4*c + i)]
for j in range(8): gate.append(lambda j=j: a(f"v_pk_fma_f32 {vr(GY+2*j,2)}, {vr(UU+2*j,2)}, {vr(DP,2)}, {vr(GY+2*j,2)}"))
for j in range(8): gate.append(lambda j=j: a(f"v_pk_mul_f32 {vr(GY+2*j,2)}, {vr(GY+2*j,2)}, {vr(GQ+2*j,2)}"))
for j in range(8): gate.append(lambda j=j: cvt(QG + j, GY + 2*j, GY + 2*j + 1))
for p in range(OPT["wre"], 32):
    for part in range(2):
        wo_read(p, part)
        if gate: gate.pop(0)()
for g in gate: g()
for d, r in ((8, vL16), (9, vGO), (10, vOO)): a(f"v_mov_b32 v{d}, {vr(r)}")
a(f"v_xor_b32 v4, 16, {vr(vTW)}")
gfl = OPT["gfl"].replace("_", " ")
if not OPT["hst"]: stamp("gate done")
OFR, PA = 64, [16, 32, 96, 112]
a.label("L_pw")
dsr("ds_read_b32", 6, 1, vCNT, 4)
a("s_waitcnt lgkmcnt(0)")
a(f"v_readfirstlane_b32 {sr(sT1)}, v6")
a(f"s_andn2_b32 {sr(sT1)}, {sr(sT1)}, {sr(sPASS)}")
a("s_cbranch_scc0 L_pw")
a(f"s_or_b32 {sr(sPASS)}, {sr(sPASS)}, {sr(sT1)}")
for q in range(4):
    L = newlab("pq")
    a(f"s_bitcmp1_b32 {sr(sT1)}, {q}")
    a(f"s_cbranch_scc0 {L}")
    for p in range(8): dsr("ds_read_b128", OFR + 4*p, 4, 8, 1024*(8*q + p))
    a(f"s_add_u32 {sr(sT0)}, {sr(sA)}, {0x1000 * q}")
    for p in range(8):
        a(f"s_waitcnt lgkmcnt({7 - p})")
        mfma32(PA[q], WOF + 4*(8*q + p), OFR + 4*p, None if p == 0 else PA[q])
        if p in (1, 3): bstore(QG + 2*q + (p >> 1), 1, 9, OUT, sr(sT0), 1024 * p, gfl)
    a.label(L)
a(f"s_cmp_lg_u32 {sr(sPASS)}, 15")
a("s_cbranch_scc1 L_pw")
set_stamp(12)
if not OPT["hst"]: stamp("proj done")
a(f"s_or_b32 {sr(sT0)}, s2, {sr(sHH)}")
a("s_cbranch_scc1 L_noep")
a(f"v_mov_b32 v6, {EP}")
a("s_mov_b64 exec, 1")
bstore(vTG, 1, 6, WS, 0, flags="sc1")
a("s_mov_b64 exec, -1")
a.label("L_noep")
a("s_nop 7")
pfl = OPT["pfl"].replace("_", " ")
for h in range(2):
    for j in range(4*h, 4*h + 4):
        a(f"v_pk_add_f32 {vr(PA[0]+2*j,2)}, {vr(PA[0]+2*j,2)}, {vr(PA[1]+2*j,2)}")
        a(f"v_pk_add_f32 {vr(PA[2]+2*j,2)}, {vr(PA[2]+2*j,2)}, {vr(PA[3]+2*j,2)}")
    for j in range(4*h, 4*h + 4): a(f"v_pk_add_f32 {vr(PA[0]+2*j,2)}, {vr(PA[0]+2*j,2)}, {vr(PA[2]+2*j,2)}")
    for j in range(4*h, 4*h + 4): cvt(64 + j, PA[0] + 2*j, PA[0] + 2*j + 1)
    dsw("ds_write_b128", 4 if h else vTW, 64 + 4*h, 4)
dsr("ds_read_b128", 72, 4, vTR); dsr("ds_read_b128", 76, 4, vTR, 1024)
a(f"s_add_u32 {sr(sT0)}, {sr(sSX)}, 0x8000")
a("s_waitcnt lgkmcnt(1)")
bstore(72, 4, 10, OUT, sr(sSX), 0, pfl)
a("s_waitcnt lgkmcnt(0)")
bstore(76, 4, 10, OUT, sr(sT0), 0, pfl)
if DIAG or OPT["enc"] or OPT["spin"]: finish(13 if DIAG == 1 else 11, True)
else: a("s_endpgm")

a.label("L_main")
if OPT["wpf"]:
    n = {1: 12, 2: 4}[OPT["wpf"]]
    a(f"s_lshl2_add_u32 {sr(sT0)}, {sr(sTB)}, {sr(sW)}")
    a(f"s_mul_i32 {sr(sT0)}, {sr(sT0)}, 12*1024")
    a(f"s_lshl_b32 {sr(sT1)}, {sr(sHQ)}, 7")
    a(f"s_add_u32 {sr(sT0)}, {sr(sT0)}, {sr(sT1)}")
    a("v_and_b32 v6, 63, v0")
    a(f"v_min_u32 v6, {n - 1}, v6")
    a(f"v_mul_u32_u24 v6, {12 // n * 1024}, v6")
    a(f"v_add_u32 v6, {sr(sT0)}, v6")
a("s_waitcnt lgkmcnt(0)")
if OPT["wpf"]: a(f"global_load_dword v57, v6, {sr(W,2)}")
common_setup()
XF, WF, ACK, ACV, ACQ = 128, 96, 64, 80, 64
vXR, vWR, vXB, vWB, vXT = 50, 51, 52, 53, 54
O0, O1, S0, S1, C0, C1 = 16, 32, 48, 64, 80, 96
Q0, Q1 = 112, 116
vIDX, vKA, vVA = 8, 9, 10
vCON = 12
vKS, vVS, vKL, vVL, vQW, vQR = 2, 3, 5, 11, 14, 15
RING = 128
def rK(i): return RING + 12 * (i & 7)
def rVa(i): return RING + 12 * (i & 7) + 4
def rVb(i): return RING + 12 * (i & 7) + 8
a("v_bfe_u32 v6, v1, 2, 2")
a("v_lshrrev_b32 v32, 5, v1")
a("v_lshl_add_u32 v33, v32, 3, v6")
a("v_lshrrev_b32 v6, 1, v6")
a(f"v_xor_b32 v6, {sr(sCT)}, v6")
a("v_lshlrev_b32 v6, 6, v6")
a("v_lshl_add_u32 v33, v33, 7, v6")
a("v_and_b32 v6, 16, v1")
a("v_lshl_add_u32 v33, v6, 1, v33")
a("v_and_b32 v6, 3, v1")
a(f"v_lshl_add_u32 {vr(vWR)}, v6, 3, v33")
a("v_and_b32 v6, 31, v1")
a("v_xor_b32 v33, v32, v6")
a("v_and_b32 v33, 15, v33")
a("v_lshlrev_b32 v33, 4, v33")
a(f"v_lshl_add_u32 v6, {sr(sTT)}, 5, v6")
a(f"v_lshl_add_u32 {vr(vXR)}, v6, 8, v33")
a("v_and_b32 v33, 0x33, v1")
a("v_and_b32 v7, 4, v1")
a("v_lshl_or_b32 v33, v7, 1, v33")
a("v_and_b32 v7, 8, v1")
a("v_lshrrev_b32 v7, 1, v7")
a("v_or_b32 v6, v7, v33")
a(f"v_lshlrev_b32 {vr(vKS)}, 4, v6")
a("v_and_b32 v7, 15, v1")
a("v_lshlrev_b32 v7, 4, v7")
a("v_lshl_add_u32 v33, v32, 8, v7")
a("v_bfe_u32 v6, v1, 4, 1")
a(f"v_lshl_add_u32 {vr(vVS)}, v6, 17, v33")
a(f"s_lshl2_add_u32 {sr(sT0)}, {sr(sCT)}, {sr(sTT)}")
a(f"s_lshl_b32 {sr(sT1)}, {sr(sT0)}, 11")
a(f"s_add_u32 {sr(sT1)}, {sr(sT1)}, {KVL}")
a(f"v_add_u32 {vr(vKL)}, {sr(sT1)}, {vr(vKS)}")
a("v_lshl_add_u32 v6, v6, 12, v33")
a(f"v_add_u32 {vr(vVL)}, {sr(sT1)}, v6")
a(f"s_lshl_b32 {sr(sT0)}, {sr(sT0)}, 10")
a(f"v_lshl_add_u32 {vr(vQW)}, v1, 4, {sr(sT0)}")
a(f"s_lshl_b32 {sr(sT0)}, {sr(sHH)}, 11")
a(f"v_lshl_add_u32 {vr(vQR)}, v1, 4, {sr(sT0)}")
a(f"s_lshl2_add_u32 {sr(sT0)}, {sr(sHQ)}, {sr(sHH)}")
a(f"s_lshl_b32 {sr(sT0)}, {sr(sT0)}, 17")
a(f"v_lshl_add_u32 {vr(vKA)}, v1, 4, {sr(sT0)}")
a(f"v_add_u32 {vr(vVA)}, {sr(sT0)}, v33")
a(f"s_lshl_b32 {sr(sT0)}, {sr(sHH)}, 12")
a(f"s_add_u32 {sr(sT0)}, {sr(sT0)}, {KVL}")
a(f"v_lshl_add_u32 v48, v1, 4, {sr(sT0)}")
a(f"v_add_u32 v49, {sr(sT0)}, v33")
a(f"v_mov_b32 {vr(vIDX)}, 0xdddddddd")
a(f"s_mov_b32 {sr(sHALF)}, 0xffff"); a(f"s_mov_b32 {sr(sHALF+1)}, {sr(sHALF)}")
a(f"s_mov_b32 {sr(sAND)}, 0x1ffff")
a(f"s_mov_b32 {sr(sREDO)}, 0")
a("v_and_b32 v7, 0x1b, v1"); a("v_cmp_eq_u32 vcc, 16, v7")
a("v_mov_b32 v6, 0x3f803f80")
a(f"s_add_u32 {sr(sOFF)}, {sr(sTB)}, 1")
a(f"v_cndmask_b32 {vr(vCON)}, 0, v6, vcc")
a(f"v_cndmask_b32 {vr(vCON+1)}, 0, v6, vcc")
a(f"s_and_b32 {sr(sOFF)}, {sr(sOFF)}, 31")
a(f"s_lshl_b32 {sr(sOFF)}, {sr(sOFF)}, 12")
for j in range(8): a(f"v_mov_b64 {vr(O0+2*j,2)}, 0")
a(f"s_lshl1_add_u32 {sr(sT0)}, {sr(sHQ)}, {sr(sCT)}")
a(f"s_lshl_b32 {sr(sT0)}, {sr(sT0)}, 18")
a(f"s_lshl1_add_u32 {sr(sT1)}, {sr(sTB)}, {sr(sTT)}")
a(f"s_lshl_b32 {sr(sT1)}, {sr(sT1)}, 11")
a(f"s_add_u32 {sr(sT3)}, {sr(sT0)}, {sr(sT1)}")
a(f"s_add_u32 {sr(sT2)}, {sr(sT3)}, 0x20000")
if OPT["mbw"]:
    a(f"s_lshr_b32 s14, {sr(sTB)}, 3"); a(f"s_lshl2_add_u32 s14, {sr(sHQ)}, s14"); a(f"s_lshl2_add_u32 s14, s14, {sr(sW)}")
    a("s_lshl_b32 s14, s14, 7"); a(f"s_add_u32 s14, s14, {MB_KV}")
    a(f"s_load_dword s15, {sr(WS,2)}, s14")
    if OPT["mbw"] & 2:
        a(f"s_lshr_b32 s16, {sr(sTBB)}, 2"); a(f"s_lshl3_add_u32 s16, {sr(sHQ)}, s16"); a(f"s_lshl2_add_u32 s16, s16, {sr(sW)}")
        a("s_lshl_b32 s16, s16, 7"); a(f"s_add_u32 s16, s16, {MB_O}")
        a(f"s_load_dword s17, {sr(WS,2)}, s16")
    if OPT["mbw"] & 4:
        a(f"s_lshl2_add_u32 s18, {sr(sDB)}, {sr(sW)}"); a("s_lshl_b32 s18, s18, 7"); a(f"s_add_u32 s19, s18, {MB_Y}"); a(f"s_add_u32 s18, s18, {MB_U}")
        a(f"s_load_dword s20, {sr(WS,2)}, s18"); a(f"s_load_dword s21, {sr(WS,2)}, s19")
if OPT["tlb"]:
    for r, o in ((14, sT3), (15, sT2)): a(f"s_load_dword s{r}, {sr(WS,2)}, {sr(o)}")
if OPT["prew"] >= 3:
    a("s_mov_b64 exec, 1")
    if OPT["prew"] == 3: bstore(O0, 4, vKS, WS, sr(sT3), 0, "sc1")
    if OPT["prew"] == 4: bload(56, 1, vKS, WS, sr(sT3), 0, "sc1")
    if OPT["prew"] == 5: bstore(O0, 4, vKS, WS, sr(sT3), 0, "")
    a("s_mov_b64 exec, -1")
    a("s_waitcnt vmcnt(1) lgkmcnt(0)")
elif OPT["prew"]:
    fl = {1: "sc1", 2: ""}[OPT["prew"]]
    bstore(O0, 4, vKS, WS, sr(sT3), 0, fl); bstore(O0, 4, vKS, WS, sr(sT2), 0, fl)
    bstore(O0, 4, vVS, WS, sr(sT3), 1024, fl); bstore(O0, 4, vVS, WS, sr(sT3), 1536, fl)
    a("s_waitcnt vmcnt(4) lgkmcnt(0)")
else: a("s_waitcnt lgkmcnt(0)")
make_tag()

def kv_gemm():
    def rd(i):
        c, s = i >> 3, i & 7
        if s == 0:
            a(f"v_add_u32 {vr(vXB)}, {XB[c]}, {vr(vXR)}")
            a(f"v_add_u32 {vr(vWB)}, {SLOT[c % 3] + 16*K1}, {vr(vWR)}")
        f = WF + 8*(i & 3); t = vXT + (s & 1)
        if s: a(f"v_xor_b32 {vr(t)}, {32*s}, {vr(vXB)}")
        if s & 3 == 0:
            a("s_barrier")
            if i == 0: stamp("B1")
            if i == 28: stamp("B4")
        dsr("ds_read_b128", XF + 4*i, 4, t if s else vXB)
        dsr("ds_read_b64_tr_b16", f, 2, vWB, 2048*s); dsr("ds_read_b64_tr_b16", f + 2, 2, vWB, 2048*s + 512)
    def rdv(i):
        s = i & 7; f = WF + 8*(i & 3) + 4
        dsr("ds_read_b64_tr_b16", f, 2, vWB, 16*K1 + 2048*s); dsr("ds_read_b64_tr_b16", f + 2, 2, vWB, 16*K1 + 2048*s + 512)
    for lo_, hi_, D in ((0, 28, OPT["gd"]), (28, 32, 3)):
        for i in range(lo_, lo_ + D): rd(i); rdv(i)
        for i in range(lo_, hi_):
            x, f = XF + 4*i, WF + 8*(i & 3)
            n = 5 * (min(hi_, i + D) - i - 1)
            a(f"s_waitcnt lgkmcnt({n + 2})")
            mfma32(ACK, f, x, None if i == 0 else ACK)
            if i + D < hi_: rd(i + D); n += 3
            a(f"s_waitcnt lgkmcnt({n})")
            mfma32(ACV, x, f + 4, None if i == 0 else ACV)
            if i + D < hi_: rdv(i + D)
def q_gemm(side):
    def rd(i):
        c, s = i >> 3, i & 7
        if s == 0: a(f"v_add_u32 {vr(vXT + (c & 1))}, {WQ[c]}, {vr(vWR)}")
        if OPT["late"] and i == 32 - 8 * OPT["late"]: a("s_barrier")
        if i == 16 and OPT["two"]:
            a("s_waitcnt vmcnt(0)"); xstamp(10, "acked"); a("s_barrier"); stamp("B5")
        dsr("ds_read_b64_tr_b16", WF + 4*(i & 7), 2, vXT + (c & 1), 2048*s)
        dsr("ds_read_b64_tr_b16", WF + 4*(i & 7) + 2, 2, vXT + (c & 1), 2048*s + 512)
    D = 4
    for i in range(D): rd(i)
    for i in range(32):
        extra = sum(side[j][1] for j in range(max(0, i - D), i) if j in side)
        a(f"s_waitcnt lgkmcnt({2 * (min(32, i + D) - i - 1) + extra})")
        mfma32(ACQ, WF + 4*(i & 7), XF + 4*i, None if i == 0 else ACQ)
        if i + D < 32: rd(i + D)
        if i in side: side[i][0]()
def vconst(i): return [f"v_mov_b64 {vr(rVa(i) + 2*j, 2)}, {vr(vCON,2)}" for j in range(4)]
sGB = 12
def gload(dst, vaddr, off): a(f"global_load_dwordx4 {vr(dst,4)}, {vr(vaddr)}, {sr(sGB,2)} offset:{off} " + OPT["ldfl"].replace("_", " "))
def adv1():
    a(f"s_add_u32 {sr(sOFF)}, {sr(sOFF)}, 0x1000")
    a(f"s_and_b32 {sr(sOFF)}, {sr(sOFF)}, {sr(sAND)}")
def adv2():
    a(f"s_add_u32 {sr(sGB)}, {sr(WS)}, {sr(sOFF)}")
    a(f"s_addc_u32 {sr(sGB+1)}, {sr(WS+1)}, 0")
def ring_fill(tiles):
    for i in tiles:
        o = 2048 * (i & 1)
        if not o: adv2()
        gload(rK(i), vKA, o)
        a(f"s_mov_b64 exec, {sr(sHALF,2)}")
        gload(rVa(i), vVA, o + 1024); gload(rVb(i), vVA, o + 1536)
        a("s_mov_b64 exec, -1")
        if o: adv1()
def rowmax(S, m, acc):
    k = 0
    if not acc:
        a(f"v_max3_f32 {vr(m)}, {vr(S)}, {vr(S+1)}, {vr(S+2)}"); k = 3
    while k < 16:
        a(f"v_max3_f32 {vr(m)}, {vr(m)}, {vr(S+k)}, {vr(S+min(k+1,15))}"); k += 2

kv_gemm()
a(f"v_mov_b32 v56, {CNT}")
dsw("ds_write_b128", 56, O0, 4)
a("s_nop 7")
for j in range(8): cvt(32 + j, ACK + 2*j, ACK + 2*j + 1)
kvfl = OPT["kvfl"].replace("_", " ")
bstore(32, 4, vKS, WS, sr(sT3), 0, kvfl); bstore(36, 4, vKS, WS, sr(sT2), 0, kvfl)
for j in range(8): cvt(40 + j, ACV + 2*j, ACV + 2*j + 1)
bstore(40, 4, vVS, WS, sr(sT3), 1024, kvfl); bstore(44, 4, vVS, WS, sr(sT3), 1536, kvfl)
dsw("ds_write_b128", vKL, 32, 4); dsw("ds_write_b128", vKL, 36, 4, 4096)
dsw("ds_write_b128", vVL, 40, 4, 1024); dsw("ds_write_b128", vVL, 44, 4, 1536)
xstamp(9, "kv stored")
mbox(MB_KV, sHQ, sTB, 11)
a(f"s_lshr_b32 {sr(sT1)}, {sr(sTB)}, 3")
a(f"s_lshl_b32 {sr(sT1)}, {sr(sT1)}, 9")
a(f"s_add_u32 {sr(sT3)}, {sr(sT3)}, {sr(sT1)}")
if OPT["two"]: a("s_waitcnt lgkmcnt(0)"); a("s_barrier"); xstamp(11, "B5a")
else: a("s_waitcnt vmcnt(0) lgkmcnt(0)"); xstamp(10, "acked"); a("s_barrier"); stamp("B5")
NK = 80
def lines(ls): return (lambda: [a(l) for l in ls], 0)
def own_k():
    for i in range(2): dsr("ds_read_b128", rK(i), 4, 48, 2048*i)
def own_v(i):
    a(f"s_mov_b64 exec, {sr(sHALF,2)}")
    dsr("ds_read_b128", rVa(i), 4, 49, 2048*i + 1024); dsr("ds_read_b128", rVb(i), 4, 49, 2048*i + 1536)
    a("s_mov_b64 exec, -1")
def ack():
    a("s_waitcnt vmcnt(0)")
    xstamp(10, "acked")
    a("s_mov_b64 exec, 1"); a("ds_add_rtn_u32 v7, v56, v7 offset:8"); a("s_mov_b64 exec, -1")
def signal():
    L = newlab("sig")
    a("v_readfirstlane_b32 s14, v7"); a("s_cmp_lg_u32 s14, 3"); a(f"s_cbranch_scc1 {L}")
    push(4, 2, 3, sr(sT0))
    a.label(L)
A_ = OPT["ackat"]
side = {0: (lambda: (a("v_and_b32 v6, 0xfffffe00, v48"), dsr("ds_read_b128", NK, 4, 6)), 1),
        2: lines(["v_bfe_u32 v6, v1, 3, 2", "v_and_b32 v5, 7, v1", "v_lshlrev_b32 v5, 2, v5", "v_lshl_add_u32 v5, v6, 7, v5"]),
        6: lines([f"v_xor_b32 {vr(NK+j)}, 0x80008000, {vr(NK+j)}" for j in range(4)]),
        8: lines(vconst(0)), 9: lines(vconst(1)), 10: (own_k, 2), 11: (lambda: own_v(0), 2), 12: (lambda: own_v(1), 2),
        21: lines(vconst(2)), 22: lines(vconst(3)), 23: lines(vconst(4)), 24: lines(vconst(5)), 25: lines(vconst(6)), 26: lines(vconst(7)),
        OPT["pollat"]: (lambda: only_wave(0, lambda: bload(4, 1, 5, WS, sr(sT3), flags="sc1")), 0),
        28: lines([f"v_mov_b64 {vr(O1+2*j,2)}, 0" for j in range(4)]), 29: lines([f"v_mov_b64 {vr(O1+2*j,2)}, 0" for j in range(4, 8)])}
if OPT["spoll"] & 4: del side[OPT["pollat"]], side[2]
q_gemm(side)
if OPT["prio"]: a("s_setprio 1")
a(f"s_mov_b32 {sr(sT2)}, {f2h(0.25 * math.log2(math.e))}")
a(f"s_mov_b32 {sr(sT1)}, {sr(sT2)}")
a(f"v_mov_b32 {vr(vCNT)}, v56"); a(f"v_mov_b32 {vr(vONE)}, 1"); a("s_nop 0")
a(f"s_mov_b32 {sr(sPASS)}, 0")
a("s_nop 4")
for j in range(8): a(f"v_pk_mul_f32 {vr(ACQ+2*j,2)}, {vr(ACQ+2*j,2)}, {sr(sT1,2)}")
for j in range(8): cvt(120 + j, ACQ + 2*j, ACQ + 2*j + 1)
dsw("ds_write_b128", vQW, 120, 4, QF); dsw("ds_write_b128", vQW, 124, 4, QF + 2048)
for j in range(4): a(f"v_mov_b64 {vr(S1+8+2*j,2)}, 0")
for j in range(2): a(f"v_mov_b64 {vr(S1+2*j,2)}, {vr(NK+2*j,2)}")
stamp("q done")
def kvpoll():
    if OPT["pollat"] < 32: a("s_waitcnt vmcnt(0)"); poll(5, 4, sr(sT3), True, 1)
    else:
        if OPT["ksl"]: a(f"s_sleep {OPT['ksl']}")
        poll(5, 4, sr(sT3), False, 1)
if not OPT["spoll"] & 4: only_wave(0, kvpoll)
a("s_waitcnt lgkmcnt(0)")
a("s_barrier")
if not OPT["b6a"]: stamp("B6")
PD = OPT["pd"]
dsr("ds_read_b128", Q0, 4, vQR, QF); dsr("ds_read_b128", Q1, 4, vQR, QF + 1024)
if not OPT["b6a"]: ring_fill([2])
a("s_waitcnt lgkmcnt(0)")
mfma32(C0, S1, Q0, None)
mfma32(S0, rK(0), Q0, C0)
mfma32(C1, S1, Q1, None)
if OPT["b6a"]: a("s_barrier"); stamp("B6"); ring_fill([2])
ring_fill(range(3, PD - 2 * OPT["cu"]))
a("s_mov_b64 exec, 1"); a(f"ds_add_u32 v2, {vr(vONE)}"); a("s_mov_b64 exec, -1")
a.label("L_fill")
stamp("loop start")
def E(S, x, y):
    for k in range(x, y + 1): a(f"v_exp_f32 {vr(S+k)}, {vr(S+k)}")
def PV(O, V, S): a(f"v_smfmac_f32_32x32x32_bf16 {vr(O,16)}, {vr(V,4)}, {vr(S,8)}, {vr(vIDX)}")
def iteration(i, last, catch=False):
    ld = not last or i + PD < 8
    t = i + PD if not catch else PD - 2 + 2 * i
    o = 2048 * (t & 1)
    E(S0, 0, 1)
    PV(O1, rVb(i-1), S1 + 8)
    if ld:
        a(f"s_mov_b64 exec, {sr(sHALF,2)}")
        gload(rVa(t), vVA, o + 1024); gload(rVb(t), vVA, o + 1536)
        a("s_mov_b64 exec, -1")
    E(S0, 2, 5)
    mfma32(S1, rK(i), Q1, C1)
    if ld: gload(rK(t), vKA, o)
    else: a("s_nop 0")
    E(S0, 6, 9)
    PV(O0, rVa(i), S0)
    if o and ld: adv1()
    E(S0, 10, 15)
    E(S1, 0, 1)
    PV(O0, rVb(i), S0 + 8)
    if catch:
        adv2()
        if i: a(f"s_waitcnt vmcnt({3 * (PD - 2)})")
    elif not (last and i == 7): a(f"s_waitcnt vmcnt({3 * (PD - 1) if ld else 18 - 3 * i})")
    if i == 7 and not last: a(f"s_add_u32 {sr(sPASS)}, {sr(sPASS)}, 1")
    E(S1, 2, 5)
    if not (last and i == 7):
        mfma32(S0, rK(i+1), Q0, C0)
        if catch: gload(rK(t + 1), vKA, 0)
        elif i == 7: a(f"s_cmp_lg_u32 {sr(sPASS)}, 7")
        else: a("s_nop 0")
    E(S1, 6, 9)
    PV(O1, rVa(i), S1)
    if catch:
        a(f"s_mov_b64 exec, {sr(sHALF,2)}")
        gload(rVa(t + 1), vVA, 1024); gload(rVb(t + 1), vVA, 1536)
        a("s_mov_b64 exec, -1")
    elif o and ld: adv2()
    if OPT["pt"] and i == 1: a("s_memrealtime s[92:93]")
    if OPT["pt"] and i == 3: a("s_waitcnt lgkmcnt(0)"); a(f"s_mov_b32 m0, {sr(sPASS)}"); a("v_writelane_b32 v15, s92, m0")
    E(S1, 10, 15)
if OPT["cu"]:
    iteration(0, False, True); iteration(1, False, True)
    a("s_branch L_loop2")
a(".p2align 6")
a.label("L_loop")
for i in range(8):
    if i == 2: a.label("L_loop2")
    iteration(i, False)
a("s_cbranch_scc1 L_loop")
for i in range(8): iteration(i, True)
a("v_lshlrev_b32 v4, 4, v1")
a(f"v_rcp_f32 v6, {vr(O0+8)}")
PV(O1, rVb(7), S1 + 8)
stamp("loop end")
a(f"s_mov_b32 {sr(sT0)}, {f2h(2.0**40)}")
a(f"s_lshl2_add_u32 {sr(sT3)}, {sr(sHQ)}, {sr(sHH)}")
a(f"s_lshl_b32 {sr(sSX)}, {sr(sTB)}, 6")
a(f"s_add_u32 {sr(sSX)}, {sr(sSX)}, {sr(sT3)}")
a(f"s_lshl_b32 {sr(sSX)}, {sr(sSX)}, 10")
a(f"s_add_u32 {sr(sSX)}, {sr(sSX)}, {OF}")
a(f"s_add_u32 {sr(sSW)}, {sr(sSX)}, 0x8000")
for j in range(8): a(f"v_mul_f32 {vr(S1+j)}, v6, {vr(O0+j)}")
a(f"v_rcp_f32 v7, {vr(O1+8)}")
a(f"v_cmp_nle_f32 vcc, {vr(O0+8)}, {sr(sT0)}")
a(f"v_cmp_nle_f32 {sr(sT1,2)}, {vr(O1+8)}, {sr(sT0)}")
for j in range(4): cvt(S0 + j, S1 + 2*j, S1 + 2*j + 1)
a(f"s_or_b64 vcc, vcc, {sr(sT1,2)}")
a("s_cbranch_vccnz L_fallback")
a.label("L_attn_done")
bstore(S0, 4, 4, WS, sr(sSX), 0, "sc1")
for j in range(8): a(f"v_mul_f32 {vr(S1+j)}, v7, {vr(O1+j)}")
for j in range(4): cvt(S0 + 4 + j, S1 + 2*j, S1 + 2*j + 1)
bstore(S0 + 4, 4, 4, WS, sr(sSW), 0, "sc1")
a("v_lshlrev_b32 v6, 9, v1")
a(f"v_mov_b32 v7, {sr(sTAG)}")
a("s_barrier")
a(f"s_lshr_b32 {sr(sT0)}, {sr(sTBB)}, 2")
a(f"s_lshl3_add_u32 {sr(sSX)}, {sr(sHQ)}, {sr(sT0)}")
a(f"s_lshl2_add_u32 {sr(sSX)}, {sr(sSX)}, {sr(sHH)}")
a(f"s_lshl_b32 {sr(sA)}, {sr(sSX)}, 7")
a(f"s_add_u32 {sr(sA)}, {sr(sA)}, {MB_O}")
a(f"s_mov_b32 {sr(sHALF)}, {sr(sTAG)}"); a(f"s_mov_b32 {sr(sHALF+1)}, {sr(sTAG)}")
def o_push():
    a(f"s_mov_b32 {sr(sT2)}, {sr(sT3)}")
    mbox(MB_O, sTB, sT2, 10)
    a(f"s_lshl_b32 {sr(sSX)}, {sr(sSX)}, 13")
    a(f"s_add_u32 {sr(sSX)}, {sr(sSX)}, {OF}")
    a(f"s_add_u32 {sr(sSW)}, {sr(sSX)}, 0x1000")
    a(f"s_lshl_b32 m0, {sr(sHH)}, 13")
    a(f"v_lshlrev_b32 {vr(vONE)}, {sr(sHH)}, {vr(vONE)}")
    a("s_mov_b64 exec, 3")
    a("s_waitcnt vmcnt(0)")
    bstore(7, 1, 6, WS, sr(sT0), flags="sc1")
    a("s_mov_b64 exec, -1")
    stamp("o pushed")
spoll(sr(sA), 1, o_push)
xstamp(12, "o flags")
for i in range(4):
    a(f"buffer_load_dwordx4 v4, {sr(WS,4)}, {sr(sSX)} offen offset:{1024*i} sc1 lds")
a("s_addk_i32 m0, 0x1000")
a("s_nop 0")
for i in range(4):
    a(f"buffer_load_dwordx4 v4, {sr(WS,4)}, {sr(sSW)} offen offset:{1024*i} sc1 lds")
a("s_mov_b64 exec, 1")
a("s_waitcnt vmcnt(0)")
a(f"ds_or_b32 {vr(vCNT)}, {vr(vONE)} offset:4")
if OPT["pt"]:
    a("s_waitcnt lgkmcnt(0)"); a("s_mov_b32 s94, s88")
    for i in range(8): a(f"v_readlane_b32 s{76 + 2*i}, v15, {i}")
    a("s_mov_b32 s92, s94")
if DIAG or OPT["enc"] or OPT["spin"]: finish(13 if DIAG == 1 else 11)
else: a("s_endpgm")
a.label("L_fallback")
a(f"s_cmp_lg_u32 {sr(sREDO)}, 0")
a("s_cbranch_scc1 L_attn_done")
a(f"s_mov_b32 {sr(sREDO)}, 1")
a(f"s_mov_b32 {sr(sOFF)}, 0")
a("v_mov_b32 v6, 0xff800000"); a("v_mov_b32 v7, v6")
for j in range(16): a(f"v_mov_b64 {vr(O0+2*j,2)}, 0")
a("s_waitcnt vmcnt(0)")
a.label("L_fb")
bload(rK(0), 4, vKA, WS, sr(sOFF), 0, "sc1")
a(f"s_add_u32 {sr(sOFF)}, {sr(sOFF)}, 0x800")
a("s_waitcnt vmcnt(0)")
mfma32(S0, rK(0), Q0, None); mfma32(S1, rK(0), Q1, None)
a("s_nop 10")
rowmax(S0, 6, True); rowmax(S1, 7, True)
a(f"s_cmp_lg_u32 {sr(sOFF)}, 0x20000")
a("s_cbranch_scc1 L_fb")
a(f"s_lshl_b32 {sr(sOFF)}, {sr(sTB)}, 12")
ring_fill(range(PD - 2 * OPT["cu"]))
a("v_mov_b32 v4, v6"); a("v_mov_b32 v11, v7"); a("s_nop 0")
a("v_permlane32_swap_b32 v6, v4"); a("v_permlane32_swap_b32 v7, v11")
a(f"v_max_f32 v6, v6, v4"); a("v_max_f32 v7, v7, v11")
for j in range(16): a(f"v_sub_f32 {vr(C0+j)}, 0, v6"); a(f"v_sub_f32 {vr(C1+j)}, 0, v7")
for j in range(4): a(f"v_mov_b64 {vr(S1+8+2*j,2)}, 0")
a(f"s_mov_b32 {sr(sPASS)}, 0")
a("s_waitcnt vmcnt(0)")
mfma32(S0, rK(0), Q0, C0)
a("s_nop 11")
a("s_branch L_fill")
a.label("L_end")
a("s_endpgm")

nbad = check(a.lines)
ref = open(f"cdna_kernels/{NAME}.s.ref").read().split("\n")
head = [l for l in ref if l.startswith(";") and "@launch" not in l and "Override launch" not in l and "grid=ceil" not in l]
out = "\n".join(head) + f"""
; Fused single launch: 256 workgroups (one per CU) x 8 waves; generated by gen/gen.py.
; @launch grid=(256,1,1) block=(512,1,1) lds={LDS_BYTES}
.amdgcn_target "amdgcn-amd-amdhsa--gfx950"
.text
.globl {NAME}_kernel
.p2align 8
.type {NAME}_kernel,@function
""" + a.text() + f""".section .rodata,"a"
.p2align 6
.amdhsa_kernel {NAME}_kernel
  .amdhsa_next_free_vgpr 256
  .amdhsa_next_free_sgpr 102
  .amdhsa_accum_offset 256
  .amdhsa_group_segment_fixed_size 0
  .amdhsa_kernarg_size 96
  .amdhsa_user_sgpr_count 2
  .amdhsa_user_sgpr_kernarg_segment_ptr 1
  .amdhsa_system_sgpr_workgroup_id_x 1
.end_amdhsa_kernel
"""
open(sys.argv[1], "w").write(out)
print("hazards:", nbad, "lines:", len(a.lines), "stamps:", nstamp[0])
```

```python
import sys, math, struct
from asmlib import Asm, vr, sr, check

NAME = "concat_heads__mha_block__ssm_conv_h3__prompt"
OPT = dict(wfl="", xfl="", mix=0, lai=12, encx=-1, trig=29, dr=24, kffl="sc1", wre=8, kslp=1, b6a=1, spoll=7, encc=0, encall=0, dbm=2, cu=0, mbw=7, ke=0, ksl=0, xf=10, la=3, coal=1, gat=1, enc0="", encm=2, hqx=0, rotm=0, wpf=3, wfirst=0, hat=0, p0w=2, wo1=24, map=1, ldfl="sc1", kvfl="sc1", wsoff=0, tlb=0, prew=0, late=0, hlate=0, kvat=2, pace=0, two=1, pd=5, ackat=16, pollat=27, p0p=0, hst=0, wqe=1, ysl=0, usl=0, wpace=3, gd=2, p0late=1, hs=4, pt=0, slp=8, onepoll=1, skip="", cp=0, sp=3, ep=3, hp=0, enc="", encw=0, first=0, gfl="sc1", pfl="sc1", vz=1, noload=0, nopv=0, noqk=0, noexp=0, c0=0, prio=1, diag=0, spin=0, spinat="end", clk=0)
for arg in sys.argv[2:]:
    k, v = arg.split("=")
    try: OPT[k] = int(v, 0)
    except ValueError: OPT[k] = v
DIAG = OPT["diag"]

KV, UT, YT, OF, MB = 0, 0x400000, 0x600000, 0x800000, 0xA00000
MB_U, MB_KV, MB_Y, MB_O = MB, MB + 0x8000, MB + 0x10000, MB + 0x18000
EP = MB + 0x20000
STAMP = 0xA30000
WS_SIZE = 0xA50000
K1 = 1024
SLOT = [0, 48 * K1, 96 * K1]
EX = 144 * K1
P0S = 8 * K1
HB = SLOT[2]; HSTR = 4512
UB = HB + 8 * HSTR; USTR = 4224
CNT = UB + 2 * USTR
QF = 16 * K1; RED = 140 * K1; KVL = SLOT[2]
YB = 128 * K1; MG = 140 * K1
LDS_BYTES = 160 * K1
assert CNT + 16 <= MG
X, W, WO, BQ, BK, BV, SH, HK, DD, OUT, WS = 4, 8, 12, 16, 20, 24, 28, 32, 36, 40, 44
sW, sHQ, sTB, sDB, sTBB, sROT, sTAG, sMASK = 48, 49, 50, 51, 52, 53, 54, 55
sA, sT0, sT1, sT2, sT3, sSX, sSW, sM0 = 56, 57, 58, 59, 60, 61, 62, 63
sOFF, sPASS, sREDO, sSPIN, sAND = 64, 65, 66, 67, 68
sHALF = 70
sCT, sTT, sHH, sHB = 3, 69, 72, 73
sST = 74
SPINMAX = 0x4000
f2h = lambda x: hex(struct.unpack("<I", struct.pack("<f", x))[0])

a = Asm()
nstamp = [0]
def stamp(name):
    if OPT["enc"] and name.replace(" ", "_") == OPT["enc"]: a("s_memtime s[94:95]" if OPT["encc"] else "s_memrealtime s[94:95]")
    if OPT["enc0"] and name.replace(" ", "_") == OPT["enc0"]: a("s_memtime s[96:97]" if OPT["encc"] else "s_memrealtime s[96:97]")
    if OPT["enc"] == "drained" and name == "end": a("s_waitcnt vmcnt(0)"); a("s_memrealtime s[94:95]")
    if OPT["enc"] and name == "end":
        L, L2 = newlab("spin"), newlab("spin")
        a("s_waitcnt lgkmcnt(0)")
        a(f"s_sub_u32 s94, s94, {'s96' if OPT['enc0'] else 's100'}"); a(f"s_lshl_b32 s94, s94, {OPT['encm']}" if not OPT["encc"] else f"s_sub_u32 s94, s94, {OPT['encc']}"); a("s_min_u32 s94, s94, 100000")
        a("s_lshr_b32 s95, s2, 3" if not OPT["encall"] else "s_mov_b32 s95, 12"); a(f"s_lshl3_add_u32 s95, s95, {sr(sW)}"); a(f"s_cmp_eq_u32 s95, {96 + OPT['encw']}")
        a("s_cselect_b32 s94, s94, 0")
        if OPT["encx"] >= 0: a(f"s_cmp_eq_u32 {sr(sHQ)}, {OPT['encx']}"); a("s_cselect_b32 s94, s94, 0")
        a("s_add_u32 s94, s94, 4000")
        a.label(L)
        a("s_memrealtime s[98:99]"); a("s_waitcnt lgkmcnt(0)")
        a("s_sub_u32 s98, s98, s100"); a("s_cmp_lt_u32 s98, s94"); a(f"s_cbranch_scc1 {L}")
    if OPT["spin"] and name.replace(" ", "_") == OPT["spinat"]:
        L = newlab("spin")
        if OPT["first"]:
            a("v_mov_b32 v6, 0"); a("global_load_dword v6, v6, s[96:97] sc1"); a("s_waitcnt vmcnt(0)")
            a("v_readfirstlane_b32 s100, v6"); a("s_nop 3"); a("s_not_b32 s100, s100")
        a.label(L)
        a("s_memrealtime s[98:99]"); a("s_waitcnt lgkmcnt(0)")
        a("s_sub_u32 s98, s98, s100"); a(f"s_cmp_lt_u32 s98, {OPT['spin'] * 100}"); a(f"s_cbranch_scc1 {L}")
    if DIAG == 2:
        if name in ("B1", "B5", "B6", "loop start", "loop end", "end"):
            i = nstamp[0]; nstamp[0] += 2
            a(f"s_memrealtime {sr(sST + 2 * i, 2)}")
            a(f"s_memtime {sr(sST + 2 * i + 2, 2)}")
    elif DIAG:
        i = nstamp[0]; nstamp[0] += 1
        assert sST + 2 * i + 1 <= 101, "too many stamps"
        a(f"{'s_memtime' if OPT['clk'] else 's_memrealtime'} {sr(sST + 2 * i, 2)} ; stamp {i} {name}")
def set_stamp(i): nstamp[0] = i
def xstamp(i, name):
    if DIAG == 1 and not OPT["pt"]:
        k = nstamp[0]; nstamp[0] = i; stamp(name); nstamp[0] = k
    elif OPT["enc"]: stamp(name)
lab = [0]
def newlab(p):
    lab[0] += 1; return f"L_{p}{lab[0]}"

def bload(dst, n, vaddr, srd, soff, off=0, flags=""):
    op = {1: "dword", 2: "dwordx2", 4: "dwordx4"}[n]
    a(f"buffer_load_{op} {vr(dst, n)}, {vr(vaddr)}, {sr(srd, 4)}, {soff} offen" + (f" offset:{off}" if off else "") + (" " + flags if flags else ""))
def bstore(src, n, vaddr, srd, soff, off=0, flags=""):
    op = {1: "dword", 2: "dwordx2", 4: "dwordx4"}[n]
    a(f"buffer_store_{op} {vr(src, n)}, {vr(vaddr)}, {sr(srd, 4)}, {soff} offen" + (f" offset:{off}" if off else "") + (" " + flags if flags else ""))
def dma(vaddr, srd, soff, flags=""):
    a(f"buffer_load_dwordx4 {vr(vaddr)}, {sr(srd, 4)}, {soff} offen" + (" " + flags if flags else "") + " lds")
def dsr(op, dst, n, vaddr, off=0):
    assert 0 <= off < 65536
    a(f"{op} {vr(dst, n)}, {vr(vaddr)}" + (f" offset:{off}" if off else ""))
def dsw(op, vaddr, src, n, off=0):
    assert 0 <= off < 65536
    a(f"{op} {vr(vaddr)}, {vr(src, n)}" + (f" offset:{off}" if off else ""))
def mfma32(d, A, B, c): a(f"v_mfma_f32_32x32x16_bf16 {vr(d,16)}, {vr(A,4)}, {vr(B,4)}, " + ("0" if c is None else vr(c, 16)))
def mfma16(d, A, B, c): a(f"v_mfma_f32_16x16x32_bf16 {vr(d,4)}, {vr(A,4)}, {vr(B,4)}, " + ("0" if c is None else vr(c, 4)))
def cvt(d, x, y): a(f"v_cvt_pk_bf16_f32 {vr(d)}, {vr(x)}, {vr(y)}")
def lo(d, s): a(f"v_lshlrev_b32 {vr(d)}, 16, {vr(s)}")
def hi(d, s): a(f"v_and_b32 {vr(d)}, {sr(sMASK)}, {vr(s)}")

bload_, mfma32_ = bload, mfma32
def poll(vaddr, vtmp, soff, first_issued=False, slp=None):
    L, Lo = newlab("poll"), newlab("pollok")
    a(f"s_mov_b32 {sr(sSPIN)}, 0")
    if first_issued:
        a(f"v_cmp_ne_u32 vcc, {sr(sTAG)}, {vr(vtmp)}")
        a(f"s_cbranch_vccz {Lo}")
    a.label(L)
    bload(vtmp, 1, vaddr, WS, soff, flags="sc1")
    a(f"s_add_u32 {sr(sSPIN)}, {sr(sSPIN)}, 1")
    a(f"s_cmp_ge_u32 {sr(sSPIN)}, {SPINMAX}")
    a("s_waitcnt vmcnt(0)")
    a(f"s_cbranch_scc1 {Lo}")
    a(f"v_cmp_ne_u32 vcc, {sr(sTAG)}, {vr(vtmp)}")
    a(f"s_cbranch_vccz {Lo}")
    a(f"s_sleep {OPT['slp'] if slp is None else slp}")
    a(f"s_branch {L}")
    a.label(Lo)

def spoll(soff, slp, first=None):
    L, Lo = newlab("spoll"), newlab("spollok")
    a(f"s_mov_b32 {sr(sSPIN)}, 0")
    if first:
        a(f"s_load_dwordx8 s[4:11], {sr(WS,2)}, {soff} glc")
        first()
        a(f"s_branch {L}b")
    a.label(L)
    a(f"s_load_dwordx8 s[4:11], {sr(WS,2)}, {soff} glc")
    if first: a.label(L + "b")
    a(f"s_add_u32 {sr(sSPIN)}, {sr(sSPIN)}, 1")
    a(f"s_cmp_ge_u32 {sr(sSPIN)}, {SPINMAX}")
    a("s_waitcnt lgkmcnt(0)")
    a(f"s_cbranch_scc1 {Lo}")
    for j in range(4): a(f"s_xor_b64 s[{4+2*j}:{5+2*j}], s[{4+2*j}:{5+2*j}], {sr(sHALF,2)}")
    a("s_or_b64 s[4:5], s[4:5], s[6:7]"); a("s_or_b64 s[8:9], s[8:9], s[10:11]"); a("s_or_b64 s[4:5], s[4:5], s[8:9]")
    a(f"s_cbranch_scc0 {Lo}")
    a(f"s_sleep {slp}")
    a(f"s_branch {L}")
    a.label(Lo)

def push(nl, vt0, vt1, soff, fl="sc1"):
    a(f"s_mov_b64 exec, {hex((1 << nl) - 1)}")
    bstore(vt1, 1, vt0, WS, soff, flags=fl)
    a("s_mov_b64 exec, -1")

def arrive(cntoff, pushfn):
    L = newlab("arr")
    a("s_mov_b64 exec, 1")
    a(f"ds_add_rtn_u32 v7, {vr(vCNT)}, {vr(vONE)} offset:{cntoff}")
    a("s_waitcnt lgkmcnt(0)")
    a("v_cmp_ne_u32 vcc, 3, v7")
    a(f"s_cbranch_vccnz {L}")
    pushfn()
    a.label(L)
    a("s_mov_b64 exec, -1")

def hbar(extra=0, slp=None):
    L = newlab("hb")
    a(f"s_add_u32 {sr(sHB)}, {sr(sHB)}, {4 + extra}")
    a("s_mov_b64 exec, 1")
    a(f"ds_add_u32 {vr(vCNT)}, {vr(vONE)}")
    a.label(L)
    dsr("ds_read_b32", 6, 1, vCNT)
    a("s_waitcnt lgkmcnt(0)")
    a(f"v_cmp_gt_u32 vcc, {sr(sHB)}, v6")
    a(f"s_cbranch_vccz {L}x")
    if slp != 0: a(f"s_sleep {OPT['hs'] if slp is None else slp}")
    a(f"s_branch {L}")
    a.label(L + "x")
    a("s_mov_b64 exec, -1")
def only_wave(w, fn):
    L = newlab("ow")
    a(f"s_cmp_lg_u32 {sr(sW)}, {w}"); a(f"s_cbranch_scc1 {L}")
    fn()
    a.label(L)
def hprio(p):
    a(f"s_setprio {p}")
vCNT, vONE = 2, 3


a.label(f"{NAME}_kernel")
a("s_cmp_ge_u32 s2, 0x100")
a("s_cbranch_scc1 L_end")
a(f"s_load_dwordx2 {sr(X,2)}, s[0:1], 0")
a(f"s_load_dwordx2 {sr(W,2)}, s[0:1], 8")
a(f"s_load_dwordx2 {sr(WS,2)}, s[0:1], 88")
if DIAG or OPT["spin"] or OPT["enc"]: a("s_memtime s[100:101]" if OPT["clk"] else "s_memrealtime s[100:101]")
a("s_getpc_b64 s[88:89]")
a.label("L_pc")
a(f"s_lshr_b32 {sr(sTBB)}, s2, 3")
a(f"s_and_b32 {sr(sHQ)}, s2, 7")
if OPT["hqx"]: a(f"s_xor_b32 {sr(sHQ)}, {sr(sHQ)}, {OPT['hqx']}")
a("v_lshrrev_b32 v6, 6, v0")
a(f"v_lshl_add_u32 v7, {sr(sTBB)}, 3, v6")
a("v_lshlrev_b32 v7, 7, v7")
a("v_min_u32 v7, L_end-L_pc, v7")
a("global_load_dword v4, v7, s[88:89]")
a(f"v_readfirstlane_b32 {sr(sW)}, v6")
sTB = sTBB
a(f"s_add_u32 {sr(sROT)}, {sr(sHQ)}, {sr(sTB)}")
if OPT["rotm"] == 1: a(f"s_lshr_b32 {sr(sROT)}, {sr(sHQ)}, 1"); a(f"s_add_u32 {sr(sROT)}, {sr(sROT)}, {sr(sTB)}")
if OPT["rotm"] == 2: a(f"s_lshr_b32 {sr(sROT)}, {sr(sTB)}, 3"); a(f"s_add_u32 {sr(sROT)}, {sr(sROT)}, {sr(sHQ)}")
if OPT["dbm"] == 1: a(f"s_and_b32 {sr(sDB)}, {sr(sROT)}, 7")
elif OPT["dbm"] == 2: a(f"s_xor_b32 {sr(sDB)}, {sr(sHQ)}, 4")
else: sDB = sHQ
if OPT["wpf"] >= 3:
    a(f"v_min_u32 v6, {47 if OPT['wpf'] == 3 else 15}, v0")
    if OPT["wpf"] == 4: a("v_mul_u32_u24 v6, 3, v6")
    a(f"s_mul_i32 {sr(sT0)}, {sr(sTB)}, 48*8")
    a(f"s_add_u32 {sr(sT0)}, {sr(sT0)}, {sr(sHQ)}")
    a(f"v_lshl_add_u32 v6, v6, 3, {sr(sT0)}")
    a("v_lshlrev_b32 v6, 7, v6")
    a(f"s_cmp_lg_u32 {sr(sW)}, 0")
    a("s_cbranch_scc1 L_nopf")
    a("s_waitcnt lgkmcnt(0)")
    a(f"global_load_dword v57, v6, {sr(W,2)}")
    a.label("L_nopf")
a(f"s_mov_b32 {sr(X+3)}, 0x20000")
a(f"s_and_b32 {sr(sHH)}, {sr(sW)}, 3")
a(f"s_cmp_lt_u32 {sr(sW)}, 4")
a("s_cbranch_scc1 L_main")

def mbox(base, grp, idx, sh):
    a(f"s_lshr_b32 {sr(sT0)}, {sr(idx)}, 3")
    a(f"s_mul_i32 {sr(sT0)}, {sr(sT0)}, 96")
    a(f"s_lshl2_add_u32 {sr(sT0)}, {sr(idx)}, {sr(sT0)}")
    a(f"s_lshl_b32 {sr(sT3)}, {sr(grp)}, {sh}")
    a(f"s_add_u32 {sr(sT3)}, {sr(sT3)}, {base}")
    a(f"s_add_u32 {sr(sT0)}, {sr(sT0)}, {sr(sT3)}")
def common_setup():
    a("v_and_b32 v1, 63, v0")
    if OPT["wsoff"]:
        a(f"s_add_u32 {sr(WS)}, {sr(WS)}, {hex(OPT['wsoff'])}"); a(f"s_addc_u32 {sr(WS+1)}, {sr(WS+1)}, 0")
    a(f"s_add_u32 s88, {sr(WS)}, {EP}")
    a(f"s_addc_u32 s89, {sr(WS+1)}, 0")
    a(f"s_load_dword {sr(sTAG)}, s[88:89], 0")
    a(f"s_mov_b32 {sr(WS+2)}, {hex(WS_SIZE)}"); a(f"s_mov_b32 {sr(WS+3)}, {sr(X+3)}")
    a(f"s_and_b32 {sr(sCT)}, {sr(sW)}, 1")
    a(f"s_bfe_u32 {sr(sTT)}, {sr(sW)}, 0x10001")
    if DIAG: a(f"s_mov_b64 {sr(sST,2)}, s[100:101]"); nstamp[0] = 1
def make_tag():
    a(f"s_mul_i32 {sr(sTAG)}, {sr(sTAG)}, 0x2c9277b5")
    a(f"s_add_u32 {sr(sTAG)}, {sr(sTAG)}, 0xac564b05")
def finish(n, drain=False):
    a("s_mov_b64 exec, -1")
    if DIAG and drain: a("s_waitcnt vmcnt(0)")
    set_stamp(n); stamp("end")
    if DIAG:
        a("s_waitcnt lgkmcnt(0)")
        for i in range(nstamp[0]): a(f"v_mov_b32 {vr(32+i)}, {sr(sST+2*i)}")
        a(f"s_lshl3_add_u32 {sr(sT0)}, s2, {sr(sW)}")
        a(f"s_lshl_b32 {sr(sT0)}, {sr(sT0)}, 6")
        a(f"s_add_u32 {sr(sT0)}, {sr(sT0)}, {STAMP}")
        a("v_mov_b32 v6, 0")
        a("s_mov_b64 exec, 1")
        for i in range(4): bstore(32 + 4*i, 4, 6, WS, sr(sT0), 16*i)
    a("s_endpgm")

vXS, vWS = 48, 49
a("v_and_b32 v0, 0xff, v0")
a(f"s_mov_b32 {sr(X+2)}, 0x200000")
a(f"s_mov_b32 {sr(W+2)}, 0x180000"); a(f"s_mov_b32 {sr(W+3)}, {sr(X+3)}")
a("v_lshrrev_b32 v6, 4, v0")
a("v_xor_b32 v32, v6, v0")
a("v_and_b32 v32, 15, v32")
a(f"v_lshl_add_u32 v6, {sr(sTB)}, 6, v6")
a("v_lshlrev_b32 v6, 10, v6")
a(f"v_lshl_add_u32 {vr(vXS)}, v32, 4, v6")
a("v_lshrrev_b32 v6, 2, v0")
a("v_and_b32 v6, 4, v6")
a("v_xor_b32 v6, v6, v0")
a("v_and_b32 v6, 7, v6")
a(f"v_lshl_add_u32 v6, {sr(sHQ)}, 3, v6")
a("v_lshrrev_b32 v32, 3, v0")
a("v_mul_u32_u24 v32, 0xc00, v32")
a(f"v_lshl_add_u32 {vr(vWS)}, v6, 4, v32")
a(f"s_lshl_b32 {sr(sM0)}, {sr(sHH)}, 10")
def chunk_offsets(c):
    if c: a(f"s_add_u32 {sr(sT0)}, {sr(sROT)}, {c}")
    a(f"s_and_b32 {sr(sT0)}, {sr(sT0) if c else sr(sROT)}, 3")
    a(f"s_mul_i32 {sr(sSW)}, {sr(sT0)}, {128*3072}")
def dma_run(vaddr, srd, sbase, off, step, ldsbase, n=4, wait=False):
    a(f"s_add_u32 m0, {sr(sM0)}, {ldsbase}")
    a(f"s_add_u32 {sr(sT2)}, {sr(sbase)}, {off}")
    if wait: a("s_waitcnt lgkmcnt(0)")
    for i in range(n):
        dma(vaddr, srd, sr(sT2), OPT["wfl" if srd == W else "xfl"].replace("_", " "))
        if i < n - 1:
            a("s_addk_i32 m0, 0x1000")
            a(f"s_add_u32 {sr(sT2)}, {sr(sT2)}, {step}")
XB = SLOT + [EX]
WQ = [SLOT[0], SLOT[1], SLOT[1] + 16 * K1, SLOT[1] + 32 * K1]
def unit(u, wait=False):
    kind, j = u
    if kind == "x":
        if j: a(f"s_add_u32 {sr(sT0)}, {sr(sROT)}, {j}")
        a(f"s_and_b32 {sr(sT0)}, {sr(sT0) if j else sr(sROT)}, 3")
        a(f"s_lshl_b32 {sr(sSX)}, {sr(sT0)}, 8")
        dma_run(vXS, X, sSX, 0, 16384, XB[j], 4, wait)
    elif kind == "w":
        c, hf = j >> 1, j & 1
        if not hf: chunk_offsets(c)
        dma_run(vWS, W, sSW, 1024 + hf*64*3072, 32*3072, SLOT[c % 3] + 16 * K1 + hf*8192, 2, wait)
        dma_run(vWS, W, sSW, 2048 + hf*64*3072, 32*3072, SLOT[c % 3] + 32 * K1 + hf*8192, 2)
    else: dma_wq(j)
def dma_wq(c):
    chunk_offsets(c); dma_run(vWS, W, sSW, 0, 32*3072, WQ[c])
ORD = {0: "x0 w0 w1 x1 w2 w3 x2 w4 w5 x3 w6 w7", 1: "x0 w0 x1 w1 x2 w2 x3 w3 w4 w5 w6 w7", 2: "x0 x1 w0 x2 w1 x3 w2 w3 w4 w5 w6 w7",
       3: "x0 w0 x1 w1 w2 x2 w3 x3 w4 w5 w6 w7", 4: "w0 x0 w1 w2 x1 w3 w4 x2 w5 w6 x3 w7", 5: "w0 w1 x0 w2 w3 x1 w4 w5 x2 w6 w7 x3",
       6: "x0 w0 w1 x1 w2 w3 w4 x2 w5 w6 x3 w7", 7: "x0 w0 w1 w2 x1 w3 w4 w5 x2 w6 w7 x3",
       8: "x0 w0 w1 w2 x1 w3 w4 x2 w5 w6 x3 w7", 9: "x0 w0 x1 w1 w2 w3 x2 w4 w5 w6 x3 w7", 10: "w0 x0 w1 x1 w2 w3 x2 w4 w5 w6 x3 w7", 11: "x0 w0 w1 x1 w2 w3 x2 w4 w5 w6 x3 w7",
       12: "x0 w0 x1 w1 w2 x2 w3 w4 x3 w5 w6 w7", 13: "w0 x0 w1 x1 w2 w3 x2 w4 w5 x3 w6 w7", 14: "w0 x0 x1 w1 w2 x2 w3 w4 x3 w5 w6 w7"}[OPT["xf"]]
STREAM = [(t[0], int(t[1])) for t in (ORD + " q0 q1").split()]
issued = 3
def piece(p, wait=False):
    kind, j, i = p
    if kind == "x":
        if i == 0:
            if j: a(f"s_add_u32 {sr(sT0)}, {sr(sROT)}, {j}")
            a(f"s_and_b32 {sr(sT0)}, {sr(sT0) if j else sr(sROT)}, 3")
            a(f"s_lshl_b32 {sr(sSX)}, {sr(sT0)}, 8")
        dma_run(vXS, X, sSX, 16384 * i, 0, XB[j] + 4096 * i, 1, wait)
    elif kind == "w":
        c, hf = j >> 1, j & 1
        if not hf and i == 0: chunk_offsets(c)
        dma_run(vWS, W, sSW, 1024 * (1 + (i >> 1)) + (hf*64 + (i & 1)*32)*3072, 0, SLOT[c % 3] + (1 + (i >> 1)) * 16 * K1 + hf*8192 + (i & 1)*4096, 1, wait)
    else:
        if i == 0: chunk_offsets(j)
        dma_run(vWS, W, sSW, i*32*3072, 0, WQ[j] + 4096 * i, 1)
if OPT["mix"]:
    P = []
    W_ = lambda j, i: ("w", j, i); X_ = lambda j, i: ("x", j, i)
    if OPT["mix"] == 1:
        for i in range(4): P += [W_(0, i), X_(0, i)]
        for j in range(1, 7):
            c, h = (j + 1) >> 1, 2 * ((j + 1) & 1)
            P += [X_(c, h), W_(j, 0), W_(j, 1), X_(c, h + 1), W_(j, 2), W_(j, 3)]
    elif OPT["mix"] == 2:
        for i in range(4): P += [W_(0, i), X_(0, i)]
        for j in range(1, 7):
            c, h = (j + 1) >> 1, 2 * ((j + 1) & 1)
            P += [W_(j, 0), W_(j, 1), X_(c, h), W_(j, 2), W_(j, 3), X_(c, h + 1)]
    P += [W_(7, i) for i in range(4)] + [("q", j, i) for j in range(2) for i in range(4)]
    issued = 12
    for i in range(issued): piece(P[i], i == 0)
else:
    for i in range(issued): unit(STREAM[i], i == 0)
a("s_load_dwordx8 s[80:87], s[0:1], 16")
a("s_load_dwordx8 s[92:99], s[0:1], 48")
common_setup()
UU = 16
vA, vH, vSH, vPW, vPR, vPG, vHS, vSR = 8, 9, 10, 11, 12, 13, 14, 15
SR, DR, KP, WJ, VP, DP, HT = 148, 139, 160, 184, 192, 48, 208
STG = SLOT[1]; sSTG = 68
vHW, vHA, vUA, vL16, vWO, vYS, vWR0, vWR1, vYR, vGO, vPO, vOO, vRW, vRR, vY8, vZ0 = range(32, 48)
vZ1, vFL, vTG, vMB = 50, 51, 52, 54
sUB, sCH = 64, 66
a("v_and_b32 v5, 31, v0")
a("v_lshlrev_b32 v5, 2, v5")
a(f"v_mov_b32 {vr(vCNT)}, {CNT}")
a(f"v_mov_b32 {vr(vONE)}, 1")
a(f"s_mov_b32 {sr(sHB)}, 0")
a(f"s_mov_b32 {sr(sMASK)}, 0xffff0000")
a("v_lshrrev_b32 v53, 5, v0")
a("v_lshrrev_b32 v6, 3, v1")
a("v_and_b32 v7, 7, v1")
a("v_lshlrev_b32 v7, 4, v7")
a(f"v_lshl_add_u32 {vr(vA)}, v6, 10, v7")
a("v_cmp_gt_u32 vcc, 5, v6")
a(f"s_lshl_b32 {sr(sSTG)}, {sr(sHH)}, 13")
a(f"s_add_u32 {sr(sSTG)}, {sr(sSTG)}, {STG}")
a("v_lshrrev_b32 v6, 5, v1")
a("v_lshl_add_u32 v6, v6, 10, v5")
a(f"v_add_u32 {vr(vSR)}, {sr(sSTG)}, v6")
a(f"v_lshl_add_u32 {vr(vGO)}, v53, 14, v5")
a(f"s_lshl_b32 {sr(sA)}, {sr(sTBB)}, 16")
a(f"s_lshl_b32 {sr(sT0)}, {sr(sDB)}, 7")
a(f"s_add_u32 {sr(sA)}, {sr(sA)}, {sr(sT0)}")
a(f"s_lshl4_add_u32 {sr(sA)}, {sr(sM0)}, {sr(sA)}")
a(f"s_sub_u32 {sr(sT2)}, {sr(sA)}, 0x2000")
a(f"v_add_u32 v6, {sr(sT2)}, {vr(vA)}")
a("v_bfrev_b32 v7, 2")
a(f"v_cndmask_b32 {vr(vH)}, v6, v7, vcc")
a(f"v_lshlrev_b32 {vr(vSH)}, 2, v5")
a("v_xor_b32 v6, 7, v53")
a("v_xor_b32 v6, v6, v0")
a("v_and_b32 v6, 7, v6")
a("v_lshlrev_b32 v6, 4, v6")
a(f"v_lshl_add_u32 {vr(vPW)}, v5, 5, v6")
a("v_lshrrev_b32 v7, 1, v0")
a("v_xor_b32 v7, v53, v7")
a("v_and_b32 v7, 7, v7")
a("v_lshlrev_b32 v7, 4, v7")
a("v_lshl_add_u32 v7, v5, 5, v7")
a(f"v_add_u32 {vr(vYR)}, {YB}, v7")
a("v_lshrrev_b32 v6, 3, v0")
a("v_xor_b32 v7, v6, v0")
a("v_and_b32 v7, 7, v7")
a("v_lshlrev_b32 v7, 4, v7")
a(f"v_lshl_add_u32 {vr(vPR)}, v6, 7, v7")
a("v_and_b32 v7, 7, v0")
a("v_lshlrev_b32 v7, 4, v7")
a(f"v_lshl_add_u32 {vr(vPG)}, v6, 13, v7")
a("v_lshrrev_b32 v7, 1, v6")
a("v_xor_b32 v7, v7, v0")
a("v_and_b32 v7, 7, v7")
a("v_lshlrev_b32 v7, 4, v7")
a(f"v_lshl_add_u32 {vr(vYS)}, v6, 13, v7")
a(f"v_lshlrev_b32 {vr(vHS)}, 4, v0")
a(f"v_add_u32 {vr(vHW)}, {HB + 384}, {vr(vHS)}")
a("v_and_b32 v6, 3, v1")
a(f"v_mul_u32_u24 v6, {HSTR}, v6")
a("v_bfe_u32 v53, v1, 2, 2")
a("v_lshl_add_u32 v6, v53, 7, v6")
a("v_and_b32 v7, 0x30, v1")
a("v_add_u32 v6, v6, v7")
a(f"s_mul_i32 {sr(sT0)}, {sr(sCT)}, {4*HSTR}")
a(f"s_lshl_b32 {sr(sT1)}, {sr(sTT)}, 8")
a(f"s_add_u32 {sr(sT0)}, {sr(sT0)}, {sr(sT1)}")
a(f"s_add_u32 {sr(sT0)}, {sr(sT0)}, {HB}")
a(f"v_add_u32 {vr(vHA)}, {sr(sT0)}, v6")
a("v_and_b32 v6, 15, v1")
a("v_lshlrev_b32 v6, 3, v6")
a("v_sub_u32 v6, v7, v6")
a(f"s_mul_i32 {sr(sUB)}, {sr(sCT)}, {USTR}")
a(f"s_add_u32 {sr(sUB)}, {sr(sUB)}, {UB}")
a(f"s_add_u32 {sr(sT0)}, {sr(sUB)}, {sr(sT1)}")
a(f"s_add_u32 {sr(sT0)}, {sr(sT0)}, 120")
a(f"v_add_u32 {vr(vUA)}, {sr(sT0)}, v6")
a(f"v_lshlrev_b32 {vr(vL16)}, 4, v1")
a(f"v_lshlrev_b32 {vr(vY8)}, 3, v1")
a(f"v_lshlrev_b32 {vr(vFL)}, 9, v1")
a(f"v_lshl_add_u32 {vr(vRW)}, {sr(sHH)}, 12, {vr(vL16)}")
a(f"v_xor_b32 {vr(vRR)}, 0x2000, {vr(vRW)}")
a(f"v_add_u32 {vr(vRW)}, {RED}, {vr(vRW)}")
a(f"v_add_u32 {vr(vRR)}, {RED}, {vr(vRR)}")
a("v_min_u32 v6, 23, v1")
a(f"s_mul_i32 {sr(sT0)}, {sr(sHH)}, {HSTR}")
a(f"s_add_u32 {sr(sT0)}, {sr(sT0)}, {HB}")
a(f"v_lshl_add_u32 {vr(vZ0)}, v6, 4, {sr(sT0)}")
a("v_and_b32 v6, 7, v1")
a(f"v_lshl_add_u32 {vr(vZ1)}, v6, 4, {sr(sUB)}")
a(f"s_lshl_b32 {sr(sT0)}, {sr(sDB)}, 5")
a(f"s_add_u32 {sr(sT0)}, {sr(sT0)}, {sr(sTBB)}")
a(f"s_lshl_b32 {sr(sCH)}, {sr(sT0)}, 13")
a("v_lshrrev_b32 v6, 4, v0")
a("v_lshlrev_b32 v7, 2, v6")
a("v_xor_b32 v7, v7, v0")
a("v_and_b32 v7, 15, v7")
a("v_lshlrev_b32 v7, 4, v7")
a("v_lshl_add_u32 v6, v6, 10, v7")
a(f"s_and_b32 {sr(sT0)}, {sr(sTBB)}, 3")
a(f"v_lshl_add_u32 {vr(vWO)}, {sr(sT0)}, 8, v6")
a("v_lshrrev_b32 v7, 5, v1")
a("v_lshl_add_u32 v7, v7, 2, v53")
a(f"v_xor_b32 v6, {sr(sHH)}, v53")
a("v_lshlrev_b32 v6, 6, v6")
a("v_lshl_add_u32 v6, v7, 8, v6")
a("v_and_b32 v7, 1, v1")
a("v_lshl_add_u32 v6, v7, 5, v6")
a("v_and_b32 v7, 16, v1")
a("v_add_u32 v6, v6, v7")
a("v_and_b32 v7, 2, v1")
a(f"v_lshl_add_u32 {vr(vWR0)}, v7, 2, v6")
a(f"v_add_u32 {vr(vWR1)}, 0x10000, {vr(vWR0)}")
a(f"v_and_b32 {vr(vPO)}, 28, v5")
vTW, vTR = 54, 55
if OPT["coal"] == 1:
    a("v_lshrrev_b32 v6, 4, v1")
    a("v_and_b32 v6, 2, v6")
    a("v_lshrrev_b32 v7, 1, v1")
    a("v_xor_b32 v6, v6, v7")
    a("v_and_b32 v6, 3, v6")
    a("v_lshlrev_b32 v6, 4, v6")
    a("v_lshl_add_u32 v6, v5, 4, v6")
    a(f"s_lshl_b32 {sr(sT0)}, {sr(sHH)}, 11")
    a(f"s_add_u32 {sr(sT0)}, {sr(sT0)}, {RED}")
    a(f"v_add_u32 {vr(vTW)}, {sr(sT0)}, v6")
    a("v_lshrrev_b32 v6, 3, v1")
    a("v_xor_b32 v6, v6, v1")
    a("v_and_b32 v6, 3, v6")
    a("v_and_b32 v7, 0x3c, v1")
    a("v_or_b32 v6, v6, v7")
    a(f"v_lshl_add_u32 {vr(vTR)}, v6, 4, {sr(sT0)}")
    a("v_and_b32 v6, 3, v1")
    a("v_lshlrev_b32 v6, 4, v6")
    a(f"v_lshl_add_u32 {vr(vOO)}, v7, 9, v6")
else:
    a("v_and_b32 v6, 32, v1")
    a(f"v_lshl_add_u32 {vr(vOO)}, v5, 9, v6")
CY, CB, CA = 64, 96, 128
for j in range(16): a(f"v_mov_b64 {vr(CY+2*j,2)}, 0")
for j in range(11): a(f"v_mov_b64 {vr(KP+2*j,2)}, 0")
for j in range(8): a(f"v_mov_b64 {vr(VP+2*j,2)}, 0")
a("s_waitcnt lgkmcnt(0)")
for r, p in ((WO, 80), (BQ, 82), (BK, 84), (BV, 86), (SH, 92), (HK, 94), (DD, 96), (OUT, 98)):
    a(f"s_mov_b64 {sr(r,2)}, {sr(p,2)}")
for r in (BK, BV, HK, BQ): a(f"s_mov_b64 {sr(r+2,2)}, {sr(X+2,2)}")
for r, n in ((SH, 4096), (DD, 1024), (WO, 0x80000), (OUT, 0x400000)):
    a(f"s_mov_b32 {sr(r+2)}, {hex(n)}"); a(f"s_mov_b32 {sr(r+3)}, {sr(X+3)}")
make_tag()
a(f"v_mov_b32 {vr(vTG)}, {sr(sTAG)}")
a(f"s_mov_b32 {sr(sHALF)}, {sr(sTAG)}"); a(f"s_mov_b32 {sr(sHALF+1)}, {sr(sTAG)}")
a(f"s_lshl_b32 {sr(sT0)}, {sr(sDB)}, 7")
a(f"s_lshl_b32 {sr(sT1)}, {sr(sDB)}, 9")
bload(SR, 4, vSH, SH, sr(sT1)); bload(DR, 1, 5, DD, sr(sT0))
for j in range(8 if OPT["mix"] else 0):
    pos = max(P.index(("w", j, 3)), P.index(("x", j >> 1, 3)))
    while issued < min(len(P), pos + 1 + OPT["lai"]):
        k_, j_, _ = P[issued]
        if (k_ == "w" and j_ >= 6 and j < j_ - 3) or (k_ == "q" and j < 4 + 2 * j_):
            assert issued > pos
            break
        piece(P[issued]); issued += 1
    a(f"s_waitcnt vmcnt({issued - pos - 1})"); a("s_barrier")
    if j == 0: stamp("B1")
    if OPT["hst"] == 2 and 0 < j < 7: xstamp(5 + j, f"h{j}")
    assert j < 7 or issued == len(P)
for j in range(0 if OPT["mix"] else 8):
    pos = max(STREAM.index(("w", j)), STREAM.index(("x", j >> 1)))
    while issued < min(len(STREAM), pos + 1 + OPT["la"]):
        k_, j_ = STREAM[issued]
        if (k_ == "w" and j_ >= 6 and j < j_ - 3) or (k_ == "q" and j < 4 + 2 * j_):
            assert issued > pos
            break
        unit(STREAM[issued]); issued += 1
    a(f"s_waitcnt vmcnt({4 * (issued - pos - 1)})"); a("s_barrier")
    if j == 0: stamp("B1")
    if OPT["hst"] == 2 and 0 < j < 7: xstamp(5 + j, f"h{j}")
stamp("B4")
if OPT["pace"]: a("s_waitcnt vmcnt(4)")
dma_wq(2)
if OPT["pace"]: a("s_waitcnt vmcnt(4)")
dma_wq(3)
if OPT["two"]: a("s_waitcnt vmcnt(8)"); a("s_barrier")
mbox(MB_KV, sHQ, sTB, 11)
a(f"s_waitcnt vmcnt({4 * OPT['late']})"); a("s_barrier")
only_wave(4, lambda: push(4, vFL, vTG, sr(sT0), OPT["kffl"].replace("_", " ").strip()))
stamp("B5")
if OPT["late"]:
    L = newlab("w4")
    a("s_waitcnt vmcnt(1)"); a(f"s_cmp_eq_u32 {sr(sW)}, 4"); a(f"s_cbranch_scc1 {L}"); a("s_waitcnt vmcnt(0)"); a.label(L)
    a("s_barrier")
lo(WJ+0, SR); lo(WJ+1, SR+2); hi(WJ+2, SR); hi(WJ+3, SR+2)
lo(WJ+4, SR+1); lo(WJ+5, SR+3); hi(WJ+6, SR+1); hi(WJ+7, SR+3)
lo(DP, DR); hi(DP + 1, DR)
if OPT["spoll"] & 4:
    a(f"s_lshr_b32 {sr(sT1)}, {sr(sTB)}, 3")
    a(f"s_lshl2_add_u32 {sr(sT1)}, {sr(sT1)}, {sr(sHH)}")
    a(f"s_lshl_b32 {sr(sT1)}, {sr(sT1)}, 7")
    a(f"s_add_u32 {sr(sT3)}, {sr(sT3)}, {sr(sT1)}")
    if OPT["ksl"]: a(f"s_sleep {OPT['ksl']}")
    if OPT["trig"]:
        a("s_barrier")
        spoll(sr(sT3), OPT["kslp"], lambda: a("s_barrier"))
    else:
        if OPT["b6a"]: a("s_barrier")
        spoll(sr(sT3), OPT["kslp"])
a("s_barrier")
hprio(OPT["sp"])
hbar(4, 1)
def stage(vaddr, srd, soff, sbase, ldsoff, i):
    if OPT["p0w"] and i >= OPT["p0w"]: a(f"s_waitcnt vmcnt({OPT['p0w'] - 1})")
    a(f"s_add_u32 m0, {sr(sbase)}, {ldsoff}")
    a("s_nop 0")
    dma(vaddr, srd, soff)
a(f"s_add_u32 {sr(sT2)}, {sr(sA)}, 0x2000")
a(f"s_add_u32 {sr(sT1)}, {sr(sCH)}, 0x1000")
stage(vA, BK, sr(sA), sSTG, 1024, 0); stage(vA, BK, sr(sT2), sSTG, 2048, 1); stage(vH, BK, 0, sSTG, 0, 2)
dsw("ds_write_b128", vZ0, CY, 4); dsw("ds_write_b128", vZ0, CY, 4, 4*HSTR); dsw("ds_write_b128", vZ1, CY, 4, 4096)
stage(vA, BV, sr(sA), sSTG, 3072, 3); stage(vA, BV, sr(sT2), sSTG, 4096, 4)
a("s_waitcnt vmcnt(2)")
for i in range(11):
    for c in range(2): dsr("ds_read_u16_d16_hi", KP + 2*i + c, 1, vSR, (5 + i) * 128 + 2*c)
stage(vHS, HK, sr(sCH), sM0, HB + 3*HSTR + 384, 5); stage(vHS, HK, sr(sT1), sM0, HB + 7*HSTR + 384, 6)
a("s_waitcnt vmcnt(2)")
for i in range(8):
    for c in range(2): dsr("ds_read_u16_d16_hi", VP + 2*i + c, 1, vSR, 3072 + i * 128 + 2*c)
hprio(OPT["ep"])
a("s_waitcnt lgkmcnt(0)")
for j in range(8): a(f"v_pk_mul_f32 {vr(UU+2*j,2)}, {vr(KP+2*j,2)}, {vr(WJ+6,2)}")
for t in (2, 1, 0):
    for j in range(8):
        a(f"v_pk_fma_f32 {vr(UU+2*j,2)}, {vr(KP+2*(j+3-t),2)}, {vr(WJ+2*t,2)}, {vr(UU+2*j,2)}")
for j in range(8): a(f"v_pk_mul_f32 {vr(UU+2*j,2)}, {vr(UU+2*j,2)}, {vr(VP+2*j,2)}")
for c in range(2):
    for i in range(4): cvt(KP + 4*c + i, UU + 2*(7 - 2*i) + c, UU + 2*(6 - 2*i) + c)
hprio(OPT["sp"])
dsw("ds_write_b128", vPW, KP, 4, P0S); dsw("ds_write_b128", vPW, KP + 4, 4, P0S + 4096)
stamp("p0 done")
a(f"s_lshl_b32 {sr(sT0)}, {sr(sDB)}, 18")
a(f"s_sub_u32 {sr(sT1)}, 31, {sr(sTBB)}")
a(f"s_lshl_b32 {sr(sT1)}, {sr(sT1)}, 7")
a(f"s_add_u32 {sr(sT3)}, {sr(sT0)}, {sr(sT1)}")
a(f"s_add_u32 {sr(sT3)}, {sr(sT3)}, {UT}")
a(f"s_add_u32 {sr(sT1)}, {sr(sT3)}, 0x1000")
a("s_waitcnt lgkmcnt(0)")
hbar()
stamp("hb1")
dsr("ds_read_b128", KP, 4, vPR, P0S); dsr("ds_read_b128", KP + 4, 4, vPR, P0S + 4096)
a("s_waitcnt lgkmcnt(1)")
bstore(KP, 4, vPG, WS, sr(sT3), 0, "sc1")
a("s_waitcnt lgkmcnt(0)")
bstore(KP + 4, 4, vPG, WS, sr(sT1), 0, "sc1")
mbox(MB_U, sDB, sTBB, 9)
a("s_waitcnt vmcnt(0)")
hbar()
only_wave(4, lambda: push(1, vFL, vTG, sr(sT0)))
if OPT["hst"] != 2: stamp("u pushed")
QG = 56
stage(vA, BQ, sr(sA), sSTG, 5120, 0); stage(vA, BQ, sr(sT2), sSTG, 6144, 0)
for c in range(2):
    for d in (1, 2, 3): dsr("ds_read_b128", HT + 12*c + 4*(d-1), 4, vHW, (4*c + 3)*HSTR - 2*d)
for c in range(2):
    for d in (1, 2, 3):
        a(f"s_waitcnt lgkmcnt(5)")
        dsw("ds_write_b128", vHW, HT + 12*c + 4*(d-1), 4, (4*c + 3 - d)*HSTR)
def wo_init(first, n):
    a(f"s_lshr_b32 {sr(sT0)}, {sr(sTBB)}, 2")
    a(f"s_mul_i32 {sr(sT0)}, {sr(sT0)}, {n // 8 * 4096}")
    if first: a(f"s_add_u32 {sr(sT0)}, {sr(sT0)}, {first * 4096}")
def wo_piece(first, n):
    a(f"s_add_u32 m0, {sr(sM0)}, {sr(sT0)}")
    a(f"s_lshl_b32 {sr(sSX)}, {sr(sT0)}, 2")
    dma(vWO, WO, sr(sSX))
    a(f"s_add_u32 {sr(sT0)}, {sr(sT0)}, 0x1000")
    a(f"s_cmp_eq_u32 {sr(sT0)}, {(first + n) * 4096}")
    a(f"s_cselect_b32 {sr(sT0)}, {first * 4096}, {sr(sT0)}")
a(f"s_lshr_b32 {sr(sT1)}, {sr(sM0)}, 3")
a(f"s_add_u32 {sr(sT3)}, {sr(sT3)}, {sr(sT1)}")
a(f"s_xor_b32 {sr(sT1)}, {sr(sM0)}, 0xc00")
a(f"s_add_u32 {sr(sT2)}, {sr(sCH)}, {sr(sT1)}")
a(f"s_add_u32 {sr(sT2)}, {sr(sT2)}, {UT}")
a(f"s_add_u32 m0, {sr(sT1)}, {UB}")
a("s_waitcnt vmcnt(0)")
for i in range(8): dsr("ds_read_b32", QG + i, 1, vSR, 5120 + i * 128)
if OPT["usl"]: a(f"s_sleep {OPT['usl']}")
if OPT["spoll"] & 1: spoll(sr(sT3), OPT["slp"])
else: poll(vPO, 6, sr(sT3))
dma(vL16, WS, sr(sT2), "sc1")
a(f"s_addk_i32 m0, {USTR}")
a(f"s_add_u32 {sr(sT2)}, {sr(sT2)}, 0x1000")
dma(vL16, WS, sr(sT2), "sc1")
a(f"s_lshl_b32 {sr(sT0)}, {sr(sCT)}, 12")
a(f"s_add_u32 {sr(sCH)}, {sr(sCH)}, {sr(sT0)}")
a(f"s_mov_b32 {sr(sPASS)}, 0")
wo_init(0, 24)
a("s_waitcnt vmcnt(0) lgkmcnt(0)")
hbar()
hprio(OPT["cp"])
if OPT["hst"] != 2: stamp("u landed")
a.label("L_conv")
for i in range(8):
    dsr("ds_read_b64", CB + 4*i, 2, vUA, 3584 - 512*i); dsr("ds_read_b64", CB + 4*i + 2, 2, vUA, 3584 - 512*i + 8)
for ai in range(8):
    dsr("ds_read_b128", CA, 4, vHA, 512*ai)
    if ai < 6: wo_piece(0, 24)
    a("s_waitcnt lgkmcnt(0)")
    for bi in range(8 - ai): mfma16(CY + 4*(ai + bi), CA, CB + 4*bi, CY + 4*(ai + bi))
if OPT["cp"] != OPT["ep"]: hprio(OPT["ep"])
a(f"v_add_u32 {vr(vUA)}, 64, {vr(vUA)}")
a(f"v_add_u32 {vr(vHA)}, 64, {vr(vHA)}")
if OPT["cp"] != OPT["ep"]: hprio(OPT["cp"])
a(f"s_add_u32 {sr(sPASS)}, {sr(sPASS)}, 1")
a(f"s_cmp_lg_u32 {sr(sPASS)}, 4")
a("s_cbranch_scc1 L_conv")
if OPT["hst"] != 2: stamp("conv done")
hprio(OPT["sp"])
a(f"s_lshl_b32 {sr(sT0)}, {sr(sTT)}, 11")
a(f"s_add_u32 {sr(sCH)}, {sr(sCH)}, {sr(sT0)}")
a(f"s_add_u32 {sr(sCH)}, {sr(sCH)}, {YT}")
a(f"s_cmp_lg_u32 {sr(sTT)}, 0")
a("s_cbranch_scc1 L_red1")
def reduce_store(keep, send):
    for j in range(4): dsw("ds_write_b128", vRW, send + 4*j, 4, 1024*j)
    a("s_waitcnt vmcnt(0) lgkmcnt(0)")
    hbar()
    for j in range(4): dsr("ds_read_b128", CB + 4*j, 4, vRR, 1024*j)
    hprio(OPT["ep"])
    a("s_waitcnt lgkmcnt(0)")
    for j in range(8): a(f"v_pk_add_f32 {vr(CB + 2*j, 2)}, {vr(CB + 2*j, 2)}, {vr(keep + 2*j, 2)}")
reduce_store(CY, CY + 16)
a("s_branch L_red2")
a.label("L_red1")
reduce_store(CY + 16, CY)
a.label("L_red2")
for j in range(8): cvt(CY + j, CB + 2*j, CB + 2*j + 1)
hprio(OPT["sp"])
for j in range(4): bstore(CY + 2*j, 2, vY8, WS, sr(sCH), 512*j, "sc1")
WOF = 128
def wo_read(p, part): dsr("ds_read_b64_tr_b16", WOF + 4*p + 2*part, 2, vWR0 + (p >> 4), ((p & 15) * 16 + 8*part) * 256)
for p in range(OPT["wre"]): wo_read(p, 0); wo_read(p, 1)
mbox(MB_Y, sDB, sTBB, 9)
a("s_waitcnt vmcnt(0)")
arrive(12, lambda: bstore(vTG, 1, vFL, WS, sr(sT0), flags="sc1"))
wo_init(24, 8)
a(f"s_mov_b32 {sr(sT1)}, 0")
a.label("L_wo")
wo_piece(24, 8)
a(f"s_add_u32 {sr(sT1)}, {sr(sT1)}, 1")
a(f"s_cmp_lg_u32 {sr(sT1)}, 8")
a(f"s_waitcnt vmcnt({OPT['wpace']})")
a("s_cbranch_scc1 L_wo")
a(f"s_lshr_b32 {sr(sT1)}, {sr(sM0)}, 3")
a(f"s_add_u32 {sr(sT3)}, {sr(sT3)}, {sr(sT1)}")
if OPT["ysl"]: a(f"s_sleep {OPT['ysl']}")
if OPT["spoll"] & 1: spoll(sr(sT3), OPT["slp"])
else: poll(vPO, 6, sr(sT3))
a(f"s_lshl_b32 {sr(sT0)}, {sr(sDB)}, 18")
a(f"s_lshl_b32 {sr(sT1)}, {sr(sTBB)}, 7")
a(f"s_add_u32 {sr(sT0)}, {sr(sT0)}, {sr(sT1)}")
a(f"s_add_u32 m0, {sr(sM0)}, {YB}")
a(f"s_add_u32 {sr(sT0)}, {sr(sT0)}, {YT}")
dma(vYS, WS, sr(sT0), "sc1")
a(f"s_add_u32 m0, {sr(sM0)}, {YB + 4096}")
a(f"s_add_u32 {sr(sT0)}, {sr(sT0)}, 0x1000")
dma(vYS, WS, sr(sT0), "sc1")
a(f"s_lshr_b32 {sr(sT0)}, {sr(sTBB)}, 2")
a(f"s_lshl3_add_u32 {sr(sSX)}, {sr(sHQ)}, {sr(sT0)}")
a(f"s_lshl_b32 {sr(sSX)}, {sr(sSX)}, 16")
a(f"s_and_b32 {sr(sT1)}, {sr(sTBB)}, 3")
a(f"s_lshl2_add_u32 {sr(sT1)}, {sr(sT1)}, {sr(sHH)}")
a(f"s_lshl_b32 {sr(sT1)}, {sr(sT1)}, 6")
a(f"s_add_u32 {sr(sSX)}, {sr(sSX)}, {sr(sT1)}")
a(f"s_lshl_b32 {sr(sA)}, {sr(sTBB)}, 17")
a(f"s_lshl_b32 {sr(sT2)}, {sr(sDB)}, 7")
a(f"s_add_u32 {sr(sA)}, {sr(sA)}, {sr(sT2)}")
a(f"s_mov_b32 {sr(sPASS)}, 0")
a("s_waitcnt vmcnt(0)")
if not OPT["hst"]: stamp("staged")
a("s_barrier")
if OPT["enc"]: stamp("B7")
GQ, GY, YY = 64, 80, 96
dsr("ds_read_b128", YY, 4, vYR); dsr("ds_read_b128", YY + 4, 4, vYR, 4096)
gate = []
for j in range(8): gate += [lambda j=j: lo(GQ + 2*j, QG + j), lambda j=j: hi(GQ + 2*j + 1, QG + j)]
gate.append(lambda: a("s_waitcnt lgkmcnt(15)"))
for c in range(2):
    for i in range(4): gate += [lambda c=c, i=i: lo(GY + 4*i + c, YY + 4*c + i), lambda c=c, i=i: hi(GY + 4*i + 2 + c, YY + 4*c + i)]
for j in range(8): gate.append(lambda j=j: a(f"v_pk_fma_f32 {vr(GY+2*j,2)}, {vr(UU+2*j,2)}, {vr(DP,2)}, {vr(GY+2*j,2)}"))
for j in range(8): gate.append(lambda j=j: a(f"v_pk_mul_f32 {vr(GY+2*j,2)}, {vr(GY+2*j,2)}, {vr(GQ+2*j,2)}"))
for j in range(8): gate.append(lambda j=j: cvt(QG + j, GY + 2*j, GY + 2*j + 1))
for p in range(OPT["wre"], 32):
    for part in range(2):
        wo_read(p, part)
        if gate: gate.pop(0)()
for g in gate: g()
for d, r in ((8, vL16), (9, vGO), (10, vOO)): a(f"v_mov_b32 v{d}, {vr(r)}")
a(f"v_xor_b32 v4, 16, {vr(vTW)}")
gfl = OPT["gfl"].replace("_", " ")
if not OPT["hst"]: stamp("gate done")
OFR, PA = 64, [16, 32, 96, 112]
a.label("L_pw")
dsr("ds_read_b32", 6, 1, vCNT, 4)
a("s_waitcnt lgkmcnt(0)")
a(f"v_readfirstlane_b32 {sr(sT1)}, v6")
a(f"s_andn2_b32 {sr(sT1)}, {sr(sT1)}, {sr(sPASS)}")
a("s_cbranch_scc0 L_pw")
a(f"s_or_b32 {sr(sPASS)}, {sr(sPASS)}, {sr(sT1)}")
for q in range(4):
    L = newlab("pq")
    a(f"s_bitcmp1_b32 {sr(sT1)}, {q}")
    a(f"s_cbranch_scc0 {L}")
    for p in range(8): dsr("ds_read_b128", OFR + 4*p, 4, 8, 1024*(8*q + p))
    a(f"s_add_u32 {sr(sT0)}, {sr(sA)}, {0x1000 * q}")
    for p in range(8):
        a(f"s_waitcnt lgkmcnt({7 - p})")
        mfma32(PA[q], WOF + 4*(8*q + p), OFR + 4*p, None if p == 0 else PA[q])
        if p in (1, 3): bstore(QG + 2*q + (p >> 1), 1, 9, OUT, sr(sT0), 1024 * p, gfl)
    a.label(L)
a(f"s_cmp_lg_u32 {sr(sPASS)}, 15")
a("s_cbranch_scc1 L_pw")
set_stamp(12)
if not OPT["hst"]: stamp("proj done")
a(f"s_or_b32 {sr(sT0)}, s2, {sr(sHH)}")
a("s_cbranch_scc1 L_noep")
a(f"v_mov_b32 v6, {EP}")
a("s_mov_b64 exec, 1")
bstore(vTG, 1, 6, WS, 0, flags="sc1")
a("s_mov_b64 exec, -1")
a.label("L_noep")
a("s_nop 7")
pfl = OPT["pfl"].replace("_", " ")
for h in range(2):
    for j in range(4*h, 4*h + 4):
        a(f"v_pk_add_f32 {vr(PA[0]+2*j,2)}, {vr(PA[0]+2*j,2)}, {vr(PA[1]+2*j,2)}")
        a(f"v_pk_add_f32 {vr(PA[2]+2*j,2)}, {vr(PA[2]+2*j,2)}, {vr(PA[3]+2*j,2)}")
    for j in range(4*h, 4*h + 4): a(f"v_pk_add_f32 {vr(PA[0]+2*j,2)}, {vr(PA[0]+2*j,2)}, {vr(PA[2]+2*j,2)}")
    for j in range(4*h, 4*h + 4): cvt(64 + j, PA[0] + 2*j, PA[0] + 2*j + 1)
    dsw("ds_write_b128", 4 if h else vTW, 64 + 4*h, 4)
dsr("ds_read_b128", 72, 4, vTR); dsr("ds_read_b128", 76, 4, vTR, 1024)
a(f"s_add_u32 {sr(sT0)}, {sr(sSX)}, 0x8000")
a("s_waitcnt lgkmcnt(1)")
bstore(72, 4, 10, OUT, sr(sSX), 0, pfl)
a("s_waitcnt lgkmcnt(0)")
bstore(76, 4, 10, OUT, sr(sT0), 0, pfl)
if DIAG or OPT["enc"] or OPT["spin"]: finish(13 if DIAG == 1 else 11, True)
else: a("s_endpgm")

a.label("L_main")
if OPT["wpf"] in (1, 2):
    n = {1: 12, 2: 4}[OPT["wpf"]]
    a(f"s_lshl2_add_u32 {sr(sT0)}, {sr(sTB)}, {sr(sW)}")
    a(f"s_mul_i32 {sr(sT0)}, {sr(sT0)}, 12*1024")
    a(f"s_lshl_b32 {sr(sT1)}, {sr(sHQ)}, 7")
    a(f"s_add_u32 {sr(sT0)}, {sr(sT0)}, {sr(sT1)}")
    a("v_and_b32 v6, 63, v0")
    a(f"v_min_u32 v6, {n - 1}, v6")
    a(f"v_mul_u32_u24 v6, {12 // n * 1024}, v6")
    a(f"v_add_u32 v6, {sr(sT0)}, v6")
a("s_waitcnt lgkmcnt(0)")
if OPT["wpf"] in (1, 2): a(f"global_load_dword v57, v6, {sr(W,2)}")
common_setup()
XF, WF, ACK, ACV, ACQ = 128, 96, 64, 80, 64
vXR, vWR, vXB, vWB, vXT = 50, 51, 52, 53, 54
O0, O1, S0, S1, C0, C1 = 16, 32, 48, 64, 80, 96
Q0, Q1 = 112, 116
vIDX, vKA, vVA = 8, 9, 10
vCON = 12
vKS, vVS, vKL, vVL, vQW, vQR = 2, 3, 5, 11, 14, 15
RING = 128
def rK(i): return RING + 12 * (i & 7)
def rVa(i): return RING + 12 * (i & 7) + 4
def rVb(i): return RING + 12 * (i & 7) + 8
a("v_bfe_u32 v6, v1, 2, 2")
a("v_lshrrev_b32 v32, 5, v1")
a("v_lshl_add_u32 v33, v32, 3, v6")
a("v_lshrrev_b32 v6, 1, v6")
a(f"v_xor_b32 v6, {sr(sCT)}, v6")
a("v_lshlrev_b32 v6, 6, v6")
a("v_lshl_add_u32 v33, v33, 7, v6")
a("v_and_b32 v6, 16, v1")
a("v_lshl_add_u32 v33, v6, 1, v33")
a("v_and_b32 v6, 3, v1")
a(f"v_lshl_add_u32 {vr(vWR)}, v6, 3, v33")
a("v_and_b32 v6, 31, v1")
a("v_xor_b32 v33, v32, v6")
a("v_and_b32 v33, 15, v33")
a("v_lshlrev_b32 v33, 4, v33")
a(f"v_lshl_add_u32 v6, {sr(sTT)}, 5, v6")
a(f"v_lshl_add_u32 {vr(vXR)}, v6, 8, v33")
a("v_and_b32 v33, 0x33, v1")
a("v_and_b32 v7, 4, v1")
a("v_lshl_or_b32 v33, v7, 1, v33")
a("v_and_b32 v7, 8, v1")
a("v_lshrrev_b32 v7, 1, v7")
a("v_or_b32 v6, v7, v33")
a(f"v_lshlrev_b32 {vr(vKS)}, 4, v6")
a("v_and_b32 v7, 15, v1")
a("v_lshlrev_b32 v7, 4, v7")
a("v_lshl_add_u32 v33, v32, 8, v7")
a("v_bfe_u32 v6, v1, 4, 1")
a(f"v_lshl_add_u32 {vr(vVS)}, v6, 17, v33")
a(f"s_lshl2_add_u32 {sr(sT0)}, {sr(sCT)}, {sr(sTT)}")
a(f"s_lshl_b32 {sr(sT1)}, {sr(sT0)}, 11")
a(f"s_add_u32 {sr(sT1)}, {sr(sT1)}, {KVL}")
a(f"v_add_u32 {vr(vKL)}, {sr(sT1)}, {vr(vKS)}")
a("v_lshl_add_u32 v6, v6, 12, v33")
a(f"v_add_u32 {vr(vVL)}, {sr(sT1)}, v6")
a(f"s_lshl_b32 {sr(sT0)}, {sr(sT0)}, 10")
a(f"v_lshl_add_u32 {vr(vQW)}, v1, 4, {sr(sT0)}")
a(f"s_lshl_b32 {sr(sT0)}, {sr(sHH)}, 11")
a(f"v_lshl_add_u32 {vr(vQR)}, v1, 4, {sr(sT0)}")
a(f"s_lshl2_add_u32 {sr(sT0)}, {sr(sHQ)}, {sr(sHH)}")
a(f"s_lshl_b32 {sr(sT0)}, {sr(sT0)}, 17")
a(f"v_lshl_add_u32 {vr(vKA)}, v1, 4, {sr(sT0)}")
a(f"v_add_u32 {vr(vVA)}, {sr(sT0)}, v33")
a(f"s_lshl_b32 {sr(sT0)}, {sr(sHH)}, 12")
a(f"s_add_u32 {sr(sT0)}, {sr(sT0)}, {KVL}")
a(f"v_lshl_add_u32 v48, v1, 4, {sr(sT0)}")
a(f"v_add_u32 v49, {sr(sT0)}, v33")
a(f"v_mov_b32 {vr(vIDX)}, 0xdddddddd")
a(f"s_mov_b32 {sr(sHALF)}, 0xffff"); a(f"s_mov_b32 {sr(sHALF+1)}, {sr(sHALF)}")
a(f"s_mov_b32 {sr(sAND)}, 0x1ffff")
a(f"s_mov_b32 {sr(sREDO)}, 0")
a("v_and_b32 v7, 0x1b, v1"); a("v_cmp_eq_u32 vcc, 16, v7")
a("v_mov_b32 v6, 0x3f803f80")
a(f"s_add_u32 {sr(sOFF)}, {sr(sTB)}, 1")
a(f"v_cndmask_b32 {vr(vCON)}, 0, v6, vcc")
a(f"v_cndmask_b32 {vr(vCON+1)}, 0, v6, vcc")
a(f"s_and_b32 {sr(sOFF)}, {sr(sOFF)}, 31")
a(f"s_lshl_b32 {sr(sOFF)}, {sr(sOFF)}, 12")
for j in range(8): a(f"v_mov_b64 {vr(O0+2*j,2)}, 0")
a(f"s_lshl1_add_u32 {sr(sT0)}, {sr(sHQ)}, {sr(sCT)}")
a(f"s_lshl_b32 {sr(sT0)}, {sr(sT0)}, 18")
a(f"s_lshl1_add_u32 {sr(sT1)}, {sr(sTB)}, {sr(sTT)}")
a(f"s_lshl_b32 {sr(sT1)}, {sr(sT1)}, 11")
a(f"s_add_u32 {sr(sT3)}, {sr(sT0)}, {sr(sT1)}")
a(f"s_add_u32 {sr(sT2)}, {sr(sT3)}, 0x20000")
if OPT["mbw"]:
    a(f"s_lshr_b32 s14, {sr(sTB)}, 3"); a(f"s_lshl2_add_u32 s14, {sr(sHQ)}, s14"); a(f"s_lshl2_add_u32 s14, s14, {sr(sW)}")
    a("s_lshl_b32 s14, s14, 7"); a(f"s_add_u32 s14, s14, {MB_KV}")
    a(f"s_load_dword s15, {sr(WS,2)}, s14")
    if OPT["mbw"] & 2:
        a(f"s_lshr_b32 s16, {sr(sTBB)}, 2"); a(f"s_lshl3_add_u32 s16, {sr(sHQ)}, s16"); a(f"s_lshl2_add_u32 s16, s16, {sr(sW)}")
        a("s_lshl_b32 s16, s16, 7"); a(f"s_add_u32 s16, s16, {MB_O}")
        a(f"s_load_dword s17, {sr(WS,2)}, s16")
    if OPT["mbw"] & 4:
        a(f"s_lshl2_add_u32 s18, {sr(sDB)}, {sr(sW)}"); a("s_lshl_b32 s18, s18, 7"); a(f"s_add_u32 s19, s18, {MB_Y}"); a(f"s_add_u32 s18, s18, {MB_U}")
        a(f"s_load_dword s20, {sr(WS,2)}, s18"); a(f"s_load_dword s21, {sr(WS,2)}, s19")
if OPT["tlb"]:
    for r, o in ((14, sT3), (15, sT2)): a(f"s_load_dword s{r}, {sr(WS,2)}, {sr(o)}")
if OPT["prew"] >= 3:
    a("s_mov_b64 exec, 1")
    if OPT["prew"] == 3: bstore(O0, 4, vKS, WS, sr(sT3), 0, "sc1")
    if OPT["prew"] == 4: bload(56, 1, vKS, WS, sr(sT3), 0, "sc1")
    if OPT["prew"] == 5: bstore(O0, 4, vKS, WS, sr(sT3), 0, "")
    a("s_mov_b64 exec, -1")
    a("s_waitcnt vmcnt(1) lgkmcnt(0)")
elif OPT["prew"]:
    fl = {1: "sc1", 2: ""}[OPT["prew"]]
    bstore(O0, 4, vKS, WS, sr(sT3), 0, fl); bstore(O0, 4, vKS, WS, sr(sT2), 0, fl)
    bstore(O0, 4, vVS, WS, sr(sT3), 1024, fl); bstore(O0, 4, vVS, WS, sr(sT3), 1536, fl)
    a("s_waitcnt vmcnt(4) lgkmcnt(0)")
else: a("s_waitcnt lgkmcnt(0)")
make_tag()

def kv_gemm():
    def rd(i):
        c, s = i >> 3, i & 7
        if s == 0:
            a(f"v_add_u32 {vr(vXB)}, {XB[c]}, {vr(vXR)}")
            a(f"v_add_u32 {vr(vWB)}, {SLOT[c % 3] + 16*K1}, {vr(vWR)}")
        f = WF + 8*(i & 3); t = vXT + (s & 1)
        if s: a(f"v_xor_b32 {vr(t)}, {32*s}, {vr(vXB)}")
        if s & 3 == 0:
            a("s_barrier")
            if i == 0: stamp("B1")
            if i == 28: stamp("B4")
        dsr("ds_read_b128", XF + 4*i, 4, t if s else vXB)
        dsr("ds_read_b64_tr_b16", f, 2, vWB, 2048*s); dsr("ds_read_b64_tr_b16", f + 2, 2, vWB, 2048*s + 512)
    def rdv(i):
        s = i & 7; f = WF + 8*(i & 3) + 4
        dsr("ds_read_b64_tr_b16", f, 2, vWB, 16*K1 + 2048*s); dsr("ds_read_b64_tr_b16", f + 2, 2, vWB, 16*K1 + 2048*s + 512)
    for lo_, hi_, D in ((0, OPT["dr"], OPT["gd"]), (OPT["dr"], 32, 3)):
        for i in range(lo_, lo_ + D): rd(i); rdv(i)
        for i in range(lo_, hi_):
            x, f = XF + 4*i, WF + 8*(i & 3)
            n = 5 * (min(hi_, i + D) - i - 1)
            a(f"s_waitcnt lgkmcnt({n + 2})")
            mfma32(ACK, f, x, None if i == 0 else ACK)
            if i + D < hi_: rd(i + D); n += 3
            a(f"s_waitcnt lgkmcnt({n})")
            mfma32(ACV, x, f + 4, None if i == 0 else ACV)
            if i + D < hi_: rdv(i + D)
def q_gemm(side):
    def rd(i):
        c, s = i >> 3, i & 7
        if s == 0: a(f"v_add_u32 {vr(vXT + (c & 1))}, {WQ[c]}, {vr(vWR)}")
        if OPT["late"] and i == 32 - 8 * OPT["late"]: a("s_barrier")
        if i == OPT["ackat"] and OPT["two"]:
            a("s_waitcnt vmcnt(0)"); xstamp(10, "acked"); a("s_barrier"); stamp("B5")
        dsr("ds_read_b64_tr_b16", WF + 4*(i & 7), 2, vXT + (c & 1), 2048*s)
        dsr("ds_read_b64_tr_b16", WF + 4*(i & 7) + 2, 2, vXT + (c & 1), 2048*s + 512)
    D = 4
    for i in range(D): rd(i)
    for i in range(32):
        extra = sum(side[j][1] for j in range(max(0, i - D), i) if j in side)
        a(f"s_waitcnt lgkmcnt({2 * (min(32, i + D) - i - 1) + extra})")
        mfma32(ACQ, WF + 4*(i & 7), XF + 4*i, None if i == 0 else ACQ)
        if i + D < 32: rd(i + D)
        if i in side: side[i][0]()
        if OPT["trig"] and i == OPT["trig"]: a("s_barrier")
def vconst(i): return [f"v_mov_b64 {vr(rVa(i) + 2*j, 2)}, {vr(vCON,2)}" for j in range(4)]
sGB = 12
def gload(dst, vaddr, off): a(f"global_load_dwordx4 {vr(dst,4)}, {vr(vaddr)}, {sr(sGB,2)} offset:{off} " + OPT["ldfl"].replace("_", " "))
def adv1():
    a(f"s_add_u32 {sr(sOFF)}, {sr(sOFF)}, 0x1000")
    a(f"s_and_b32 {sr(sOFF)}, {sr(sOFF)}, {sr(sAND)}")
def adv2():
    a(f"s_add_u32 {sr(sGB)}, {sr(WS)}, {sr(sOFF)}")
    a(f"s_addc_u32 {sr(sGB+1)}, {sr(WS+1)}, 0")
def ring_fill(tiles):
    for i in tiles:
        o = 2048 * (i & 1)
        if not o: adv2()
        gload(rK(i), vKA, o)
        a(f"s_mov_b64 exec, {sr(sHALF,2)}")
        gload(rVa(i), vVA, o + 1024); gload(rVb(i), vVA, o + 1536)
        a("s_mov_b64 exec, -1")
        if o: adv1()
def rowmax(S, m, acc):
    k = 0
    if not acc:
        a(f"v_max3_f32 {vr(m)}, {vr(S)}, {vr(S+1)}, {vr(S+2)}"); k = 3
    while k < 16:
        a(f"v_max3_f32 {vr(m)}, {vr(m)}, {vr(S+k)}, {vr(S+min(k+1,15))}"); k += 2

kv_gemm()
a(f"v_mov_b32 v56, {CNT}")
dsw("ds_write_b128", 56, O0, 4)
a("s_nop 7")
for j in range(8): cvt(32 + j, ACK + 2*j, ACK + 2*j + 1)
kvfl = OPT["kvfl"].replace("_", " ")
bstore(32, 4, vKS, WS, sr(sT3), 0, kvfl); bstore(36, 4, vKS, WS, sr(sT2), 0, kvfl)
for j in range(8): cvt(40 + j, ACV + 2*j, ACV + 2*j + 1)
bstore(40, 4, vVS, WS, sr(sT3), 1024, kvfl); bstore(44, 4, vVS, WS, sr(sT3), 1536, kvfl)
dsw("ds_write_b128", vKL, 32, 4); dsw("ds_write_b128", vKL, 36, 4, 4096)
dsw("ds_write_b128", vVL, 40, 4, 1024); dsw("ds_write_b128", vVL, 44, 4, 1536)
xstamp(9, "kv stored")
mbox(MB_KV, sHQ, sTB, 11)
a(f"s_lshr_b32 {sr(sT1)}, {sr(sTB)}, 3")
a(f"s_lshl_b32 {sr(sT1)}, {sr(sT1)}, 9")
a(f"s_add_u32 {sr(sT3)}, {sr(sT3)}, {sr(sT1)}")
if OPT["two"]: a("s_waitcnt lgkmcnt(0)"); a("s_barrier"); xstamp(11, "B5a")
else: a("s_waitcnt vmcnt(0) lgkmcnt(0)"); xstamp(10, "acked"); a("s_barrier"); stamp("B5")
NK = 80
def lines(ls): return (lambda: [a(l) for l in ls], 0)
def own_k():
    for i in range(2): dsr("ds_read_b128", rK(i), 4, 48, 2048*i)
def own_v(i):
    a(f"s_mov_b64 exec, {sr(sHALF,2)}")
    dsr("ds_read_b128", rVa(i), 4, 49, 2048*i + 1024); dsr("ds_read_b128", rVb(i), 4, 49, 2048*i + 1536)
    a("s_mov_b64 exec, -1")
def ack():
    a("s_waitcnt vmcnt(0)")
    xstamp(10, "acked")
    a("s_mov_b64 exec, 1"); a("ds_add_rtn_u32 v7, v56, v7 offset:8"); a("s_mov_b64 exec, -1")
def signal():
    L = newlab("sig")
    a("v_readfirstlane_b32 s14, v7"); a("s_cmp_lg_u32 s14, 3"); a(f"s_cbranch_scc1 {L}")
    push(4, 2, 3, sr(sT0))
    a.label(L)
A_ = OPT["ackat"]
side = {0: (lambda: (a("v_and_b32 v6, 0xfffffe00, v48"), dsr("ds_read_b128", NK, 4, 6)), 1),
        2: lines(["v_bfe_u32 v6, v1, 3, 2", "v_and_b32 v5, 7, v1", "v_lshlrev_b32 v5, 2, v5", "v_lshl_add_u32 v5, v6, 7, v5"]),
        6: lines([f"v_xor_b32 {vr(NK+j)}, 0x80008000, {vr(NK+j)}" for j in range(4)]),
        8: lines(vconst(0)), 9: lines(vconst(1)), 10: (own_k, 2), 11: (lambda: own_v(0), 2), 12: (lambda: own_v(1), 2),
        21: lines(vconst(2)), 22: lines(vconst(3)), 23: lines(vconst(4)), 24: lines(vconst(5)), 25: lines(vconst(6)), 26: lines(vconst(7)),
        OPT["pollat"]: (lambda: only_wave(0, lambda: bload(4, 1, 5, WS, sr(sT3), flags="sc1")), 0),
        28: lines([f"v_mov_b64 {vr(O1+2*j,2)}, 0" for j in range(4)]), 29: lines([f"v_mov_b64 {vr(O1+2*j,2)}, 0" for j in range(4, 8)])}
if OPT["spoll"] & 4: del side[OPT["pollat"]], side[2]
q_gemm(side)
if OPT["prio"]: a("s_setprio 1")
a(f"s_mov_b32 {sr(sT2)}, {f2h(0.25 * math.log2(math.e))}")
a(f"s_mov_b32 {sr(sT1)}, {sr(sT2)}")
a(f"v_mov_b32 {vr(vCNT)}, v56"); a(f"v_mov_b32 {vr(vONE)}, 1"); a("s_nop 0")
a(f"s_mov_b32 {sr(sPASS)}, 0")
a("s_nop 4")
for j in range(8): a(f"v_pk_mul_f32 {vr(ACQ+2*j,2)}, {vr(ACQ+2*j,2)}, {sr(sT1,2)}")
for j in range(8): cvt(120 + j, ACQ + 2*j, ACQ + 2*j + 1)
dsw("ds_write_b128", vQW, 120, 4, QF); dsw("ds_write_b128", vQW, 124, 4, QF + 2048)
for j in range(4): a(f"v_mov_b64 {vr(S1+8+2*j,2)}, 0")
for j in range(2): a(f"v_mov_b64 {vr(S1+2*j,2)}, {vr(NK+2*j,2)}")
stamp("q done")
def kvpoll():
    if OPT["pollat"] < 32: a("s_waitcnt vmcnt(0)"); poll(5, 4, sr(sT3), True, 1)
    else:
        if OPT["ksl"]: a(f"s_sleep {OPT['ksl']}")
        poll(5, 4, sr(sT3), False, 1)
if not OPT["spoll"] & 4: only_wave(0, kvpoll)
a("s_waitcnt lgkmcnt(0)")
a("s_barrier")
if not OPT["b6a"]: stamp("B6")
PD = OPT["pd"]
dsr("ds_read_b128", Q0, 4, vQR, QF); dsr("ds_read_b128", Q1, 4, vQR, QF + 1024)
if not OPT["b6a"]: ring_fill([2])
a("s_waitcnt lgkmcnt(0)")
mfma32(C0, S1, Q0, None)
mfma32(S0, rK(0), Q0, C0)
mfma32(C1, S1, Q1, None)
if OPT["b6a"]: a("s_barrier"); stamp("B6"); ring_fill([2])
ring_fill(range(3, PD - 2 * OPT["cu"]))
a("s_mov_b64 exec, 1"); a(f"ds_add_u32 v2, {vr(vONE)}"); a("s_mov_b64 exec, -1")
a.label("L_fill")
stamp("loop start")
def E(S, x, y):
    for k in range(x, y + 1): a(f"v_exp_f32 {vr(S+k)}, {vr(S+k)}")
def PV(O, V, S): a(f"v_smfmac_f32_32x32x32_bf16 {vr(O,16)}, {vr(V,4)}, {vr(S,8)}, {vr(vIDX)}")
def iteration(i, last, catch=False):
    ld = not last or i + PD < 8
    t = i + PD if not catch else PD - 2 + 2 * i
    o = 2048 * (t & 1)
    E(S0, 0, 1)
    PV(O1, rVb(i-1), S1 + 8)
    if ld:
        a(f"s_mov_b64 exec, {sr(sHALF,2)}")
        gload(rVa(t), vVA, o + 1024); gload(rVb(t), vVA, o + 1536)
        a("s_mov_b64 exec, -1")
    E(S0, 2, 5)
    mfma32(S1, rK(i), Q1, C1)
    if ld: gload(rK(t), vKA, o)
    else: a("s_nop 0")
    E(S0, 6, 9)
    PV(O0, rVa(i), S0)
    if o and ld: adv1()
    E(S0, 10, 15)
    E(S1, 0, 1)
    PV(O0, rVb(i), S0 + 8)
    if catch:
        adv2()
        if i: a(f"s_waitcnt vmcnt({3 * (PD - 2)})")
    elif not (last and i == 7): a(f"s_waitcnt vmcnt({3 * (PD - 1) if ld else 18 - 3 * i})")
    if i == 7 and not last: a(f"s_add_u32 {sr(sPASS)}, {sr(sPASS)}, 1")
    E(S1, 2, 5)
    if not (last and i == 7):
        mfma32(S0, rK(i+1), Q0, C0)
        if catch: gload(rK(t + 1), vKA, 0)
        elif i == 7: a(f"s_cmp_lg_u32 {sr(sPASS)}, 7")
        else: a("s_nop 0")
    E(S1, 6, 9)
    PV(O1, rVa(i), S1)
    if catch:
        a(f"s_mov_b64 exec, {sr(sHALF,2)}")
        gload(rVa(t + 1), vVA, 1024); gload(rVb(t + 1), vVA, 1536)
        a("s_mov_b64 exec, -1")
    elif o and ld: adv2()
    if OPT["pt"] and i == 1: a("s_memtime s[92:93]" if OPT["clk"] else "s_memrealtime s[92:93]")
    if OPT["pt"] and i == 3: a("s_waitcnt lgkmcnt(0)"); a(f"s_mov_b32 m0, {sr(sPASS)}"); a("v_writelane_b32 v15, s92, m0")
    E(S1, 10, 15)
if OPT["cu"]:
    iteration(0, False, True); iteration(1, False, True)
    a("s_branch L_loop2")
a(".p2align 6")
a.label("L_loop")
for i in range(8):
    if i == 2: a.label("L_loop2")
    iteration(i, False)
a("s_cbranch_scc1 L_loop")
for i in range(8): iteration(i, True)
a("v_lshlrev_b32 v4, 4, v1")
a(f"v_rcp_f32 v6, {vr(O0+8)}")
PV(O1, rVb(7), S1 + 8)
stamp("loop end")
a(f"s_mov_b32 {sr(sT0)}, {f2h(2.0**40)}")
a(f"s_lshl2_add_u32 {sr(sT3)}, {sr(sHQ)}, {sr(sHH)}")
a(f"s_lshl_b32 {sr(sSX)}, {sr(sTB)}, 6")
a(f"s_add_u32 {sr(sSX)}, {sr(sSX)}, {sr(sT3)}")
a(f"s_lshl_b32 {sr(sSX)}, {sr(sSX)}, 10")
a(f"s_add_u32 {sr(sSX)}, {sr(sSX)}, {OF}")
a(f"s_add_u32 {sr(sSW)}, {sr(sSX)}, 0x8000")
for j in range(8): a(f"v_mul_f32 {vr(S1+j)}, v6, {vr(O0+j)}")
a(f"v_rcp_f32 v7, {vr(O1+8)}")
a(f"v_cmp_nle_f32 vcc, {vr(O0+8)}, {sr(sT0)}")
a(f"v_cmp_nle_f32 {sr(sT1,2)}, {vr(O1+8)}, {sr(sT0)}")
for j in range(4): cvt(S0 + j, S1 + 2*j, S1 + 2*j + 1)
a(f"s_or_b64 vcc, vcc, {sr(sT1,2)}")
a("s_cbranch_vccnz L_fallback")
a.label("L_attn_done")
bstore(S0, 4, 4, WS, sr(sSX), 0, "sc1")
for j in range(8): a(f"v_mul_f32 {vr(S1+j)}, v7, {vr(O1+j)}")
for j in range(4): cvt(S0 + 4 + j, S1 + 2*j, S1 + 2*j + 1)
bstore(S0 + 4, 4, 4, WS, sr(sSW), 0, "sc1")
a("v_lshlrev_b32 v6, 9, v1")
a(f"v_mov_b32 v7, {sr(sTAG)}")
a("s_barrier")
a(f"s_lshr_b32 {sr(sT0)}, {sr(sTBB)}, 2")
a(f"s_lshl3_add_u32 {sr(sSX)}, {sr(sHQ)}, {sr(sT0)}")
a(f"s_lshl2_add_u32 {sr(sSX)}, {sr(sSX)}, {sr(sHH)}")
a(f"s_lshl_b32 {sr(sA)}, {sr(sSX)}, 7")
a(f"s_add_u32 {sr(sA)}, {sr(sA)}, {MB_O}")
a(f"s_mov_b32 {sr(sHALF)}, {sr(sTAG)}"); a(f"s_mov_b32 {sr(sHALF+1)}, {sr(sTAG)}")
def o_push():
    a(f"s_mov_b32 {sr(sT2)}, {sr(sT3)}")
    mbox(MB_O, sTB, sT2, 10)
    a(f"s_lshl_b32 {sr(sSX)}, {sr(sSX)}, 13")
    a(f"s_add_u32 {sr(sSX)}, {sr(sSX)}, {OF}")
    a(f"s_add_u32 {sr(sSW)}, {sr(sSX)}, 0x1000")
    a(f"s_lshl_b32 m0, {sr(sHH)}, 13")
    a(f"v_lshlrev_b32 {vr(vONE)}, {sr(sHH)}, {vr(vONE)}")
    a("s_mov_b64 exec, 3")
    a("s_waitcnt vmcnt(0)")
    bstore(7, 1, 6, WS, sr(sT0), flags="sc1")
    a("s_mov_b64 exec, -1")
    stamp("o pushed")
spoll(sr(sA), 1, o_push)
xstamp(12, "o flags")
for i in range(4):
    a(f"buffer_load_dwordx4 v4, {sr(WS,4)}, {sr(sSX)} offen offset:{1024*i} sc1 lds")
a("s_addk_i32 m0, 0x1000")
a("s_nop 0")
for i in range(4):
    a(f"buffer_load_dwordx4 v4, {sr(WS,4)}, {sr(sSW)} offen offset:{1024*i} sc1 lds")
a("s_mov_b64 exec, 1")
a("s_waitcnt vmcnt(0)")
a(f"ds_or_b32 {vr(vCNT)}, {vr(vONE)} offset:4")
if OPT["pt"]:
    a("s_waitcnt lgkmcnt(0)"); a("s_mov_b32 s94, s88")
    for i in range(8): a(f"v_readlane_b32 s{76 + 2*i}, v15, {i}")
    a("s_mov_b32 s92, s94")
if DIAG or OPT["enc"] or OPT["spin"]: finish(13 if DIAG == 1 else 11)
else: a("s_endpgm")
a.label("L_fallback")
a(f"s_cmp_lg_u32 {sr(sREDO)}, 0")
a("s_cbranch_scc1 L_attn_done")
a(f"s_mov_b32 {sr(sREDO)}, 1")
a(f"s_mov_b32 {sr(sOFF)}, 0")
a("v_mov_b32 v6, 0xff800000"); a("v_mov_b32 v7, v6")
for j in range(16): a(f"v_mov_b64 {vr(O0+2*j,2)}, 0")
a("s_waitcnt vmcnt(0)")
a.label("L_fb")
bload(rK(0), 4, vKA, WS, sr(sOFF), 0, "sc1")
a(f"s_add_u32 {sr(sOFF)}, {sr(sOFF)}, 0x800")
a("s_waitcnt vmcnt(0)")
mfma32(S0, rK(0), Q0, None); mfma32(S1, rK(0), Q1, None)
a("s_nop 10")
rowmax(S0, 6, True); rowmax(S1, 7, True)
a(f"s_cmp_lg_u32 {sr(sOFF)}, 0x20000")
a("s_cbranch_scc1 L_fb")
a(f"s_lshl_b32 {sr(sOFF)}, {sr(sTB)}, 12")
ring_fill(range(PD - 2 * OPT["cu"]))
a("v_mov_b32 v4, v6"); a("v_mov_b32 v11, v7"); a("s_nop 0")
a("v_permlane32_swap_b32 v6, v4"); a("v_permlane32_swap_b32 v7, v11")
a(f"v_max_f32 v6, v6, v4"); a("v_max_f32 v7, v7, v11")
for j in range(16): a(f"v_sub_f32 {vr(C0+j)}, 0, v6"); a(f"v_sub_f32 {vr(C1+j)}, 0, v7")
for j in range(4): a(f"v_mov_b64 {vr(S1+8+2*j,2)}, 0")
a(f"s_mov_b32 {sr(sPASS)}, 0")
a("s_waitcnt vmcnt(0)")
mfma32(S0, rK(0), Q0, C0)
a("s_nop 11")
a("s_branch L_fill")
a.label("L_end")
a("s_endpgm")

nbad = check(a.lines)
ref = open(f"cdna_kernels/{NAME}.s.ref").read().split("\n")
head = [l for l in ref if l.startswith(";") and "@launch" not in l and "Override launch" not in l and "grid=ceil" not in l]
out = "\n".join(head) + f"""
; Fused single launch: 256 workgroups (one per CU) x 8 waves; generated by gen/gen.py.
; @launch grid=(256,1,1) block=(512,1,1) lds={LDS_BYTES}
.amdgcn_target "amdgcn-amd-amdhsa--gfx950"
.text
.globl {NAME}_kernel
.p2align 8
.type {NAME}_kernel,@function
""" + a.text() + f""".section .rodata,"a"
.p2align 6
.amdhsa_kernel {NAME}_kernel
  .amdhsa_next_free_vgpr 256
  .amdhsa_next_free_sgpr 102
  .amdhsa_accum_offset 256
  .amdhsa_group_segment_fixed_size 0
  .amdhsa_kernarg_size 96
  .amdhsa_user_sgpr_count 2
  .amdhsa_user_sgpr_kernarg_segment_ptr 1
  .amdhsa_system_sgpr_workgroup_id_x 1
.end_amdhsa_kernel
"""
open(sys.argv[1], "w").write(out)
print("hazards:", nbad, "lines:", len(a.lines), "stamps:", nstamp[0])
```

```python
from cold import *
O0, O1, S0, S1, C0, C1, Q0, Q1, IDX, RING = 16, 32, 48, 64, 80, 96, 112, 116, 124, 128
def vr(a, n=1, t="v"): return f"{t}{a}" if n == 1 else f"{t}[{a}:{a+n-1}]"
def body(kind):
    U = 16 if "u16" in kind else (64 if "u64" in kind else 8)
    s = """
    s_load_dwordx4 s[4:7], s[0:1], 0
    s_load_dwordx2 s[24:25], s[0:1], 16
    v_lshrrev_b32 v1, 6, v0
    s_nop 1
    v_readfirstlane_b32 s20, v1
    v_and_b32 v1, 63, v0
    s_waitcnt lgkmcnt(0)
""" + srd(8, 4, 1 << 20) + srd(16, 24, 256*8*16)
    s += "    v_lshlrev_b32 v2, 4, v0\n"
    for i in range(24): s += f"    s_mov_b32 s30, {i*8192}\n    buffer_load_dwordx4 {vr(RING+4*i,4)}, v2, s[8:11], s30 offen\n"
    for i in range(2): s += f"    s_mov_b32 s30, {(24+i)*8192}\n    buffer_load_dwordx4 {vr(Q0+4*i,4)}, v2, s[8:11], s30 offen\n"
    s += "    s_waitcnt vmcnt(0)\n"
    s += "    v_and_b32 v7, 0x1b, v1\n    v_cmp_eq_u32 vcc, 16, v7\n    v_mov_b32 v6, 0x3f803f80\n    s_nop 1\n    v_cndmask_b32 v6, 0, v6, vcc\n"
    s += "    s_mov_b32 s32, 0xffff0000\n    s_mov_b32 s33, 0xffff0000\n    s_mov_b64 exec, s[32:33]\n"
    for i in range(8):
        for j in range(8): s += f"    v_mov_b32 v{RING+12*i+4+j}, v6\n"
    s += "    s_mov_b64 exec, -1\n"
    for j in range(16, 80): s += f"    v_mov_b32 v{j}, 0\n"
    for j in range(224, 256): s += f"    v_mov_b32 v{j}, 0\n"
    s += "    v_and_b32 v7, 15, v1\n    v_cmp_eq_u32 vcc, 0, v7\n    v_mov_b32 v6, 0x3f803f80\n    s_nop 1\n"
    if "s16" in kind:
        for j in range(224, 228): s += f"    v_cndmask_b32 v{j}, 0, v6, vcc\n"
    for j in range(80, 112): s += f"    v_mov_b32 v{j}, -4.0\n"
    s += f"    v_mov_b32 v{IDX}, 0xdddddddd\n    s_mov_b32 s31, 0\n"
    s += """    s_mov_b32 s34, 0xffff
    s_mov_b32 s35, 0xffff
    s_lshr_b32 s36, s2, 3
    s_lshl_b32 s36, s36, 12
    s_lshl_b32 s37, s20, 17
    s_and_b32 s37, s37, 0x7ffff
    s_mov_b32 s39, 0x1ffff
    v_lshl_add_u32 v4, v1, 4, s37
    v_lshrrev_b32 v6, 5, v1
    v_lshl_add_u32 v6, v6, 8, s37
    v_and_b32 v7, 15, v1
    v_lshl_add_u32 v3, v7, 4, v6
    v_and_b32 v7, 16, v1
    v_cmp_ne_u32 vcc, 0, v7
    v_bfrev_b32 v7, 2
    s_nop 0
    v_cndmask_b32 v5, v3, v7, vcc
    s_add_u32 s12, s4, s37
    s_addc_u32 s13, s5, 0
    s_or_b32 s13, s13, 0x100000
    s_mov_b32 s14, 0x4000
    s_mov_b32 s15, 0x800000
    s_mul_i32 s38, s20, STAG
    s_barrier
L_st:
    s_sub_u32 s38, s38, 1
    s_cbranch_scc0 L_st
    s_memrealtime s[40:41]
    s_memtime s[42:43]
    s_cmp_ge_u32 s20, 4
    s_cbranch_scc1 L_done
"""
    rK = lambda i: RING + 12*(i & 7); rVa = lambda i: rK(i) + 4; rVb = lambda i: rK(i) + 8
    L = []
    A = L.append
    E = lambda S, x, y: [A(f"v_exp_f32 v{S+k}, v{S+k}") for k in range(x, y+1)]
    QK = lambda S, K, Q, C: A(f"v_mfma_f32_32x32x16_bf16 {vr(S,16)}, {vr(K,4)}, {vr(Q,4)}, {vr(C,16) if 'c0' not in kind else 0}")
    if "samev" in kind: rVa = rVb = lambda i: RING + 4
    PV = lambda O, V, S: A(f"v_smfmac_f32_32x32x32_bf16 {vr(O,16)}, {vr(V,4)}, {vr(S,8)}, v{IDX}")
    ld = lambda r, v, off: A(f"buffer_load_dwordx4 {vr(r,4)}, v{v}, s[8:11], s36 offen offset:{off} sc1")
    if "tid" in kind: ld = lambda r, v, off: A(f"buffer_load_dwordx4 {vr(r,4)}, off, s[12:15], s36 offset:{1280 if off == 1536 else off} sc1")
    if "glb" in kind: ld = lambda r, v, off: A(f"global_load_dwordx4 {vr(r,4)}, v{v}, s[4:5] offset:{off} sc1")
    if "lds" in kind: ld = lambda r, v, off: A(f"ds_read_b128 {vr(r,4)}, v2 offset:{off}")
    for i in range(U if "s16" in kind else 0):
        SB = [S0, S0+8, S1, S1+8]
        q16 = lambda t, j, K: A(f"v_mfma_f32_16x16x16_bf16 {vr(SB[t]+4*j,4)}, {vr(K+2*j,2)}, {vr(Q0+2*t,2)}, {vr(C0+4*t,4)}")
        p16 = lambda O, V, t: A(f"v_smfmac_f32_16x16x64_bf16 {vr(O,4)}, {vr(V,4)}, {vr(SB[t],8)}, v{IDX}")
        for t in range(4):
            pt = (t - 1) & 3; ip = i - 1 if t == 0 else i
            E(SB[t],0,1); p16(O0+4*pt, rK(ip)+4*0 if False else rK(ip+3), pt)
            if t == 0 and "nold" not in kind: ld(rK(i-1), 4, 0)
            if t == 1 and "nold" not in kind: ld(rVa(i-1), 4, 1024)
            if t == 2: A("s_waitcnt vmcnt(10)")
            if "ones" in kind: E(SB[t],2,2); p16(O1+4*pt, 224, pt); E(SB[t],3,3)
            else: E(SB[t],2,3)
            if "add" in kind:
                for k in range(4): A(f"v_pk_add_f32 {vr(O1+2*pt,2)}, {vr(O1+2*pt,2)}, {vr(SB[pt]+2*k,2)}")
            q16(pt, 0, rK(ip+1)); E(SB[t],4,5); q16(pt, 1, rK(ip+1))
            if t == 3 and i == U - 1: A("s_add_u32 s31, s31, 1"); A(f"s_cmp_lg_u32 s31, {64 // U}")
            E(SB[t],6,7)
    for i in range(U if kind.startswith("P") else 0):
        pl = kind.split("_")[1].split(".")
        def slot(n):
            for ch in pl[n]:
                if ch == "k": ld(rK(i-1), 4, 0)
                elif ch == "a": ld(rVa(i-2), 3, 1024)
                elif ch == "b": ld(rVb(i-2), 3, 1536)
                elif ch == "h": A("s_mov_b64 exec, s[34:35]")
                elif ch == "f": A("s_mov_b64 exec, -1")
                elif ch == "s": A("s_add_u32 s36, s36, 0x800")
                elif ch == "w": A("s_waitcnt vmcnt(12)")
                elif ch == "n": A("s_nop 0")
        E(S0,0,1); PV(O1, rVb(i-1), S1+8); slot(0); E(S0,2,5); QK(S1, rK(i), Q1, C1); slot(1); E(S0,6,9); PV(O0, rVa(i), S0); slot(2)
        E(S0,10,15); E(S1,0,1); PV(O0, rVb(i), S0+8); slot(3); E(S1,2,5); QK(S0, rK(i+1), Q0, C0); slot(4); E(S1,6,9); PV(O1, rVa(i), S1); slot(5)
        if i == U - 1: A("s_add_u32 s31, s31, 1"); A(f"s_cmp_lg_u32 s31, {64 // U}")
        E(S1,10,15)
    for i in range(U if "shareA" not in kind and "s16" not in kind and not kind.startswith("P") else 0):
        last = i == U - 1
        E(S0,0,1); PV(O1, rVb(i-1), S1+8)
        if "nold" in kind: pass
        elif "oob" in kind: ld(rVa(i-1), 5, 1024)
        elif "konly" in kind: pass
        elif "split" in kind: A("s_mov_b64 exec, s[34:35]"); ld(rVa(i-1), 3, 1024); A("s_mov_b64 exec, -1")
        elif "pair" in kind:
            if i & 1:
                A("s_mov_b64 exec, s[34:35]"); ld(rVa(i-2), 3, 1024); ld(rVb(i-2), 3, 1536); ld(rVa(i-1), 3, 3072); ld(rVb(i-1), 3, 3584); A("s_mov_b64 exec, -1")
        else:
            A("s_mov_b64 exec, s[34:35]"); ld(rVa(i-1), 3, 1024); ld(rVb(i-1), 3, 1536); A("s_mov_b64 exec, -1")
        E(S0,2,5); QK(S1, rK(i), Q1, C1)
        if "nold" in kind: A("s_nop 0")
        else: ld(rK(i-1), 4, 2048 if ("pair" in kind and i & 1) else 0)
        E(S0,6,9); PV(O0, rVa(i), S0)
        if "oob" in kind: ld(rVb(i-1), 5, 1536)
        elif "pair" not in kind or i & 1:
            A(f"s_add_u32 s36, s36, {0x1000 if 'pair' in kind else 0x800}"); A("s_and_b32 s36, s36, s39")
        E(S0,10,15); E(S1,0,1); PV(O0, rVb(i), S0+8)
        if "split" in kind: A("s_mov_b64 exec, s[34:35]"); ld(rVb(i-1), 3, 1536); A("s_mov_b64 exec, -1")
        else: A("s_waitcnt vmcnt(15)")
        if last: A("s_add_u32 s31, s31, 1")
        E(S1,2,5); QK(S0, rK(i+1), Q0, C0)
        if "oob" in kind: A("s_add_u32 s36, s36, 0x800")
        else: A("s_nop 0" if "split" not in kind else "s_waitcnt vmcnt(15)")
        if "late" in kind: E(S1,6,14); PV(O1, rVa(i), S1)
        else: E(S1,6,9); PV(O1, rVa(i), S1)
        if "oob" in kind: A("s_and_b32 s36, s36, s39")
        if last: A(f"s_cmp_lg_u32 s31, {64 // U}")
        if last and "rot" in kind: A("s_cbranch_scc0 L_out"); A("@")
        if "late" in kind: E(S1,15,15)
        else: E(S1,10,15)
    for i in range(U if "shareA" in kind else 0):
        a0, a1 = (S0, S1) if i & 1 == 0 else (224, 240); b0, b1 = (224, 240) if i & 1 == 0 else (S0, S1)
        E(a0,0,1); PV(O0, rVb(i-1), b0+8); E(a0,2,5); PV(O1, rVb(i-1), b1+8); E(a0,6,7); E(a1,0,2)
        QK(b0, rK(i+1), Q0, C0); A("s_nop 0"); E(a1,3,7); QK(b1, rK(i+1), Q1, C1); A("s_nop 0"); E(a0,8,12)
        PV(O0, rVa(i), a0); E(a0,13,15); E(a1,8,9); PV(O1, rVa(i), a1)
        if i == U - 1: A("s_add_u32 s31, s31, 1"); A(f"s_cmp_lg_u32 s31, {64 // U}")
        E(a1,10,15)
    if "rot" in kind:
        k = L.index("@"); tail = L[k+1:]; L = L[:k]
        L[-1] = "s_cbranch_scc1 L_loop"
        s += "    s_branch L_in\n.p2align 6\nL_loop:\n" + "\n".join("    " + x for x in tail) + "\nL_in:\n" + "\n".join("    " + x for x in L) + "\n"
    else:
        pad = "    s_nop 0\n" if "mis" in kind else ""
        s += ".p2align 6\n" + pad + "L_loop:\n" + "\n".join("    " + x for x in L) + "\n    s_cbranch_scc1 L_loop\n"
    s += f"""L_done:
    s_barrier
    s_memrealtime s[44:45]
    s_memtime s[46:47]
    s_waitcnt lgkmcnt(0)
    s_sub_u32 s44, s44, s40
    s_sub_u32 s46, s46, s42
    v_mov_b32 v8, s44
    v_mov_b32 v9, s46
    s_lshl_b32 s3, s2, 3
    s_add_u32 s3, s3, s20
    s_lshl_b32 s3, s3, 4
    v_mov_b32 v1, s3
    s_waitcnt vmcnt(0)
    buffer_store_dwordx2 v[8:9], v1, s[16:19], 0 offen
    s_waitcnt vmcnt(0)
"""
    return s.replace("STAG", "3" if "stag" in kind else "0")
kinds = sys.argv[1:]
ks = [(k, build(body(k), 3, lds=100*1024)) for k in kinds]
if ks[0][1] is None: raise SystemExit
rng = np.random.default_rng(0)
d = (rng.standard_normal(1 << 19).astype(np.float32) * 0.55)
hd = (d.view(np.uint32) >> 16).astype(np.uint16)
x = cl.DeviceBuffer.from_numpy(hd); st = cl.DeviceBuffer.from_numpy(np.zeros(256*8*4, dtype=np.uint32))
fl = cl.DeviceBuffer(256 << 20)
ka = struct.pack("<3Q", x.ptr, x.ptr, st.ptr)
rows = {n: [] for n, _ in ks}
for rep in range(15):
    for name, k in ks:
        time.sleep(0.003); cl._check(cl._hip.hipMemsetAsync(fl._ptr, 0x5a, 256 << 20, None))
        k.launch((256,1,1), (512,1,1), ka, 100*1024); sync()
        o = st.to_numpy(np.uint32, (256, 8, 4)).astype(np.float64)
        rows[name].append([np.median(o[:, 0, 0])/100, o[:, 0, 0].max()/100, np.median(o[:, 0, 1]), np.median(o[:, 0, 1]/o[:, 0, 0])/10])
for name, k in ks:
    r = np.median(np.array(rows[name]), axis=0)
    print(f"{name:28s} time med {r[0]:6.2f} max {r[1]:6.2f} us  cycles {r[2]:7.0f} ({r[2]/64:6.1f}/iter) clk {r[3]:.3f}", flush=True)
```
